```python
import torch

def _softmax(x, axis=-1):
    return torch.softmax(x, dim=axis)
def _gelu(x):
    return torch.nn.functional.gelu(x, approximate="tanh")
def _silu(x):
    return torch.nn.functional.silu(x)
def _sigmoid(x):
    return torch.sigmoid(x)
def _layernorm(x, axis=-1, eps=1e-5):
    m = x.mean(dim=axis, keepdim=True)
    v = x.var(dim=axis, keepdim=True, unbiased=False)
    return (x - m) / torch.sqrt(v + eps)
def _scatter_add(tgt, idx, src, axis=0):
    return tgt.clone().index_add_(axis, idx, src)
def _segment_sum(src, seg, n):
    out = torch.zeros((n,) + src.shape[1:], dtype=src.dtype)
    return out.index_add_(0, seg, src)
def _pad(x, pw):
    flat = tuple(v for pair in reversed(pw) for v in pair)
    return torch.nn.functional.pad(x, flat)

kernel_name = 'gated_mix__ssm_conv_s4__mixer_channel_mlp__prompt'

def setup_inputs():

    _w = (lambda a: (lambda t: t.to(torch.bfloat16) if t.is_floating_point() else t)(torch.as_tensor(a)))
    def _A_setup():
        B, L, D, N = 1, 2048, 512, 128
        A_re = -(lambda _x: torch.exp(torch.as_tensor(_x)))((lambda *s: torch.randn(*s, dtype=torch.bfloat16) * 3.2)(D, N))
        A_im = torch.pi * (lambda *s: torch.randn(*s, dtype=torch.bfloat16) * 0.1)(D, N)
        B_re = (lambda *s: torch.randn(*s, dtype=torch.bfloat16) * 0.2)(D, N)
        B_im = (lambda *s: torch.randn(*s, dtype=torch.bfloat16) * 0.2)(D, N)
        C_re = (lambda *s: torch.randn(*s, dtype=torch.bfloat16) * 0.2)(D, N)
        C_im = (lambda *s: torch.randn(*s, dtype=torch.bfloat16) * 0.2)(D, N)
        log_dt = (lambda *s: torch.randn(*s, dtype=torch.bfloat16) * 0.1)(D) * 0.5 - 4.0
        Dskip = (lambda *s: torch.randn(*s, dtype=torch.bfloat16) * 0.1)(D)
        return {
            "u": _w((lambda *s: torch.randn(*s, dtype=torch.bfloat16) * 0.05)(B, L, D)),
            "A_re": _w(A_re),
            "A_im": _w(A_im),
            "B_re": _w(B_re),
            "B_im": _w(B_im),
            "C_re": _w(C_re),
            "C_im": _w(C_im),
            "log_dt": _w(log_dt),
            "Dskip": _w(Dskip),
        }
    _A_in = _A_setup()

    def _B_setup():
        B, S, D, F = 1, 2048, 512, 1792
        return {
            "x": _w((lambda *s: torch.randn(*s, dtype=torch.bfloat16) * 0.05)(B, S, D)),
            "w1": _w((lambda *s: torch.randn(*s, dtype=torch.bfloat16) * 0.8)(D, F) * (D ** -0.5)),
            "b1": _w((lambda *s: torch.randn(*s, dtype=torch.bfloat16) * 0.2)(F)),
            "w2": _w((lambda *s: torch.randn(*s, dtype=torch.bfloat16) * 0.05)(F, D) * (F ** -0.5)),
            "b2": _w((lambda *s: torch.randn(*s, dtype=torch.bfloat16) * 0.05)(D)),
        }
    _B_in = _B_setup()

    return {
        "A_u": _A_in["u"],
        "A_A_re": _A_in["A_re"],
        "A_A_im": _A_in["A_im"],
        "A_B_re": _A_in["B_re"],
        "A_B_im": _A_in["B_im"],
        "A_C_re": _A_in["C_re"],
        "A_C_im": _A_in["C_im"],
        "A_log_dt": _A_in["log_dt"],
        "A_Dskip": _A_in["Dskip"],
        "B_x": _B_in["x"],
        "B_w1": _B_in["w1"],
        "B_b1": _B_in["b1"],
        "B_w2": _B_in["w2"],
        "B_b2": _B_in["b2"],
        "gate_w": _w((lambda *s: torch.randn(*s, dtype=torch.bfloat16) * 0.05)(512) * 16.0),
    }

def reference(A_u, A_A_re, A_A_im, A_B_re, A_B_im, A_C_re, A_C_im, A_log_dt, A_Dskip, B_x, B_w1, B_b1, B_w2, B_b2, gate_w):
    def _A_ref(u, A_re, A_im, B_re, B_im, C_re, C_im, log_dt, Dskip):
        Bsz, L, D = u.shape
        dt = torch.exp(log_dt)[:, None]
        A = A_re + 1j * A_im
        Bc = B_re + 1j * B_im
        Cc = C_re + 1j * C_im
        logdA = dt * A
        dB = dt * Bc
        l = (lambda x, dt: x.to(dt))(torch.arange(L), A_re.dtype)
        P = torch.exp(logdA[:, :, None] * l[None, None, :])
        K = torch.einsum("dn,dnl,dn->dl", Cc, P, dB).real
        L2 = 2 * L
        Kp = _pad(K, ((0, 0), (0, L)))
        up = (lambda x, *d: x.permute(*d))(u, 0, 2, 1)
        up = _pad(up, ((0, 0), (0, 0), (0, L)))
        Kf = (lambda x, axes=(-2,-1): torch.fft.rfft2(x.float(), dim=axes))(Kp[:, None, :], axes=(-2, -1))
        Uf = (lambda x, axes=(-2,-1): torch.fft.rfft2(x.float(), dim=axes))(up[:, :, None, :], axes=(-2, -1))
        Yf = Uf * Kf[None, :, :, :]
        y = (lambda x, s, axes=(-2,-1): torch.fft.irfft2(x, s=s, dim=axes).to(torch.bfloat16))(Yf, (1, L2), axes=(-2, -1))[:, :, 0, :L]
        y = (lambda x, *d: x.permute(*d))(y, 0, 2, 1) + u * Dskip[None, None, :]
        return y

    def _B_ref(x, w1, b1, w2, b2):
        y = _layernorm(x, axis=-1)
        h = _gelu(torch.einsum("bsd,df->bsf", y, w1) + b1)
        return torch.einsum("bsf,fd->bsd", h, w2) + b2

    x = A_u
    g = _sigmoid((x * gate_w).sum(-1, keepdims=True))
    a = _A_ref(x, A_A_re, A_A_im, A_B_re, A_B_im, A_C_re, A_C_im, A_log_dt, A_Dskip)
    b = _B_ref(x, B_w1, B_b1, B_w2, B_b2)
    return g * a + (1 - g) * b
```

```python
import re

REG_RE = re.compile(r'(?<![\w.])([vsa])\[(\d+):(\d+)\]|(?<![\w.\[])([vsa])(\d+)(?![\w\]:])|\b(vcc|exec|m0|scc)\b')
TRANS = ('v_exp_f32', 'v_log_f32', 'v_rcp_f32', 'v_rsq_f32', 'v_sqrt_f32', 'v_sin_f32', 'v_cos_f32', 'v_rcp_iflag_f32')


def regs_of(tok):
    out = []
    for m in REG_RE.finditer(tok):
        if m.group(1):
            out += [(m.group(1), i) for i in range(int(m.group(2)), int(m.group(3)) + 1)]
        elif m.group(4):
            out.append((m.group(4), int(m.group(5))))
        else:
            n = m.group(6)
            if n == 'vcc':
                out += [('s', 106), ('s', 107)]
            elif n == 'exec':
                out += [('s', 126), ('s', 127)]
            elif n == 'm0':
                out.append(('s', 124))
    return out


class Ins:
    __slots__ = ('text', 'op', 'defs', 'uses', 'kind', 'passes', 'dpp', 'srcc', 'wide_store', 'vm', 'lgkm', 'opt', 'ab')

    def __init__(self, text, opt=False):
        self.text = text
        body = text.split(';')[0].strip()
        parts = body.split(None, 1)
        self.op = op = parts[0]
        op = re.sub(r'_e(32|64)$', '', op)
        op = re.sub(r'_(dpp|sdwa)$', '', op)
        self.op = op
        rest = parts[1] if len(parts) > 1 else ''
        ops = [o.strip() for o in re.split(r',(?![^\[]*\])', rest)] if rest else []
        mods = ''
        if ops:
            last = ops[-1].split(None, 1)
            if len(last) > 1:
                ops[-1] = last[0]
                mods = last[1]
        self.dpp = ('quad_perm' in rest or 'row_' in rest or 'wave_' in rest)
        self.defs, self.uses = [], []
        self.kind = 'other'
        self.passes = 0
        self.srcc = []
        self.ab = []
        self.wide_store = False
        self.vm = False
        self.lgkm = None
        self.opt = opt
        R = lambda i: regs_of(ops[i]) if i < len(ops) else []
        def rest_from(i):
            r = []
            for k in range(i, len(ops)):
                r += regs_of(ops[k])
            return r
        if op.startswith('v_mfma'):
            self.kind = 'mfma'
            self.passes = 8 if '32x32' in op else 4
            self.defs = R(0); self.uses = rest_from(1); self.srcc = R(3); self.ab = R(1) + R(2)
        elif op.startswith('v_cmp'):
            self.kind = 'valu'; self.defs = R(0); self.uses = rest_from(1)
        elif op in ('v_readfirstlane_b32', 'v_readlane_b32'):
            self.kind = 'valu'; self.defs = R(0); self.uses = rest_from(1)
        elif op.startswith('v_permlane') and 'swap' in op:
            self.kind = 'valu'; self.defs = R(0) + R(1); self.uses = R(0) + R(1)
        elif op.startswith('v_'):
            self.kind = 'valu'
            if '_co_' in op:
                self.defs = R(0) + R(1); self.uses = rest_from(2)
            else:
                self.defs = R(0); self.uses = rest_from(1)
            if op.startswith(('v_fmac', 'v_mac', 'v_dot2c', 'v_writelane')) or self.dpp or 'dst_unused:UNUSED_PRESERVE' in rest:
                self.uses += R(0)
            if op in ('v_nop',):
                self.defs = []; self.uses = []
        elif op.startswith('ds_'):
            self.kind = 'ds'; self.lgkm = 'ds'
            if op.startswith(('ds_read', 'ds_bpermute', 'ds_permute', 'ds_swizzle')) or '_rtn' in op:
                self.defs = R(0); self.uses = rest_from(1)
                if 'd16' in op:
                    self.uses += R(0)
            else:
                self.uses = rest_from(0)
        elif op.startswith('buffer_') or op.startswith('global_'):
            self.kind = 'vmem'; self.vm = True
            islds = bool(re.search(r'\blds\b', mods)) or '_lds_' in op
            if islds:
                self.uses = rest_from(0) + [('s', 124)]
            elif '_load' in op:
                self.defs = R(0); self.uses = rest_from(1)
                if 'd16' in op:
                    self.uses += R(0)
            elif 'atomic' in op and re.search(r'\bsc0\b', mods):
                self.defs = R(0); self.uses = rest_from(0)
            else:
                self.uses = rest_from(0)
                if op.endswith(('x4', 'x3')):
                    self.wide_store = True
            if op.startswith(('buffer_inv', 'buffer_wbl2')):
                self.defs = []; self.uses = []
        elif op.startswith('s_load') or op in ('s_memtime', 's_memrealtime'):
            self.kind = 'smem'; self.lgkm = 'smem'
            self.defs = R(0); self.uses = rest_from(1)
        elif op.startswith('s_'):
            self.kind = 'salu'
            if op.startswith(('s_cmp', 's_bitcmp', 's_waitcnt', 's_nop', 's_barrier', 's_branch', 's_cbranch', 's_endpgm', 's_setprio', 's_sleep', 's_setpc')):
                self.uses = rest_from(0)
                if op.startswith('s_cbranch_vcc'): self.uses += [('s', 106), ('s', 107)]
                if op.startswith('s_cbranch_exec'): self.uses += [('s', 126), ('s', 127)]
            else:
                self.defs = R(0); self.uses = rest_from(1)
                if 'saveexec' in op:
                    self.defs += [('s', 126), ('s', 127)]; self.uses += [('s', 126), ('s', 127)]
        if self.kind in ('valu', 'mfma') and op in ('v_cndmask_b32', 'v_addc_co_u32', 'v_subb_co_u32') and len(ops) == 3:
            self.uses += [('s', 106), ('s', 107)]


class Asm:
    def __init__(self):
        self.out = []
        self.hist = []
        self.vmq = []
        self.lgq = []
        self.vseq = 0
        self.lseq = 0
        self.nins = 0
        self.auto = True

    def raw(self, s):
        self.out.append(s)

    def comment(self, s):
        self.out.append('    ; ' + s)

    def label(self, name):
        self.out.append(name + ':')

    def reset(self):
        self.hist = []; self.vmq = []; self.lgq = []

    def save(self):
        return (list(self.hist), list(self.vmq), list(self.lgq))

    def restore(self, st):
        self.hist, self.vmq, self.lgq = list(st[0]), list(st[1]), list(st[2])

    def _emit_wait(self, vm=None, lg=None):
        parts = []
        if vm is not None:
            vm = min(vm, 63)
            parts.append(f'vmcnt({vm})')
            self.vmq = self.vmq[len(self.vmq) - vm:] if vm < len(self.vmq) and vm > 0 else ([] if vm == 0 else self.vmq)
        if lg is not None:
            lg = min(lg, 15)
            parts.append(f'lgkmcnt({lg})')
            self.lgq = self.lgq[len(self.lgq) - lg:] if lg < len(self.lgq) and lg > 0 else ([] if lg == 0 else self.lgq)
        self._push(Ins('s_waitcnt ' + ' '.join(parts)))

    def wait_vm_token(self, tok):
        idx = [i for i, e in enumerate(self.vmq) if e[0] <= tok]
        if not idx:
            return
        younger = sum(1 for e in self.vmq[idx[-1] + 1:] if not e[2])
        self._wait_vm_exact(idx[-1], younger)

    def _wait_vm_exact(self, lastidx, younger):
        younger = min(younger, 63)
        self._push(Ins(f's_waitcnt vmcnt({younger})'))
        self.vmq = self.vmq[lastidx + 1:]

    def wait_lg_token(self, tok):
        idx = [i for i, e in enumerate(self.lgq) if e[0] <= tok]
        if not idx:
            return
        if any(e[2] == 'smem' for e in self.lgq):
            self._push(Ins('s_waitcnt lgkmcnt(0)')); self.lgq = []
            return
        younger = min(len(self.lgq) - idx[-1] - 1, 15)
        self._push(Ins(f's_waitcnt lgkmcnt({younger})'))
        self.lgq = self.lgq[idx[-1] + 1:]

    def wait_all(self, vm=True, lg=True):
        parts = []
        if vm: parts.append('vmcnt(0)'); self.vmq = []
        if lg: parts.append('lgkmcnt(0)'); self.lgq = []
        self._push(Ins('s_waitcnt ' + ' '.join(parts)))

    def _auto_wait(self, ins):
        touched = set(ins.uses) | set(ins.defs)
        last = None
        for i, e in enumerate(self.vmq):
            if touched & e[1]:
                last = i
        if last is not None:
            younger = sum(1 for e in self.vmq[last + 1:] if not e[2])
            self._wait_vm_exact(last, younger)
        last = None
        for i, e in enumerate(self.lgq):
            if touched & e[1]:
                last = i
        if last is not None:
            self.wait_lg_token(self.lgq[last][0])

    def _need_states(self, ins):
        need = 0
        dist = 0
        uses = set(ins.uses); defs = set(ins.defs)
        vuses = {r for r in uses if r[0] in 'va'}
        for p in reversed(self.hist):
            if dist >= 24:
                break
            pd = set(p.defs)
            req = 0
            if p.kind == 'valu':
                pv = {r for r in pd if r[0] in 'va'}
                ps = {r for r in pd if r[0] == 's'}
                if ins.kind == 'mfma' and pv & uses: req = max(req, 2)
                if p.op in TRANS and ins.kind in ('valu', 'mfma') and ins.op not in TRANS and pv & uses: req = max(req, 1)
                if p.op in TRANS and ins.kind in ('ds', 'vmem') and pv & uses: req = max(req, 1)
                if ins.op in ('v_readfirstlane_b32', 'v_readlane_b32') and pv & uses: req = max(req, 1)
                if p.op.startswith('v_dot') and pv & (uses | defs):
                    if ins.op != p.op or (pv & set(ins.uses[:-1]) if not ins.op.startswith('v_dot2c') else False): req = max(req, 3)
                if ins.kind == 'valu' and (ins.dpp or ins.op.startswith('v_permlane')) and pv & uses: req = max(req, 2)
                if ps:
                    if ins.kind == 'valu' and ps & uses: req = max(req, 4 if ins.op.endswith('lane_b32') else 2)
                    if ins.kind == 'vmem' and ps & uses: req = max(req, 5)
                    if ins.kind == 'salu' and ps & uses: req = max(req, 4)
                    if ins.kind == 'mfma' and ps & {('s', 126), ('s', 127)}: req = max(req, 4)
            elif p.kind == 'mfma':
                big = p.passes == 8
                if pd & (uses | defs):
                    if ins.kind == 'mfma':
                        if pd & set(ins.ab): req = max(req, 12 if big else 8)
                        if pd & set(ins.srcc):
                            same = (set(ins.srcc) == pd and ins.passes == p.passes)
                            if not same: req = max(req, 10 if big else 6)
                        elif pd & defs:
                            req = max(req, 12 if big else 8)
                    else:
                        req = max(req, 12 if big else 8)
                if ins.kind == 'valu' and set(p.srcc) & defs: req = max(req, 7 if big else 3)
            elif p.kind == 'salu':
                if ('s', 124) in pd and ('s', 124) in uses and ins.kind in ('vmem', 'ds'): req = max(req, 1)
            if p.wide_store and ins.kind in ('valu', 'mfma', 'ds', 'vmem') and {r for r in p.uses if r[0] in 'va'} & defs:
                req = max(req, 2)
            if req > dist:
                need = max(need, req - dist)
            dist += self._states(p)
        return need

    @staticmethod
    def _states(p):
        if p.op == 's_nop':
            return int(p.text.split()[1]) + 1
        return 1

    def _push(self, ins):
        self.out.append('    ' + ins.text)
        self.hist.append(ins)
        if len(self.hist) > 64:
            self.hist = self.hist[-40:]
        self.nins += 1

    def nop(self, states):
        while states > 0:
            n = min(states, 16)
            self._push(Ins(f's_nop {n - 1}'))
            states -= n

    def __call__(self, text, opt=False):
        ins = Ins(text, opt)
        if self.auto:
            self._auto_wait(ins)
            n = self._need_states(ins)
            if n:
                self.nop(n)
        self._push(ins)
        tok = None
        if ins.op == 's_waitcnt':
            m = re.search(r'vmcnt\((\d+)\)', text)
            if m:
                k = int(m.group(1)); self.vmq = self.vmq[len(self.vmq) - k:] if 0 < k < len(self.vmq) else ([] if k == 0 else self.vmq)
            m = re.search(r'lgkmcnt\((\d+)\)', text)
            if m:
                k = int(m.group(1)); self.lgq = self.lgq[len(self.lgq) - k:] if 0 < k < len(self.lgq) else ([] if k == 0 else self.lgq)
        if ins.vm:
            self.vseq += 1
            self.vmq.append((self.vseq, set(ins.defs), opt))
            tok = self.vseq
        if ins.lgkm:
            self.lseq += 1
            self.lgq.append((self.lseq, set(ins.defs), ins.lgkm))
            tok = self.lseq
        return tok

    def lines(self, text):
        for l in text.strip('\n').split('\n'):
            l = l.strip()
            if not l or l.startswith(';'):
                continue
            if l.endswith(':'):
                self.label(l[:-1])
            else:
                self(l)

    def text(self):
        return '\n'.join(self.out) + '\n'


def v(n, c=1):
    return f'v{n}' if c == 1 else f'v[{n}:{n + c - 1}]'


def s(n, c=1):
    return f's{n}' if c == 1 else f's[{n}:{n + c - 1}]'
```

```python
import math, struct, sys
from asmlib import Asm, v, s

NAME = "gated_mix__ssm_conv_s4__mixer_channel_mlp__prompt"

WS_UT, WS_AT, WS_H = 0x000000, 0x200000, 0x400000
WS_G, WS_ST, WS_S = 0xB00000, 0xB02000, 0xB06000
WS_FL = 0xB10000
FL_P0, FL_S, FL_H, FL_A = 0x0, 0x8000, 0x9000, 0x11000
FL_LINES = 0x19000 // 128
LDS_BYTES = 81920

P_U, P_ARE, P_AIM, P_BRE, P_BIM, P_CRE, P_CIM, P_LDT, P_DSK, P_X, P_W1, P_B1, P_W2, P_B2, P_GW, P_OUT, P_DBG, P_WS = \
    [4 + 2 * i for i in range(18)]
P_X = P_U
S_WAVE, S_IDX = 40, 41
ST = 42
SRD0, SRD1, SRD2, SRD3, SRD4, SRD5 = 48, 52, 56, 60, 64, 68
V_TID, V_LANE = 0, 1

def f32(x):
    return '0x%08x' % struct.unpack('<I', struct.pack('<f', x))[0]

LOG2E = 1.4426950408889634


def srd(a, dst, ptr, off, size):
    if isinstance(off, str):
        a(f's_add_u32 s{dst}, s{ptr}, {off}')
        a(f's_addc_u32 s{dst+1}, s{ptr+1}, 0')
    elif off:
        a(f's_add_u32 s{dst}, s{ptr}, {hex(off)}')
        a(f's_addc_u32 s{dst+1}, s{ptr+1}, 0')
    else:
        a(f's_mov_b32 s{dst}, s{ptr}')
        a(f's_mov_b32 s{dst+1}, s{ptr+1}')
    a(f's_mov_b32 s{dst+2}, {size if isinstance(size, str) else hex(size)}')
    a(f's_mov_b32 s{dst+3}, 0x20000')


def bf16_round(a, dst, src):
    a(f'v_cvt_pk_bf16_f32 v{dst}, v{src}, v{src}')
    a(f'v_lshlrev_b32 v{dst}, 16, v{dst}')


def entry(a, name, nwg):
    a.raw(f'.globl {name}')
    a.raw('.p2align 8')
    a.raw(f'.type {name},@function')
    a.label(name)
    a.reset()
    a(f's_cmp_ge_u32 s2, {nwg}')
    a(f's_cbranch_scc1 L_{name}_exit')
    a('s_load_dwordx16 s[4:19], s[0:1], 0')
    a('s_load_dwordx16 s[20:35], s[0:1], 64')
    a('s_load_dwordx4 s[36:39], s[0:1], 128')
    a(f'v_lshrrev_b32 v2, 6, v{V_TID}')
    a(f'v_and_b32 v{V_LANE}, 63, v{V_TID}')
    a(f'v_readfirstlane_b32 s{S_WAVE}, v2')
    a('s_waitcnt lgkmcnt(0)')


def red8(a, r):
    a(f'v_add_f32_dpp v{r}, v{r}, v{r} quad_perm:[1,0,3,2] row_mask:0xf bank_mask:0xf')
    a(f'v_add_f32_dpp v{r}, v{r}, v{r} quad_perm:[2,3,0,1] row_mask:0xf bank_mask:0xf')
    a(f'v_add_f32_dpp v{r}, v{r}, v{r} row_half_mirror row_mask:0xf bank_mask:0xf')


def emit_p0(a, tag, SC):
    X, J, T0, TT, DT = 72, 73, 74, 75, 76
    a(f's_and_b32 s{X}, s{S_IDX}, 7')
    a(f's_lshr_b32 s{J}, s{S_IDX}, 3')
    a(f's_lshl_b32 s{T0}, s{X}, 8')
    a(f's_lshl_b32 s42, s{J}, 3')
    a(f's_add_u32 s{T0}, s{T0}, s42')
    a(f's_lshl_b32 s{TT}, s{X}, 2')
    a(f's_lshr_b32 s42, s{J}, 3')
    a(f's_add_u32 s{TT}, s{TT}, s42')
    a(f's_and_b32 s{DT}, s{J}, 7')
    srd(a, SRD0, P_WS, 0, 0x1000000)
    a(f'v_lshrrev_b32 v2, 3, v{V_LANE}')
    a(f'v_and_b32 v3, 7, v{V_LANE}')
    a(f'v_lshlrev_b32 v4, 4, v3')
    a(f's_cmp_ge_u32 s{S_WAVE}, 2')
    a(f's_cbranch_scc1 L_{tag}_tr')
    st_tr = a.save()
    a(f's_cmp_eq_u32 s{S_WAVE}, 0')
    a(f's_cselect_b32 s44, s{P_U}, s{P_X}')
    a(f's_cselect_b32 s45, s{P_U+1}, s{P_X+1}')
    a(f'v_add_u32 v5, s{T0}, v2')
    a(f'v_lshlrev_b32 v5, 10, v5')
    a(f'v_add_u32 v5, v5, v4')
    for jj in range(8):
        a(f'global_load_dwordx4 v[{64+4*jj}:{67+4*jj}], v5, s[44:45] offset:{128*jj}')
    a(f's_cmp_eq_u32 s{S_WAVE}, 0')
    a(f's_cbranch_scc0 L_{tag}_stats')
    st_stats = a.save()
    for jj in range(8):
        a(f'global_load_dwordx4 v[{96+4*jj}:{99+4*jj}], v4, s[{P_GW}:{P_GW+1}] offset:{128*jj}')
    for k in range(4):
        a(f'v_mov_b32 v{8+k}, 0')
    for d in range(32):
        a(f'v_dot2_f32_bf16 v{8+d%4}, v{64+d}, v{96+d}, v{8+d%4}')
    a('v_add_f32 v8, v8, v9')
    a('v_add_f32 v10, v10, v11')
    a('v_add_f32 v8, v8, v10')
    red8(a, 8)
    bf16_round(a, 8, 8)
    a(f'v_mul_f32 v8, {f32(-LOG2E)}, v8')
    a('v_exp_f32 v8, v8')
    a('v_add_f32 v8, 1.0, v8')
    a('v_rcp_f32 v8, v8')
    bf16_round(a, 8, 8)
    a(f'v_add_u32 v5, s{T0}, v2')
    a('v_lshlrev_b32 v5, 2, v5')
    a(f'v_add_u32 v5, {hex(WS_G)}, v5')
    a('s_mov_b32 s46, 0x01010101')
    a('s_mov_b32 s47, 0x01010101')
    a('s_mov_b64 exec, s[46:47]')
    a(f'buffer_store_dword v8, v5, s[{SRD0}:{SRD0+3}], 0 offen {SC}')
    a('s_mov_b64 exec, -1')
    a(f's_branch L_{tag}_join')
    a.label(f'L_{tag}_stats')
    a.restore(st_stats)
    a('s_mov_b32 s46, 0x3f803f80')
    for k in range(4):
        a(f'v_mov_b32 v{8+k}, 0')
    for d in range(32):
        a(f'v_dot2_f32_bf16 v{8+d%4}, v{64+d}, s46, v{8+d%4}')
    a('v_add_f32 v8, v8, v9')
    a('v_add_f32 v10, v10, v11')
    a('v_add_f32 v8, v8, v10')
    red8(a, 8)
    a(f'v_mul_f32 v8, {f32(1/512)}, v8')
    for k in range(4):
        a(f'v_mov_b32 v{12+k}, 0')
    for d in range(0, 32, 2):
        for e in range(2):
            a(f'v_lshlrev_b32 v{16+4*e}, 16, v{64+d+e}')
            a(f'v_and_b32 v{17+4*e}, 0xffff0000, v{64+d+e}')
        for e in range(2):
            a(f'v_sub_f32 v{16+4*e}, v{16+4*e}, v8')
            a(f'v_sub_f32 v{17+4*e}, v{17+4*e}, v8')
        for e in range(2):
            a(f'v_fmac_f32 v{12+2*e}, v{16+4*e}, v{16+4*e}')
            a(f'v_fmac_f32 v{13+2*e}, v{17+4*e}, v{17+4*e}')
    a('v_add_f32 v12, v12, v13')
    a('v_add_f32 v14, v14, v15')
    a('v_add_f32 v12, v12, v14')
    red8(a, 12)
    a(f'v_mul_f32 v12, {f32(1/512)}, v12')
    bf16_round(a, 12, 12)
    a(f'v_add_f32 v12, {f32(1e-5)}, v12')
    bf16_round(a, 12, 12)
    a('v_sqrt_f32 v12, v12')
    bf16_round(a, 9, 12)
    bf16_round(a, 8, 8)
    a(f'v_add_u32 v5, s{T0}, v2')
    a('v_lshlrev_b32 v5, 3, v5')
    a(f'v_add_u32 v5, {hex(WS_ST)}, v5')
    a('s_mov_b32 s46, 0x01010101')
    a('s_mov_b32 s47, 0x01010101')
    a('s_mov_b64 exec, s[46:47]')
    a(f'buffer_store_dwordx2 v[8:9], v5, s[{SRD0}:{SRD0+3}], 0 offen {SC}')
    a('s_mov_b64 exec, -1')
    a(f's_branch L_{tag}_join')
    a.label(f'L_{tag}_tr')
    a.restore(st_tr)
    a(f's_sub_u32 s42, s{S_WAVE}, 2')
    a('s_lshl_b32 s42, s42, 5')
    a(f's_lshl_b32 s43, s{TT}, 6')
    a('s_add_u32 s43, s43, s42')
    a('v_add_u32 v5, s43, v2')
    a('v_lshlrev_b32 v5, 10, v5')
    a('v_add_u32 v5, v5, v4')
    a(f's_lshl_b32 s43, s{DT}, 7')
    a('v_add_u32 v5, s43, v5')
    for jj in range(4):
        if jj:
            a('v_add_u32 v5, 0x2000, v5')
        a(f'global_load_dwordx4 v[{64+4*jj}:{67+4*jj}], v5, s[{P_U}:{P_U+1}]')
    a('v_add_u32 v6, s42, v2')
    a('v_mul_u32_u24 v6, 144, v6')
    a('v_add_u32 v6, v6, v4')
    for jj in range(4):
        a(f'ds_write_b128 v6, v[{64+4*jj}:{67+4*jj}] offset:{jj*8*144}')
    a.label(f'L_{tag}_join')
    a.hist = []
    a('s_waitcnt lgkmcnt(0)')
    a.lgq = []
    a('s_barrier')
    a(f'v_and_b32 v2, 15, v{V_LANE}')
    a(f'v_lshrrev_b32 v3, 4, v{V_LANE}')
    a('v_lshrrev_b32 v4, 2, v2')
    a('v_lshl_add_u32 v4, v3, 3, v4')
    a('v_mul_u32_u24 v4, 144, v4')
    a('v_and_b32 v5, 3, v2')
    a('v_lshl_add_u32 v4, v5, 3, v4')
    a(f's_lshl_b32 s42, s{S_WAVE}, 5')
    a('v_add_u32 v4, s42, v4')
    for th in range(2):
        a(f'ds_read_b64_tr_b16 v[{64+4*th}:{65+4*th}], v4 offset:{th*32*144}')
        a(f'ds_read_b64_tr_b16 v[{66+4*th}:{67+4*th}], v4 offset:{th*32*144+4*144}')
    a(f's_lshl_b32 s42, s{DT}, 6')
    a(f's_lshl_b32 s43, s{S_WAVE}, 4')
    a('s_add_u32 s42, s42, s43')
    a('v_add_u32 v5, s42, v2')
    a('v_lshlrev_b32 v5, 12, v5')
    a('v_lshl_add_u32 v5, v3, 4, v5')
    a(f's_lshl_b32 s42, s{TT}, 7')
    a('v_add_u32 v5, s42, v5')
    for th in range(2):
        a(f'buffer_store_dwordx4 v[{64+4*th}:{67+4*th}], v5, s[{SRD0}:{SRD0+3}], 0 offen offset:{WS_UT+64*th} {SC}')


def emit_shelper(a, tag, SH, SC):
    srd(a, SRD0, P_WS, 0, 0x1000000)
    a(f'v_lshrrev_b32 v2, 3, v{V_LANE}')
    a(f'v_and_b32 v3, 7, v{V_LANE}')
    a(f's_lshl_b32 s42, s{S_WAVE}, 7')
    a('v_add_u32 v4, s42, v2')
    a('v_mul_u32_u24 v4, 3584, v4')
    a('v_lshl_add_u32 v4, v3, 4, v4')
    a(f's_lshl_b32 s42, s{SH}, 7')
    a('v_add_u32 v4, s42, v4')
    for jj in range(16):
        if jj:
            a(f'v_add_u32 v4, {8*3584}, v4')
        a(f'global_load_dwordx4 v[{64+4*jj}:{67+4*jj}], v4, s[{P_W1}:{P_W1+1}]')
    for k in range(8):
        a(f'v_mov_b32 v{8+k}, 0')
    for jj in range(16):
        for d in range(4):
            a(f'v_lshlrev_b32 v{16+2*d}, 16, v{64+4*jj+d}')
            a(f'v_and_b32 v{17+2*d}, 0xffff0000, v{64+4*jj+d}')
        for k in range(8):
            a(f'v_add_f32 v{8+k}, v{8+k}, v{16+k}')
    a(f's_lshl_b32 s42, s{S_WAVE}, 3')
    a('v_add_u32 v4, s42, v2')
    a('v_lshlrev_b32 v4, 8, v4')
    a('v_lshl_add_u32 v4, v3, 5, v4')
    a('ds_write_b128 v4, v[8:11]')
    a('ds_write_b128 v4, v[12:15] offset:16')
    a('s_waitcnt lgkmcnt(0)')
    a('s_barrier')
    a(f's_cmp_eq_u32 s{S_WAVE}, 0')
    a(f's_cbranch_scc0 L_{tag}_done')
    a(f'v_lshlrev_b32 v4, 2, v{V_LANE}')
    for r in range(32):
        a(f'ds_read_b32 v{64+r}, v4 offset:{256*r}')
    for r in range(1, 32):
        a(f'v_add_f32 v64, v64, v{64+r}')
    a(f's_lshl_b32 s42, s{SH}, 8')
    a(f's_add_u32 s42, s42, {hex(WS_S)}')
    a('v_add_u32 v4, s42, v4')
    a(f'buffer_store_dword v64, v4, s[{SRD0}:{SRD0+3}], 0 offen {SC}')
    a.label(f'L_{tag}_done')
    a.hist = []


L_PQ = 15360
PQ_ROW = 272
L_UC = 0
UC_COPY, UC_CH = 4160, 16640
L_XC = 33280
L_KT = 61440
KT_CH = 4576
L_KC = 70592
KC_CH = 1536
L_XK = 73664


def kidx(l):
    u = struct.unpack('<I', struct.pack('<f', float(l)))[0]
    b = (u + 0x7FFF + ((u >> 16) & 1)) >> 16
    return l if l < 128 else b - 17024


def cmul(a, cr, ci, ar, ai, br, bi, nbi):
    a(f'v_mul_f32 v{cr}, v{ar}, v{br}')
    a(f'v_mul_f32 v{ci}, v{ar}, v{bi}')
    a(f'v_fmac_f32 v{cr}, v{ai}, v{nbi}')
    a(f'v_fmac_f32 v{ci}, v{ai}, v{br}')


def emit_ssm_loads(a):
    C, MH = 79, 80
    a(f's_lshr_b32 s{C}, s{S_WAVE}, 1')
    a(f's_and_b32 s{MH}, s{S_WAVE}, 1')
    a(f's_lshl_b32 s42, s{S_IDX}, 1')
    a(f's_add_u32 s81, s42, s{C}')
    a('s_lshl_b32 s42, s81, 8')
    a(f's_lshl_b32 s43, s{MH}, 7')
    a('s_add_u32 s42, s42, s43')
    a(f'v_lshlrev_b32 v38, 1, v{V_LANE}')
    a('v_add_u32 v38, s42, v38')
    for k, p in enumerate((P_ARE, P_AIM, P_BRE, P_BIM, P_CRE, P_CIM)):
        a(f'global_load_ushort v{40+k}, v38, s[{p}:{p+1}]')
    a(f's_lshl_b32 s42, s{S_IDX}, 2')
    a(f's_load_dword s77, s[{P_LDT}:{P_LDT+1}], s42')
    a(f's_load_dword s78, s[{P_DSK}:{P_DSK+1}], s42')


def emit_cis(a, outr, outi, A, B, m, t0):
    a(f'v_mul_f32 v{t0}, {f32(float(m))}, v{A}')
    a(f'v_mul_f32 v{t0+1}, {f32(float(m))}, v{B}')
    a(f'v_exp_f32 v{t0}, v{t0}')
    a(f'v_fract_f32 v{t0+1}, v{t0+1}')
    a(f'v_cos_f32 v{outr}, v{t0+1}')
    a(f'v_sin_f32 v{outi}, v{t0+1}')
    a(f'v_mul_f32 v{outr}, v{outr}, v{t0}')
    a(f'v_mul_f32 v{outi}, v{outi}, v{t0}')


def emit_kgen(a, tag, mid_hook=None):
    C, MH, D = 79, 80, 81
    a('s_waitcnt lgkmcnt(0)')
    a(f's_lshl_b32 s42, s{C}, 4')
    a('s_lshr_b32 s77, s77, s42')
    a('s_lshl_b32 s77, s77, 16')
    a('s_lshr_b32 s78, s78, s42')
    a('s_lshl_b32 s78, s78, 16')
    a('v_mov_b32 v2, s77')
    a(f'v_mul_f32 v3, {f32(LOG2E)}, v2')
    hi = struct.unpack('<f', struct.pack('<f', LOG2E))[0]
    a(f's_mov_b32 s42, {f32(LOG2E)}')
    a('v_fma_f32 v4, v2, s42, -v3')
    a(f'v_fmac_f32 v4, {f32(LOG2E - hi)}, v2')
    a('v_exp_f32 v3, v3')
    a(f'v_mul_f32 v4, {f32(math.log(2))}, v4')
    a('v_fmac_f32 v3, v3, v4')
    bf16_round(a, 2, 3)
    for k in range(6):
        a(f'v_lshlrev_b32 v{40+k}, 16, v{40+k}')
    ZA, ZB = 46, 47
    a(f'v_mul_f32 v{ZA}, v2, v40')
    a(f'v_mul_f32 v{ZB}, v2, v41')
    a(f'v_mul_f32 v{ZA}, {f32(LOG2E)}, v{ZA}')
    a(f'v_mul_f32 v{ZB}, {f32(1/(2*math.pi))}, v{ZB}')
    a('v_mul_f32 v42, v2, v42')
    a('v_mul_f32 v43, v2, v43')
    WR, WI = 48, 49
    a(f'v_mul_f32 v{WR}, v44, v42')
    a(f'v_mul_f32 v{WI}, v44, v43')
    a('v_mul_f32 v3, v45, v43')
    a(f'v_fmac_f32 v{WI}, v45, v42')
    a(f'v_sub_f32 v{WR}, v{WR}, v3')
    E1, E8, E256, E2, E4 = 50, 53, 56, 59, 62
    emit_cis(a, E1, E1 + 1, ZA, ZB, 1, 4)
    emit_cis(a, E8, E8 + 1, ZA, ZB, 8, 6)
    emit_cis(a, E256, E256 + 1, ZA, ZB, 256, 8)
    for e in (E1, E8, E256):
        a(f'v_sub_f32 v{e+2}, 0, v{e+1}')
    cmul(a, E2, E2 + 1, E1, E1 + 1, E1, E1 + 1, E1 + 2)
    a(f'v_sub_f32 v{E2+2}, 0, v{E2+1}')
    cmul(a, E4, E4 + 1, E2, E2 + 1, E2, E2 + 1, E2 + 2)
    a(f'v_sub_f32 v{E4+2}, 0, v{E4+1}')
    VA = 39
    a(f's_mul_i32 s42, s{S_WAVE}, {L_PQ}')
    a(f'v_lshlrev_b32 v{VA}, 2, v{V_LANE}')
    a(f'v_add_u32 v{VA}, s42, v{VA}')
    pk = [70, 71, 72, 73]
    cnt = [0]
    def put(row, re, im, neg):
        r = pk[cnt[0] % 4]; cnt[0] += 1
        a(f'v_cvt_pk_bf16_f32 v{r}, v{re}, {"-" if neg else ""}v{im}')
        a(f'ds_write_b32 v{VA}, v{r} offset:{row*PQ_ROW}')
    q = [(66, 67), (68, 69)]
    a('v_mov_b32 v66, 1.0')
    a('v_mov_b32 v67, 0')
    put(24, 66, 67, False)
    put(25, E8, E8 + 1, False)
    cur = (E8, E8 + 1)
    for j in range(2, 32):
        nxt = q[j % 2]
        cmul(a, nxt[0], nxt[1], cur[0], cur[1], E8, E8 + 1, E8 + 2)
        put(24 + j, nxt[0], nxt[1], False)
        cur = nxt
    if mid_hook:
        mid_hook()
    put(0, WR, WI, True)
    cur = (WR, WI)
    for p in range(1, 8):
        nxt = q[p % 2]
        cmul(a, nxt[0], nxt[1], cur[0], cur[1], E1, E1 + 1, E1 + 2)
        put(p, nxt[0], nxt[1], True)
        cur = nxt
    g = [(74, 75), (76, 77)]
    gc = (WR, WI)
    for k in range(1, 9):
        gn = g[k % 2]
        cmul(a, gn[0], gn[1], gc[0], gc[1], E256, E256 + 1, E256 + 2)
        row = {1: 8, 2: 12, 3: 14, 4: 16, 5: 17, 6: 18, 7: 19, 8: 20}[k]
        put(row, gn[0], gn[1], True)
        if k == 1:
            cur = gn
            for p in range(1, 4):
                nxt = q[p % 2]
                cmul(a, nxt[0], nxt[1], cur[0], cur[1], E2, E2 + 1, E2 + 2)
                put(8 + p, nxt[0], nxt[1], True)
                cur = nxt
        if k in (2, 3):
            cmul(a, 66, 67, gn[0], gn[1], E4, E4 + 1, E4 + 2)
            put(row + 1, 66, 67, True)
        gc = gn
    a(f'v_and_b32 v2, 31, v{V_LANE}')
    a(f'v_lshrrev_b32 v3, 5, v{V_LANE}')
    a(f'v_mul_u32_u24 v4, {PQ_ROW}, v2')
    a('v_lshl_add_u32 v4, v3, 4, v4')
    a(f's_mul_i32 s42, s{S_WAVE}, {L_PQ}')
    a('v_add_u32 v4, s42, v4')
    for st in range(8):
        a(f'ds_read_b128 v[{128+8*st}:{131+8*st}], v4 offset:{32*st}')
        a(f'ds_read_b128 v[{132+8*st}:{135+8*st}], v4 offset:{24*PQ_ROW+32*st}')
    ACC = 96
    for st in range(8):
        c = '0' if st == 0 else f'v[{ACC}:{ACC+15}]'
        a(f'v_mfma_f32_32x32x16_bf16 v[{ACC}:{ACC+15}], v[{128+8*st}:{131+8*st}], v[{132+8*st}:{135+8*st}], {c}')
    a(f's_lshl_b32 s42, s{MH}, 12')
    a(f'v_lshlrev_b32 v5, 5, v{V_LANE}')
    a('v_add_u32 v5, s42, v5')
    a('s_getpc_b64 s[44:45]')
    a.label(f'L_{tag}_pc')
    a(f's_add_u32 s44, s44, KIDX_TABLE-L_{tag}_pc')
    a('s_addc_u32 s45, s45, 0')
    for q2 in range(2):
        a(f'global_load_dwordx4 v[{200+8*q2}:{203+8*q2}], v5, s[44:45] offset:{2048*q2}')
        a(f'global_load_dwordx4 v[{204+8*q2}:{207+8*q2}], v5, s[44:45] offset:{2048*q2+16}')
    a(f's_mul_i32 s42, s{C}, 3072')
    a(f's_add_u32 s42, s42, {L_XK}')
    a(f'v_lshlrev_b32 v6, 4, v{V_LANE}')
    a('v_add_u32 v6, s42, v6')
    a(f's_cmp_eq_u32 s{MH}, 0')
    a(f's_cbranch_scc1 L_{tag}_k1')
    for i in range(3):
        a(f'ds_write_b128 v6, v[{ACC+4*i}:{ACC+4*i+3}] offset:{1024*i}')
    a.label(f'L_{tag}_k1')
    a.nop(12)
    a('s_waitcnt lgkmcnt(0)')
    a('s_barrier')
    a(f's_cmp_eq_u32 s{MH}, 0')
    a(f's_cbranch_scc0 L_{tag}_k2')
    for i in range(3):
        a(f'ds_read_b128 v[{128+4*i}:{131+4*i}], v6 offset:{1024*i}')
    for r in range(12):
        a(f'v_add_f32 v{ACC+r}, v{ACC+r}, v{128+r}')
    for r in range(6):
        a(f'v_cvt_pk_bf16_f32 v{128+r}, v{ACC+2*r}, v{ACC+2*r+1}')
    a(f's_mul_i32 s42, s{C}, {KC_CH}')
    a(f's_add_u32 s42, s42, {L_KC}')
    a('v_lshlrev_b32 v7, 4, v2')
    a('v_lshl_add_u32 v7, v3, 3, v7')
    a('v_add_u32 v7, s42, v7')
    a('ds_write_b64 v7, v[128:129]')
    a('v_cmp_eq_u32 vcc, 0, v3')
    a('v_lshlrev_b32 v8, 3, v2')
    a('v_add_u32 v8, 512, v8')
    a('v_lshlrev_b32 v9, 2, v2')
    a('v_add_u32 v10, 768, v9')
    a('v_cndmask_b32 v10, v10, v8, vcc')
    a('v_add_u32 v8, 4, v8')
    a('v_add_u32 v9, 896, v9')
    a('v_cndmask_b32 v9, v9, v8, vcc')
    a('v_add_u32 v10, s42, v10')
    a('v_add_u32 v9, s42, v9')
    a('ds_write_b32 v10, v130')
    a('ds_write_b32 v9, v131')
    a('v_lshlrev_b32 v8, 1, v2')
    a('v_lshl_add_u32 v8, v3, 8, v8')
    a('v_add_u32 v8, s42, v8')
    a('ds_write_b16 v8, v132 offset:1024')
    a('ds_write_b16_d16_hi v8, v132 offset:1088')
    a('ds_write_b16 v8, v133 offset:1152')
    a('ds_write_b16_d16_hi v8, v133 offset:1216')
    a.label(f'L_{tag}_k2')
    a.hist = []
    a('s_waitcnt lgkmcnt(0)')
    a.lgq = []
    a('s_barrier')
    a(f's_mul_i32 s42, s{C}, {KC_CH}')
    a(f's_add_u32 s42, s42, {L_KC}')
    for e in range(16):
        a(f'v_add_u32 v{200+e}, s42, v{200+e}')
    for e in range(16):
        a(f'ds_read_u16 v{216+e}, v{200+e}')
    for k in range(8):
        a(f'v_lshl_or_b32 v{128+k}, v{216+2*k+1}, 16, v{216+2*k}')
    a(f's_mul_i32 s42, s{C}, {KT_CH}')
    a(f's_add_u32 s42, s42, {L_KT}')
    a(f's_lshl_b32 s43, s{MH}, 11')
    a('s_sub_u32 s43, s42, s43')
    a(f's_add_u32 s43, s43, {16*255}')
    a(f'v_lshlrev_b32 v7, 4, v{V_LANE}')
    a('v_sub_u32 v7, s43, v7')
    a('ds_write_b128 v7, v[128:131]')
    a('v_subrev_u32 v8, 1024, v7')
    a('ds_write_b128 v8, v[132:135]')
    for k in range(4):
        a(f'v_mov_b32 v{136+k}, 0')
    a(f'v_lshlrev_b32 v8, 4, v{V_LANE}')
    a('s_add_u32 s42, s42, 4096')
    a('v_add_u32 v8, s42, v8')
    a('s_mov_b64 exec, 0x3fffffff')
    a('ds_write_b128 v8, v[136:139]')
    a('s_mov_b64 exec, -1')


def emit_ucopies(a, tag, SC):
    C, MH, D = 79, 80, 81
    a(f's_lshl_b32 s42, s{D}, 12')
    srd(a, SRD1, P_WS, 's42', 4096)
    a(f's_lshl_b32 s42, s{MH}, 11')
    a(f'v_lshlrev_b32 v2, 4, v{V_LANE}')
    a('v_add_u32 v2, s42, v2')
    a('v_subrev_u32 v3, 32, v2')
    a('v_add_u32 v4, 1024, v3')
    a('v_add_u32 v5, 2048, v3')
    E = [128, 136, 144]
    for q2, vo in ((0, 3), (1, 4), (2, 5)):
        a(f'buffer_load_dwordx4 v[{E[q2]}:{E[q2]+3}], v{vo}, s[{SRD1}:{SRD1+3}], 0 offen {SC}')
        a(f'v_add_u32 v6, 16, v{vo}')
        a(f'buffer_load_dwordx2 v[{E[q2]+4}:{E[q2]+5}], v6, s[{SRD1}:{SRD1+3}], 0 offen {SC}')
    a(f's_mul_i32 s42, s{C}, {UC_CH}')
    a(f's_add_u32 s42, s42, {L_UC}')
    a('v_add_u32 v2, s42, v2')
    for q2 in range(3):
        e = E[q2]
        if q2 == 2:
            a(f's_cmp_eq_u32 s{MH}, 1')
            a('s_cselect_b64 exec, 3, 0')
        T = 152
        for k in range(4):
            a(f'v_alignbit_b32 v{T+k}, v{e+k+1}, v{e+k}, 16')
        for k in range(4):
            a(f'v_mov_b32 v{T+4+k}, v{e+k+1}')
        for k in range(4):
            a(f'v_alignbit_b32 v{T+8+k}, v{e+k+2}, v{e+k+1}, 16')
        off = 1024 * q2
        a(f'ds_write_b128 v2, v[{e}:{e+3}] offset:{off}')
        a(f'ds_write_b128 v2, v[{T}:{T+3}] offset:{off+UC_COPY}')
        a(f'ds_write_b128 v2, v[{T+4}:{T+7}] offset:{off+2*UC_COPY}')
        a(f'ds_write_b128 v2, v[{T+8}:{T+11}] offset:{off+3*UC_COPY}')
    a('s_mov_b64 exec, -1')


def emit_conv(a, tag, SC):
    C, MH, D = 79, 80, 81
    VK, VU = 2, 3
    ACC = 16
    FA = [[64 + 4 * p for p in range(8)], [128 + 4 * p for p in range(8)]]
    FB = [[96 + 4 * p for p in range(8)], [160 + 4 * p for p in range(8)]]
    a(f'v_and_b32 v4, 15, v{V_LANE}')
    a(f'v_lshrrev_b32 v5, 4, v{V_LANE}')
    a('v_lshlrev_b32 v6, 1, v4')
    a('v_sub_u32 v6, v5, v6')
    a('v_lshlrev_b32 v6, 4, v6')
    a(f's_mul_i32 s42, s{C}, {KT_CH}')
    a(f's_add_u32 s42, s42, {L_KT + 16*282 - 64*59}')
    a(f's_lshl_b32 s43, s{MH}, 8')
    a('s_sub_u32 s42, s42, s43')
    a(f'v_add_u32 v{VK}, s42, v6')
    a('v_add_u32 v6, 1, v4')
    a('v_and_b32 v7, 3, v6')
    a('v_sub_u32 v6, v6, v7')
    a('v_lshlrev_b32 v6, 1, v6')
    a(f'v_mul_u32_u24 v7, {UC_COPY}, v7')
    a('v_add_u32 v6, v6, v7')
    a('v_lshl_add_u32 v6, v5, 4, v6')
    a(f's_mul_i32 s42, s{C}, {UC_CH}')
    a(f's_add_u32 s42, s42, {L_UC + 256}')
    a('s_sub_u32 s42, s42, s43')
    a(f'v_add_u32 v{VU}, s42, v6')
    def reads(rr, st, k):
        a(f'ds_read_b128 v[{FB[st][k]}:{FB[st][k]+3}], v{VK} offset:{64*(59-8*k-rr)}')
        o = 512 * k + 64 * (3 - rr)
        a(f'ds_read_b64 v[{FA[st][k]}:{FA[st][k]+1}], v{VU} offset:{o}')
        a(f'ds_read_b64 v[{FA[st][k]+2}:{FA[st][k]+3}], v{VU} offset:{o+8}')
    for k in range(8):
        reads(0, 0, k)
    for rr in range(4):
        st = rr & 1
        pairs = sorted([(qq, p) for qq in range(8) for p in range(8 - qq)], key=lambda x: (max(x), x))
        nxt = list(range(8)) if rr < 3 else []
        for n, (qq, p) in enumerate(pairs):
            j = qq + p
            first = (rr == 0 and not any(q2 + p2 == j for q2, p2 in pairs[:n]))
            c = '0' if first else f'v[{ACC+4*j}:{ACC+4*j+3}]'
            a(f'v_mfma_f32_16x16x32_bf16 v[{ACC+4*j}:{ACC+4*j+3}], v[{FA[st][p]}:{FA[st][p]+3}], v[{FB[st][qq]}:{FB[st][qq]+3}], {c}')
            if nxt and n % 4 == 3:
                reads(rr + 1, st ^ 1, nxt.pop(0))
        while nxt:
            reads(rr + 1, st ^ 1, nxt.pop(0))
    a(f's_lshl_b32 s42, s{S_WAVE}, 12')
    a(f's_add_u32 s42, s42, {L_XC}')
    a(f'v_lshlrev_b32 v6, 4, v{V_LANE}')
    a('v_add_u32 v7, s42, v6')
    a(f's_xor_b32 s43, s{S_WAVE}, 1')
    a('s_lshl_b32 s43, s43, 12')
    a(f's_add_u32 s43, s43, {L_XC}')
    a('v_add_u32 v8, s43, v6')
    a(f's_cmp_eq_u32 s{MH}, 0')
    a(f's_cbranch_scc1 L_{tag}_x0')
    a.nop(8)
    for jj in range(4):
        a(f'ds_write_b128 v7, v[{ACC+4*jj}:{ACC+4*jj+3}] offset:{1024*jj}')
    a.nop(2)
    for r in range(16):
        a(f'v_mov_b32 v{ACC+r}, v{ACC+16+r}')
    a(f's_branch L_{tag}_x1')
    a.label(f'L_{tag}_x0')
    a.hist = []
    a.nop(8)
    for jj in range(4):
        a(f'ds_write_b128 v7, v[{ACC+16+4*jj}:{ACC+16+4*jj+3}] offset:{1024*jj}')
    a.label(f'L_{tag}_x1')
    a.hist = []
    a('s_waitcnt lgkmcnt(0)')
    a.lgq = []
    a('s_barrier')
    for jj in range(4):
        a(f'ds_read_b128 v[{64+4*jj}:{67+4*jj}], v8 offset:{1024*jj}')
    a('v_lshlrev_b32 v9, 5, v4')
    a('v_lshl_add_u32 v9, v5, 3, v9')
    a(f's_lshl_b32 s43, s{MH}, 11')
    a('v_add_u32 v9, s43, v9')
    a(f's_mul_i32 s42, s{C}, {UC_CH}')
    a(f's_add_u32 s42, s42, {L_UC + 32}')
    a('v_add_u32 v10, s42, v9')
    for jj in range(4):
        a(f'ds_read_b64 v[{96+2*jj}:{97+2*jj}], v10 offset:{512*jj}')
    a(f's_lshl_b32 s42, s{D}, 12')
    a(f's_add_u32 s42, s42, {hex(WS_AT)}')
    a('v_add_u32 v9, s42, v9')
    srd(a, SRD0, P_WS, 0, 0x1000000)
    for r in range(16):
        a(f'v_add_f32 v{ACC+r}, v{ACC+r}, v{64+r}')
    for jj in range(4):
        Y = ACC + 4 * jj
        U = 104
        a(f'v_lshlrev_b32 v{U}, 16, v{96+2*jj}')
        a(f'v_and_b32 v{U+1}, 0xffff0000, v{96+2*jj}')
        a(f'v_lshlrev_b32 v{U+2}, 16, v{97+2*jj}')
        a(f'v_and_b32 v{U+3}, 0xffff0000, v{97+2*jj}')
        for r in range(4):
            a(f'v_mul_f32 v{U+r}, s78, v{U+r}')
        a(f'v_cvt_pk_bf16_f32 v{U}, v{U}, v{U+1}')
        a(f'v_cvt_pk_bf16_f32 v{U+1}, v{U+2}, v{U+3}')
        a(f'v_cvt_pk_bf16_f32 v{Y}, v{Y}, v{Y+1}')
        a(f'v_cvt_pk_bf16_f32 v{Y+1}, v{Y+2}, v{Y+3}')
        for h in range(2):
            a(f'v_lshlrev_b32 v{U+4+2*h}, 16, v{U+h}')
            a(f'v_and_b32 v{U+5+2*h}, 0xffff0000, v{U+h}')
            a(f'v_lshlrev_b32 v{U+8+2*h}, 16, v{Y+h}')
            a(f'v_and_b32 v{U+9+2*h}, 0xffff0000, v{Y+h}')
        for r in range(4):
            a(f'v_add_f32 v{U+4+r}, v{U+4+r}, v{U+8+r}')
        a(f'v_cvt_pk_bf16_f32 v{112+2*jj}, v{U+4}, v{U+5}')
        a(f'v_cvt_pk_bf16_f32 v{113+2*jj}, v{U+6}, v{U+7}')
        a(f'buffer_store_dwordx2 v[{112+2*jj}:{113+2*jj}], v9, s[{SRD0}:{SRD0+3}], 0 offen offset:{512*jj} {SC}')


G1_XS = [0, 16384, 32768]
G1_WS = [49152 + 8192 * k for k in range(4)]
GELU_C = 2.0 * 0.7978845608028654 * LOG2E


def emit_g1_index(a):
    a(f's_and_b32 s75, s{S_IDX}, 7')
    a(f's_lshr_b32 s74, s{S_IDX}, 3')
    a('s_mul_i32 s42, s74, 37')
    a('s_lshr_b32 s42, s42, 8')
    a('s_mul_i32 s43, s42, 7')
    a('s_sub_u32 s43, s74, s43')
    a('s_lshr_b32 s44, s75, 1')
    a('s_lshl_b32 s44, s44, 2')
    a('s_add_u32 s72, s44, s42')
    a('s_and_b32 s44, s75, 1')
    a('s_mul_i32 s44, s44, 7')
    a('s_add_u32 s73, s44, s43')


def emit_g1(a, tag, SC, pre_epilogue=None, hooks=None):
    TB, FB_ = 72, 73
    WF, WT = 82, 83
    hooks = hooks or {}
    a(f's_and_b32 s{WF}, s{S_WAVE}, 1')
    a(f's_lshr_b32 s{WT}, s{S_WAVE}, 1')
    a(f's_lshl_b32 s42, s{TB}, 17')
    srd(a, SRD1, P_X, 's42', 131072)
    a(f's_lshl_b32 s42, s{FB_}, 8')
    a(f's_sub_u32 s43, {512*3584}, s42')
    srd(a, SRD2, P_W1, 's42', 's43')
    VX0, VX1, VW0, VW1 = 2, 3, 4, 5
    a(f'v_lshrrev_b32 v6, 3, v{V_LANE}')
    a(f'v_and_b32 v7, 7, v{V_LANE}')
    a('v_lshrrev_b32 v8, 1, v6')
    a('v_xor_b32 v9, v7, v8')
    a(f's_lshl_b32 s42, s{S_WAVE}, 4')
    a('v_add_u32 v10, s42, v6')
    a('v_lshlrev_b32 v10, 10, v10')
    a(f'v_lshl_add_u32 v{VX0}, v9, 4, v10')
    a('v_xor_b32 v9, 4, v9')
    a(f'v_lshl_add_u32 v{VX1}, v9, 4, v10')
    a(f'v_add_u32 v{VX1}, {8*1024-1024}, v{VX1}')
    a(f'v_lshrrev_b32 v6, 4, v{V_LANE}')
    a(f'v_and_b32 v7, 15, v{V_LANE}')
    a('v_lshrrev_b32 v8, 2, v7')
    a('v_xor_b32 v8, v8, v6')
    a('v_and_b32 v7, 3, v7')
    a('v_lshl_add_u32 v8, v8, 2, v7')
    a(f's_lshl_b32 s42, s{S_WAVE}, 3')
    a('v_add_u32 v10, s42, v6')
    a('v_mul_u32_u24 v10, 3584, v10')
    a(f'v_lshl_add_u32 v{VW0}, v8, 4, v10')
    a(f'v_add_u32 v{VW1}, {4*3584-1024}, v{VW0}')
    a(f's_lshl_b32 s84, s{S_WAVE}, 11')
    tokW, tokX = {}, {}
    def dma_w(st):
        a(f's_add_u32 m0, s84, {G1_WS[st % 4]}')
        a(f's_mov_b32 s85, {st*32*3584}')
        a(f'buffer_load_dwordx4 v{VW0}, s[{SRD2}:{SRD2+3}], s85 offen lds')
        tokW[st] = a(f'buffer_load_dwordx4 v{VW1}, s[{SRD2}:{SRD2+3}], s85 offen offset:1024 lds')
    def dma_x(c, h):
        a(f's_add_u32 m0, s84, {G1_XS[c % 3] + 8192*h}')
        a(f's_mov_b32 s86, {c*128 + h*65536}')
        a(f'buffer_load_dwordx4 v{VX0}, s[{SRD1}:{SRD1+3}], s86 offen lds')
        tokX[(c, h)] = a(f'buffer_load_dwordx4 v{VX1}, s[{SRD1}:{SRD1+3}], s86 offen offset:1024 lds')
    dma_w(0); dma_x(0, 0); dma_x(0, 1); dma_w(1); dma_x(1, 0); dma_x(1, 1); dma_w(2)
    VA = [6, 7]; VB = [8, 9, 10, 11]
    a(f'v_lshrrev_b32 v12, 4, v{V_LANE}')
    a(f'v_and_b32 v13, 15, v{V_LANE}')
    a('v_lshrrev_b32 v14, 2, v13')
    a('v_and_b32 v13, 3, v13')
    a('v_lshrrev_b32 v15, 1, v12')
    a('v_and_b32 v12, 1, v12')
    a('v_lshl_add_u32 v15, v15, 3, v14')
    a('v_lshlrev_b32 v15, 8, v15')
    a('v_lshl_add_u32 v15, v12, 5, v15')
    a('v_lshl_add_u32 v15, v13, 3, v15')
    a(f'v_add_u32 v15, {G1_WS[0]}, v15')
    a(f's_lshl_b32 s42, s{WF}, 1')
    for ft in range(2):
        a(f's_add_u32 s43, s42, {ft}')
        a('v_xor_b32 v12, s43, v14')
        a(f'v_lshl_add_u32 v{VA[ft]}, v12, 6, v15')
    a(f'v_and_b32 v12, 31, v{V_LANE}')
    a(f'v_lshrrev_b32 v13, 5, v{V_LANE}')
    a('v_lshrrev_b32 v14, 1, v12')
    a('v_and_b32 v14, 7, v14')
    a(f's_lshl_b32 s42, s{WT}, 6')
    a('v_add_u32 v12, s42, v12')
    a('v_lshlrev_b32 v12, 7, v12')
    for kk in range(4):
        a(f'v_add_u32 v15, {2*kk}, v13')
        a('v_xor_b32 v15, v15, v14')
        a(f'v_lshl_add_u32 v{VB[kk]}, v15, 4, v12')
    ACC = 32
    FR = [96, 112]
    def reads(st, kap):
        base = FR[kap]
        lst = []
        for ft in range(2):
            o = (st % 4) * 8192 + kap * 16 * 256
            lst.append(f'ds_read_b64_tr_b16 v[{base+4*ft}:{base+4*ft+1}], v{VA[ft]} offset:{o}')
            lst.append(f'ds_read_b64_tr_b16 v[{base+4*ft+2}:{base+4*ft+3}], v{VA[ft]} offset:{o+1024}')
        for tt in range(2):
            kk = 2 * (st & 1) + kap
            lst.append(f'ds_read_b128 v[{base+8+4*tt}:{base+11+4*tt}], v{VB[kk]} offset:{G1_XS[(st>>1) % 3] + 4096*tt}')
        return lst
    def mfmas(st, kap, fill):
        base = FR[kap]
        n = 0
        for ft in range(2):
            for tt in range(2):
                acc = ACC + 32 * ft + 16 * tt
                c = '0' if (st == 0 and kap == 0) else f'v[{acc}:{acc+15}]'
                a(f'v_mfma_f32_32x32x16_bf16 v[{acc}:{acc+15}], v[{base+4*ft}:{base+4*ft+3}], v[{base+8+4*tt}:{base+11+4*tt}], {c}')
                for _ in range(2):
                    if fill: a(fill.pop(0))
        while fill: a(fill.pop(0))
    for st in range(16):
        need = [tokW[st]] + [tokX[(st >> 1, h)] for h in range(2)]
        if st + 1 < 16:
            need += [tokW[st + 1]] + [tokX[((st + 1) >> 1, h)] for h in range(2)]
        a.wait_vm_token(max(need))
        a('s_barrier')
        if st + 3 < 16: dma_w(st + 3)
        c = (st >> 1) + 2
        if c < 8: dma_x(c, st & 1)
        if st in hooks: hooks[st]()
        if st == 0:
            for l in reads(0, 0): a(l)
        mfmas(st, 0, reads(st, 1))
        mfmas(st, 1, reads(st + 1, 0) if st + 1 < 16 else [])
    if pre_epilogue:
        pre_epilogue()
    SV, BV = 128, 160
    MS = [12, 14]
    a(f'v_and_b32 v2, 31, v{V_LANE}')
    a(f'v_lshrrev_b32 v3, 5, v{V_LANE}')
    srd(a, SRD0, P_WS, 0, 0x1000000)
    a(f's_lshl_b32 s42, s{TB}, 7')
    a(f's_lshl_b32 s43, s{WT}, 6')
    a('s_add_u32 s42, s42, s43')
    a('v_add_u32 v4, s42, v2')
    a('v_lshlrev_b32 v4, 3, v4')
    a(f'v_add_u32 v4, {hex(WS_ST)}, v4')
    for tt in range(2):
        a(f'buffer_load_dwordx2 v[{MS[tt]}:{MS[tt]+1}], v4, s[{SRD0}:{SRD0+3}], 0 offen offset:{256*tt} {SC}')
    a(f's_lshl_b32 s42, s{FB_}, 7')
    a(f's_lshl_b32 s43, s{WF}, 6')
    a('s_add_u32 s42, s42, s43')
    a('v_lshlrev_b32 v5, 2, v3')
    a('v_add_u32 v5, s42, v5')
    a('v_lshlrev_b32 v6, 2, v5')
    a(f'v_add_u32 v6, {hex(WS_S)}, v6')
    a('v_lshlrev_b32 v5, 1, v5')
    for ft in range(2):
        for i in range(4):
            a(f'buffer_load_dwordx4 v[{SV+16*ft+4*i}:{SV+16*ft+4*i+3}], v6, s[{SRD0}:{SRD0+3}], 0 offen offset:{128*ft+32*i} {SC}')
            a(f'global_load_dwordx2 v[{192+8*ft+2*i}:{193+8*ft+2*i}], v5, s[{P_B1}:{P_B1+1}] offset:{64*ft+16*i}')
    for ft in range(2):
        for i in range(4):
            for h in range(2):
                a(f'v_lshlrev_b32 v{BV+16*ft+4*i+2*h}, 16, v{192+8*ft+2*i+h}')
                a(f'v_and_b32 v{BV+16*ft+4*i+2*h+1}, 0xffff0000, v{192+8*ft+2*i+h}')
    NM, SD, AL, BE = [16, 17], [13, 15], [18, 19], [20, 21]
    for tt in range(2):
        a(f'v_sub_f32 v{NM[tt]}, 0, v{MS[tt]}')
        a(f'v_rcp_f32 v22, v{SD[tt]}')
        a(f'v_mul_f32 v{AL[tt]}, {f32(-GELU_C)}, v22')
        a('v_mul_f32 v23, v22, v22')
        a(f'v_mul_f32 v23, v23, v{AL[tt]}')
        a(f'v_mul_f32 v{BE[tt]}, {f32(0.044715)}, v23')
    a(f's_lshl_b32 s42, s{TB}, 2')
    a(f's_lshl_b32 s43, s{WT}, 1')
    a('s_add_u32 s42, s42, s43')
    a('s_mul_i32 s42, s42, 112')
    a(f's_lshl_b32 s43, s{FB_}, 3')
    a('s_add_u32 s42, s42, s43')
    a(f's_lshl_b32 s43, s{WF}, 2')
    a('s_add_u32 s42, s42, s43')
    a('s_lshl_b32 s42, s42, 10')
    a(f's_add_u32 s42, s42, {hex(WS_H)}')
    a(f'v_lshlrev_b32 v4, 4, v{V_LANE}')
    a('v_add_u32 v4, s42, v4')
    a(f'v_add_u32 v5, {112*1024}, v4')
    VH = [4, 5]
    T = 208
    for ft in range(2):
        for tt in range(2):
            acc = ACC + 32 * ft + 16 * tt
            for j in range(2):
                r0 = 8 * j
                E = range(8)
                for e in E: a(f'v_fmac_f32 v{acc+r0+e}, v{BV+16*ft+r0+e}, v{SD[tt]}')
                for e in E: a(f'v_fmac_f32 v{acc+r0+e}, v{SV+16*ft+r0+e}, v{NM[tt]}')
                for e in E: a(f'v_mul_f32 v{T+e}, v{acc+r0+e}, v{acc+r0+e}')
                for e in E: a(f'v_fma_f32 v{T+e}, v{T+e}, v{BE[tt]}, v{AL[tt]}')
                for e in E: a(f'v_mul_f32 v{T+e}, v{T+e}, v{acc+r0+e}')
                for e in E: a(f'v_exp_f32 v{T+e}, v{T+e}')
                for e in E: a(f'v_fma_f32 v{T+e}, v{T+e}, v{SD[tt]}, v{SD[tt]}')
                for e in E: a(f'v_rcp_f32 v{T+e}, v{T+e}')
                for e in E: a(f'v_mul_f32 v{T+e}, v{T+e}, v{acc+r0+e}')
                H = 216 + 4 * ((2 * tt + j) % 4)
                for e in range(4): a(f'v_cvt_pk_bf16_f32 v{H+e}, v{T+2*e}, v{T+2*e+1}')
                a(f'buffer_store_dwordx4 v[{H}:{H+3}], v{VH[tt]}, s[{SRD0}:{SRD0+3}], 0 offen offset:{(2*ft+j)*1024} {SC}')
        if ('ft', ft) in hooks: hooks[('ft', ft)]()


def emit_g2(a, tag, SC, pre_h=None, pre_mix=None):
    TAU, DT = 87, 88
    a(f's_and_b32 s42, s{S_IDX}, 7')
    a(f's_lshr_b32 s43, s{S_IDX}, 3')
    a('s_lshl_b32 s42, s42, 2')
    a('s_lshr_b32 s44, s43, 3')
    a(f's_add_u32 s{TAU}, s42, s44')
    a(f's_and_b32 s{DT}, s43, 7')
    a(f's_lshl_b32 s42, s{DT}, 7')
    a(f's_sub_u32 s43, {1792*1024}, s42')
    srd(a, SRD2, P_W2, 's42', 's43')
    a(f's_mul_i32 s42, s{TAU}, {2*112*1024}')
    a(f's_add_u32 s42, s42, {hex(WS_H)}')
    srd(a, SRD3, P_WS, 's42', 2 * 112 * 1024)
    WD, WT = 82, 83
    a(f's_and_b32 s{WD}, s{S_WAVE}, 1')
    a(f's_lshr_b32 s{WT}, s{S_WAVE}, 1')
    VW0, VW1 = 2, 3
    a(f'v_lshrrev_b32 v6, 3, v{V_LANE}')
    a(f'v_and_b32 v7, 7, v{V_LANE}')
    a('v_lshrrev_b32 v8, 2, v7')
    a('v_lshrrev_b32 v9, 1, v6')
    a('v_and_b32 v9, 1, v9')
    a('v_xor_b32 v8, v8, v9')
    a('v_and_b32 v7, 3, v7')
    a('v_lshl_add_u32 v8, v8, 2, v7')
    a('v_lshlrev_b32 v6, 10, v6')
    a(f'v_lshl_add_u32 v{VW0}, v8, 4, v6')
    a(f'v_add_u32 v{VW1}, {8*1024-1024}, v{VW0}')
    a(f's_mul_i32 s84, s{S_WAVE}, 20480')
    a(f's_mul_i32 s85, s{S_WAVE}, {28*16384}')
    a(f's_mul_i32 s86, s{S_WAVE}, {28*1024}')
    tokW = {}
    def dma(k):
        a(f's_add_u32 m0, s84, {2048*(k % 10)}')
        a(f's_add_u32 s89, s85, {k*16384}')
        a(f'buffer_load_dwordx4 v{VW0}, s[{SRD2}:{SRD2+3}], s89 offen lds')
        tokW[k] = a(f'buffer_load_dwordx4 v{VW1}, s[{SRD2}:{SRD2+3}], s89 offen offset:1024 lds')
    for k in range(10): dma(k)
    VA = [4, 5]; VH = [6, 7]
    a(f'v_lshrrev_b32 v12, 4, v{V_LANE}')
    a(f'v_and_b32 v13, 15, v{V_LANE}')
    a('v_lshrrev_b32 v14, 2, v13')
    a('v_and_b32 v13, 3, v13')
    a('v_lshrrev_b32 v15, 1, v12')
    a('v_and_b32 v12, 1, v12')
    a('v_lshl_add_u32 v15, v15, 2, v14')
    a('v_lshlrev_b32 v15, 7, v15')
    a('v_lshl_add_u32 v15, v12, 5, v15')
    a('v_lshl_add_u32 v15, v13, 3, v15')
    a('v_lshrrev_b32 v14, 1, v14')
    a(f'v_xor_b32 v12, s{WD}, v14')
    a('v_lshl_add_u32 v16, v12, 6, v15')
    a('v_xor_b32 v12, 1, v12')
    a('v_lshl_add_u32 v17, v12, 6, v15')
    a(f'v_add_u32 v{VA[0]}, s84, v16')
    a(f'v_add_u32 v{VA[1]}, s84, v17')
    a(f'v_xor_b32 v12, s{WT}, v14')
    a('v_lshl_add_u32 v18, v12, 6, v15')
    a(f'v_lshlrev_b32 v12, 4, v{V_LANE}')
    a(f's_mul_i32 s42, s{WT}, {112*1024}')
    a(f'v_add_u32 v{VH[0]}, s42, v12')
    a(f's_sub_u32 s42, {112*1024}, s42')
    a(f'v_add_u32 v{VH[1]}, s42, v12')
    if pre_h: pre_h()
    HD = 6
    HB = 128
    ACC = 32
    FA = [96, 104]
    def hload(k):
        b = HB + 8 * (k % HD)
        a(f's_add_u32 s90, s86, {k*1024}')
        for tt in range(2):
            a(f'buffer_load_dwordx4 v[{b+4*tt}:{b+4*tt+3}], v{VH[tt]}, s[{SRD3}:{SRD3+3}], s90 offen {SC}')
    def wread(k):
        b = FA[k & 1]
        for dd in range(2):
            a(f'ds_read_b64_tr_b16 v[{b+4*dd}:{b+4*dd+1}], v{VA[dd]} offset:{2048*(k % 10)}')
            a(f'ds_read_b64_tr_b16 v[{b+4*dd+2}:{b+4*dd+3}], v{VA[dd]} offset:{2048*(k % 10)+1024}')
    for k in range(HD): hload(k)
    a.wait_vm_token(tokW[0]); wread(0)
    for k in range(28):
        if k + 1 < 28:
            a.wait_vm_token(tokW[k + 1]); wread(k + 1)
        b = HB + 8 * (k % HD); f = FA[k & 1]
        for tt in range(2):
            for dd in range(2):
                acc = ACC + 16 * (dd + 2 * tt)
                c = '0' if k == 0 else f'v[{acc}:{acc+15}]'
                a(f'v_mfma_f32_32x32x16_bf16 v[{acc}:{acc+15}], v[{f+4*dd}:{f+4*dd+3}], v[{b+4*tt}:{b+4*tt+3}], {c}')
        if k + HD < 28: hload(k + HD)
        if k + 10 < 28: dma(k + 10)
    a('s_waitcnt lgkmcnt(0)')
    a('s_barrier')
    if pre_mix: pre_mix()
    srd(a, SRD0, P_WS, 0, 0x1000000)
    a(f's_lshl_b32 s42, s{DT}, 18')
    a(f's_lshl_b32 s43, s{TAU}, 7')
    a('s_add_u32 s42, s42, s43')
    a(f's_lshl_b32 s43, s{S_WAVE}, 16')
    a('s_add_u32 s42, s42, s43')
    a(f's_add_u32 s89, s42, {hex(WS_AT)}')
    a(f'v_lshrrev_b32 v6, 3, v{V_LANE}')
    a('v_mul_u32_u24 v6, 3072, v6')
    a(f'v_add_u32 v8, v{VW0}, v6')
    a(f'v_add_u32 v9, {8*4096-1024}, v8')
    a(f's_lshl_b32 s43, s{S_WAVE}, 11')
    a('s_add_u32 m0, s43, 49152')
    a(f'buffer_load_dwordx4 v8, s[{SRD0}:{SRD0+3}], s89 offen lds {SC}')
    tokA = a(f'buffer_load_dwordx4 v9, s[{SRD0}:{SRD0+3}], s89 offen offset:1024 lds {SC}')
    a(f'v_and_b32 v2, 31, v{V_LANE}')
    a(f'v_lshrrev_b32 v3, 5, v{V_LANE}')
    a(f's_lshl_b32 s42, s{TAU}, 6')
    a(f's_lshl_b32 s43, s{WT}, 5')
    a('s_add_u32 s42, s42, s43')
    a('v_add_u32 v10, s42, v2')
    a('v_lshlrev_b32 v11, 2, v10')
    a(f'v_add_u32 v11, {hex(WS_G)}, v11')
    a(f'buffer_load_dword v12, v11, s[{SRD0}:{SRD0+3}], 0 offen {SC}')
    a(f's_lshl_b32 s42, s{DT}, 6')
    a(f's_lshl_b32 s43, s{WD}, 5')
    a('s_add_u32 s42, s42, s43')
    a('v_lshlrev_b32 v11, 2, v3')
    a('v_add_u32 v11, s42, v11')
    a('v_lshlrev_b32 v13, 1, v11')
    for i in range(4):
        a(f'global_load_dwordx2 v[{112+2*i}:{113+2*i}], v13, s[{P_B2}:{P_B2+1}] offset:{16*i}')
    a(f'v_lshlrev_b32 v14, 4, v{V_LANE}')
    for x in range(1, 4):
        a(f's_xor_b32 s42, s{S_WAVE}, {x}')
        a('s_mul_i32 s42, s42, 12288')
        a(f'v_add_u32 v15, s42, v14')
        for i in range(4):
            a(f'ds_write_b128 v15, v[{ACC+16*x+4*i}:{ACC+16*x+4*i+3}] offset:{4096*(x-1)+1024*i}')
    a.wait_vm_token(tokA)
    a('s_waitcnt lgkmcnt(0)')
    a('s_barrier')
    a(f's_mul_i32 s42, s{S_WAVE}, 12288')
    a('v_add_u32 v15, s42, v14')
    for x in range(3):
        for i in range(4):
            a(f'ds_read_b128 v[{128+16*x+4*i}:{128+16*x+4*i+3}], v15 offset:{4096*x+1024*i}')
    a(f's_lshl_b32 s42, s{WD}, 12')
    a('s_add_u32 s42, s42, 49152')
    a('v_add_u32 v18, s42, v18')
    for i in range(4):
        a(f'ds_read_b64_tr_b16 v[{176+2*i}:{177+2*i}], v18 offset:{1024*i}')
    a('v_sub_f32 v16, 1.0, v12')
    bf16_round(a, 16, 16)
    for x in range(3):
        for r in range(16):
            a(f'v_add_f32 v{ACC+r}, v{ACC+r}, v{128+16*x+r}')
    O = 184
    for i in range(4):
        T = 192
        for h in range(2):
            a(f'v_lshlrev_b32 v{T+2*h}, 16, v{112+2*i+h}')
            a(f'v_and_b32 v{T+2*h+1}, 0xffff0000, v{112+2*i+h}')
            a(f'v_lshlrev_b32 v{T+4+2*h}, 16, v{176+2*i+h}')
            a(f'v_and_b32 v{T+4+2*h+1}, 0xffff0000, v{176+2*i+h}')
        for r in range(4):
            a(f'v_add_f32 v{T+r}, v{T+r}, v{ACC+4*i+r}')
        if 'outb' in sys.argv:
            pass
        elif 'outa' in sys.argv:
            for r in range(4):
                a(f'v_mov_b32 v{T+r}, v{T+4+r}')
        else:
            for r in range(4):
                a(f'v_mul_f32 v{T+r}, v{T+r}, v16')
            for r in range(4):
                a(f'v_fmac_f32 v{T+r}, v{T+4+r}, v12')
        a(f'v_cvt_pk_bf16_f32 v{O+2*i}, v{T}, v{T+1}')
        a(f'v_cvt_pk_bf16_f32 v{O+2*i+1}, v{T+2}, v{T+3}')
    a('v_lshlrev_b32 v10, 10, v10')
    a(f's_lshl_b32 s42, s{DT}, 6')
    a(f's_lshl_b32 s43, s{WD}, 5')
    a('s_add_u32 s42, s42, s43')
    a('s_lshl_b32 s42, s42, 1')
    a('v_add_u32 v10, s42, v10')
    a('v_lshl_add_u32 v10, v3, 4, v10')
    srd(a, SRD1, P_OUT, 0, 2048 * 1024)
    for p in range(2):
        a(f'v_permlane32_swap_b32 v{O+4*p}, v{O+4*p+2}')
        a(f'v_permlane32_swap_b32 v{O+4*p+1}, v{O+4*p+3}')
        a(f'buffer_store_dwordx4 v[{O+4*p}:{O+4*p+3}], v10, s[{SRD1}:{SRD1+3}], 0 offen offset:{32*p}')


WS_DBG = 0xC00000
def dump_lds(a, base, nbytes, slot_bytes):
    a('s_waitcnt vmcnt(0) lgkmcnt(0)')
    a('s_barrier')
    srd(a, SRD5, P_WS, 0, 0x4000000)
    a(f's_mul_i32 s42, s{S_IDX}, {slot_bytes}')
    a(f's_add_u32 s42, s42, {hex(WS_DBG)}')
    a(f'v_lshlrev_b32 v250, 4, v{V_TID}')
    for o in range(0, nbytes, 4096):
        a(f'v_add_u32 v251, {base + o}, v250')
        a('ds_read_b128 v[252:255], v251')
        a(f'v_add_u32 v251, {o}, v250')
        a(f'v_add_u32 v251, s42, v251')
        a(f'buffer_store_dwordx4 v[252:255], v251, s[{SRD5}:{SRD5+3}], 0 offen')
        a('s_waitcnt vmcnt(0)')
    a('s_barrier')


def kd(name):
    return f"""
.amdhsa_kernel {name}
  .amdhsa_next_free_vgpr 256
  .amdhsa_next_free_sgpr 102
  .amdhsa_accum_offset 256
  .amdhsa_group_segment_fixed_size 0
  .amdhsa_kernarg_size 144
  .amdhsa_user_sgpr_count 2
  .amdhsa_user_sgpr_kernarg_segment_ptr 1
  .amdhsa_system_sgpr_workgroup_id_x 1
.end_amdhsa_kernel"""


def table():
    rows = []
    for lam in range(256):
        rows.append('.long ' + ', '.join(str(2 * kidx(8 * lam + 7 - e)) for e in range(8)))
    return '.p2align 8\nKIDX_TABLE:\n' + '\n'.join(rows) + '\n'


DEBUG = 'debug' in sys.argv
HEADER = open('cdna_kernels/' + NAME + '.s.ref').read().split('; Override launch')[0]


def build_multi():
    a = Asm()
    names = ['p0_kernel', 'mid_kernel', 'g2_kernel']
    a.raw(HEADER.rstrip())
    a.raw(f'; @launch kernel=p0_kernel grid=(284,1,1) block=(256,1,1) lds={LDS_BYTES}')
    a.raw(f'; @launch kernel=mid_kernel grid=(512,1,1) block=(256,1,1) lds={LDS_BYTES}')
    a.raw(f'; @launch kernel=g2_kernel grid=(256,1,1) block=(256,1,1) lds={LDS_BYTES}')
    a.raw('.amdgcn_target "amdgcn-amd-amdhsa--gfx950"')
    a.raw('.text')
    entry(a, 'p0_kernel', 284)
    a(f's_mov_b32 s{S_IDX}, s2')
    a('s_cmp_ge_u32 s2, 256')
    a('s_cbranch_scc1 L_p0_sh')
    emit_p0(a, 'p0', '')
    a('s_branch L_p0_kernel_exit')
    a.label('L_p0_sh'); a.reset()
    a('s_sub_u32 s72, s2, 256')
    emit_shelper(a, 'sh', 72, '')
    a.label('L_p0_kernel_exit')
    a('s_endpgm')
    entry(a, 'mid_kernel', 512)
    a('s_cmp_ge_u32 s2, 256')
    a('s_cbranch_scc1 L_mid_g1')
    a(f's_mov_b32 s{S_IDX}, s2')
    emit_ssm_loads(a)
    emit_kgen(a, 'kg')
    a('s_waitcnt lgkmcnt(0)')
    a('s_barrier')
    if DEBUG: dump_lds(a, L_KT, 20480, 20480)
    emit_ucopies(a, 'uc', '')
    a('s_waitcnt lgkmcnt(0)')
    a('s_barrier')
    emit_conv(a, 'cv', '')
    a('s_branch L_mid_kernel_exit')
    a.label('L_mid_g1'); a.reset()
    a(f's_sub_u32 s{S_IDX}, s2, 256')
    emit_g1_index(a)
    a('s_cmp_ge_u32 s74, 28')
    a('s_cbranch_scc1 L_mid_kernel_exit')
    emit_g1(a, 'g1', '')
    a.label('L_mid_kernel_exit')
    a('s_endpgm')
    entry(a, 'g2_kernel', 256)
    a(f's_mov_b32 s{S_IDX}, s2')
    emit_g2(a, 'g2', '')
    a.label('L_g2_kernel_exit')
    a('s_endpgm')
    a.raw(table())
    a.raw('.section .rodata,"a"')
    for n in names:
        a.raw('.p2align 6')
        a.raw(kd(n).strip('\n'))
    return a.text()


if __name__ == '__main__':
    mode = sys.argv[1] if len(sys.argv) > 1 else 'multi'
    out = sys.argv[2] if len(sys.argv) > 2 else 'cdna_kernels/' + NAME + '.s'
    txt = {'multi': build_multi}[mode]()
    open(out, 'w').write(txt)
    print('wrote', out, len(txt), 'bytes')
```

```python
import math, struct, sys
from asmlib import Asm, v, s

NAME = "gated_mix__ssm_conv_s4__mixer_channel_mlp__prompt"

WS_UT, WS_AT, WS_H = 0x000000, 0x200000, 0x400000
WS_G, WS_ST, WS_S = 0xB00000, 0xB02000, 0xB06000
WS_FL = 0xB10000
FL_P0, FL_S, FL_H, FL_A = 0x0, 0x8000, 0x9000, 0x11000
FL_LINES = 0x19000 // 128
LDS_BYTES = 81920

P_U, P_ARE, P_AIM, P_BRE, P_BIM, P_CRE, P_CIM, P_LDT, P_DSK, P_X, P_W1, P_B1, P_W2, P_B2, P_GW, P_OUT, P_DBG, P_WS = \
    [4 + 2 * i for i in range(18)]
P_X = P_U
S_WAVE, S_IDX = 40, 41
ST = 42
SRD0, SRD1, SRD2, SRD3, SRD4, SRD5 = 48, 52, 56, 60, 64, 68
V_TID, V_LANE = 0, 1

def f32(x):
    return '0x%08x' % struct.unpack('<I', struct.pack('<f', x))[0]

LOG2E = 1.4426950408889634


def srd(a, dst, ptr, off, size):
    if isinstance(off, str):
        a(f's_add_u32 s{dst}, s{ptr}, {off}')
        a(f's_addc_u32 s{dst+1}, s{ptr+1}, 0')
    elif off:
        a(f's_add_u32 s{dst}, s{ptr}, {hex(off)}')
        a(f's_addc_u32 s{dst+1}, s{ptr+1}, 0')
    else:
        a(f's_mov_b32 s{dst}, s{ptr}')
        a(f's_mov_b32 s{dst+1}, s{ptr+1}')
    a(f's_mov_b32 s{dst+2}, {size if isinstance(size, str) else hex(size)}')
    a(f's_mov_b32 s{dst+3}, 0x20000')


def bf16_round(a, dst, src):
    a(f'v_cvt_pk_bf16_f32 v{dst}, v{src}, v{src}')
    a(f'v_lshlrev_b32 v{dst}, 16, v{dst}')


def entry(a, name, nwg):
    a.raw(f'.globl {name}')
    a.raw('.p2align 8')
    a.raw(f'.type {name},@function')
    a.label(name)
    a.reset()
    a(f's_cmp_ge_u32 s2, {nwg}')
    a(f's_cbranch_scc1 L_{name}_exit')
    a('s_load_dwordx16 s[4:19], s[0:1], 0')
    a('s_load_dwordx16 s[20:35], s[0:1], 64')
    a('s_load_dwordx4 s[36:39], s[0:1], 128')
    a(f'v_lshrrev_b32 v2, 6, v{V_TID}')
    a(f'v_and_b32 v{V_LANE}, 63, v{V_TID}')
    a(f'v_readfirstlane_b32 s{S_WAVE}, v2')
    a('s_waitcnt lgkmcnt(0)')


WS_STAMP = 0x1000000
STAMP = 'stamp' in sys.argv
_nstamp = [0]
def stamp(a, k):
    if not STAMP:
        return
    a('s_memtime s[0:1]' if 'cyc' in sys.argv else 's_memrealtime s[0:1]')
    a('s_waitcnt lgkmcnt(0)')
    a.lgq = []
    a('v_mov_b32 v254, s0')
    a('s_lshl_b32 s3, s2, 2')
    a(f's_add_u32 s3, s3, s{S_WAVE}')
    a('s_lshl_b32 s3, s3, 6')
    a(f's_add_u32 s3, s3, {hex(WS_STAMP + 4 * (k % 16) + (k // 16) * 0x40000)}')
    a('v_mov_b32 v255, s3')
    a('s_mov_b64 s[22:23], exec')
    a('s_mov_b64 exec, 1')
    a(f'global_store_dword v255, v254, s[{P_WS}:{P_WS+1}]', opt=True)
    a('s_mov_b64 exec, s[22:23]')


def red8(a, r):
    a(f'v_add_f32_dpp v{r}, v{r}, v{r} quad_perm:[1,0,3,2] row_mask:0xf bank_mask:0xf')
    a(f'v_add_f32_dpp v{r}, v{r}, v{r} quad_perm:[2,3,0,1] row_mask:0xf bank_mask:0xf')
    a(f'v_add_f32_dpp v{r}, v{r}, v{r} row_half_mirror row_mask:0xf bank_mask:0xf')


def emit_p0(a, tag, SC):
    X, J, T0, TT, DT = 72, 73, 74, 75, 76
    a(f's_and_b32 s{X}, s{S_IDX}, 7')
    a(f's_lshr_b32 s{J}, s{S_IDX}, 3')
    a(f's_lshl_b32 s{T0}, s{X}, 8')
    a(f's_lshl_b32 s42, s{J}, 3')
    a(f's_add_u32 s{T0}, s{T0}, s42')
    a(f's_lshl_b32 s{TT}, s{X}, 2')
    a(f's_lshr_b32 s42, s{J}, 3')
    a(f's_add_u32 s{TT}, s{TT}, s42')
    a(f's_and_b32 s{DT}, s{J}, 7')
    srd(a, SRD0, P_WS, 0, 0x1000000)
    a(f'v_lshrrev_b32 v2, 3, v{V_LANE}')
    a(f'v_and_b32 v3, 7, v{V_LANE}')
    a(f'v_lshlrev_b32 v4, 4, v3')
    a(f's_cmp_ge_u32 s{S_WAVE}, 2')
    a(f's_cbranch_scc1 L_{tag}_tr')
    st_tr = a.save()
    a(f's_cmp_eq_u32 s{S_WAVE}, 0')
    a(f's_cselect_b32 s44, s{P_U}, s{P_X}')
    a(f's_cselect_b32 s45, s{P_U+1}, s{P_X+1}')
    a(f'v_add_u32 v5, s{T0}, v2')
    a(f'v_lshlrev_b32 v5, 10, v5')
    a(f'v_add_u32 v5, v5, v4')
    for jj in range(8):
        a(f'global_load_dwordx4 v[{64+4*jj}:{67+4*jj}], v5, s[44:45] offset:{128*jj}')
    a(f's_cmp_eq_u32 s{S_WAVE}, 0')
    a(f's_cbranch_scc0 L_{tag}_stats')
    st_stats = a.save()
    for jj in range(8):
        a(f'global_load_dwordx4 v[{96+4*jj}:{99+4*jj}], v4, s[{P_GW}:{P_GW+1}] offset:{128*jj}')
    for k in range(4):
        a(f'v_mov_b32 v{8+k}, 0')
    for d in range(32):
        a(f'v_dot2_f32_bf16 v{8+d%4}, v{64+d}, v{96+d}, v{8+d%4}')
    a('v_add_f32 v8, v8, v9')
    a('v_add_f32 v10, v10, v11')
    a('v_add_f32 v8, v8, v10')
    red8(a, 8)
    bf16_round(a, 8, 8)
    a(f'v_mul_f32 v8, {f32(-LOG2E)}, v8')
    a('v_exp_f32 v8, v8')
    a('v_add_f32 v8, 1.0, v8')
    a('v_rcp_f32 v8, v8')
    bf16_round(a, 8, 8)
    a(f'v_add_u32 v5, s{T0}, v2')
    a('v_lshlrev_b32 v5, 2, v5')
    a(f'v_add_u32 v5, {hex(WS_G)}, v5')
    a('s_mov_b32 s46, 0x01010101')
    a('s_mov_b32 s47, 0x01010101')
    a('s_mov_b64 exec, s[46:47]')
    a(f'buffer_store_dword v8, v5, s[{SRD0}:{SRD0+3}], 0 offen {SC}')
    a('s_mov_b64 exec, -1')
    a(f's_branch L_{tag}_join')
    a.label(f'L_{tag}_stats')
    a.restore(st_stats)
    a('s_mov_b32 s46, 0x3f803f80')
    for k in range(4):
        a(f'v_mov_b32 v{8+k}, 0')
    for d in range(32):
        a(f'v_dot2_f32_bf16 v{8+d%4}, v{64+d}, s46, v{8+d%4}')
    a('v_add_f32 v8, v8, v9')
    a('v_add_f32 v10, v10, v11')
    a('v_add_f32 v8, v8, v10')
    red8(a, 8)
    a(f'v_mul_f32 v8, {f32(1/512)}, v8')
    for k in range(4):
        a(f'v_mov_b32 v{12+k}, 0')
    for d in range(0, 32, 2):
        for e in range(2):
            a(f'v_lshlrev_b32 v{16+4*e}, 16, v{64+d+e}')
            a(f'v_and_b32 v{17+4*e}, 0xffff0000, v{64+d+e}')
        for e in range(2):
            a(f'v_sub_f32 v{16+4*e}, v{16+4*e}, v8')
            a(f'v_sub_f32 v{17+4*e}, v{17+4*e}, v8')
        for e in range(2):
            a(f'v_fmac_f32 v{12+2*e}, v{16+4*e}, v{16+4*e}')
            a(f'v_fmac_f32 v{13+2*e}, v{17+4*e}, v{17+4*e}')
    a('v_add_f32 v12, v12, v13')
    a('v_add_f32 v14, v14, v15')
    a('v_add_f32 v12, v12, v14')
    red8(a, 12)
    a(f'v_mul_f32 v12, {f32(1/512)}, v12')
    bf16_round(a, 12, 12)
    a(f'v_add_f32 v12, {f32(1e-5)}, v12')
    bf16_round(a, 12, 12)
    a('v_sqrt_f32 v12, v12')
    bf16_round(a, 9, 12)
    bf16_round(a, 8, 8)
    a(f'v_add_u32 v5, s{T0}, v2')
    a('v_lshlrev_b32 v5, 3, v5')
    a(f'v_add_u32 v5, {hex(WS_ST)}, v5')
    a('s_mov_b32 s46, 0x01010101')
    a('s_mov_b32 s47, 0x01010101')
    a('s_mov_b64 exec, s[46:47]')
    a(f'buffer_store_dwordx2 v[8:9], v5, s[{SRD0}:{SRD0+3}], 0 offen {SC}')
    a('s_mov_b64 exec, -1')
    a(f's_branch L_{tag}_join')
    a.label(f'L_{tag}_tr')
    a.restore(st_tr)
    a(f's_sub_u32 s42, s{S_WAVE}, 2')
    a('s_lshl_b32 s42, s42, 5')
    a(f's_lshl_b32 s43, s{TT}, 6')
    a('s_add_u32 s43, s43, s42')
    a('v_add_u32 v5, s43, v2')
    a('v_lshlrev_b32 v5, 10, v5')
    a('v_add_u32 v5, v5, v4')
    a(f's_lshl_b32 s43, s{DT}, 7')
    a('v_add_u32 v5, s43, v5')
    for jj in range(4):
        if jj:
            a('v_add_u32 v5, 0x2000, v5')
        a(f'global_load_dwordx4 v[{64+4*jj}:{67+4*jj}], v5, s[{P_U}:{P_U+1}]')
    a('v_add_u32 v6, s42, v2')
    a('v_mul_u32_u24 v6, 144, v6')
    a('v_add_u32 v6, v6, v4')
    for jj in range(4):
        a(f'ds_write_b128 v6, v[{64+4*jj}:{67+4*jj}] offset:{jj*8*144}')
    a.label(f'L_{tag}_join')
    a.hist = []
    a('s_waitcnt lgkmcnt(0)')
    a.lgq = []
    a('s_barrier')
    a(f'v_and_b32 v2, 15, v{V_LANE}')
    a(f'v_lshrrev_b32 v3, 4, v{V_LANE}')
    a('v_lshrrev_b32 v4, 2, v2')
    a('v_lshl_add_u32 v4, v3, 3, v4')
    a('v_mul_u32_u24 v4, 144, v4')
    a('v_and_b32 v5, 3, v2')
    a('v_lshl_add_u32 v4, v5, 3, v4')
    a(f's_lshl_b32 s42, s{S_WAVE}, 5')
    a('v_add_u32 v4, s42, v4')
    for th in range(2):
        a(f'ds_read_b64_tr_b16 v[{64+4*th}:{65+4*th}], v4 offset:{th*32*144}')
        a(f'ds_read_b64_tr_b16 v[{66+4*th}:{67+4*th}], v4 offset:{th*32*144+4*144}')
    a(f's_lshl_b32 s42, s{DT}, 6')
    a(f's_lshl_b32 s43, s{S_WAVE}, 4')
    a('s_add_u32 s42, s42, s43')
    a('v_add_u32 v5, s42, v2')
    a('v_lshlrev_b32 v5, 12, v5')
    a('v_lshl_add_u32 v5, v3, 4, v5')
    a(f's_lshl_b32 s42, s{TT}, 7')
    a('v_add_u32 v5, s42, v5')
    for th in range(2):
        a(f'buffer_store_dwordx4 v[{64+4*th}:{67+4*th}], v5, s[{SRD0}:{SRD0+3}], 0 offen offset:{WS_UT+64*th} {SC}')


def emit_shelper(a, tag, SH, SC):
    srd(a, SRD0, P_WS, 0, 0x1000000)
    a(f'v_lshrrev_b32 v2, 3, v{V_LANE}')
    a(f'v_and_b32 v3, 7, v{V_LANE}')
    a(f's_lshl_b32 s42, s{S_WAVE}, 7')
    a('v_add_u32 v4, s42, v2')
    a('v_mul_u32_u24 v4, 3584, v4')
    a('v_lshl_add_u32 v4, v3, 4, v4')
    a(f's_lshl_b32 s42, s{SH}, 7')
    a('v_add_u32 v4, s42, v4')
    for jj in range(16):
        if jj:
            a(f'v_add_u32 v4, {8*3584}, v4')
        a(f'global_load_dwordx4 v[{64+4*jj}:{67+4*jj}], v4, s[{P_W1}:{P_W1+1}]')
    for k in range(8):
        a(f'v_mov_b32 v{8+k}, 0')
    for jj in range(16):
        for d in range(4):
            a(f'v_lshlrev_b32 v{16+2*d}, 16, v{64+4*jj+d}')
            a(f'v_and_b32 v{17+2*d}, 0xffff0000, v{64+4*jj+d}')
        for k in range(8):
            a(f'v_add_f32 v{8+k}, v{8+k}, v{16+k}')
    a(f's_lshl_b32 s42, s{S_WAVE}, 3')
    a('v_add_u32 v4, s42, v2')
    a('v_lshlrev_b32 v4, 8, v4')
    a('v_lshl_add_u32 v4, v3, 5, v4')
    a('ds_write_b128 v4, v[8:11]')
    a('ds_write_b128 v4, v[12:15] offset:16')
    a('s_waitcnt lgkmcnt(0)')
    a('s_barrier')
    a(f's_cmp_eq_u32 s{S_WAVE}, 0')
    a(f's_cbranch_scc0 L_{tag}_done')
    a(f'v_lshlrev_b32 v4, 2, v{V_LANE}')
    for r in range(32):
        a(f'ds_read_b32 v{64+r}, v4 offset:{256*r}')
    for r in range(1, 32):
        a(f'v_add_f32 v64, v64, v{64+r}')
    a(f's_lshl_b32 s42, s{SH}, 8')
    a(f's_add_u32 s42, s42, {hex(WS_S)}')
    a('v_add_u32 v4, s42, v4')
    a(f'buffer_store_dword v64, v4, s[{SRD0}:{SRD0+3}], 0 offen {SC}')
    a.label(f'L_{tag}_done')
    a.hist = []


L_PQ = 15360
PQ_ROW = 272
L_UC = 0
UC_COPY, UC_CH = 4160, 16640
L_XC = 33280
L_KT = 61440
KT_CH = 4576
L_KC = 70592
KC_CH = 1536
L_XK = 73664


def kidx(l):
    u = struct.unpack('<I', struct.pack('<f', float(l)))[0]
    b = (u + 0x7FFF + ((u >> 16) & 1)) >> 16
    return l if l < 128 else b - 17024


def cmul(a, cr, ci, ar, ai, br, bi, nbi):
    a(f'v_mul_f32 v{cr}, v{ar}, v{br}')
    a(f'v_mul_f32 v{ci}, v{ar}, v{bi}')
    a(f'v_fmac_f32 v{cr}, v{ai}, v{nbi}')
    a(f'v_fmac_f32 v{ci}, v{ai}, v{br}')


def emit_ssm_loads(a):
    C, MH = 79, 80
    a(f's_lshr_b32 s{C}, s{S_WAVE}, 1')
    a(f's_and_b32 s{MH}, s{S_WAVE}, 1')
    a(f's_lshl_b32 s42, s{S_IDX}, 1')
    a(f's_add_u32 s81, s42, s{C}')
    a('s_lshl_b32 s42, s81, 8')
    a(f's_lshl_b32 s43, s{MH}, 7')
    a('s_add_u32 s42, s42, s43')
    a(f'v_lshlrev_b32 v38, 1, v{V_LANE}')
    a('v_add_u32 v38, s42, v38')
    for k, p in enumerate((P_ARE, P_AIM, P_BRE, P_BIM, P_CRE, P_CIM)):
        a(f'global_load_ushort v{40+k}, v38, s[{p}:{p+1}]')
    a(f's_lshl_b32 s42, s{S_IDX}, 2')
    a(f's_load_dword s77, s[{P_LDT}:{P_LDT+1}], s42')
    a(f's_load_dword s78, s[{P_DSK}:{P_DSK+1}], s42')


def emit_cis(a, outr, outi, A, B, m, t0):
    a(f'v_mul_f32 v{t0}, {f32(float(m))}, v{A}')
    a(f'v_mul_f32 v{t0+1}, {f32(float(m))}, v{B}')
    a(f'v_exp_f32 v{t0}, v{t0}')
    a(f'v_fract_f32 v{t0+1}, v{t0+1}')
    a(f'v_cos_f32 v{outr}, v{t0+1}')
    a(f'v_sin_f32 v{outi}, v{t0+1}')
    a(f'v_mul_f32 v{outr}, v{outr}, v{t0}')
    a(f'v_mul_f32 v{outi}, v{outi}, v{t0}')


def emit_kgen(a, tag, mid_hook=None, pre_mfma=None, post_mfma=None):
    C, MH, D = 79, 80, 81
    a('s_waitcnt lgkmcnt(0)')
    a(f's_lshl_b32 s42, s{C}, 4')
    a('s_lshr_b32 s77, s77, s42')
    a('s_lshl_b32 s77, s77, 16')
    a('s_lshr_b32 s78, s78, s42')
    a('s_lshl_b32 s78, s78, 16')
    a('v_mov_b32 v2, s77')
    a(f'v_mul_f32 v3, {f32(LOG2E)}, v2')
    hi = struct.unpack('<f', struct.pack('<f', LOG2E))[0]
    a(f's_mov_b32 s42, {f32(LOG2E)}')
    a('v_fma_f32 v4, v2, s42, -v3')
    a(f'v_fmac_f32 v4, {f32(LOG2E - hi)}, v2')
    a('v_exp_f32 v3, v3')
    a(f'v_mul_f32 v4, {f32(math.log(2))}, v4')
    a('v_fmac_f32 v3, v3, v4')
    bf16_round(a, 2, 3)
    for k in range(6):
        a(f'v_lshlrev_b32 v{40+k}, 16, v{40+k}')
    ZA, ZB = 46, 47
    a(f'v_mul_f32 v{ZA}, v2, v40')
    a(f'v_mul_f32 v{ZB}, v2, v41')
    a(f'v_mul_f32 v{ZA}, {f32(LOG2E)}, v{ZA}')
    a(f'v_mul_f32 v{ZB}, {f32(1/(2*math.pi))}, v{ZB}')
    a('v_mul_f32 v42, v2, v42')
    a('v_mul_f32 v43, v2, v43')
    WR, WI = 48, 49
    a(f'v_mul_f32 v{WR}, v44, v42')
    a(f'v_mul_f32 v{WI}, v44, v43')
    a('v_mul_f32 v3, v45, v43')
    a(f'v_fmac_f32 v{WI}, v45, v42')
    a(f'v_sub_f32 v{WR}, v{WR}, v3')
    E1, E8, E256, E2, E4 = 50, 53, 56, 59, 62
    emit_cis(a, E1, E1 + 1, ZA, ZB, 1, 4)
    emit_cis(a, E8, E8 + 1, ZA, ZB, 8, 6)
    emit_cis(a, E256, E256 + 1, ZA, ZB, 256, 8)
    for e in (E1, E8, E256):
        a(f'v_sub_f32 v{e+2}, 0, v{e+1}')
    cmul(a, E2, E2 + 1, E1, E1 + 1, E1, E1 + 1, E1 + 2)
    a(f'v_sub_f32 v{E2+2}, 0, v{E2+1}')
    cmul(a, E4, E4 + 1, E2, E2 + 1, E2, E2 + 1, E2 + 2)
    a(f'v_sub_f32 v{E4+2}, 0, v{E4+1}')
    VA = 39
    a(f's_mul_i32 s42, s{S_WAVE}, {L_PQ}')
    a(f'v_lshlrev_b32 v{VA}, 2, v{V_LANE}')
    a(f'v_add_u32 v{VA}, s42, v{VA}')
    pk = [70, 71, 72, 73]
    cnt = [0]
    def put(row, re, im, neg):
        r = pk[cnt[0] % 4]; cnt[0] += 1
        a(f'v_cvt_pk_bf16_f32 v{r}, v{re}, {"-" if neg else ""}v{im}')
        a(f'ds_write_b32 v{VA}, v{r} offset:{row*PQ_ROW}')
    q = [(66, 67), (68, 69)]
    a('v_mov_b32 v66, 1.0')
    a('v_mov_b32 v67, 0')
    put(24, 66, 67, False)
    put(25, E8, E8 + 1, False)
    cur = (E8, E8 + 1)
    for j in range(2, 32):
        nxt = q[j % 2]
        cmul(a, nxt[0], nxt[1], cur[0], cur[1], E8, E8 + 1, E8 + 2)
        put(24 + j, nxt[0], nxt[1], False)
        cur = nxt
    if mid_hook:
        mid_hook()
    put(0, WR, WI, True)
    cur = (WR, WI)
    for p in range(1, 8):
        nxt = q[p % 2]
        cmul(a, nxt[0], nxt[1], cur[0], cur[1], E1, E1 + 1, E1 + 2)
        put(p, nxt[0], nxt[1], True)
        cur = nxt
    g = [(74, 75), (76, 77)]
    gc = (WR, WI)
    for k in range(1, 9):
        gn = g[k % 2]
        cmul(a, gn[0], gn[1], gc[0], gc[1], E256, E256 + 1, E256 + 2)
        row = {1: 8, 2: 12, 3: 14, 4: 16, 5: 17, 6: 18, 7: 19, 8: 20}[k]
        put(row, gn[0], gn[1], True)
        if k == 1:
            cur = gn
            for p in range(1, 4):
                nxt = q[p % 2]
                cmul(a, nxt[0], nxt[1], cur[0], cur[1], E2, E2 + 1, E2 + 2)
                put(8 + p, nxt[0], nxt[1], True)
                cur = nxt
        if k in (2, 3):
            cmul(a, 66, 67, gn[0], gn[1], E4, E4 + 1, E4 + 2)
            put(row + 1, 66, 67, True)
        gc = gn
    if pre_mfma:
        pre_mfma()
    a(f'v_and_b32 v2, 31, v{V_LANE}')
    a(f'v_lshrrev_b32 v3, 5, v{V_LANE}')
    a(f'v_mul_u32_u24 v4, {PQ_ROW}, v2')
    a('v_lshl_add_u32 v4, v3, 4, v4')
    a(f's_mul_i32 s42, s{S_WAVE}, {L_PQ}')
    a('v_add_u32 v4, s42, v4')
    for st in range(8):
        a(f'ds_read_b128 v[{128+8*st}:{131+8*st}], v4 offset:{32*st}')
        a(f'ds_read_b128 v[{132+8*st}:{135+8*st}], v4 offset:{24*PQ_ROW+32*st}')
    ACC = 96
    for st in range(8):
        c = '0' if st == 0 else f'v[{ACC}:{ACC+15}]'
        a(f'v_mfma_f32_32x32x16_bf16 v[{ACC}:{ACC+15}], v[{128+8*st}:{131+8*st}], v[{132+8*st}:{135+8*st}], {c}')
    if post_mfma:
        post_mfma()
    a(f's_lshl_b32 s42, s{MH}, 12')
    a(f'v_lshlrev_b32 v5, 5, v{V_LANE}')
    a('v_add_u32 v5, s42, v5')
    a('s_getpc_b64 s[44:45]')
    a.label(f'L_{tag}_pc')
    a(f's_add_u32 s44, s44, KIDX_TABLE-L_{tag}_pc')
    a('s_addc_u32 s45, s45, 0')
    for q2 in range(2):
        a(f'global_load_dwordx4 v[{200+8*q2}:{203+8*q2}], v5, s[44:45] offset:{2048*q2}')
        a(f'global_load_dwordx4 v[{204+8*q2}:{207+8*q2}], v5, s[44:45] offset:{2048*q2+16}')
    a(f's_mul_i32 s42, s{C}, 3072')
    a(f's_add_u32 s42, s42, {L_XK}')
    a(f'v_lshlrev_b32 v6, 4, v{V_LANE}')
    a('v_add_u32 v6, s42, v6')
    a(f's_cmp_eq_u32 s{MH}, 0')
    a(f's_cbranch_scc1 L_{tag}_k1')
    for i in range(3):
        a(f'ds_write_b128 v6, v[{ACC+4*i}:{ACC+4*i+3}] offset:{1024*i}')
    a.label(f'L_{tag}_k1')
    a.nop(12)
    a('s_waitcnt lgkmcnt(0)')
    a('s_barrier')
    a(f's_cmp_eq_u32 s{MH}, 0')
    a(f's_cbranch_scc0 L_{tag}_k2')
    for i in range(3):
        a(f'ds_read_b128 v[{128+4*i}:{131+4*i}], v6 offset:{1024*i}')
    for r in range(12):
        a(f'v_add_f32 v{ACC+r}, v{ACC+r}, v{128+r}')
    for r in range(6):
        a(f'v_cvt_pk_bf16_f32 v{128+r}, v{ACC+2*r}, v{ACC+2*r+1}')
    a(f's_mul_i32 s42, s{C}, {KC_CH}')
    a(f's_add_u32 s42, s42, {L_KC}')
    a('v_lshlrev_b32 v7, 4, v2')
    a('v_lshl_add_u32 v7, v3, 3, v7')
    a('v_add_u32 v7, s42, v7')
    a('ds_write_b64 v7, v[128:129]')
    a('v_cmp_eq_u32 vcc, 0, v3')
    a('v_lshlrev_b32 v8, 3, v2')
    a('v_add_u32 v8, 512, v8')
    a('v_lshlrev_b32 v9, 2, v2')
    a('v_add_u32 v10, 768, v9')
    a('v_cndmask_b32 v10, v10, v8, vcc')
    a('v_add_u32 v8, 4, v8')
    a('v_add_u32 v9, 896, v9')
    a('v_cndmask_b32 v9, v9, v8, vcc')
    a('v_add_u32 v10, s42, v10')
    a('v_add_u32 v9, s42, v9')
    a('ds_write_b32 v10, v130')
    a('ds_write_b32 v9, v131')
    a('v_lshlrev_b32 v8, 1, v2')
    a('v_lshl_add_u32 v8, v3, 8, v8')
    a('v_add_u32 v8, s42, v8')
    a('ds_write_b16 v8, v132 offset:1024')
    a('ds_write_b16_d16_hi v8, v132 offset:1088')
    a('ds_write_b16 v8, v133 offset:1152')
    a('ds_write_b16_d16_hi v8, v133 offset:1216')
    a.label(f'L_{tag}_k2')
    a.hist = []
    a('s_waitcnt lgkmcnt(0)')
    a.lgq = []
    a('s_barrier')
    a(f's_mul_i32 s42, s{C}, {KC_CH}')
    a(f's_add_u32 s42, s42, {L_KC}')
    for e in range(16):
        a(f'v_add_u32 v{200+e}, s42, v{200+e}')
    for e in range(16):
        a(f'ds_read_u16 v{216+e}, v{200+e}')
    for k in range(8):
        a(f'v_lshl_or_b32 v{128+k}, v{216+2*k+1}, 16, v{216+2*k}')
    a(f's_mul_i32 s42, s{C}, {KT_CH}')
    a(f's_add_u32 s42, s42, {L_KT}')
    a(f's_lshl_b32 s43, s{MH}, 11')
    a('s_sub_u32 s43, s42, s43')
    a(f's_add_u32 s43, s43, {16*255}')
    a(f'v_lshlrev_b32 v7, 4, v{V_LANE}')
    a('v_sub_u32 v7, s43, v7')
    a('ds_write_b128 v7, v[128:131]')
    a('v_subrev_u32 v8, 1024, v7')
    a('ds_write_b128 v8, v[132:135]')
    for k in range(4):
        a(f'v_mov_b32 v{136+k}, 0')
    a(f'v_lshlrev_b32 v8, 4, v{V_LANE}')
    a('s_add_u32 s42, s42, 4096')
    a('v_add_u32 v8, s42, v8')
    a('s_mov_b64 exec, 0x3fffffff')
    a('ds_write_b128 v8, v[136:139]')
    a('s_mov_b64 exec, -1')


def emit_ucopies(a, tag, SC):
    C, MH, D = 79, 80, 81
    a(f's_lshl_b32 s42, s{D}, 12')
    srd(a, SRD1, P_WS, 's42', 4096)
    a(f's_lshl_b32 s42, s{MH}, 11')
    a(f'v_lshlrev_b32 v2, 4, v{V_LANE}')
    a('v_add_u32 v2, s42, v2')
    a('v_subrev_u32 v3, 32, v2')
    a('v_add_u32 v4, 1024, v3')
    a('v_add_u32 v5, 2048, v3')
    E = [128, 136, 144]
    for q2, vo in ((0, 3), (1, 4), (2, 5)):
        a(f'buffer_load_dwordx4 v[{E[q2]}:{E[q2]+3}], v{vo}, s[{SRD1}:{SRD1+3}], 0 offen {SC}')
        a(f'v_add_u32 v6, 16, v{vo}')
        a(f'buffer_load_dwordx2 v[{E[q2]+4}:{E[q2]+5}], v6, s[{SRD1}:{SRD1+3}], 0 offen {SC}')
    a(f's_mul_i32 s42, s{C}, {UC_CH}')
    a(f's_add_u32 s42, s42, {L_UC}')
    a('v_add_u32 v2, s42, v2')
    for q2 in range(3):
        e = E[q2]
        if q2 == 2:
            a(f's_cmp_eq_u32 s{MH}, 1')
            a('s_cselect_b64 exec, 3, 0')
        T = 152
        for k in range(4):
            a(f'v_alignbit_b32 v{T+k}, v{e+k+1}, v{e+k}, 16')
        for k in range(4):
            a(f'v_mov_b32 v{T+4+k}, v{e+k+1}')
        for k in range(4):
            a(f'v_alignbit_b32 v{T+8+k}, v{e+k+2}, v{e+k+1}, 16')
        off = 1024 * q2
        a(f'ds_write_b128 v2, v[{e}:{e+3}] offset:{off}')
        a(f'ds_write_b128 v2, v[{T}:{T+3}] offset:{off+UC_COPY}')
        a(f'ds_write_b128 v2, v[{T+4}:{T+7}] offset:{off+2*UC_COPY}')
        a(f'ds_write_b128 v2, v[{T+8}:{T+11}] offset:{off+3*UC_COPY}')
    a('s_mov_b64 exec, -1')


def emit_conv(a, tag, SC):
    C, MH, D = 79, 80, 81
    VK, VU = 2, 3
    ACC = 16
    FA = [[64 + 4 * p for p in range(8)], [128 + 4 * p for p in range(8)]]
    FB = [[96 + 4 * p for p in range(8)], [160 + 4 * p for p in range(8)]]
    a(f'v_and_b32 v4, 15, v{V_LANE}')
    a(f'v_lshrrev_b32 v5, 4, v{V_LANE}')
    a('v_lshlrev_b32 v6, 1, v4')
    a('v_sub_u32 v6, v5, v6')
    a('v_lshlrev_b32 v6, 4, v6')
    a(f's_mul_i32 s42, s{C}, {KT_CH}')
    a(f's_add_u32 s42, s42, {L_KT + 16*282 - 64*59}')
    a(f's_lshl_b32 s43, s{MH}, 8')
    a('s_sub_u32 s42, s42, s43')
    a(f'v_add_u32 v{VK}, s42, v6')
    a('v_add_u32 v6, 1, v4')
    a('v_and_b32 v7, 3, v6')
    a('v_sub_u32 v6, v6, v7')
    a('v_lshlrev_b32 v6, 1, v6')
    a(f'v_mul_u32_u24 v7, {UC_COPY}, v7')
    a('v_add_u32 v6, v6, v7')
    a('v_lshl_add_u32 v6, v5, 4, v6')
    a(f's_mul_i32 s42, s{C}, {UC_CH}')
    a(f's_add_u32 s42, s42, {L_UC + 256}')
    a('s_sub_u32 s42, s42, s43')
    a(f'v_add_u32 v{VU}, s42, v6')
    def reads(rr, st, k):
        a(f'ds_read_b128 v[{FB[st][k]}:{FB[st][k]+3}], v{VK} offset:{64*(59-8*k-rr)}')
        o = 512 * k + 64 * (3 - rr)
        a(f'ds_read_b64 v[{FA[st][k]}:{FA[st][k]+1}], v{VU} offset:{o}')
        a(f'ds_read_b64 v[{FA[st][k]+2}:{FA[st][k]+3}], v{VU} offset:{o+8}')
    for k in range(8):
        reads(0, 0, k)
    for rr in range(4):
        st = rr & 1
        pairs = sorted([(qq, p) for qq in range(8) for p in range(8 - qq)], key=lambda x: (max(x), x))
        nxt = list(range(8)) if rr < 3 else []
        for n, (qq, p) in enumerate(pairs):
            j = qq + p
            first = (rr == 0 and not any(q2 + p2 == j for q2, p2 in pairs[:n]))
            c = '0' if first else f'v[{ACC+4*j}:{ACC+4*j+3}]'
            a(f'v_mfma_f32_16x16x32_bf16 v[{ACC+4*j}:{ACC+4*j+3}], v[{FA[st][p]}:{FA[st][p]+3}], v[{FB[st][qq]}:{FB[st][qq]+3}], {c}')
            if nxt and n % 4 == 3:
                reads(rr + 1, st ^ 1, nxt.pop(0))
        while nxt:
            reads(rr + 1, st ^ 1, nxt.pop(0))
    a(f's_lshl_b32 s42, s{S_WAVE}, 12')
    a(f's_add_u32 s42, s42, {L_XC}')
    a(f'v_lshlrev_b32 v6, 4, v{V_LANE}')
    a('v_add_u32 v7, s42, v6')
    a(f's_xor_b32 s43, s{S_WAVE}, 1')
    a('s_lshl_b32 s43, s43, 12')
    a(f's_add_u32 s43, s43, {L_XC}')
    a('v_add_u32 v8, s43, v6')
    a(f's_cmp_eq_u32 s{MH}, 0')
    a(f's_cbranch_scc1 L_{tag}_x0')
    a.nop(8)
    for jj in range(4):
        a(f'ds_write_b128 v7, v[{ACC+4*jj}:{ACC+4*jj+3}] offset:{1024*jj}')
    a.nop(2)
    for r in range(16):
        a(f'v_mov_b32 v{ACC+r}, v{ACC+16+r}')
    a(f's_branch L_{tag}_x1')
    a.label(f'L_{tag}_x0')
    a.hist = []
    a.nop(8)
    for jj in range(4):
        a(f'ds_write_b128 v7, v[{ACC+16+4*jj}:{ACC+16+4*jj+3}] offset:{1024*jj}')
    a.label(f'L_{tag}_x1')
    a.hist = []
    a('s_waitcnt lgkmcnt(0)')
    a.lgq = []
    a('s_barrier')
    for jj in range(4):
        a(f'ds_read_b128 v[{64+4*jj}:{67+4*jj}], v8 offset:{1024*jj}')
    a('v_lshlrev_b32 v9, 5, v4')
    a('v_lshl_add_u32 v9, v5, 3, v9')
    a(f's_lshl_b32 s43, s{MH}, 11')
    a('v_add_u32 v9, s43, v9')
    a(f's_mul_i32 s42, s{C}, {UC_CH}')
    a(f's_add_u32 s42, s42, {L_UC + 32}')
    a('v_add_u32 v10, s42, v9')
    for jj in range(4):
        a(f'ds_read_b64 v[{96+2*jj}:{97+2*jj}], v10 offset:{512*jj}')
    a(f's_lshl_b32 s42, s{D}, 12')
    a(f's_add_u32 s42, s42, {hex(WS_AT)}')
    a('v_add_u32 v9, s42, v9')
    srd(a, SRD0, P_WS, 0, 0x1000000)
    for r in range(16):
        a(f'v_add_f32 v{ACC+r}, v{ACC+r}, v{64+r}')
    for jj in range(4):
        Y = ACC + 4 * jj
        U = 104
        a(f'v_lshlrev_b32 v{U}, 16, v{96+2*jj}')
        a(f'v_and_b32 v{U+1}, 0xffff0000, v{96+2*jj}')
        a(f'v_lshlrev_b32 v{U+2}, 16, v{97+2*jj}')
        a(f'v_and_b32 v{U+3}, 0xffff0000, v{97+2*jj}')
        for r in range(4):
            a(f'v_mul_f32 v{U+r}, s78, v{U+r}')
        a(f'v_cvt_pk_bf16_f32 v{U}, v{U}, v{U+1}')
        a(f'v_cvt_pk_bf16_f32 v{U+1}, v{U+2}, v{U+3}')
        a(f'v_cvt_pk_bf16_f32 v{Y}, v{Y}, v{Y+1}')
        a(f'v_cvt_pk_bf16_f32 v{Y+1}, v{Y+2}, v{Y+3}')
        for h in range(2):
            a(f'v_lshlrev_b32 v{U+4+2*h}, 16, v{U+h}')
            a(f'v_and_b32 v{U+5+2*h}, 0xffff0000, v{U+h}')
            a(f'v_lshlrev_b32 v{U+8+2*h}, 16, v{Y+h}')
            a(f'v_and_b32 v{U+9+2*h}, 0xffff0000, v{Y+h}')
        for r in range(4):
            a(f'v_add_f32 v{U+4+r}, v{U+4+r}, v{U+8+r}')
        a(f'v_cvt_pk_bf16_f32 v{112+2*jj}, v{U+4}, v{U+5}')
        a(f'v_cvt_pk_bf16_f32 v{113+2*jj}, v{U+6}, v{U+7}')
        a(f'buffer_store_dwordx2 v[{112+2*jj}:{113+2*jj}], v9, s[{SRD0}:{SRD0+3}], 0 offen offset:{512*jj} {SC}')


G1_XS = [0, 16384, 32768]
G1_WS = [49152 + 8192 * k for k in range(4)]
GELU_C = 2.0 * 0.7978845608028654 * LOG2E


def emit_g1_index(a):
    a(f's_and_b32 s75, s{S_IDX}, 7')
    a(f's_lshr_b32 s74, s{S_IDX}, 3')
    a('s_mul_i32 s42, s74, 37')
    a('s_lshr_b32 s42, s42, 8')
    a('s_mul_i32 s43, s42, 7')
    a('s_sub_u32 s43, s74, s43')
    a('s_lshr_b32 s44, s75, 1')
    a('s_lshl_b32 s44, s44, 2')
    a('s_add_u32 s72, s44, s42')
    a('s_and_b32 s44, s75, 1')
    a('s_mul_i32 s44, s44, 7')
    a('s_add_u32 s73, s44, s43')


def emit_g1(a, tag, SC, pre_epilogue=None, hooks=None):
    TB, FB_ = 72, 73
    WF, WT = 82, 83
    hooks = hooks or {}
    a(f's_and_b32 s{WF}, s{S_WAVE}, 1')
    a(f's_lshr_b32 s{WT}, s{S_WAVE}, 1')
    a(f's_lshl_b32 s42, s{TB}, 17')
    srd(a, SRD1, P_X, 's42', 131072)
    a(f's_lshl_b32 s42, s{FB_}, 8')
    a(f's_sub_u32 s43, {512*3584}, s42')
    srd(a, SRD2, P_W1, 's42', 's43')
    VX0, VX1, VW0, VW1 = 2, 3, 4, 5
    a(f'v_lshrrev_b32 v6, 3, v{V_LANE}')
    a(f'v_and_b32 v7, 7, v{V_LANE}')
    a('v_lshrrev_b32 v8, 1, v6')
    a('v_xor_b32 v9, v7, v8')
    a(f's_lshl_b32 s42, s{S_WAVE}, 4')
    a('v_add_u32 v10, s42, v6')
    a('v_lshlrev_b32 v10, 10, v10')
    a(f'v_lshl_add_u32 v{VX0}, v9, 4, v10')
    a('v_xor_b32 v9, 4, v9')
    a(f'v_lshl_add_u32 v{VX1}, v9, 4, v10')
    a(f'v_add_u32 v{VX1}, {8*1024-1024}, v{VX1}')
    a(f'v_lshrrev_b32 v6, 4, v{V_LANE}')
    a(f'v_and_b32 v7, 15, v{V_LANE}')
    a('v_lshrrev_b32 v8, 2, v7')
    a('v_xor_b32 v8, v8, v6')
    a('v_and_b32 v7, 3, v7')
    a('v_lshl_add_u32 v8, v8, 2, v7')
    a(f's_lshl_b32 s42, s{S_WAVE}, 3')
    a('v_add_u32 v10, s42, v6')
    a('v_mul_u32_u24 v10, 3584, v10')
    a(f'v_lshl_add_u32 v{VW0}, v8, 4, v10')
    a(f'v_add_u32 v{VW1}, {4*3584-1024}, v{VW0}')
    a(f's_lshl_b32 s84, s{S_WAVE}, 11')
    tokW, tokX = {}, {}
    def dma_w(st):
        a(f's_add_u32 m0, s84, {G1_WS[st % 4]}')
        a(f's_mov_b32 s85, {st*32*3584}')
        a(f'buffer_load_dwordx4 v{VW0}, s[{SRD2}:{SRD2+3}], s85 offen lds')
        tokW[st] = a(f'buffer_load_dwordx4 v{VW1}, s[{SRD2}:{SRD2+3}], s85 offen offset:1024 lds')
    def dma_x(c, h):
        a(f's_add_u32 m0, s84, {G1_XS[c % 3] + 8192*h}')
        a(f's_mov_b32 s86, {c*128 + h*65536}')
        a(f'buffer_load_dwordx4 v{VX0}, s[{SRD1}:{SRD1+3}], s86 offen lds')
        tokX[(c, h)] = a(f'buffer_load_dwordx4 v{VX1}, s[{SRD1}:{SRD1+3}], s86 offen offset:1024 lds')
    dma_w(0); dma_x(0, 0); dma_x(0, 1); dma_w(1); dma_x(1, 0); dma_x(1, 1); dma_w(2)
    VA = [6, 7]; VB = [8, 9, 10, 11]
    a(f'v_lshrrev_b32 v12, 4, v{V_LANE}')
    a(f'v_and_b32 v13, 15, v{V_LANE}')
    a('v_lshrrev_b32 v14, 2, v13')
    a('v_and_b32 v13, 3, v13')
    a('v_lshrrev_b32 v15, 1, v12')
    a('v_and_b32 v12, 1, v12')
    a('v_lshl_add_u32 v15, v15, 3, v14')
    a('v_lshlrev_b32 v15, 8, v15')
    a('v_lshl_add_u32 v15, v12, 5, v15')
    a('v_lshl_add_u32 v15, v13, 3, v15')
    a(f'v_add_u32 v15, {G1_WS[0]}, v15')
    a(f's_lshl_b32 s42, s{WF}, 1')
    for ft in range(2):
        a(f's_add_u32 s43, s42, {ft}')
        a('v_xor_b32 v12, s43, v14')
        a(f'v_lshl_add_u32 v{VA[ft]}, v12, 6, v15')
    a(f'v_and_b32 v12, 31, v{V_LANE}')
    a(f'v_lshrrev_b32 v13, 5, v{V_LANE}')
    a('v_lshrrev_b32 v14, 1, v12')
    a('v_and_b32 v14, 7, v14')
    a(f's_lshl_b32 s42, s{WT}, 6')
    a('v_add_u32 v12, s42, v12')
    a('v_lshlrev_b32 v12, 7, v12')
    for kk in range(4):
        a(f'v_add_u32 v15, {2*kk}, v13')
        a('v_xor_b32 v15, v15, v14')
        a(f'v_lshl_add_u32 v{VB[kk]}, v15, 4, v12')
    ACC = 32
    FR = [96, 112]
    def reads(st, kap):
        base = FR[kap]
        lst = []
        if 'g1noread' in sys.argv: return lst
        for ft in range(2):
            o = (st % 4) * 8192 + kap * 16 * 256
            lst.append(f'ds_read_b64_tr_b16 v[{base+4*ft}:{base+4*ft+1}], v{VA[ft]} offset:{o}')
            lst.append(f'ds_read_b64_tr_b16 v[{base+4*ft+2}:{base+4*ft+3}], v{VA[ft]} offset:{o+1024}')
        for tt in range(2):
            kk = 2 * (st & 1) + kap
            lst.append(f'ds_read_b128 v[{base+8+4*tt}:{base+11+4*tt}], v{VB[kk]} offset:{G1_XS[(st>>1) % 3] + 4096*tt}')
        return lst
    def mfmas(st, kap, fill):
        base = FR[kap]
        n = 0
        for ft in range(2):
            for tt in range(2):
                acc = ACC + 32 * ft + 16 * tt
                c = '0' if (st == 0 and kap == 0) else f'v[{acc}:{acc+15}]'
                if 'g1nomfma' not in sys.argv or st == 0:
                    a(f'v_mfma_f32_32x32x16_bf16 v[{acc}:{acc+15}], v[{base+4*ft}:{base+4*ft+3}], v[{base+8+4*tt}:{base+11+4*tt}], {c}')
                for _ in range(2):
                    if fill: a(fill.pop(0))
        while fill: a(fill.pop(0))
    for st in range(16):
        need = [tokW[st]] + [tokX[(st >> 1, h)] for h in range(2)]
        if st + 1 < 16:
            need += [tokW[st + 1]] + [tokX[((st + 1) >> 1, h)] for h in range(2)]
        a.wait_vm_token(max(need))
        if 'g1nobar' not in sys.argv: a('s_barrier')
        if 'g1nodma' in sys.argv:
            tokW.setdefault(st + 3, tokW[2]); tokX.setdefault(((st >> 1) + 2, st & 1), tokX[(1, 1)])
        else:
            if st + 3 < 16: dma_w(st + 3)
            c = (st >> 1) + 2
            if c < 8: dma_x(c, st & 1)
        if st in hooks: hooks[st]()
        if st == 0:
            for l in reads(0, 0): a(l)
        mfmas(st, 0, reads(st, 1))
        mfmas(st, 1, reads(st + 1, 0) if st + 1 < 16 else [])
    if pre_epilogue:
        pre_epilogue()
    SV, BV = 128, 160
    MS = [12, 14]
    a(f'v_and_b32 v2, 31, v{V_LANE}')
    a(f'v_lshrrev_b32 v3, 5, v{V_LANE}')
    srd(a, SRD0, P_WS, 0, 0x1000000)
    a(f's_lshl_b32 s42, s{TB}, 7')
    a(f's_lshl_b32 s43, s{WT}, 6')
    a('s_add_u32 s42, s42, s43')
    a('v_add_u32 v4, s42, v2')
    a('v_lshlrev_b32 v4, 3, v4')
    a(f'v_add_u32 v4, {hex(WS_ST)}, v4')
    for tt in range(2):
        a(f'buffer_load_dwordx2 v[{MS[tt]}:{MS[tt]+1}], v4, s[{SRD0}:{SRD0+3}], 0 offen offset:{256*tt} {SC}')
    a(f's_lshl_b32 s42, s{FB_}, 7')
    a(f's_lshl_b32 s43, s{WF}, 6')
    a('s_add_u32 s42, s42, s43')
    a('v_lshlrev_b32 v5, 2, v3')
    a('v_add_u32 v5, s42, v5')
    a('v_lshlrev_b32 v6, 2, v5')
    a(f'v_add_u32 v6, {hex(WS_S)}, v6')
    a('v_lshlrev_b32 v5, 1, v5')
    for ft in range(2):
        for i in range(4):
            a(f'buffer_load_dwordx4 v[{SV+16*ft+4*i}:{SV+16*ft+4*i+3}], v6, s[{SRD0}:{SRD0+3}], 0 offen offset:{128*ft+32*i} {SC}')
            a(f'global_load_dwordx2 v[{192+8*ft+2*i}:{193+8*ft+2*i}], v5, s[{P_B1}:{P_B1+1}] offset:{64*ft+16*i}')
    for ft in range(2):
        for i in range(4):
            for h in range(2):
                a(f'v_lshlrev_b32 v{BV+16*ft+4*i+2*h}, 16, v{192+8*ft+2*i+h}')
                a(f'v_and_b32 v{BV+16*ft+4*i+2*h+1}, 0xffff0000, v{192+8*ft+2*i+h}')
    NM, SD, AL, BE = [16, 17], [13, 15], [18, 19], [20, 21]
    for tt in range(2):
        a(f'v_sub_f32 v{NM[tt]}, 0, v{MS[tt]}')
        a(f'v_rcp_f32 v22, v{SD[tt]}')
        a(f'v_mul_f32 v{AL[tt]}, {f32(-GELU_C)}, v22')
        a('v_mul_f32 v23, v22, v22')
        a(f'v_mul_f32 v23, v23, v{AL[tt]}')
        a(f'v_mul_f32 v{BE[tt]}, {f32(0.044715)}, v23')
    a(f's_lshl_b32 s42, s{TB}, 2')
    a(f's_lshl_b32 s43, s{WT}, 1')
    a('s_add_u32 s42, s42, s43')
    a('s_mul_i32 s42, s42, 112')
    a(f's_lshl_b32 s43, s{FB_}, 3')
    a('s_add_u32 s42, s42, s43')
    a(f's_lshl_b32 s43, s{WF}, 2')
    a('s_add_u32 s42, s42, s43')
    a('s_lshl_b32 s42, s42, 10')
    a(f's_add_u32 s42, s42, {hex(WS_H)}')
    a(f'v_lshlrev_b32 v4, 4, v{V_LANE}')
    a('v_add_u32 v4, s42, v4')
    a(f'v_add_u32 v5, {112*1024}, v4')
    VH = [4, 5]
    T = 208
    for ft in range(2):
        for tt in range(2):
            acc = ACC + 32 * ft + 16 * tt
            for j in range(2):
                r0 = 8 * j
                E = range(8)
                for e in E: a(f'v_fmac_f32 v{acc+r0+e}, v{BV+16*ft+r0+e}, v{SD[tt]}')
                for e in E: a(f'v_fmac_f32 v{acc+r0+e}, v{SV+16*ft+r0+e}, v{NM[tt]}')
                for e in E: a(f'v_mul_f32 v{T+e}, v{acc+r0+e}, v{acc+r0+e}')
                for e in E: a(f'v_fma_f32 v{T+e}, v{T+e}, v{BE[tt]}, v{AL[tt]}')
                for e in E: a(f'v_mul_f32 v{T+e}, v{T+e}, v{acc+r0+e}')
                for e in E: a(f'v_exp_f32 v{T+e}, v{T+e}')
                for e in E: a(f'v_fma_f32 v{T+e}, v{T+e}, v{SD[tt]}, v{SD[tt]}')
                for e in E: a(f'v_rcp_f32 v{T+e}, v{T+e}')
                for e in E: a(f'v_mul_f32 v{T+e}, v{T+e}, v{acc+r0+e}')
                H = 216 + 4 * ((2 * tt + j) % 4)
                for e in range(4): a(f'v_cvt_pk_bf16_f32 v{H+e}, v{T+2*e}, v{T+2*e+1}')
                a(f'buffer_store_dwordx4 v[{H}:{H+3}], v{VH[tt]}, s[{SRD0}:{SRD0+3}], 0 offen offset:{(2*ft+j)*1024} {SC}')
        if ('ft', ft) in hooks: hooks[('ft', ft)]()


def emit_g2(a, tag, SC, pre_h=None, pre_mix=None):
    TAU, DT = 87, 88
    a(f's_and_b32 s42, s{S_IDX}, 7')
    a(f's_lshr_b32 s43, s{S_IDX}, 3')
    a('s_lshl_b32 s42, s42, 2')
    a('s_lshr_b32 s44, s43, 3')
    a(f's_add_u32 s{TAU}, s42, s44')
    a(f's_and_b32 s{DT}, s43, 7')
    a(f's_lshl_b32 s42, s{DT}, 7')
    a(f's_sub_u32 s43, {1792*1024}, s42')
    srd(a, SRD2, P_W2, 's42', 's43')
    a(f's_mul_i32 s42, s{TAU}, {2*112*1024}')
    a(f's_add_u32 s42, s42, {hex(WS_H)}')
    srd(a, SRD3, P_WS, 's42', 2 * 112 * 1024)
    WD, WT = 82, 83
    a(f's_and_b32 s{WD}, s{S_WAVE}, 1')
    a(f's_lshr_b32 s{WT}, s{S_WAVE}, 1')
    VW0, VW1 = 2, 3
    a(f'v_lshrrev_b32 v6, 3, v{V_LANE}')
    a(f'v_and_b32 v7, 7, v{V_LANE}')
    a('v_lshrrev_b32 v8, 2, v7')
    a('v_lshrrev_b32 v9, 1, v6')
    a('v_and_b32 v9, 1, v9')
    a('v_xor_b32 v8, v8, v9')
    a('v_and_b32 v7, 3, v7')
    a('v_lshl_add_u32 v8, v8, 2, v7')
    a('v_lshlrev_b32 v6, 10, v6')
    a(f'v_lshl_add_u32 v{VW0}, v8, 4, v6')
    a(f'v_add_u32 v{VW1}, {8*1024-1024}, v{VW0}')
    a(f's_mul_i32 s84, s{S_WAVE}, 20480')
    a(f's_mul_i32 s85, s{S_WAVE}, {28*16384}')
    a(f's_mul_i32 s86, s{S_WAVE}, {28*1024}')
    tokW = {}
    def dma(k):
        a(f's_add_u32 m0, s84, {2048*(k % 10)}')
        a(f's_add_u32 s89, s85, {k*16384}')
        a(f'buffer_load_dwordx4 v{VW0}, s[{SRD2}:{SRD2+3}], s89 offen lds')
        tokW[k] = a(f'buffer_load_dwordx4 v{VW1}, s[{SRD2}:{SRD2+3}], s89 offen offset:1024 lds')
    for k in range(10): dma(k)
    VA = [4, 5]; VH = [6, 7]
    a(f'v_lshrrev_b32 v12, 4, v{V_LANE}')
    a(f'v_and_b32 v13, 15, v{V_LANE}')
    a('v_lshrrev_b32 v14, 2, v13')
    a('v_and_b32 v13, 3, v13')
    a('v_lshrrev_b32 v15, 1, v12')
    a('v_and_b32 v12, 1, v12')
    a('v_lshl_add_u32 v15, v15, 2, v14')
    a('v_lshlrev_b32 v15, 7, v15')
    a('v_lshl_add_u32 v15, v12, 5, v15')
    a('v_lshl_add_u32 v15, v13, 3, v15')
    a('v_lshrrev_b32 v14, 1, v14')
    a(f'v_xor_b32 v12, s{WD}, v14')
    a('v_lshl_add_u32 v16, v12, 6, v15')
    a('v_xor_b32 v12, 1, v12')
    a('v_lshl_add_u32 v17, v12, 6, v15')
    a(f'v_add_u32 v{VA[0]}, s84, v16')
    a(f'v_add_u32 v{VA[1]}, s84, v17')
    a(f'v_xor_b32 v12, s{WT}, v14')
    a('v_lshl_add_u32 v18, v12, 6, v15')
    a(f'v_lshlrev_b32 v12, 4, v{V_LANE}')
    a(f's_mul_i32 s42, s{WT}, {112*1024}')
    a(f'v_add_u32 v{VH[0]}, s42, v12')
    a(f's_sub_u32 s42, {112*1024}, s42')
    a(f'v_add_u32 v{VH[1]}, s42, v12')
    if pre_h: pre_h()
    HD = 6
    HB = 128
    ACC = 32
    FA = [96, 104]
    def hload(k):
        b = HB + 8 * (k % HD)
        a(f's_add_u32 s90, s86, {k*1024}')
        for tt in range(2):
            a(f'buffer_load_dwordx4 v[{b+4*tt}:{b+4*tt+3}], v{VH[tt]}, s[{SRD3}:{SRD3+3}], s90 offen {SC}')
    def wread(k):
        b = FA[k & 1]
        for dd in range(2):
            a(f'ds_read_b64_tr_b16 v[{b+4*dd}:{b+4*dd+1}], v{VA[dd]} offset:{2048*(k % 10)}')
            a(f'ds_read_b64_tr_b16 v[{b+4*dd+2}:{b+4*dd+3}], v{VA[dd]} offset:{2048*(k % 10)+1024}')
    for k in range(HD): hload(k)
    a.wait_vm_token(tokW[0]); wread(0)
    for k in range(28):
        if k + 1 < 28:
            a.wait_vm_token(tokW[k + 1]); wread(k + 1)
        b = HB + 8 * (k % HD); f = FA[k & 1]
        for tt in range(2):
            for dd in range(2):
                acc = ACC + 16 * (dd + 2 * tt)
                c = '0' if k == 0 else f'v[{acc}:{acc+15}]'
                a(f'v_mfma_f32_32x32x16_bf16 v[{acc}:{acc+15}], v[{f+4*dd}:{f+4*dd+3}], v[{b+4*tt}:{b+4*tt+3}], {c}')
        if k + HD < 28: hload(k + HD)
        if k + 10 < 28: dma(k + 10)
    a('s_waitcnt lgkmcnt(0)')
    a('s_barrier')
    if pre_mix: pre_mix()
    srd(a, SRD0, P_WS, 0, 0x1000000)
    a(f's_lshl_b32 s42, s{DT}, 18')
    a(f's_lshl_b32 s43, s{TAU}, 7')
    a('s_add_u32 s42, s42, s43')
    a(f's_lshl_b32 s43, s{S_WAVE}, 16')
    a('s_add_u32 s42, s42, s43')
    a(f's_add_u32 s89, s42, {hex(WS_AT)}')
    a(f'v_lshrrev_b32 v6, 3, v{V_LANE}')
    a('v_mul_u32_u24 v6, 3072, v6')
    a(f'v_add_u32 v8, v{VW0}, v6')
    a(f'v_add_u32 v9, {8*4096-1024}, v8')
    a(f's_lshl_b32 s43, s{S_WAVE}, 11')
    a('s_add_u32 m0, s43, 49152')
    a(f'buffer_load_dwordx4 v8, s[{SRD0}:{SRD0+3}], s89 offen lds {SC}')
    tokA = a(f'buffer_load_dwordx4 v9, s[{SRD0}:{SRD0+3}], s89 offen offset:1024 lds {SC}')
    a(f'v_and_b32 v2, 31, v{V_LANE}')
    a(f'v_lshrrev_b32 v3, 5, v{V_LANE}')
    a(f's_lshl_b32 s42, s{TAU}, 6')
    a(f's_lshl_b32 s43, s{WT}, 5')
    a('s_add_u32 s42, s42, s43')
    a('v_add_u32 v10, s42, v2')
    a('v_lshlrev_b32 v11, 2, v10')
    a(f'v_add_u32 v11, {hex(WS_G)}, v11')
    a(f'buffer_load_dword v12, v11, s[{SRD0}:{SRD0+3}], 0 offen {SC}')
    a(f's_lshl_b32 s42, s{DT}, 6')
    a(f's_lshl_b32 s43, s{WD}, 5')
    a('s_add_u32 s42, s42, s43')
    a('v_lshlrev_b32 v11, 2, v3')
    a('v_add_u32 v11, s42, v11')
    a('v_lshlrev_b32 v13, 1, v11')
    for i in range(4):
        a(f'global_load_dwordx2 v[{112+2*i}:{113+2*i}], v13, s[{P_B2}:{P_B2+1}] offset:{16*i}')
    a(f'v_lshlrev_b32 v14, 4, v{V_LANE}')
    for x in range(1, 4):
        a(f's_xor_b32 s42, s{S_WAVE}, {x}')
        a('s_mul_i32 s42, s42, 12288')
        a(f'v_add_u32 v15, s42, v14')
        for i in range(4):
            a(f'ds_write_b128 v15, v[{ACC+16*x+4*i}:{ACC+16*x+4*i+3}] offset:{4096*(x-1)+1024*i}')
    a.wait_vm_token(tokA)
    a('s_waitcnt lgkmcnt(0)')
    a('s_barrier')
    a(f's_mul_i32 s42, s{S_WAVE}, 12288')
    a('v_add_u32 v15, s42, v14')
    for x in range(3):
        for i in range(4):
            a(f'ds_read_b128 v[{128+16*x+4*i}:{128+16*x+4*i+3}], v15 offset:{4096*x+1024*i}')
    a(f's_lshl_b32 s42, s{WD}, 12')
    a('s_add_u32 s42, s42, 49152')
    a('v_add_u32 v18, s42, v18')
    for i in range(4):
        a(f'ds_read_b64_tr_b16 v[{176+2*i}:{177+2*i}], v18 offset:{1024*i}')
    a('v_sub_f32 v16, 1.0, v12')
    bf16_round(a, 16, 16)
    for x in range(3):
        for r in range(16):
            a(f'v_add_f32 v{ACC+r}, v{ACC+r}, v{128+16*x+r}')
    O = 184
    for i in range(4):
        T = 192
        for h in range(2):
            a(f'v_lshlrev_b32 v{T+2*h}, 16, v{112+2*i+h}')
            a(f'v_and_b32 v{T+2*h+1}, 0xffff0000, v{112+2*i+h}')
            a(f'v_lshlrev_b32 v{T+4+2*h}, 16, v{176+2*i+h}')
            a(f'v_and_b32 v{T+4+2*h+1}, 0xffff0000, v{176+2*i+h}')
        for r in range(4):
            a(f'v_add_f32 v{T+r}, v{T+r}, v{ACC+4*i+r}')
        if 'outb' in sys.argv:
            pass
        elif 'outa' in sys.argv:
            for r in range(4):
                a(f'v_mov_b32 v{T+r}, v{T+4+r}')
        else:
            for r in range(4):
                a(f'v_mul_f32 v{T+r}, v{T+r}, v16')
            for r in range(4):
                a(f'v_fmac_f32 v{T+r}, v{T+4+r}, v12')
        a(f'v_cvt_pk_bf16_f32 v{O+2*i}, v{T}, v{T+1}')
        a(f'v_cvt_pk_bf16_f32 v{O+2*i+1}, v{T+2}, v{T+3}')
    a('v_lshlrev_b32 v10, 10, v10')
    a(f's_lshl_b32 s42, s{DT}, 6')
    a(f's_lshl_b32 s43, s{WD}, 5')
    a('s_add_u32 s42, s42, s43')
    a('s_lshl_b32 s42, s42, 1')
    a('v_add_u32 v10, s42, v10')
    a('v_lshl_add_u32 v10, v3, 4, v10')
    srd(a, SRD1, P_OUT, 0, 2048 * 1024)
    for p in range(2):
        a(f'v_permlane32_swap_b32 v{O+4*p}, v{O+4*p+2}')
        a(f'v_permlane32_swap_b32 v{O+4*p+1}, v{O+4*p+3}')
        a(f'buffer_store_dwordx4 v[{O+4*p}:{O+4*p+3}], v10, s[{SRD1}:{SRD1+3}], 0 offen offset:{32*p}')


WS_DBG = 0xC00000
def dump_lds(a, base, nbytes, slot_bytes):
    a('s_waitcnt vmcnt(0) lgkmcnt(0)')
    a('s_barrier')
    srd(a, SRD5, P_WS, 0, 0x4000000)
    a(f's_mul_i32 s42, s{S_IDX}, {slot_bytes}')
    a(f's_add_u32 s42, s42, {hex(WS_DBG)}')
    a(f'v_lshlrev_b32 v250, 4, v{V_TID}')
    for o in range(0, nbytes, 4096):
        a(f'v_add_u32 v251, {base + o}, v250')
        a('ds_read_b128 v[252:255], v251')
        a(f'v_add_u32 v251, {o}, v250')
        a(f'v_add_u32 v251, s42, v251')
        a(f'buffer_store_dwordx4 v[252:255], v251, s[{SRD5}:{SRD5+3}], 0 offen')
        a('s_waitcnt vmcnt(0)')
    a('s_barrier')


def kd(name):
    return f"""
.amdhsa_kernel {name}
  .amdhsa_next_free_vgpr 256
  .amdhsa_next_free_sgpr 102
  .amdhsa_accum_offset 256
  .amdhsa_group_segment_fixed_size 0
  .amdhsa_kernarg_size 144
  .amdhsa_user_sgpr_count 2
  .amdhsa_user_sgpr_kernarg_segment_ptr 1
  .amdhsa_system_sgpr_workgroup_id_x 1
.end_amdhsa_kernel"""


def table():
    rows = []
    for lam in range(256):
        rows.append('.long ' + ', '.join(str(2 * kidx(8 * lam + 7 - e)) for e in range(8)))
    return '.p2align 8\nKIDX_TABLE:\n' + '\n'.join(rows) + '\n'


DEBUG = 'debug' in sys.argv
HEADER = open('cdna_kernels/' + NAME + '.s.ref').read().split('; Override launch')[0]


def build_multi():
    a = Asm()
    names = ['p0_kernel', 'mid_kernel', 'g2_kernel']
    a.raw(HEADER.rstrip())
    a.raw(f'; @launch kernel=p0_kernel grid=(284,1,1) block=(256,1,1) lds={LDS_BYTES}')
    a.raw(f'; @launch kernel=mid_kernel grid=(512,1,1) block=(256,1,1) lds={LDS_BYTES}')
    a.raw(f'; @launch kernel=g2_kernel grid=(256,1,1) block=(256,1,1) lds={LDS_BYTES}')
    a.raw('.amdgcn_target "amdgcn-amd-amdhsa--gfx950"')
    a.raw('.text')
    entry(a, 'p0_kernel', 284)
    a(f's_mov_b32 s{S_IDX}, s2')
    stamp(a, 0)
    a('s_cmp_ge_u32 s2, 256')
    a('s_cbranch_scc1 L_p0_sh')
    emit_p0(a, 'p0', '')
    a('s_waitcnt vmcnt(0)') if STAMP else None
    stamp(a, 1)
    a('s_branch L_p0_kernel_exit')
    a.label('L_p0_sh'); a.reset()
    a('s_sub_u32 s72, s2, 256')
    emit_shelper(a, 'sh', 72, '')
    a.label('L_p0_kernel_exit')
    a('s_endpgm')
    entry(a, 'mid_kernel', 512)
    stamp(a, 16)
    a('s_cmp_ge_u32 s2, 256')
    a('s_cbranch_scc1 L_mid_g1')
    a(f's_mov_b32 s{S_IDX}, s2')
    if 'nossm' in sys.argv: a('s_branch L_mid_kernel_exit')
    emit_ssm_loads(a)
    emit_kgen(a, 'kg')
    a('s_waitcnt lgkmcnt(0)')
    a('s_barrier')
    if DEBUG: dump_lds(a, L_KT, 20480, 20480)
    stamp(a, 17)
    emit_ucopies(a, 'uc', '')
    a('s_waitcnt lgkmcnt(0)')
    a('s_barrier')
    stamp(a, 18)
    emit_conv(a, 'cv', '')
    a('s_waitcnt vmcnt(0)') if STAMP else None
    stamp(a, 19)
    a('s_branch L_mid_kernel_exit')
    a.label('L_mid_g1'); a.reset()
    a(f's_sub_u32 s{S_IDX}, s2, 256')
    emit_g1_index(a)
    if 'nog1' in sys.argv: a('s_branch L_mid_kernel_exit')
    a('s_cmp_ge_u32 s74, 28')
    a('s_cbranch_scc1 L_mid_kernel_exit')
    emit_g1(a, 'g1', '', pre_epilogue=lambda: stamp(a, 17), hooks={0: lambda: stamp(a, 20), 1: lambda: stamp(a, 21), 4: lambda: stamp(a, 22), 8: lambda: stamp(a, 23), 12: lambda: stamp(a, 24)} if STAMP else None)
    a('s_waitcnt vmcnt(0)') if STAMP else None
    stamp(a, 19)
    a.label('L_mid_kernel_exit')
    a('s_endpgm')
    entry(a, 'g2_kernel', 256)
    a(f's_mov_b32 s{S_IDX}, s2')
    stamp(a, 32)
    emit_g2(a, 'g2', '', pre_mix=lambda: stamp(a, 33))
    a('s_waitcnt vmcnt(0)') if STAMP else None
    stamp(a, 35)
    a.label('L_g2_kernel_exit')
    a('s_endpgm')
    a.raw(table())
    a.raw('.section .rodata,"a"')
    for n in names:
        a.raw('.p2align 6')
        a.raw(kd(n).strip('\n'))
    return a.text()


if __name__ == '__main__':
    mode = sys.argv[1] if len(sys.argv) > 1 else 'multi'
    out = sys.argv[2] if len(sys.argv) > 2 else 'cdna_kernels/' + NAME + '.s'
    txt = {'multi': build_multi}[mode]()
    open(out, 'w').write(txt)
    print('wrote', out, len(txt), 'bytes')
```

```python
import math, struct, sys
from asmlib import Asm
import gen as G
from gen import *

SC = 'sc1'
SRDF, SRDD = SRD4, SRD5
SPIN_LIMIT = 20000
ARGS = set(sys.argv[1:])
slow_blocks = []


def setup_flag_srds(a):
    srd(a, SRDF, P_WS, WS_FL, FL_LINES * 128)
    srd(a, SRDD, P_DBG, 0, 256)


def set_exec(a, mask):
    if isinstance(mask, str):
        a(f's_mov_b64 exec, {mask}')
    elif mask < (1 << 31):
        a(f's_mov_b64 exec, {hex(mask)}')
    else:
        a(f's_mov_b32 exec_lo, {hex(mask & 0xffffffff)}')
        a(f's_mov_b32 exec_hi, {hex(mask >> 32)}')


def poll_issue(a, vd, vaddr, srd_, mask, off=0):
    set_exec(a, mask)
    tok = a(f'buffer_load_dword v{vd}, v{vaddr}, s[{srd_}:{srd_+3}], 0 offen offset:{off} {SC}')
    a('s_mov_b64 exec, -1')
    return tok


def cmp_mask(a, vd, mask):
    set_exec(a, mask)
    a(f'v_cmp_eq_u32 vcc, 1, v{vd}')
    a('s_mov_b64 s[46:47], exec')
    a('s_mov_b64 exec, -1')
    a('s_cmp_eq_u64 vcc, s[46:47]')


def spin(a, name, vd, vaddr, srd_, mask, off=0):
    a(f's_mov_b32 s45, {SPIN_LIMIT}')
    a.label(f'L_{name}_spin')
    set_exec(a, mask)
    a(f'buffer_load_dword v{vd}, v{vaddr}, s[{srd_}:{srd_+3}], 0 offen offset:{off} {SC}', opt=True)
    a('s_waitcnt vmcnt(0)')
    a(f'v_cmp_eq_u32 vcc, 1, v{vd}')
    a('s_mov_b64 s[46:47], exec')
    a('s_mov_b64 exec, -1')
    a('s_cmp_eq_u64 vcc, s[46:47]')
    a(f's_cbranch_scc1 L_{name}_done')
    a('s_sub_u32 s45, s45, 1')
    a('s_cmp_lg_u32 s45, 0')
    a(f's_cbranch_scc1 L_{name}_spin')
    a.label(f'L_{name}_done')


def check_or_spin(a, name, tok, vd, vaddr, srd_, mask, off=0):
    a.wait_vm_token(tok)
    cmp_mask(a, vd, mask)
    a(f's_cbranch_scc0 L_{name}_slow')
    a.label(f'L_{name}_back')
    slow_blocks.append((name, vd, vaddr, srd_, mask, off))


def emit_slow_blocks(a):
    for (name, vd, vaddr, srd_, mask, off) in slow_blocks:
        a.label(f'L_{name}_slow')
        a.reset()
        spin(a, name + 's', vd, vaddr, srd_, mask, off)
        a(f's_branch L_{name}_back')
    slow_blocks.clear()


def flag_store(a, vtmp, soff_expr_reg, extra=0, val=1):
    a(f'v_mov_b32 v{vtmp}, s{soff_expr_reg}')
    a(f'v_mov_b32 v{vtmp+1}, {val}')
    a('s_mov_b64 exec, 1')
    a(f'buffer_store_dword v{vtmp+1}, v{vtmp}, s[{SRDF}:{SRDF+3}], 0 offen offset:{extra} {SC}', opt=True)
    a('s_mov_b64 exec, -1')


def wave0_only(a, name, fn):
    a(f's_cmp_eq_u32 s{S_WAVE}, 0')
    a(f's_cbranch_scc0 L_{name}_skip')
    st = a.save()
    fn()
    a.label(f'L_{name}_skip')
    a.hist = []
    a.vmq = st[1]; a.lgq = st[2]


def red32(a, r, t):
    red8(a, r)
    a(f'v_add_f32_dpp v{r}, v{r}, v{r} row_mirror row_mask:0xf bank_mask:0xf')
    a(f'v_mov_b32 v{t}, v{r}')
    a(f'v_permlane16_swap_b32 v{r}, v{t}')
    a(f'v_add_f32 v{r}, v{r}, v{t}')


def p0_loads(a):
    X, J, T0, TT, DT = 72, 73, 74, 75, 76
    a(f's_and_b32 s{X}, s{S_IDX}, 7')
    a(f's_lshr_b32 s{J}, s{S_IDX}, 3')
    a(f's_lshl_b32 s{T0}, s{X}, 8')
    a(f's_lshl_b32 s42, s{J}, 3')
    a(f's_add_u32 s{T0}, s{T0}, s42')
    a(f's_lshl_b32 s{TT}, s{X}, 2')
    a(f's_lshr_b32 s42, s{J}, 3')
    a(f's_add_u32 s{TT}, s{TT}, s42')
    a(f's_and_b32 s{DT}, s{J}, 7')
    a(f'v_lshrrev_b32 v2, 3, v{V_LANE}')
    a(f'v_and_b32 v3, 7, v{V_LANE}')
    a(f's_lshl_b32 s42, s{TT}, 6')
    a(f's_lshl_b32 s43, s{S_WAVE}, 4')
    a('s_add_u32 s42, s42, s43')
    a('v_add_u32 v4, s42, v2')
    a('v_lshlrev_b32 v4, 10, v4')
    a('v_lshl_add_u32 v4, v3, 4, v4')
    a(f's_lshl_b32 s42, s{DT}, 7')
    a('v_add_u32 v4, s42, v4')
    a(f'global_load_dwordx4 v[64:67], v4, s[{P_U}:{P_U+1}]')
    a('v_add_u32 v4, 0x2000, v4')
    a(f'global_load_dwordx4 v[68:71], v4, s[{P_U}:{P_U+1}]')
    a(f'v_lshrrev_b32 v5, 5, v{V_LANE}')
    a(f'v_and_b32 v6, 31, v{V_LANE}')
    a(f's_lshl_b32 s42, s{S_WAVE}, 1')
    a(f's_add_u32 s42, s42, s{T0}')
    a('v_add_u32 v7, s42, v5')
    a('v_lshlrev_b32 v8, 10, v7')
    a('v_lshlrev_b32 v9, 5, v6')
    a('v_add_u32 v8, v8, v9')
    for k in range(2):
        a(f'global_load_dwordx4 v[{72+4*k}:{75+4*k}], v8, s[{P_U}:{P_U+1}] offset:{16*k}')
    for k in range(2):
        a(f'global_load_dwordx4 v[{80+4*k}:{83+4*k}], v9, s[{P_GW}:{P_GW+1}] offset:{16*k}')


def p0_compute(a):
    X, J, T0, TT, DT = 72, 73, 74, 75, 76
    srd(a, SRD0, P_WS, 0, 0x1000000)
    a(f's_lshl_b32 s42, s{S_WAVE}, 4')
    a('v_add_u32 v10, s42, v2')
    a('v_mul_u32_u24 v10, 144, v10')
    a('v_lshl_add_u32 v10, v3, 4, v10')
    a(f'v_add_u32 v10, {L_KT}, v10')
    a('ds_write_b128 v10, v[64:67]')
    a(f'ds_write_b128 v10, v[68:71] offset:{8*144}')
    a('s_mov_b32 s46, 0x3f803f80')
    for k in range(4):
        a(f'v_mov_b32 v{12+k}, 0')
    for d in range(8):
        a(f'v_dot2_f32_bf16 v{12+d%2}, v{72+d}, s46, v{12+d%2}')
        a(f'v_dot2_f32_bf16 v{14+d%2}, v{72+d}, v{80+d}, v{14+d%2}')
    a('v_add_f32 v12, v12, v13')
    a('v_add_f32 v14, v14, v15')
    red32(a, 12, 16)
    red32(a, 14, 17)
    a(f'v_mul_f32 v12, {f32(1/512)}, v12')
    for k in range(4):
        a(f'v_mov_b32 v{20+k}, 0')
    for d in range(0, 8, 2):
        for e in range(2):
            a(f'v_lshlrev_b32 v{24+2*e}, 16, v{72+d+e}')
            a(f'v_and_b32 v{25+2*e}, 0xffff0000, v{72+d+e}')
        for e in range(4):
            a(f'v_sub_f32 v{24+e}, v{24+e}, v12')
        for e in range(4):
            a(f'v_fmac_f32 v{20+e}, v{24+e}, v{24+e}')
    a('v_add_f32 v20, v20, v21')
    a('v_add_f32 v22, v22, v23')
    a('v_add_f32 v20, v20, v22')
    red32(a, 20, 16)
    bf16_round(a, 14, 14)
    a(f'v_mul_f32 v14, {f32(-LOG2E)}, v14')
    a('v_exp_f32 v14, v14')
    a(f'v_mul_f32 v20, {f32(1/512)}, v20')
    a('v_add_f32 v14, 1.0, v14')
    a('v_rcp_f32 v14, v14')
    bf16_round(a, 20, 20)
    a(f'v_add_f32 v20, {f32(1e-5)}, v20')
    bf16_round(a, 14, 14)
    bf16_round(a, 20, 20)
    a('v_sqrt_f32 v20, v20')
    bf16_round(a, 12, 12)
    bf16_round(a, 13, 20)
    a('v_lshlrev_b32 v8, 2, v7')
    a(f'v_add_u32 v8, {hex(WS_G)}, v8')
    a('v_lshlrev_b32 v9, 3, v7')
    a(f'v_add_u32 v9, {hex(WS_ST)}, v9')
    a('s_mov_b32 exec_lo, 1')
    a('s_mov_b32 exec_hi, 1')
    a(f'buffer_store_dword v14, v8, s[{SRD0}:{SRD0+3}], 0 offen {SC}')
    a(f'buffer_store_dwordx2 v[12:13], v9, s[{SRD0}:{SRD0+3}], 0 offen {SC}')
    a('s_mov_b64 exec, -1')
    a('s_waitcnt lgkmcnt(0)')
    a('s_barrier')
    a(f'v_and_b32 v2, 15, v{V_LANE}')
    a(f'v_lshrrev_b32 v3, 4, v{V_LANE}')
    a('v_lshrrev_b32 v4, 2, v2')
    a('v_lshl_add_u32 v4, v3, 3, v4')
    a('v_mul_u32_u24 v4, 144, v4')
    a('v_and_b32 v5, 3, v2')
    a('v_lshl_add_u32 v4, v5, 3, v4')
    a(f's_lshl_b32 s42, s{S_WAVE}, 5')
    a(f's_add_u32 s42, s42, {L_KT}')
    a('v_add_u32 v4, s42, v4')
    for th in range(2):
        a(f'ds_read_b64_tr_b16 v[{64+4*th}:{65+4*th}], v4 offset:{th*32*144}')
        a(f'ds_read_b64_tr_b16 v[{66+4*th}:{67+4*th}], v4 offset:{th*32*144+4*144}')
    a(f's_lshl_b32 s42, s{DT}, 6')
    a(f's_lshl_b32 s43, s{S_WAVE}, 4')
    a('s_add_u32 s42, s42, s43')
    a('v_add_u32 v5, s42, v2')
    a('v_lshlrev_b32 v5, 12, v5')
    a('v_lshl_add_u32 v5, v3, 4, v5')
    a(f's_lshl_b32 s42, s{TT}, 7')
    a('v_add_u32 v5, s42, v5')
    for th in range(2):
        a(f'buffer_store_dwordx4 v[{64+4*th}:{67+4*th}], v5, s[{SRD0}:{SRD0+3}], 0 offen offset:{WS_UT+64*th} {SC}')


def ucopy_loads(a, opt):
    MH, D = 80, 81
    E = [160, 168, 176]
    for q2, vo in ((0, 30), (1, 31), (2, 32)):
        a(f'buffer_load_dwordx4 v[{E[q2]}:{E[q2]+3}], v{vo}, s[{SRD1}:{SRD1+3}], 0 offen {SC}', opt=opt)
        a(f'buffer_load_dwordx2 v[{E[q2]+4}:{E[q2]+5}], v{vo}, s[{SRD1}:{SRD1+3}], 0 offen offset:16 {SC}', opt=opt)


def ucopy_addr(a):
    MH, D = 80, 81
    a(f's_lshl_b32 s42, s{D}, 12')
    srd(a, SRD1, P_WS, 's42', 4096)
    a(f's_lshl_b32 s42, s{MH}, 11')
    a(f'v_lshlrev_b32 v29, 4, v{V_LANE}')
    a('v_add_u32 v29, s42, v29')
    a('v_subrev_u32 v30, 32, v29')
    a('v_add_u32 v31, 1024, v30')
    a('v_add_u32 v32, 2048, v30')


def ucopy_writes(a):
    C, MH = 79, 80
    E = [160, 168, 176]
    a(f's_mul_i32 s42, s{C}, {UC_CH}')
    a(f's_add_u32 s42, s42, {L_UC}')
    a('v_add_u32 v2, s42, v29')
    for q2 in range(3):
        e = E[q2]
        if q2 == 2:
            a(f's_cmp_eq_u32 s{MH}, 1')
            a('s_cselect_b64 exec, 3, 0')
        T = 184 + 12 * (q2 & 1)
        for k in range(4):
            a(f'v_alignbit_b32 v{T+k}, v{e+k+1}, v{e+k}, 16')
        for k in range(4):
            a(f'v_mov_b32 v{T+4+k}, v{e+k+1}')
        for k in range(4):
            a(f'v_alignbit_b32 v{T+8+k}, v{e+k+2}, v{e+k+1}, 16')
        off = 1024 * q2
        a(f'ds_write_b128 v2, v[{e}:{e+3}] offset:{off}')
        a(f'ds_write_b128 v2, v[{T}:{T+3}] offset:{off+UC_COPY}')
        a(f'ds_write_b128 v2, v[{T+4}:{T+7}] offset:{off+2*UC_COPY}')
        a(f'ds_write_b128 v2, v[{T+8}:{T+11}] offset:{off+3*UC_COPY}')
    a('s_mov_b64 exec, -1')


def ssm_role(a):
    a(f's_mov_b32 s{S_IDX}, s2')
    stamp(a, 0)
    p0_loads(a)
    emit_ssm_loads(a)
    setup_flag_srds(a)
    p0_compute(a)
    stamp(a, 1)
    a('v_mov_b32 v33, 0')
    tok_rdy = poll_issue(a, 34, 33, SRDD, 1)
    DTC = 77
    def publish():
        a('s_waitcnt vmcnt(0)')
        check_or_spin(a, 'ssm_rdy', tok_rdy, 34, 33, SRDD, 1)
        a('s_barrier')
        def f():
            a(f's_lshl_b32 s42, s{S_IDX}, 7')
            a(f's_add_u32 s42, s42, {FL_P0}')
            flag_store(a, 35, 42)
        wave0_only(a, 'ssm_pub', f)
        stamp(a, 2)
    state = {}
    def mid():
        publish()
    def pre_mfma():
        a(f's_lshr_b32 s42, s{S_IDX}, 5')
        a(f'v_and_b32 v35, 7, v{V_LANE}')
        a(f'v_lshrrev_b32 v36, 3, v{V_LANE}')
        a('v_lshlrev_b32 v36, 3, v36')
        a('v_add_u32 v36, s42, v36')
        a('v_lshl_add_u32 v35, v36, 3, v35')
        a('v_lshlrev_b32 v35, 7, v35')
        state['tok'] = poll_issue(a, 34, 35, SRDF, 0xffffffff, FL_P0)
        ucopy_addr(a)
    def post_mfma():
        a.wait_vm_token(state['tok'])
        cmp_mask(a, 34, 0xffffffff)
        a('s_cselect_b32 s82, 1, 0')
        a('s_cbranch_scc0 L_ssm_noearly')
        st = a.save()
        ucopy_loads(a, True)
        a.label('L_ssm_noearly')
        a.hist = []; a.vmq = st[1]; a.lgq = st[2]
    G.emit_kgen(a, 'kg', mid_hook=mid, pre_mfma=pre_mfma, post_mfma=post_mfma)
    stamp(a, 3)
    a('s_cmp_eq_u32 s82, 1')
    a('s_cbranch_scc1 L_ssm_have')
    spin(a, 'ssm_ut', 34, 35, SRDF, 0xffffffff, FL_P0)
    ucopy_loads(a, True)
    a.label('L_ssm_have')
    a.hist = []
    a('s_waitcnt vmcnt(0) lgkmcnt(0)')
    a('s_barrier')
    stamp(a, 4)
    ucopy_writes(a)
    a('s_waitcnt lgkmcnt(0)')
    a('s_barrier')
    stamp(a, 5)
    emit_conv(a, 'cv', SC)
    stamp(a, 6)
    a('s_waitcnt vmcnt(0)')
    a('s_barrier')
    def f():
        a(f's_lshl_b32 s42, s{S_IDX}, 7')
        a(f's_add_u32 s42, s42, {FL_A}')
        flag_store(a, 35, 42)
    wave0_only(a, 'ssm_pub2', f)
    stamp(a, 7)


TB, FB_, JJ, XC = 72, 73, 74, 75
WF, WT = 82, 83
TAU, DT = 87, 88
SK = list(range(6, 22)) + list(range(90, 102))
R1 = 10
W2R = [96 + 4 * k for k in range(8)] + [32 + 4 * k for k in range(8)] + [232 + 4 * k for k in range(4)]
G2ACC = [64, 80, 128, 144]
HD = 6
HRING = [160 + 4 * k for k in range(12)]
G2FA = [208, 216]


def g2_index(a):
    a(f's_lshl_b32 s42, s{XC}, 2')
    a(f's_lshr_b32 s44, s{JJ}, 3')
    a(f's_add_u32 s{TAU}, s42, s44')
    a(f's_and_b32 s{DT}, s{JJ}, 7')
    a(f's_lshl_b32 s42, s{DT}, 1')
    a('s_cmp_ge_u32 s42, 14')
    a('s_cselect_b32 s43, 14, 0')
    a('s_sub_u32 s42, s42, s43')
    a(f's_mul_i32 s44, s{S_WAVE}, 28')
    for k in range(14):
        a('s_lshr_b32 s43, s42, 1')
        a('s_lshl_b32 s43, s43, 2')
        a('s_and_b32 s45, s42, 1')
        a('s_add_u32 s43, s43, s45')
        a('s_add_u32 s43, s43, s44')
        a(f's_lshl_b32 s{SK[k]}, s43, 10')
        a(f's_add_u32 s{SK[k+14]}, s{SK[k]}, 2048')
        if k < 13:
            a('s_add_u32 s42, s42, 1')
            a('s_cmp_eq_u32 s42, 14')
            a('s_cselect_b32 s42, 0, s42')


class G2State:
    pass


def g2_setup(a, g):
    a(f's_lshl_b32 s42, s{DT}, 7')
    a(f's_sub_u32 s43, {1792*1024}, s42')
    srd(a, SRD2, P_W2, 's42', 's43')
    a(f's_mul_i32 s42, s{TAU}, {2*112*1024}')
    a(f's_add_u32 s42, s42, {hex(WS_H)}')
    srd(a, SRD3, P_WS, 's42', 2 * 112 * 1024)
    a(f's_and_b32 s{WF}, s{S_WAVE}, 1')
    a(f's_lshr_b32 s{WT}, s{S_WAVE}, 1')
    a(f'v_lshrrev_b32 v6, 3, v{V_LANE}')
    a(f'v_and_b32 v7, 7, v{V_LANE}')
    a('v_lshrrev_b32 v8, 2, v7')
    a('v_lshrrev_b32 v9, 1, v6')
    a('v_and_b32 v9, 1, v9')
    a('v_xor_b32 v8, v8, v9')
    a('v_and_b32 v7, 3, v7')
    a('v_lshl_add_u32 v8, v8, 2, v7')
    a('v_lshlrev_b32 v6, 10, v6')
    a('v_lshl_add_u32 v2, v8, 4, v6')
    a(f'v_add_u32 v3, {8*1024-1024}, v2')
    a(f's_mul_i32 s84, s{S_WAVE}, 20480')
    a(f'v_lshrrev_b32 v6, 4, v{V_LANE}')
    a(f'v_and_b32 v7, 15, v{V_LANE}')
    a('v_lshrrev_b32 v8, 2, v7')
    a('v_and_b32 v7, 3, v7')
    a('v_lshrrev_b32 v9, 1, v6')
    a('v_and_b32 v6, 1, v6')
    a('v_lshl_add_u32 v9, v9, 2, v8')
    a('v_lshlrev_b32 v9, 7, v9')
    a('v_lshl_add_u32 v9, v6, 5, v9')
    a('v_lshl_add_u32 v9, v7, 3, v9')
    a('v_lshrrev_b32 v8, 1, v8')
    a(f'v_xor_b32 v8, s{WF}, v8')
    a('v_lshl_add_u32 v4, v8, 6, v9')
    a('v_xor_b32 v8, 1, v8')
    a('v_lshl_add_u32 v5, v8, 6, v9')
    a('v_add_u32 v4, s84, v4')
    a('v_add_u32 v5, s84, v5')
    a(f'v_lshlrev_b32 v8, 4, v{V_LANE}')
    a(f's_mul_i32 s42, s{WT}, {112*1024}')
    a('v_add_u32 v6, s42, v8')
    a(f's_sub_u32 s42, {112*1024}, s42')
    a('v_add_u32 v7, s42, v8')
    g.tokW = {}


def g2_dma(a, g, k):
    slot = k % 10
    a(f's_add_u32 m0, s84, {2048*slot}')
    a(f's_lshl_b32 s89, s{SK[k]}, 4')
    a(f'buffer_load_dwordx4 v2, s[{SRD2}:{SRD2+3}], s89 offen lds')
    g.tokW[k] = a(f'buffer_load_dwordx4 v3, s[{SRD2}:{SRD2+3}], s89 offen offset:1024 lds')


def g2_wread(a, k, regs):
    slot = k % 10
    for dd in range(2):
        a(f'ds_read_b64_tr_b16 v[{regs[dd]}:{regs[dd]+1}], v{4+dd} offset:{2048*slot}')
        a(f'ds_read_b64_tr_b16 v[{regs[dd]+2}:{regs[dd]+3}], v{4+dd} offset:{2048*slot+1024}')


def g2_round1_reads(a, g):
    a.wait_vm_token(g.tokW[R1 - 1])
    for k in range(R1):
        g2_wread(a, k, W2R[2*k:2*k+2])


def g2_round2_dma(a, g):
    a('s_waitcnt lgkmcnt(0)')
    for k in range(R1, R1 + 10):
        g2_dma(a, g, k)


def g1_role(a, g):
    a(f's_and_b32 s{WF}, s{S_WAVE}, 1')
    a(f's_lshr_b32 s{WT}, s{S_WAVE}, 1')
    a(f's_lshl_b32 s42, s{TB}, 17')
    srd(a, SRD1, P_X, 's42', 131072)
    a(f's_lshl_b32 s42, s{FB_}, 8')
    a(f's_sub_u32 s43, {512*3584}, s42')
    srd(a, SRD2, P_W1, 's42', 's43')
    VX0, VX1, VW0, VW1 = 2, 3, 4, 5
    a(f'v_lshrrev_b32 v6, 3, v{V_LANE}')
    a(f'v_and_b32 v7, 7, v{V_LANE}')
    a('v_lshrrev_b32 v8, 1, v6')
    a('v_xor_b32 v9, v7, v8')
    a(f's_lshl_b32 s42, s{S_WAVE}, 4')
    a('v_add_u32 v10, s42, v6')
    a('v_lshlrev_b32 v10, 10, v10')
    a(f'v_lshl_add_u32 v{VX0}, v9, 4, v10')
    a('v_xor_b32 v9, 4, v9')
    a(f'v_lshl_add_u32 v{VX1}, v9, 4, v10')
    a(f'v_add_u32 v{VX1}, {8*1024-1024}, v{VX1}')
    a(f'v_lshrrev_b32 v6, 4, v{V_LANE}')
    a(f'v_and_b32 v7, 15, v{V_LANE}')
    a('v_lshrrev_b32 v8, 2, v7')
    a('v_xor_b32 v8, v8, v6')
    a('v_and_b32 v7, 3, v7')
    a('v_lshl_add_u32 v8, v8, 2, v7')
    a(f's_lshl_b32 s42, s{S_WAVE}, 3')
    a('v_add_u32 v10, s42, v6')
    a('v_mul_u32_u24 v10, 3584, v10')
    a(f'v_lshl_add_u32 v{VW0}, v8, 4, v10')
    a(f'v_add_u32 v{VW1}, {4*3584-1024}, v{VW0}')
    a(f's_lshl_b32 s84, s{S_WAVE}, 11')
    tokW, tokX = {}, {}
    ROT = 79
    def dma_w(st):
        a(f's_add_u32 m0, s84, {G1_WS[st % 4]}')
        a(f's_add_u32 s85, s{ROT}, {128*(st >> 1)}')
        a('s_and_b32 s85, s85, 1023')
        a('s_mul_i32 s85, s85, 1792')
        if st & 1: a(f's_add_u32 s85, s85, {32*3584}')
        a(f'buffer_load_dwordx4 v{VW0}, s[{SRD2}:{SRD2+3}], s85 offen lds')
        tokW[st] = a(f'buffer_load_dwordx4 v{VW1}, s[{SRD2}:{SRD2+3}], s85 offen offset:1024 lds')
    def dma_x(c, h):
        a(f's_add_u32 m0, s84, {G1_XS[c % 3] + 8192*h}')
        a(f's_add_u32 s86, s{ROT}, {128*c}')
        a('s_and_b32 s86, s86, 1023')
        if h: a('s_or_b32 s86, s86, 65536')
        a(f'buffer_load_dwordx4 v{VX0}, s[{SRD1}:{SRD1+3}], s86 offen lds')
        tokX[(c, h)] = a(f'buffer_load_dwordx4 v{VX1}, s[{SRD1}:{SRD1+3}], s86 offen offset:1024 lds')
    dma_w(0); dma_x(0, 0); dma_x(0, 1); dma_w(1); dma_x(1, 0); dma_x(1, 1); dma_w(2)
    stamp(a, 1)
    g2_index(a)
    VA = [6, 7]; VB = [8, 9, 10, 11]
    a(f'v_lshrrev_b32 v12, 4, v{V_LANE}')
    a(f'v_and_b32 v13, 15, v{V_LANE}')
    a('v_lshrrev_b32 v14, 2, v13')
    a('v_and_b32 v13, 3, v13')
    a('v_lshrrev_b32 v15, 1, v12')
    a('v_and_b32 v12, 1, v12')
    a('v_lshl_add_u32 v15, v15, 3, v14')
    a('v_lshlrev_b32 v15, 8, v15')
    a('v_lshl_add_u32 v15, v12, 5, v15')
    a('v_lshl_add_u32 v15, v13, 3, v15')
    a(f'v_add_u32 v15, {G1_WS[0]}, v15')
    a(f's_lshl_b32 s42, s{WF}, 1')
    for ft in range(2):
        a(f's_add_u32 s43, s42, {ft}')
        a('v_xor_b32 v12, s43, v14')
        a(f'v_lshl_add_u32 v{VA[ft]}, v12, 6, v15')
    a(f'v_and_b32 v12, 31, v{V_LANE}')
    a(f'v_lshrrev_b32 v13, 5, v{V_LANE}')
    a('v_lshrrev_b32 v14, 1, v12')
    a('v_and_b32 v14, 7, v14')
    a(f's_lshl_b32 s42, s{WT}, 6')
    a('v_add_u32 v12, s42, v12')
    a('v_lshlrev_b32 v12, 7, v12')
    for kk in range(4):
        a(f'v_add_u32 v15, {2*kk}, v13')
        a('v_xor_b32 v15, v15, v14')
        a(f'v_lshl_add_u32 v{VB[kk]}, v15, 4, v12')
    SV, BV, RAW = 128, 160, 192
    MS = [12, 14]
    setup_flag_srds(a)
    srd(a, SRD0, P_WS, 0, 0x1000000)
    a('v_mov_b32 v24, 0')
    a(f's_lshr_b32 s42, s{TB}, 1')
    a(f's_and_b32 s43, s{TB}, 1')
    a('s_lshl_b32 s43, s43, 7')
    a('s_add_u32 s42, s42, s43')
    a(f'v_lshlrev_b32 v25, 3, v{V_LANE}')
    a('v_add_u32 v25, s42, v25')
    a('v_lshlrev_b32 v25, 7, v25')
    a(f'v_add_u32 v25, {FL_P0}, v25')
    a(f's_lshl_b32 s42, s{FB_}, 1')
    a('s_sub_u32 s42, s42, 16')
    a(f'v_add_u32 v26, s42, v{V_LANE}')
    a('v_lshlrev_b32 v26, 7, v26')
    a(f'v_add_u32 v26, {FL_S}, v26')
    a(f'v_cmp_gt_u32 vcc, 16, v{V_LANE}')
    a('v_cndmask_b32 v25, v26, v25, vcc')
    a(f'v_and_b32 v26, 31, v{V_LANE}')
    a(f'v_lshrrev_b32 v27, 5, v{V_LANE}')
    a(f's_lshl_b32 s42, s{TB}, 7')
    a(f's_lshl_b32 s43, s{WT}, 6')
    a('s_add_u32 s42, s42, s43')
    a('v_add_u32 v28, s42, v26')
    a('v_lshlrev_b32 v28, 3, v28')
    a(f'v_add_u32 v28, {hex(WS_ST)}, v28')
    a(f's_lshl_b32 s42, s{FB_}, 7')
    a(f's_lshl_b32 s43, s{WF}, 6')
    a('s_add_u32 s42, s42, s43')
    a('v_lshlrev_b32 v29, 2, v27')
    a('v_add_u32 v29, s42, v29')
    a('v_lshlrev_b32 v30, 2, v29')
    a(f'v_add_u32 v30, {hex(WS_S)}, v30')
    a('v_lshlrev_b32 v29, 1, v29')
    hk = {}
    st_ = {}
    def h_rdy_issue(): st_['r'] = poll_issue(a, 31, 24, SRDD, 1)
    def h_rdy_check(): check_or_spin(a, 'g1_rdy', st_['r'], 31, 24, SRDD, 1)
    def h_fl_issue(): st_['f'] = poll_issue(a, 31, 25, SRDF, 0x3ffff)
    def h_fl_check():
        check_or_spin(a, 'g1_fl', st_['f'], 31, 25, SRDF, 0x3ffff)
        for tt in range(2):
            a(f'buffer_load_dwordx2 v[{MS[tt]}:{MS[tt]+1}], v28, s[{SRD0}:{SRD0+3}], 0 offen offset:{256*tt} {SC}')
        for ft in range(2):
            for i in range(4):
                a(f'buffer_load_dwordx4 v[{SV+16*ft+4*i}:{SV+16*ft+4*i+3}], v30, s[{SRD0}:{SRD0+3}], 0 offen offset:{128*ft+32*i} {SC}')
                a(f'global_load_dwordx2 v[{RAW+8*ft+2*i}:{RAW+8*ft+2*i+1}], v29, s[{P_B1}:{P_B1+1}] offset:{64*ft+16*i}')
    hk = {6: h_rdy_issue, 9: h_rdy_check, 11: h_fl_issue, 13: h_fl_check}
    ACC = 32
    FR = [96, 112]
    def reads(st, kap):
        base = FR[kap]
        lst = []
        for ft in range(2):
            o = (st % 4) * 8192 + kap * 16 * 256
            lst.append(f'ds_read_b64_tr_b16 v[{base+4*ft}:{base+4*ft+1}], v{VA[ft]} offset:{o}')
            lst.append(f'ds_read_b64_tr_b16 v[{base+4*ft+2}:{base+4*ft+3}], v{VA[ft]} offset:{o+1024}')
        for tt in range(2):
            kk = 2 * (st & 1) + kap
            lst.append(f'ds_read_b128 v[{base+8+4*tt}:{base+11+4*tt}], v{VB[kk]} offset:{G1_XS[(st>>1) % 3] + 4096*tt}')
        return lst
    def mfmas(st, kap, fill):
        base = FR[kap]
        for ft in range(2):
            for tt in range(2):
                acc = ACC + 32 * ft + 16 * tt
                c = '0' if (st == 0 and kap == 0) else f'v[{acc}:{acc+15}]'
                a(f'v_mfma_f32_32x32x16_bf16 v[{acc}:{acc+15}], v[{base+4*ft}:{base+4*ft+3}], v[{base+8+4*tt}:{base+11+4*tt}], {c}')
                for _ in range(2):
                    if fill: a(fill.pop(0))
        while fill: a(fill.pop(0))
    for st in range(16):
        need = [tokW[st]] + [tokX[(st >> 1, h)] for h in range(2)]
        if st + 1 < 16:
            need += [tokW[st + 1]] + [tokX[((st + 1) >> 1, h)] for h in range(2)]
        a.wait_vm_token(max(need))
        a('s_barrier')
        if st in (0, 4, 8, 12): stamp(a, 2 + st // 4)
        if st + 3 < 16: dma_w(st + 3)
        c = (st >> 1) + 2
        if c < 8: dma_x(c, st & 1)
        if st in hk: hk[st]()
        if st == 0:
            for l in reads(0, 0): a(l)
        mfmas(st, 0, reads(st, 1))
        mfmas(st, 1, reads(st + 1, 0) if st + 1 < 16 else [])
    a('s_waitcnt lgkmcnt(0)')
    a('s_barrier')
    stamp(a, 6)
    a(f's_lshl_b32 s42, s{TB}, 2')
    a(f's_lshl_b32 s43, s{WT}, 1')
    a('s_add_u32 s42, s42, s43')
    a('s_mul_i32 s42, s42, 112')
    a(f's_lshl_b32 s43, s{FB_}, 3')
    a('s_add_u32 s42, s42, s43')
    a(f's_lshl_b32 s43, s{WF}, 2')
    a('s_add_u32 s42, s42, s43')
    a('s_lshl_b32 s42, s42, 10')
    a(f's_add_u32 s42, s42, {hex(WS_H)}')
    a(f'v_lshlrev_b32 v24, 4, v{V_LANE}')
    a('v_add_u32 v24, s42, v24')
    a(f'v_add_u32 v25, {112*1024}, v24')
    VH = [24, 25]
    g2_setup(a, g)
    for k in range(R1):
        g2_dma(a, g, k)
    for ft in range(2):
        for i in range(4):
            for h in range(2):
                a(f'v_lshlrev_b32 v{BV+16*ft+4*i+2*h}, 16, v{RAW+8*ft+2*i+h}')
                a(f'v_and_b32 v{BV+16*ft+4*i+2*h+1}, 0xffff0000, v{RAW+8*ft+2*i+h}')
    NM, SD, AL, BE = [16, 17], [13, 15], [18, 19], [20, 21]
    for tt in range(2):
        a(f'v_sub_f32 v{NM[tt]}, 0, v{MS[tt]}')
        a(f'v_rcp_f32 v22, v{SD[tt]}')
        a(f'v_mul_f32 v{AL[tt]}, {f32(-GELU_C)}, v22')
        a('v_mul_f32 v23, v22, v22')
        a(f'v_mul_f32 v23, v23, v{AL[tt]}')
        a(f'v_mul_f32 v{BE[tt]}, {f32(0.044715)}, v23')
    T = 208
    toks = {}
    def gelu(ft, tt):
        acc = ACC + 32 * ft + 16 * tt
        for j in range(2):
            r0 = 8 * j
            E = range(8)
            for e in E: a(f'v_fmac_f32 v{acc+r0+e}, v{BV+16*ft+r0+e}, v{SD[tt]}')
            for e in E: a(f'v_fmac_f32 v{acc+r0+e}, v{SV+16*ft+r0+e}, v{NM[tt]}')
            for e in E: a(f'v_mul_f32 v{T+e}, v{acc+r0+e}, v{acc+r0+e}')
            for e in E: a(f'v_fma_f32 v{T+e}, v{T+e}, v{BE[tt]}, v{AL[tt]}')
            for e in E: a(f'v_mul_f32 v{T+e}, v{T+e}, v{acc+r0+e}')
            for e in E: a(f'v_exp_f32 v{T+e}, v{T+e}')
            for e in E: a(f'v_fma_f32 v{T+e}, v{T+e}, v{SD[tt]}, v{SD[tt]}')
            for e in E: a(f'v_rcp_f32 v{T+e}, v{T+e}')
            for e in E: a(f'v_mul_f32 v{T+e}, v{T+e}, v{acc+r0+e}')
            H = 216 + 4 * ((2 * tt + j) % 4)
            for e in range(4): a(f'v_cvt_pk_bf16_f32 v{H+e}, v{T+2*e}, v{T+2*e+1}')
            toks[(ft, tt, j)] = a(f'buffer_store_dwordx4 v[{H}:{H+3}], v{VH[tt]}, s[{SRD0}:{SRD0+3}], 0 offen offset:{(2*ft+j)*1024} {SC}')
    def publish(stage):
        def f():
            a(f's_mul_i32 s42, s{TB}, 14')
            a(f's_add_u32 s42, s42, s{FB_}')
            a('s_lshl_b32 s42, s42, 7')
            a(f's_add_u32 s42, s42, {FL_H}')
            flag_store(a, 22, 42, extra=4 * stage)
        a('s_barrier')
        wave0_only(a, f'g1_pub{stage}', f)
    gelu(0, 0); gelu(0, 1)
    stamp(a, 7)
    g2_round1_reads(a, g)
    gelu(1, 0)
    a.wait_vm_token(toks[(0, 1, 1)])
    publish(0)
    g2_round2_dma(a, g)
    gelu(1, 1)
    stamp(a, 8)
    a('s_waitcnt vmcnt(0)')
    publish(1)
    stamp(a, 9)


def helper_role(a, g):
    SL = 76
    a(f's_sub_u32 s42, s{JJ}, 28')
    a('s_lshl_b32 s42, s42, 3')
    a(f's_add_u32 s{SL}, s42, s{XC}')
    setup_flag_srds(a)
    a(f's_cmp_eq_u32 s{SL}, 0')
    a('s_cbranch_scc0 L_h_notzero')
    a(f'v_lshlrev_b32 v2, 7, v{V_TID}')
    a('v_mov_b32 v4, 0')
    a('v_mov_b32 v5, 0')
    for k in range(4):
        a(f'buffer_store_dwordx2 v[4:5], v2, s[{SRDF}:{SRDF+3}], 0 offen {SC}')
        if k < 3: a(f'v_add_u32 v2, {256*128}, v2')
    a('s_waitcnt vmcnt(0)')
    a('s_barrier')
    def f():
        a('v_mov_b32 v2, 0')
        a('v_mov_b32 v3, 1')
        a('s_mov_b64 exec, 1')
        a(f'buffer_store_dword v3, v2, s[{SRDD}:{SRDD+3}], 0 offen {SC}', opt=True)
        a('s_mov_b64 exec, -1')
    wave0_only(a, 'h_rdy', f)
    a('s_branch L_h_done')
    a.label('L_h_notzero')
    a.reset()
    a(f's_cmp_gt_u32 s{SL}, 28')
    a('s_cbranch_scc1 L_h_done')
    a(f's_sub_u32 s{SL}, s{SL}, 1')
    emit_shelper(a, 'sh', SL, SC)
    a('v_mov_b32 v33, 0')
    a('s_waitcnt vmcnt(0)')
    spin(a, 'h_rdy2', 34, 33, SRDD, 1)
    a('s_barrier')
    def f2():
        a(f's_lshl_b32 s42, s{SL}, 7')
        a(f's_add_u32 s42, s42, {FL_S}')
        flag_store(a, 22, 42)
    wave0_only(a, 'h_pub', f2)
    a.label('L_h_done')
    a.reset()
    a('s_waitcnt lgkmcnt(0)')
    a('s_barrier')
    g2_index(a)
    g2_setup(a, g)
    for k in range(R1):
        g2_dma(a, g, k)
    srd(a, SRD0, P_WS, 0, 0x1000000)
    a('v_mov_b32 v33, 0')
    spin(a, 'h_rdy3', 34, 33, SRDD, 1)
    g2_round1_reads(a, g)
    g2_round2_dma(a, g)
    a('s_waitcnt vmcnt(0)')


def g2_main(a, g):
    a(f's_lshr_b32 s42, s{TAU}, 1')
    a('s_mul_i32 s42, s42, 14')
    a(f's_mul_i32 s43, s{S_WAVE}, 7')
    a('s_lshr_b32 s43, s43, 1')
    a('s_add_u32 s42, s42, s43')
    a(f'v_add_u32 v8, s42, v{V_LANE}')
    a('v_lshlrev_b32 v8, 7, v8')
    a(f'v_add_u32 v8, {FL_H}, v8')
    a(f's_lshl_b32 s42, s{DT}, 5')
    a(f'v_add_u32 v9, s42, v{V_LANE}')
    a('v_lshlrev_b32 v9, 7, v9')
    a(f'v_add_u32 v9, {FL_A}, v9')
    a(f's_lshr_b32 s42, s{TAU}, 2')
    a(f's_and_b32 s43, s{TAU}, 3')
    a('s_lshl_b32 s43, s43, 6')
    a('s_add_u32 s42, s42, s43')
    a(f'v_subrev_u32 v10, 32, v{V_LANE}')
    a('v_lshlrev_b32 v10, 3, v10')
    a('v_add_u32 v10, s42, v10')
    a('v_lshlrev_b32 v10, 7, v10')
    a(f'v_add_u32 v10, {FL_P0}, v10')
    a(f'v_cmp_gt_u32 vcc, 32, v{V_LANE}')
    a('v_cndmask_b32 v9, v10, v9, vcc')
    TAILMASK = (1 << 40) - 1
    spin(a, 'g2_h0', 11, 8, SRDF, 0xf, 0)
    stamp(a, 10)
    def hload(k):
        b = 2 * (k % HD)
        for tt in range(2):
            r = HRING[b + tt]
            a(f'buffer_load_dwordx4 v[{r}:{r+3}], v{6+tt}, s[{SRD3}:{SRD3+3}], s{SK[k]} offen {SC}')
    def wregs(k):
        return W2R[2*k:2*k+2] if k < R1 else [G2FA[k & 1], G2FA[k & 1] + 4]
    st_ = {}
    for k in range(HD): hload(k)
    AV = [32 + r for r in range(16)]
    GV, B2 = 48, 50
    for k in range(28):
        if R1 <= k + 1 < 28:
            if k + 1 >= R1 + 10: a.wait_vm_token(g.tokW[k + 1])
            g2_wread(a, k + 1, wregs(k + 1))
        f = wregs(k)
        for tt in range(2):
            r = HRING[2 * (k % HD) + tt]
            for dd in range(2):
                acc = G2ACC[dd + 2 * tt]
                c = '0' if k == 0 else f'v[{acc}:{acc+15}]'
                a(f'v_mfma_f32_32x32x16_bf16 v[{acc}:{acc+15}], v[{f[dd]}:{f[dd]+3}], v[{r}:{r+3}], {c}')
        if k == 14 - HD - 4: st_['h1'] = poll_issue(a, 11, 8, SRDF, 0xf, 4)
        if k == 14 - HD - 1: check_or_spin(a, 'g2_h1', st_['h1'], 11, 8, SRDF, 0xf, 4)
        if k + HD < 28: hload(k + HD)
        if k >= R1 and k + 10 < 28: g2_dma(a, g, k + 10)
        if k == 15: st_['t'] = poll_issue(a, 11, 9, SRDF, TAILMASK)
        if k == 19:
            check_or_spin(a, 'g2_t', st_['t'], 11, 9, SRDF, TAILMASK)
            a(f'v_and_b32 v12, 31, v{V_LANE}')
            a(f'v_lshrrev_b32 v13, 5, v{V_LANE}')
            a(f's_lshl_b32 s42, s{TAU}, 6')
            a(f's_lshl_b32 s43, s{WT}, 5')
            a('s_add_u32 s42, s42, s43')
            a('v_add_u32 v12, s42, v12')
            a('v_lshlrev_b32 v14, 2, v12')
            a(f'v_add_u32 v14, {hex(WS_G)}, v14')
            a(f'buffer_load_dword v{GV}, v14, s[{SRD0}:{SRD0+3}], 0 offen {SC}')
            a(f's_lshl_b32 s42, s{DT}, 6')
            a(f's_lshl_b32 s43, s{WF}, 5')
            a('s_add_u32 s85, s42, s43')
            a('v_lshlrev_b32 v14, 2, v13')
            a('v_add_u32 v14, s85, v14')
            a('v_lshlrev_b32 v15, 1, v14')
            for i in range(4):
                a(f'global_load_dwordx2 v[{B2+2*i}:{B2+2*i+1}], v15, s[{P_B2}:{P_B2+1}] offset:{16*i}')
            a('v_lshlrev_b32 v14, 12, v14')
            a('v_lshl_add_u32 v14, v12, 1, v14')
            for i in range(4):
                for r in range(4):
                    a(f's_mov_b32 s86, {hex(WS_AT + (8*i+r)*4096)}')
                    a(f'buffer_load_ushort v{AV[4*i+r]}, v14, s[{SRD0}:{SRD0+3}], s86 offen {SC}')
    stamp(a, 11)
    a('s_waitcnt lgkmcnt(0)')
    a('s_barrier')
    a(f'v_lshlrev_b32 v14, 4, v{V_LANE}')
    for x in range(1, 4):
        a(f's_xor_b32 s42, s{S_WAVE}, {x}')
        a('s_mul_i32 s42, s42, 12288')
        a('v_add_u32 v15, s42, v14')
        for i in range(4):
            a(f'ds_write_b128 v15, v[{G2ACC[x]+4*i}:{G2ACC[x]+4*i+3}] offset:{4096*(x-1)+1024*i}')
    a('s_waitcnt lgkmcnt(0)')
    a('s_barrier')
    a(f's_mul_i32 s42, s{S_WAVE}, 12288')
    a('v_add_u32 v15, s42, v14')
    PR = 160
    for x in range(3):
        for i in range(4):
            a(f'ds_read_b128 v[{PR+16*x+4*i}:{PR+16*x+4*i+3}], v15 offset:{4096*x+1024*i}')
    a(f'v_sub_f32 v16, 1.0, v{GV}')
    bf16_round(a, 16, 16)
    for r in range(16):
        a(f'v_lshlrev_b32 v{AV[r]}, 16, v{AV[r]}')
        a(f'v_mul_f32 v{AV[r]}, v{AV[r]}, v{GV}')
    ACC = G2ACC[0]
    for x in range(3):
        for r in range(16):
            a(f'v_add_f32 v{ACC+r}, v{ACC+r}, v{PR+16*x+r}')
    O = 96
    for i in range(4):
        T = 104
        for h in range(2):
            a(f'v_lshlrev_b32 v{T+2*h}, 16, v{B2+2*i+h}')
            a(f'v_and_b32 v{T+2*h+1}, 0xffff0000, v{B2+2*i+h}')
        for r in range(4):
            a(f'v_add_f32 v{T+r}, v{T+r}, v{ACC+4*i+r}')
        for r in range(4):
            a(f'v_fma_f32 v{T+r}, v{T+r}, v16, v{AV[4*i+r]}')
        a(f'v_cvt_pk_bf16_f32 v{O+2*i}, v{T}, v{T+1}')
        a(f'v_cvt_pk_bf16_f32 v{O+2*i+1}, v{T+2}, v{T+3}')
    a('v_lshlrev_b32 v12, 10, v12')
    a('s_lshl_b32 s42, s85, 1')
    a('v_add_u32 v12, s42, v12')
    a('v_lshl_add_u32 v12, v13, 4, v12')
    srd(a, SRD1, P_OUT, 0, 2048 * 1024)
    for p in range(2):
        a(f'v_permlane32_swap_b32 v{O+4*p}, v{O+4*p+2}')
        a(f'v_permlane32_swap_b32 v{O+4*p+1}, v{O+4*p+3}')
        a(f'buffer_store_dwordx4 v[{O+4*p}:{O+4*p+3}], v12, s[{SRD1}:{SRD1+3}], 0 offen offset:{32*p}')
    if G.STAMP:
        a('s_waitcnt vmcnt(0)')
    stamp(a, 12)


def gemm_role(a):
    g = G2State()
    a(f's_sub_u32 s{S_IDX}, s2, 256')
    a('s_setprio 2')
    stamp(a, 0)
    a(f's_and_b32 s{XC}, s{S_IDX}, 7')
    a(f's_lshr_b32 s{JJ}, s{S_IDX}, 3')
    a(f's_cmp_ge_u32 s{JJ}, 28')
    a('s_cbranch_scc1 L_helper')
    a(f's_mul_i32 s42, s{JJ}, 37')
    a('s_lshr_b32 s42, s42, 8')
    a('s_mul_i32 s43, s42, 7')
    a(f's_sub_u32 s43, s{JJ}, s43')
    a(f's_lshr_b32 s44, s{XC}, 1')
    a('s_lshl_b32 s44, s44, 2')
    a(f's_add_u32 s{TB}, s44, s42')
    a(f's_and_b32 s44, s{XC}, 1')
    a('s_mul_i32 s44, s44, 7')
    a(f's_add_u32 s{FB_}, s44, s43')
    a('s_lshl_b32 s42, s42, 1')
    a('s_add_u32 s42, s42, s43')
    a('s_and_b32 s42, s42, 7')
    a('s_lshl_b32 s79, s42, 7')
    g1_role(a, g)
    a('s_branch L_g2')
    a.label('L_helper')
    a.reset()
    g2s = G2State()
    helper_role(a, g2s)
    a.label('L_g2')
    a.reset()
    g.tokW = {}
    g2_main(a, g)


def build():
    a = Asm()
    name = NAME + '_kernel'
    a.raw(HEADER.rstrip())
    a.raw(f'; @launch grid=(512,1,1) block=(256,1,1) lds={LDS_BYTES}')
    a.raw('.amdgcn_target "amdgcn-amd-amdhsa--gfx950"')
    a.raw('.text')
    entry(a, name, 512)
    a('s_cmp_ge_u32 s2, 256')
    a('s_cbranch_scc1 L_gemm')
    ssm_role(a)
    a('s_endpgm')
    emit_slow_blocks(a)
    a.label('L_gemm')
    a.reset()
    gemm_role(a)
    a.label(f'L_{name}_exit')
    a('s_endpgm')
    emit_slow_blocks(a)
    a.raw(table())
    a.raw('.section .rodata,"a"')
    a.raw('.p2align 6')
    a.raw(kd(name).strip('\n'))
    return a.text()


if __name__ == '__main__':
    out = [x for x in sys.argv[1:] if x.endswith('.s')]
    out = out[0] if out else 'cdna_kernels/' + NAME + '.s'
    txt = build()
    open(out, 'w').write(txt)
    print('wrote', out, len(txt), 'bytes')
```

```python
import re

REG_RE = re.compile(r'(?<![\w.])([vsa])\[(\d+):(\d+)\]|(?<![\w.\[])([vsa])(\d+)(?![\w\]:])|\b(vcc|exec|m0|scc)\b')
TRANS = ('v_exp_f32', 'v_log_f32', 'v_rcp_f32', 'v_rsq_f32', 'v_sqrt_f32', 'v_sin_f32', 'v_cos_f32', 'v_rcp_iflag_f32')


def regs_of(tok):
    out = []
    for m in REG_RE.finditer(tok):
        if m.group(1):
            out += [(m.group(1), i) for i in range(int(m.group(2)), int(m.group(3)) + 1)]
        elif m.group(4):
            out.append((m.group(4), int(m.group(5))))
        else:
            n = m.group(6)
            if n == 'vcc':
                out += [('s', 106), ('s', 107)]
            elif n == 'exec':
                out += [('s', 126), ('s', 127)]
            elif n == 'm0':
                out.append(('s', 124))
    return out


class Ins:
    __slots__ = ('text', 'op', 'defs', 'uses', 'kind', 'passes', 'dpp', 'srcc', 'wide_store', 'vm', 'lgkm', 'opt', 'ab')

    def __init__(self, text, opt=False):
        self.text = text
        body = text.split(';')[0].strip()
        parts = body.split(None, 1)
        self.op = op = parts[0]
        op = re.sub(r'_e(32|64)$', '', op)
        op = re.sub(r'_(dpp|sdwa)$', '', op)
        self.op = op
        rest = parts[1] if len(parts) > 1 else ''
        ops = [o.strip() for o in re.split(r',(?![^\[]*\])', rest)] if rest else []
        mods = ''
        if ops:
            last = ops[-1].split(None, 1)
            if len(last) > 1:
                ops[-1] = last[0]
                mods = last[1]
        self.dpp = ('quad_perm' in rest or 'row_' in rest or 'wave_' in rest)
        self.defs, self.uses = [], []
        self.kind = 'other'
        self.passes = 0
        self.srcc = []
        self.ab = []
        self.wide_store = False
        self.vm = False
        self.lgkm = None
        self.opt = opt
        R = lambda i: regs_of(ops[i]) if i < len(ops) else []
        def rest_from(i):
            r = []
            for k in range(i, len(ops)):
                r += regs_of(ops[k])
            return r
        if op.startswith('v_mfma'):
            self.kind = 'mfma'
            self.passes = 8 if '32x32' in op else 4
            self.defs = R(0); self.uses = rest_from(1); self.srcc = R(3); self.ab = R(1) + R(2)
        elif op.startswith('v_cmp'):
            self.kind = 'valu'; self.defs = R(0); self.uses = rest_from(1)
        elif op in ('v_readfirstlane_b32', 'v_readlane_b32'):
            self.kind = 'valu'; self.defs = R(0); self.uses = rest_from(1)
        elif op.startswith('v_permlane') and 'swap' in op:
            self.kind = 'valu'; self.defs = R(0) + R(1); self.uses = R(0) + R(1)
        elif op.startswith('v_'):
            self.kind = 'valu'
            if '_co_' in op:
                self.defs = R(0) + R(1); self.uses = rest_from(2)
            else:
                self.defs = R(0); self.uses = rest_from(1)
            if op.startswith(('v_fmac', 'v_mac', 'v_dot2c', 'v_writelane')) or self.dpp or 'dst_unused:UNUSED_PRESERVE' in rest:
                self.uses += R(0)
            if op in ('v_nop',):
                self.defs = []; self.uses = []
        elif op.startswith('ds_'):
            self.kind = 'ds'; self.lgkm = 'ds'
            if op.startswith(('ds_read', 'ds_bpermute', 'ds_permute', 'ds_swizzle')) or '_rtn' in op:
                self.defs = R(0); self.uses = rest_from(1)
                if 'd16' in op:
                    self.uses += R(0)
            else:
                self.uses = rest_from(0)
        elif op.startswith('buffer_') or op.startswith('global_'):
            self.kind = 'vmem'; self.vm = True
            islds = bool(re.search(r'\blds\b', mods)) or '_lds_' in op
            if islds:
                self.uses = rest_from(0) + [('s', 124)]
            elif '_load' in op:
                self.defs = R(0); self.uses = rest_from(1)
                if 'd16' in op:
                    self.uses += R(0)
            elif 'atomic' in op and re.search(r'\bsc0\b', mods):
                self.defs = R(0); self.uses = rest_from(0)
            else:
                self.uses = rest_from(0)
                if op.endswith(('x4', 'x3')):
                    self.wide_store = True
            if op.startswith(('buffer_inv', 'buffer_wbl2')):
                self.defs = []; self.uses = []
        elif op.startswith('s_load') or op in ('s_memtime', 's_memrealtime'):
            self.kind = 'smem'; self.lgkm = 'smem'
            self.defs = R(0); self.uses = rest_from(1)
        elif op.startswith('s_'):
            self.kind = 'salu'
            if op.startswith(('s_cmp', 's_bitcmp', 's_waitcnt', 's_nop', 's_barrier', 's_branch', 's_cbranch', 's_endpgm', 's_setprio', 's_sleep', 's_setpc')):
                self.uses = rest_from(0)
                if op.startswith('s_cbranch_vcc'): self.uses += [('s', 106), ('s', 107)]
                if op.startswith('s_cbranch_exec'): self.uses += [('s', 126), ('s', 127)]
            else:
                self.defs = R(0); self.uses = rest_from(1)
                if 'saveexec' in op:
                    self.defs += [('s', 126), ('s', 127)]; self.uses += [('s', 126), ('s', 127)]
        if self.kind in ('valu', 'mfma') and op in ('v_cndmask_b32', 'v_addc_co_u32', 'v_subb_co_u32') and len(ops) == 3:
            self.uses += [('s', 106), ('s', 107)]


class Asm:
    def __init__(self):
        self.out = []
        self.hist = []
        self.vmq = []
        self.lgq = []
        self.vseq = 0
        self.lseq = 0
        self.nins = 0
        self.auto = True

    def raw(self, s):
        self.out.append(s)

    def comment(self, s):
        self.out.append('    ; ' + s)

    def label(self, name):
        self.out.append(name + ':')

    def reset(self):
        self.hist = []; self.vmq = []; self.lgq = []

    def save(self):
        return (list(self.hist), list(self.vmq), list(self.lgq))

    def restore(self, st):
        self.hist, self.vmq, self.lgq = list(st[0]), list(st[1]), list(st[2])

    def _emit_wait(self, vm=None, lg=None):
        parts = []
        if vm is not None:
            vm = min(vm, 63)
            parts.append(f'vmcnt({vm})')
            self.vmq = self.vmq[len(self.vmq) - vm:] if vm < len(self.vmq) and vm > 0 else ([] if vm == 0 else self.vmq)
        if lg is not None:
            lg = min(lg, 15)
            parts.append(f'lgkmcnt({lg})')
            self.lgq = self.lgq[len(self.lgq) - lg:] if lg < len(self.lgq) and lg > 0 else ([] if lg == 0 else self.lgq)
        self._push(Ins('s_waitcnt ' + ' '.join(parts)))

    def wait_vm_token(self, tok):
        idx = [i for i, e in enumerate(self.vmq) if e[0] <= tok]
        if not idx:
            return
        younger = sum(1 for e in self.vmq[idx[-1] + 1:] if not e[2])
        self._wait_vm_exact(idx[-1], younger)

    def _wait_vm_exact(self, lastidx, younger):
        younger = min(younger, 63)
        self._push(Ins(f's_waitcnt vmcnt({younger})'))
        self.vmq = self.vmq[lastidx + 1:]

    def wait_lg_token(self, tok):
        idx = [i for i, e in enumerate(self.lgq) if e[0] <= tok]
        if not idx:
            return
        if any(e[2] == 'smem' for e in self.lgq):
            self._push(Ins('s_waitcnt lgkmcnt(0)')); self.lgq = []
            return
        younger = min(len(self.lgq) - idx[-1] - 1, 15)
        self._push(Ins(f's_waitcnt lgkmcnt({younger})'))
        self.lgq = self.lgq[idx[-1] + 1:]

    def wait_all(self, vm=True, lg=True):
        parts = []
        if vm: parts.append('vmcnt(0)'); self.vmq = []
        if lg: parts.append('lgkmcnt(0)'); self.lgq = []
        self._push(Ins('s_waitcnt ' + ' '.join(parts)))

    def _auto_wait(self, ins):
        touched = set(ins.uses) | set(ins.defs)
        last = None
        for i, e in enumerate(self.vmq):
            if touched & e[1]:
                last = i
        if last is not None:
            younger = sum(1 for e in self.vmq[last + 1:] if not e[2])
            self._wait_vm_exact(last, younger)
        last = None
        for i, e in enumerate(self.lgq):
            if touched & e[1]:
                last = i
        if last is not None:
            self.wait_lg_token(self.lgq[last][0])

    def _need_states(self, ins):
        need = 0
        dist = 0
        uses = set(ins.uses); defs = set(ins.defs)
        vuses = {r for r in uses if r[0] in 'va'}
        for p in reversed(self.hist):
            if dist >= 24:
                break
            pd = set(p.defs)
            req = 0
            if p.kind == 'valu':
                pv = {r for r in pd if r[0] in 'va'}
                ps = {r for r in pd if r[0] == 's'}
                if ins.kind == 'mfma' and pv & uses: req = max(req, 2)
                if p.op in TRANS and ins.kind in ('valu', 'mfma') and ins.op not in TRANS and pv & uses: req = max(req, 1)
                if p.op in TRANS and ins.kind in ('ds', 'vmem') and pv & uses: req = max(req, 1)
                if ins.op in ('v_readfirstlane_b32', 'v_readlane_b32') and pv & uses: req = max(req, 1)
                if p.op.startswith('v_dot') and pv & (uses | defs):
                    if ins.op != p.op or (pv & set(ins.uses[:-1]) if not ins.op.startswith('v_dot2c') else False): req = max(req, 3)
                if ins.kind == 'valu' and (ins.dpp or ins.op.startswith('v_permlane')) and pv & uses: req = max(req, 2)
                if ps:
                    if ins.kind == 'valu' and ps & uses: req = max(req, 4 if ins.op.endswith('lane_b32') else 2)
                    if ins.kind == 'vmem' and ps & uses: req = max(req, 5)
                    if ins.kind == 'salu' and ps & uses: req = max(req, 4)
                    if ins.kind == 'mfma' and ps & {('s', 126), ('s', 127)}: req = max(req, 4)
            elif p.kind == 'mfma':
                big = p.passes == 8
                if pd & (uses | defs):
                    if ins.kind == 'mfma':
                        if pd & set(ins.ab): req = max(req, 12 if big else 8)
                        if pd & set(ins.srcc):
                            same = (set(ins.srcc) == pd and ins.passes == p.passes)
                            if not same: req = max(req, 10 if big else 6)
                        elif pd & defs:
                            req = max(req, 12 if big else 8)
                    else:
                        req = max(req, 12 if big else 8)
                if ins.kind == 'valu' and set(p.srcc) & defs: req = max(req, 7 if big else 3)
            elif p.kind == 'salu':
                if ('s', 124) in pd and ('s', 124) in uses and ins.kind in ('vmem', 'ds'): req = max(req, 1)
            if p.wide_store and ins.kind in ('valu', 'mfma', 'ds', 'vmem') and {r for r in p.uses if r[0] in 'va'} & defs:
                req = max(req, 2)
            if req > dist:
                need = max(need, req - dist)
            dist += self._states(p)
        return need

    @staticmethod
    def _states(p):
        if p.op == 's_nop':
            return int(p.text.split()[1]) + 1
        return 1

    def _push(self, ins):
        self.out.append('    ' + ins.text)
        self.hist.append(ins)
        if len(self.hist) > 64:
            self.hist = self.hist[-40:]
        self.nins += 1

    def nop(self, states):
        while states > 0:
            n = min(states, 16)
            self._push(Ins(f's_nop {n - 1}'))
            states -= n

    def __call__(self, text, opt=False, discard=False):
        ins = Ins(text, opt)
        if discard:
            ins.defs = []
        if self.auto:
            self._auto_wait(ins)
            n = self._need_states(ins)
            if n:
                self.nop(n)
        self._push(ins)
        tok = None
        if ins.op == 's_waitcnt':
            m = re.search(r'vmcnt\((\d+)\)', text)
            if m:
                k = int(m.group(1)); self.vmq = self.vmq[len(self.vmq) - k:] if 0 < k < len(self.vmq) else ([] if k == 0 else self.vmq)
            m = re.search(r'lgkmcnt\((\d+)\)', text)
            if m:
                k = int(m.group(1)); self.lgq = self.lgq[len(self.lgq) - k:] if 0 < k < len(self.lgq) else ([] if k == 0 else self.lgq)
        if ins.vm:
            self.vseq += 1
            self.vmq.append((self.vseq, set(ins.defs), opt))
            tok = self.vseq
        if ins.lgkm:
            self.lseq += 1
            self.lgq.append((self.lseq, set(ins.defs), ins.lgkm))
            tok = self.lseq
        return tok

    def lines(self, text):
        for l in text.strip('\n').split('\n'):
            l = l.strip()
            if not l or l.startswith(';'):
                continue
            if l.endswith(':'):
                self.label(l[:-1])
            else:
                self(l)

    def text(self):
        return '\n'.join(self.out) + '\n'


def v(n, c=1):
    return f'v{n}' if c == 1 else f'v[{n}:{n + c - 1}]'


def s(n, c=1):
    return f's{n}' if c == 1 else f's[{n}:{n + c - 1}]'
```

```python
import math, struct, sys
from asmlib import Asm
import gen as G
from gen import *

SC = 'sc1'
SRDF, SRDD = SRD4, SRD5
SPIN_LIMIT = 20000
FS = 6
FL_P0, FL_H, FL_A = 0x0, 0x4000, 0x8000
FL_BYTES = 0xC000
ARGS = set(sys.argv[1:])
slow_blocks = []


def setup_flag_srds(a):
    srd(a, SRDF, P_WS, WS_FL, FL_BYTES)
    srd(a, SRDD, P_DBG, 0, 256)


def set_exec(a, mask):
    if isinstance(mask, str):
        a(f's_mov_b64 exec, {mask}')
    elif mask < (1 << 31):
        a(f's_mov_b64 exec, {hex(mask)}')
    else:
        a(f's_mov_b32 exec_lo, {hex(mask & 0xffffffff)}')
        a(f's_mov_b32 exec_hi, {hex(mask >> 32)}')


def poll_issue(a, vd, vaddr, srd_, mask, off=0):
    set_exec(a, mask)
    tok = a(f'buffer_load_dword v{vd}, v{vaddr}, s[{srd_}:{srd_+3}], 0 offen offset:{off} {SC}')
    a('s_mov_b64 exec, -1')
    return tok


def cmp_mask(a, vd, mask):
    set_exec(a, mask)
    a(f'v_cmp_eq_u32 vcc, 1, v{vd}')
    a('s_mov_b64 s[46:47], exec')
    a('s_mov_b64 exec, -1')
    a('s_cmp_eq_u64 vcc, s[46:47]')


def spin(a, name, vd, vaddr, srd_, mask, off=0):
    a(f's_mov_b32 s45, {SPIN_LIMIT}')
    a.label(f'L_{name}_spin')
    set_exec(a, mask)
    a(f'buffer_load_dword v{vd}, v{vaddr}, s[{srd_}:{srd_+3}], 0 offen offset:{off} {SC}', opt=True)
    a('s_waitcnt vmcnt(0)')
    a(f'v_cmp_eq_u32 vcc, 1, v{vd}')
    a('s_mov_b64 s[46:47], exec')
    a('s_mov_b64 exec, -1')
    a('s_cmp_eq_u64 vcc, s[46:47]')
    a(f's_cbranch_scc1 L_{name}_done')
    a('s_sub_u32 s45, s45, 1')
    a('s_cmp_lg_u32 s45, 0')
    a(f's_cbranch_scc1 L_{name}_spin')
    a.label(f'L_{name}_done')


def check_or_spin(a, name, tok, vd, vaddr, srd_, mask, off=0):
    a.wait_vm_token(tok)
    cmp_mask(a, vd, mask)
    a(f's_cbranch_scc0 L_{name}_slow')
    a.label(f'L_{name}_back')
    slow_blocks.append((name, vd, vaddr, srd_, mask, off))


def emit_slow_blocks(a):
    for (name, vd, vaddr, srd_, mask, off) in slow_blocks:
        a.label(f'L_{name}_slow')
        a.reset()
        spin(a, name + 's', vd, vaddr, srd_, mask, off)
        a(f's_branch L_{name}_back')
    slow_blocks.clear()


def flag_store(a, vtmp, soff_expr_reg, extra=0, val=1):
    a(f'v_mov_b32 v{vtmp}, s{soff_expr_reg}')
    a(f'v_mov_b32 v{vtmp+1}, {val}')
    a('s_mov_b64 exec, 1')
    a(f'buffer_store_dword v{vtmp+1}, v{vtmp}, s[{SRDF}:{SRDF+3}], 0 offen offset:{extra} {SC}', opt=True)
    a('s_mov_b64 exec, -1')


def wave0_only(a, name, fn):
    a(f's_cmp_eq_u32 s{S_WAVE}, 0')
    a(f's_cbranch_scc0 L_{name}_skip')
    st = a.save()
    fn()
    a.label(f'L_{name}_skip')
    a.hist = []
    a.vmq = st[1]; a.lgq = st[2]


def red32(a, r, t):
    red8(a, r)
    a(f'v_add_f32_dpp v{r}, v{r}, v{r} row_mirror row_mask:0xf bank_mask:0xf')
    a(f'v_mov_b32 v{t}, v{r}')
    a(f'v_permlane16_swap_b32 v{r}, v{t}')
    a(f'v_add_f32 v{r}, v{r}, v{t}')


def p0_loads(a):
    X, J, T0, TT, DT = 72, 73, 74, 75, 76
    a(f's_and_b32 s{X}, s{S_IDX}, 7')
    a(f's_lshr_b32 s{J}, s{S_IDX}, 3')
    a(f's_lshl_b32 s{T0}, s{X}, 8')
    a(f's_lshl_b32 s42, s{J}, 3')
    a(f's_add_u32 s{T0}, s{T0}, s42')
    a(f's_lshl_b32 s{TT}, s{X}, 2')
    a(f's_lshr_b32 s42, s{J}, 3')
    a(f's_add_u32 s{TT}, s{TT}, s42')
    a(f's_and_b32 s{DT}, s{J}, 7')
    a(f'v_lshrrev_b32 v2, 3, v{V_LANE}')
    a(f'v_and_b32 v3, 7, v{V_LANE}')
    a(f's_lshl_b32 s42, s{TT}, 6')
    a(f's_lshl_b32 s43, s{S_WAVE}, 4')
    a('s_add_u32 s42, s42, s43')
    a('v_add_u32 v4, s42, v2')
    a('v_lshlrev_b32 v4, 10, v4')
    a('v_lshl_add_u32 v4, v3, 4, v4')
    a(f's_lshl_b32 s42, s{DT}, 7')
    a('v_add_u32 v4, s42, v4')
    a(f'global_load_dwordx4 v[64:67], v4, s[{P_U}:{P_U+1}]')
    a('v_add_u32 v4, 0x2000, v4')
    a(f'global_load_dwordx4 v[68:71], v4, s[{P_U}:{P_U+1}]')
    a(f'v_lshrrev_b32 v5, 5, v{V_LANE}')
    a(f'v_and_b32 v6, 31, v{V_LANE}')
    a(f's_lshl_b32 s42, s{S_WAVE}, 1')
    a(f's_add_u32 s42, s42, s{T0}')
    a('v_add_u32 v7, s42, v5')
    a('v_lshlrev_b32 v8, 10, v7')
    a('v_lshlrev_b32 v9, 5, v6')
    a('v_add_u32 v8, v8, v9')
    for k in range(2):
        a(f'global_load_dwordx4 v[{72+4*k}:{75+4*k}], v8, s[{P_U}:{P_U+1}] offset:{16*k}')
    for k in range(2):
        a(f'global_load_dwordx4 v[{80+4*k}:{83+4*k}], v9, s[{P_GW}:{P_GW+1}] offset:{16*k}')


def p0_compute(a):
    X, J, T0, TT, DT = 72, 73, 74, 75, 76
    srd(a, SRD0, P_WS, 0, 0x1000000)
    a(f's_lshl_b32 s42, s{S_WAVE}, 4')
    a('v_add_u32 v10, s42, v2')
    a('v_mul_u32_u24 v10, 144, v10')
    a('v_lshl_add_u32 v10, v3, 4, v10')
    a(f'v_add_u32 v10, {L_KT}, v10')
    a('ds_write_b128 v10, v[64:67]')
    a(f'ds_write_b128 v10, v[68:71] offset:{8*144}')
    a('s_mov_b32 s46, 0x3f803f80')
    for k in range(4):
        a(f'v_mov_b32 v{12+k}, 0')
    for d in range(8):
        a(f'v_dot2_f32_bf16 v{12+d%2}, v{72+d}, s46, v{12+d%2}')
        a(f'v_dot2_f32_bf16 v{14+d%2}, v{72+d}, v{80+d}, v{14+d%2}')
    a('v_add_f32 v12, v12, v13')
    a('v_add_f32 v14, v14, v15')
    red32(a, 12, 16)
    red32(a, 14, 17)
    a(f'v_mul_f32 v12, {f32(1/512)}, v12')
    for k in range(4):
        a(f'v_mov_b32 v{20+k}, 0')
    for d in range(0, 8, 2):
        for e in range(2):
            a(f'v_lshlrev_b32 v{24+2*e}, 16, v{72+d+e}')
            a(f'v_and_b32 v{25+2*e}, 0xffff0000, v{72+d+e}')
        for e in range(4):
            a(f'v_sub_f32 v{24+e}, v{24+e}, v12')
        for e in range(4):
            a(f'v_fmac_f32 v{20+e}, v{24+e}, v{24+e}')
    a('v_add_f32 v20, v20, v21')
    a('v_add_f32 v22, v22, v23')
    a('v_add_f32 v20, v20, v22')
    red32(a, 20, 16)
    bf16_round(a, 14, 14)
    a(f'v_mul_f32 v14, {f32(-LOG2E)}, v14')
    a('v_exp_f32 v14, v14')
    a(f'v_mul_f32 v20, {f32(1/512)}, v20')
    a('v_add_f32 v14, 1.0, v14')
    a('v_rcp_f32 v14, v14')
    bf16_round(a, 20, 20)
    a(f'v_add_f32 v20, {f32(1e-5)}, v20')
    bf16_round(a, 14, 14)
    bf16_round(a, 20, 20)
    a('v_sqrt_f32 v20, v20')
    bf16_round(a, 12, 12)
    bf16_round(a, 13, 20)
    a('v_lshlrev_b32 v8, 2, v7')
    a(f'v_add_u32 v8, {hex(WS_G)}, v8')
    a('v_lshlrev_b32 v9, 3, v7')
    a(f'v_add_u32 v9, {hex(WS_ST)}, v9')
    a('s_mov_b32 exec_lo, 1')
    a('s_mov_b32 exec_hi, 1')
    a(f'buffer_store_dword v14, v8, s[{SRD0}:{SRD0+3}], 0 offen {SC}')
    a(f'buffer_store_dwordx2 v[12:13], v9, s[{SRD0}:{SRD0+3}], 0 offen {SC}')
    a('s_mov_b64 exec, -1')
    a('s_waitcnt lgkmcnt(0)')
    a('s_barrier')
    a(f'v_and_b32 v2, 15, v{V_LANE}')
    a(f'v_lshrrev_b32 v3, 4, v{V_LANE}')
    a('v_lshrrev_b32 v4, 2, v2')
    a('v_lshl_add_u32 v4, v3, 3, v4')
    a('v_mul_u32_u24 v4, 144, v4')
    a('v_and_b32 v5, 3, v2')
    a('v_lshl_add_u32 v4, v5, 3, v4')
    a(f's_lshl_b32 s42, s{S_WAVE}, 5')
    a(f's_add_u32 s42, s42, {L_KT}')
    a('v_add_u32 v4, s42, v4')
    for th in range(2):
        a(f'ds_read_b64_tr_b16 v[{64+4*th}:{65+4*th}], v4 offset:{th*32*144}')
        a(f'ds_read_b64_tr_b16 v[{66+4*th}:{67+4*th}], v4 offset:{th*32*144+4*144}')
    a(f's_lshl_b32 s42, s{DT}, 6')
    a(f's_lshl_b32 s43, s{S_WAVE}, 4')
    a('s_add_u32 s42, s42, s43')
    a('v_add_u32 v5, s42, v2')
    a('v_lshlrev_b32 v5, 12, v5')
    a('v_lshl_add_u32 v5, v3, 4, v5')
    a(f's_lshl_b32 s42, s{TT}, 7')
    a('v_add_u32 v5, s42, v5')
    for th in range(2):
        a(f'buffer_store_dwordx4 v[{64+4*th}:{67+4*th}], v5, s[{SRD0}:{SRD0+3}], 0 offen offset:{WS_UT+64*th} {SC}')


def ucopy_loads(a, opt):
    MH, D = 80, 81
    E = [160, 168, 176]
    for q2, vo in ((0, 30), (1, 31), (2, 32)):
        a(f'buffer_load_dwordx4 v[{E[q2]}:{E[q2]+3}], v{vo}, s[{SRD1}:{SRD1+3}], 0 offen {SC}', opt=opt)
        a(f'buffer_load_dwordx2 v[{E[q2]+4}:{E[q2]+5}], v{vo}, s[{SRD1}:{SRD1+3}], 0 offen offset:16 {SC}', opt=opt)


def ucopy_addr(a):
    MH, D = 80, 81
    a(f's_lshl_b32 s42, s{D}, 12')
    srd(a, SRD1, P_WS, 's42', 4096)
    a(f's_lshl_b32 s42, s{MH}, 11')
    a(f'v_lshlrev_b32 v29, 4, v{V_LANE}')
    a('v_add_u32 v29, s42, v29')
    a('v_subrev_u32 v30, 32, v29')
    a('v_add_u32 v31, 1024, v30')
    a('v_add_u32 v32, 2048, v30')


def ucopy_writes(a):
    C, MH = 79, 80
    E = [160, 168, 176]
    a(f's_mul_i32 s42, s{C}, {UC_CH}')
    a(f's_add_u32 s42, s42, {L_UC}')
    a('v_add_u32 v2, s42, v29')
    for q2 in range(3):
        e = E[q2]
        if q2 == 2:
            a(f's_cmp_eq_u32 s{MH}, 1')
            a('s_cselect_b64 exec, 3, 0')
        T = 184 + 12 * (q2 & 1)
        for k in range(4):
            a(f'v_alignbit_b32 v{T+k}, v{e+k+1}, v{e+k}, 16')
        for k in range(4):
            a(f'v_mov_b32 v{T+4+k}, v{e+k+1}')
        for k in range(4):
            a(f'v_alignbit_b32 v{T+8+k}, v{e+k+2}, v{e+k+1}, 16')
        off = 1024 * q2
        a(f'ds_write_b128 v2, v[{e}:{e+3}] offset:{off}')
        a(f'ds_write_b128 v2, v[{T}:{T+3}] offset:{off+UC_COPY}')
        a(f'ds_write_b128 v2, v[{T+4}:{T+7}] offset:{off+2*UC_COPY}')
        a(f'ds_write_b128 v2, v[{T+8}:{T+11}] offset:{off+3*UC_COPY}')
    a('s_mov_b64 exec, -1')


def ssm_role(a):
    a(f's_mov_b32 s{S_IDX}, s2')
    stamp(a, 0)
    p0_loads(a)
    emit_ssm_loads(a)
    setup_flag_srds(a)
    p0_compute(a)
    stamp(a, 1)
    a('v_mov_b32 v33, 0')
    tok_rdy = poll_issue(a, 34, 33, SRDD, 1)
    DTC = 77
    def publish():
        a('s_waitcnt vmcnt(0)')
        check_or_spin(a, 'ssm_rdy', tok_rdy, 34, 33, SRDD, 1)
        a('s_barrier')
        def f():
            a(f's_lshl_b32 s42, s{S_IDX}, {FS}')
            a(f's_add_u32 s42, s42, {FL_P0}')
            flag_store(a, 35, 42)
        wave0_only(a, 'ssm_pub', f)
        stamp(a, 2)
    if 'ssmlite' in ARGS:
        publish()
        def f0():
            a(f's_lshl_b32 s42, s{S_IDX}, {FS}')
            a(f's_add_u32 s42, s42, {FL_A}')
            flag_store(a, 35, 42)
        wave0_only(a, 'ssm_pubx', f0)
        return
    state = {}
    def mid():
        publish()
    def pre_mfma():
        a(f's_lshr_b32 s42, s{S_IDX}, 5')
        a(f'v_and_b32 v35, 7, v{V_LANE}')
        a(f'v_lshrrev_b32 v36, 3, v{V_LANE}')
        a('v_lshlrev_b32 v36, 3, v36')
        a('v_add_u32 v36, s42, v36')
        a('v_lshl_add_u32 v35, v36, 3, v35')
        a(f'v_lshlrev_b32 v35, {FS}, v35')
        state['tok'] = poll_issue(a, 34, 35, SRDF, 0xffffffff, FL_P0)
        ucopy_addr(a)
    def post_mfma():
        a.wait_vm_token(state['tok'])
        cmp_mask(a, 34, 0xffffffff)
        a('s_cselect_b32 s82, 1, 0')
        a('s_cbranch_scc0 L_ssm_noearly')
        st = a.save()
        ucopy_loads(a, True)
        a.label('L_ssm_noearly')
        a.hist = []; a.vmq = st[1]; a.lgq = st[2]
    G.emit_kgen(a, 'kg', mid_hook=mid, pre_mfma=pre_mfma, post_mfma=post_mfma)
    stamp(a, 3)
    a('s_cmp_eq_u32 s82, 1')
    a('s_cbranch_scc1 L_ssm_have')
    spin(a, 'ssm_ut', 34, 35, SRDF, 0xffffffff, FL_P0)
    ucopy_loads(a, True)
    a.label('L_ssm_have')
    a.hist = []
    a('s_waitcnt vmcnt(0) lgkmcnt(0)')
    a('s_barrier')
    stamp(a, 4)
    ucopy_writes(a)
    a('s_waitcnt lgkmcnt(0)')
    a('s_barrier')
    stamp(a, 5)
    emit_conv(a, 'cv', SC)
    stamp(a, 6)
    a('s_waitcnt vmcnt(0)')
    a('s_barrier')
    def f():
        a(f's_lshl_b32 s42, s{S_IDX}, {FS}')
        a(f's_add_u32 s42, s42, {FL_A}')
        flag_store(a, 35, 42)
    wave0_only(a, 'ssm_pub2', f)
    stamp(a, 7)


TB, FB_, JJ, XC, PAR = 72, 73, 74, 75, 76
HOFF = [77, 78]
ROT = 79
WF, WT = 82, 83
TAU, DT = 87, 88
KX = list(range(6, 14))
KW = list(range(14, 22))
SP = list(range(90, 97))
SQ = list(range(6, 13))
WE = [97, 98, 99, 100]
R1 = 10
W2R = [96 + 4 * k for k in range(8)] + [32 + 4 * k for k in range(8)] + [232 + 4 * k for k in range(4)]
G2ACC = [64, 80, 128, 144]
HD = 6
HRING = [160 + 4 * k for k in range(12)]
G2FA = [208, 216]


class G2State:
    pass


def pos_mj(k):
    return (k % 14) >> 1, k & 1, k >= 14


def g2_index(a):
    a(f's_lshl_b32 s42, s{XC}, 2')
    a(f's_lshr_b32 s44, s{JJ}, 3')
    a(f's_add_u32 s{TAU}, s42, s44')
    a(f's_and_b32 s{DT}, s{JJ}, 7')
    a(f's_and_b32 s{PAR}, s{TAU}, 1')
    a(f's_cmp_eq_u32 s{DT}, 7')
    a(f's_cselect_b32 s42, 0, s{DT}')
    a(f's_mul_i32 s44, s{S_WAVE}, {28*1024}')
    for m in range(7):
        a('s_lshl_b32 s43, s42, 12')
        a(f's_add_u32 s{SP[m]}, s43, s44')
        if m < 6:
            a('s_add_u32 s42, s42, 1')
            a('s_cmp_eq_u32 s42, 7')
            a('s_cselect_b32 s42, 0, s42')
    a(f's_lshl_b32 s{WE[0]}, s{PAR}, 15')
    a(f's_add_u32 s{WE[1]}, s{WE[0]}, 16384')
    a(f's_sub_u32 s{WE[2]}, 32768, s{WE[0]}')
    a(f's_add_u32 s{WE[3]}, s{WE[2]}, 16384')


def g2_setup(a, g):
    for m in range(7):
        a(f's_lshl_b32 s{SQ[m]}, s{SP[m]}, 4')
    a(f's_lshl_b32 s42, s{DT}, 7')
    a(f's_sub_u32 s43, {1792*1024}, s42')
    srd(a, SRD2, P_W2, 's42', 's43')
    a(f's_mul_i32 s42, s{TAU}, {2*112*1024}')
    a(f's_add_u32 s42, s42, {hex(WS_H)}')
    srd(a, SRD3, P_WS, 's42', 2 * 112 * 1024)
    a(f's_and_b32 s{WF}, s{S_WAVE}, 1')
    a(f's_lshr_b32 s{WT}, s{S_WAVE}, 1')
    a(f'v_lshrrev_b32 v6, 3, v{V_LANE}')
    a(f'v_and_b32 v7, 7, v{V_LANE}')
    a('v_lshrrev_b32 v8, 2, v7')
    a('v_lshrrev_b32 v9, 1, v6')
    a('v_and_b32 v9, 1, v9')
    a('v_xor_b32 v8, v8, v9')
    a('v_and_b32 v7, 3, v7')
    a('v_lshl_add_u32 v8, v8, 2, v7')
    a('v_lshlrev_b32 v6, 10, v6')
    a('v_lshl_add_u32 v2, v8, 4, v6')
    a(f'v_add_u32 v3, {8*1024-1024}, v2')
    a(f's_mul_i32 s84, s{S_WAVE}, 20480')
    a(f'v_lshrrev_b32 v6, 4, v{V_LANE}')
    a(f'v_and_b32 v7, 15, v{V_LANE}')
    a('v_lshrrev_b32 v8, 2, v7')
    a('v_and_b32 v7, 3, v7')
    a('v_lshrrev_b32 v9, 1, v6')
    a('v_and_b32 v6, 1, v6')
    a('v_lshl_add_u32 v9, v9, 2, v8')
    a('v_lshlrev_b32 v9, 7, v9')
    a('v_lshl_add_u32 v9, v6, 5, v9')
    a('v_lshl_add_u32 v9, v7, 3, v9')
    a('v_lshrrev_b32 v8, 1, v8')
    a(f'v_xor_b32 v8, s{WF}, v8')
    a('v_lshl_add_u32 v4, v8, 6, v9')
    a('v_xor_b32 v8, 1, v8')
    a('v_lshl_add_u32 v5, v8, 6, v9')
    a('v_add_u32 v4, s84, v4')
    a('v_add_u32 v5, s84, v5')
    a(f'v_lshlrev_b32 v8, 4, v{V_LANE}')
    a(f's_lshl_b32 s43, s{PAR}, 11')
    a('v_add_u32 v8, s43, v8')
    a(f's_mul_i32 s42, s{WT}, {112*1024}')
    a('v_add_u32 v6, s42, v8')
    a(f's_sub_u32 s42, {112*1024}, s42')
    a('v_add_u32 v7, s42, v8')
    a('s_lshl_b32 s43, s43, 1')
    a('s_sub_u32 s43, 2048, s43')
    a('v_add_u32 v10, s43, v6')
    a('v_add_u32 v11, s43, v7')
    g.tokW = {}


def g2_dma(a, g, k, emit=None):
    e = emit or a
    m, j, late = pos_mj(k)
    slot = k % 10
    e(f's_add_u32 m0, s84, {2048*slot}')
    e(f's_add_u32 s89, s{SQ[m]}, s{WE[2*late+j]}')
    e(f'buffer_load_dwordx4 v2, s[{SRD2}:{SRD2+3}], s89 offen lds')
    g.tokW[k] = e(f'buffer_load_dwordx4 v3, s[{SRD2}:{SRD2+3}], s89 offen offset:1024 lds')


def g2_wread_list(k, regs):
    slot = k % 10
    l = []
    for dd in range(2):
        l.append(f'ds_read_b64_tr_b16 v[{regs[dd]}:{regs[dd]+1}], v{4+dd} offset:{2048*slot}')
        l.append(f'ds_read_b64_tr_b16 v[{regs[dd]+2}:{regs[dd]+3}], v{4+dd} offset:{2048*slot+1024}')
    return l


def g2_round1_reads(a, g):
    a.wait_vm_token(g.tokW[R1 - 1])
    for k in range(R1):
        for l in g2_wread_list(k, W2R[2*k:2*k+2]): a(l)


def g2_round2_dma(a, g):
    a('s_waitcnt lgkmcnt(0)')
    for k in range(R1, R1 + 10):
        g2_dma(a, g, k)


def g1_role(a, g):
    VX = [2, 3, 4, 5]
    VW = [6, 7, 8, 9]
    a(f's_and_b32 s{WF}, s{S_WAVE}, 1')
    a(f's_lshr_b32 s{WT}, s{S_WAVE}, 1')
    a(f'v_lshrrev_b32 v12, 3, v{V_LANE}')
    a(f'v_and_b32 v13, 7, v{V_LANE}')
    a('v_lshrrev_b32 v14, 1, v12')
    a('v_xor_b32 v14, v13, v14')
    a(f's_lshl_b32 s42, s{S_WAVE}, 4')
    a('v_add_u32 v15, s42, v12')
    a('v_lshlrev_b32 v15, 10, v15')
    a(f'v_lshl_add_u32 v{VX[0]}, v14, 4, v15')
    a('v_xor_b32 v14, 4, v14')
    a(f'v_lshl_add_u32 v{VX[1]}, v14, 4, v15')
    a(f'v_add_u32 v{VX[1]}, {8*1024-1024}, v{VX[1]}')
    a(f'v_lshrrev_b32 v12, 4, v{V_LANE}')
    a(f'v_and_b32 v13, 15, v{V_LANE}')
    a('v_lshrrev_b32 v14, 2, v13')
    a('v_xor_b32 v14, v14, v12')
    a('v_and_b32 v13, 3, v13')
    a('v_lshl_add_u32 v14, v14, 2, v13')
    a(f's_lshl_b32 s42, s{S_WAVE}, 3')
    a('v_add_u32 v15, s42, v12')
    a('v_mul_u32_u24 v15, 3584, v15')
    a(f'v_lshl_add_u32 v{VW[0]}, v14, 4, v15')
    a(f'v_add_u32 v{VW[1]}, {4*3584-1024}, v{VW[0]}')
    a(f's_lshl_b32 s84, s{S_WAVE}, 11')
    def ktab(c):
        a(f's_add_u32 s42, s{ROT}, {c}')
        a('s_and_b32 s42, s42, 7')
        a(f's_lshl_b32 s{KX[c]}, s42, 7')
        a(f's_mul_i32 s{KW[c]}, s42, 229376')
    a('s_waitcnt lgkmcnt(0)')
    a.lgq = []
    ktab(0); ktab(1)
    a(f's_lshl_b32 s42, s{TB}, 17')
    srd(a, SRD1, P_X, 's42', 131072)
    a(f's_lshl_b32 s42, s{FB_}, 8')
    a(f's_sub_u32 s43, {512*3584}, s42')
    srd(a, SRD2, P_W1, 's42', 's43')
    tokW, tokX = {}, {}
    def dma_w_list(st):
        o = 2 * (st & 1)
        return [f's_add_u32 m0, s84, {G1_WS[st % 4]}',
                f'buffer_load_dwordx4 v{VW[o]}, s[{SRD2}:{SRD2+3}], s{KW[st >> 1]} offen lds',
                (f'buffer_load_dwordx4 v{VW[o+1]}, s[{SRD2}:{SRD2+3}], s{KW[st >> 1]} offen offset:1024 lds', ('w', st))]
    def dma_x_list(c, h):
        return [f's_add_u32 m0, s84, {G1_XS[c % 3] + 8192*h}',
                f'buffer_load_dwordx4 v{VX[2*h]}, s[{SRD1}:{SRD1+3}], s{KX[c]} offen lds',
                (f'buffer_load_dwordx4 v{VX[2*h+1]}, s[{SRD1}:{SRD1+3}], s{KX[c]} offen offset:1024 lds', ('x', (c, h)))]
    def put(item):
        if isinstance(item, tuple):
            t = a(item[0])
            (tokW if item[1][0] == 'w' else tokX)[item[1][1]] = t
        elif callable(item):
            item()
        else:
            a(item)
    for it in dma_w_list(0) + dma_x_list(0, 0): put(it)
    a(f'v_add_u32 v{VX[2]}, 65536, v{VX[0]}')
    a(f'v_add_u32 v{VX[3]}, 65536, v{VX[1]}')
    a(f'v_add_u32 v{VW[2]}, {32*3584}, v{VW[0]}')
    a(f'v_add_u32 v{VW[3]}, {32*3584}, v{VW[1]}')
    for it in dma_x_list(0, 1) + dma_w_list(1) + dma_x_list(1, 0) + dma_x_list(1, 1) + dma_w_list(2): put(it)
    stamp(a, 1)
    for c in range(2, 8): ktab(c)
    g2_index(a)
    VA = [10, 11]; VB = [16, 17, 18, 19]
    a(f'v_lshrrev_b32 v12, 4, v{V_LANE}')
    a(f'v_and_b32 v13, 15, v{V_LANE}')
    a('v_lshrrev_b32 v14, 2, v13')
    a('v_and_b32 v13, 3, v13')
    a('v_lshrrev_b32 v15, 1, v12')
    a('v_and_b32 v12, 1, v12')
    a('v_lshl_add_u32 v15, v15, 3, v14')
    a('v_lshlrev_b32 v15, 8, v15')
    a('v_lshl_add_u32 v15, v12, 5, v15')
    a('v_lshl_add_u32 v15, v13, 3, v15')
    a(f'v_add_u32 v15, {G1_WS[0]}, v15')
    a(f's_lshl_b32 s42, s{WF}, 1')
    a(f's_add_u32 s42, s42, s{WT}')
    for l in range(2):
        if l: a('s_xor_b32 s42, s42, 1')
        a('v_xor_b32 v12, s42, v14')
        a(f'v_lshl_add_u32 v{VA[l]}, v12, 6, v15')
    a(f'v_and_b32 v12, 31, v{V_LANE}')
    a(f'v_lshrrev_b32 v13, 5, v{V_LANE}')
    a('v_lshrrev_b32 v14, 1, v12')
    a('v_and_b32 v14, 7, v14')
    a(f's_lshl_b32 s42, s{WT}, 6')
    a('v_add_u32 v12, s42, v12')
    a('v_lshlrev_b32 v12, 7, v12')
    for kk in range(4):
        a(f'v_add_u32 v15, {2*kk}, v13')
        a('v_xor_b32 v15, v15, v14')
        a(f'v_lshl_add_u32 v{VB[kk]}, v15, 4, v12')
    ONES, SACC = 248, 232
    for k in range(4):
        a(f'v_mov_b32 v{ONES+k}, 0x3f803f80')
    SV = [SACC, 128]; BV, RAW = 160, 192
    MS = [12, 14]
    setup_flag_srds(a)
    srd(a, SRD0, P_WS, 0, 0x1000000)
    a('v_mov_b32 v24, 0')
    a(f's_lshr_b32 s42, s{TB}, 1')
    a(f's_and_b32 s43, s{TB}, 1')
    a('s_lshl_b32 s43, s43, 7')
    a('s_add_u32 s42, s42, s43')
    a(f'v_lshlrev_b32 v25, 3, v{V_LANE}')
    a('v_add_u32 v25, s42, v25')
    a(f'v_lshlrev_b32 v25, {FS}, v25')
    a(f'v_and_b32 v26, 31, v{V_LANE}')
    a(f'v_lshrrev_b32 v27, 5, v{V_LANE}')
    a(f's_lshl_b32 s42, s{TB}, 7')
    a(f's_lshl_b32 s43, s{WT}, 6')
    a('s_add_u32 s42, s42, s43')
    a('v_add_u32 v28, s42, v26')
    a('v_lshlrev_b32 v28, 3, v28')
    a(f'v_add_u32 v28, {hex(WS_ST)}, v28')
    a(f's_lshl_b32 s42, s{FB_}, 7')
    a(f's_lshl_b32 s43, s{WF}, 6')
    a('s_add_u32 s42, s42, s43')
    a('v_lshlrev_b32 v29, 2, v27')
    a('v_add_u32 v29, s42, v29')
    a('v_lshlrev_b32 v29, 1, v29')
    a(f's_lshl_b32 s42, s{WT}, 6')
    a('v_add_u32 v30, s42, v29')
    a('s_sub_u32 s42, 64, s42')
    a('v_add_u32 v29, s42, v29')
    a(f's_lshl_b32 s{HOFF[0]}, s{WT}, 11')
    a(f's_sub_u32 s{HOFF[1]}, 2048, s{HOFF[0]}')
    for l in range(2):
        for i in range(4):
            a(f'global_load_dwordx2 v[{RAW+8*l+2*i}:{RAW+8*l+2*i+1}], v{30-l}, s[{P_B1}:{P_B1+1}] offset:{16*i}')
    st_ = {}
    def h_rdy_issue(): st_['r'] = poll_issue(a, 31, 24, SRDD, 1)
    def h_rdy_check(): check_or_spin(a, 'g1_rdy', st_['r'], 31, 24, SRDD, 1)
    def h_fl_issue(): st_['f'] = poll_issue(a, 31, 25, SRDF, 0xffff, FL_P0)
    def h_fl_check():
        check_or_spin(a, 'g1_fl', st_['f'], 31, 25, SRDF, 0xffff, FL_P0)
        for tt in range(2):
            a(f'buffer_load_dwordx2 v[{MS[tt]}:{MS[tt]+1}], v28, s[{SRD0}:{SRD0+3}], 0 offen offset:{256*tt} {SC}')
    hk = {7: h_rdy_issue, 10: h_rdy_check, 11: h_fl_issue, 14: h_fl_check}
    ACC = 32
    FR = [96, 112]
    def reads(st, kap):
        base = FR[kap]
        lst = []
        for l in range(2):
            o = (st % 4) * 8192 + kap * 16 * 256
            lst.append(f'ds_read_b64_tr_b16 v[{base+4*l}:{base+4*l+1}], v{VA[l]} offset:{o}')
            lst.append(f'ds_read_b64_tr_b16 v[{base+4*l+2}:{base+4*l+3}], v{VA[l]} offset:{o+1024}')
        for tt in range(2):
            kk = 2 * (st & 1) + kap
            lst.append(f'ds_read_b128 v[{base+8+4*tt}:{base+11+4*tt}], v{VB[kk]} offset:{G1_XS[(st>>1) % 3] + 4096*tt}')
        return lst
    def mfmas(st, kap, rd, dm):
        base = FR[kap]
        first = (st == 0 and kap == 0)
        ms = []
        for l in range(2):
            for tt in range(2):
                acc = ACC + 32 * l + 16 * tt
                c = '0' if first else f'v[{acc}:{acc+15}]'
                ms.append(f'v_mfma_f32_32x32x16_bf16 v[{acc}:{acc+15}], v[{base+4*l}:{base+4*l+3}], v[{base+8+4*tt}:{base+11+4*tt}], {c}')
        c = '0' if first else f'v[{SACC}:{SACC+15}]'
        ms.append(f'v_mfma_f32_32x32x16_bf16 v[{SACC}:{SACC+15}], v[{base}:{base+3}], v[{ONES}:{ONES+3}], {c}')
        gaps = [rd[0:2], dm[0:2] + rd[2:3], rd[3:5], dm[2:3] + rd[5:6], []]
        for m, gp in zip(ms, gaps):
            a(m)
            for it in gp: put(it)
    for st in range(16):
        need = [tokW[st]] + [tokX[(st >> 1, h)] for h in range(2)]
        if st + 1 < 16:
            need += [tokW[st + 1]] + [tokX[((st + 1) >> 1, h)] for h in range(2)]
        a.wait_vm_token(max(need))
        a('s_barrier')
        if st in (0, 4, 8, 12): stamp(a, 2 + st // 4)
        if st in hk: hk[st]()
        if st == 0:
            for l in reads(0, 0): a(l)
        c = (st >> 1) + 2
        mfmas(st, 0, reads(st, 1), dma_w_list(st + 3) if st + 3 < 16 else [])
        mfmas(st, 1, reads(st + 1, 0) if st + 1 < 16 else [], dma_x_list(c, st & 1) if c < 8 else [])
    a(f's_xor_b32 s42, s{S_WAVE}, 2')
    a('s_mov_b32 s43, 14336')
    a('s_cmp_eq_u32 s42, 3')
    a('s_cselect_b32 s43, 10240, s43')
    a('s_mul_i32 s42, s42, 20480')
    a('s_add_u32 s42, s42, s43')
    a(f'v_lshrrev_b32 v20, 5, v{V_LANE}')
    a('v_lshlrev_b32 v20, 6, v20')
    a('v_add_u32 v21, s42, v20')
    a('s_mov_b32 exec_lo, 1')
    a('s_mov_b32 exec_hi, 1')
    for i in range(4):
        a(f'ds_write_b128 v21, v[{SACC+4*i}:{SACC+4*i+3}] offset:{16*i}')
    a('s_mov_b64 exec, -1')
    a('s_waitcnt lgkmcnt(0)')
    a('s_barrier')
    stamp(a, 6)
    a('s_mov_b32 s43, 14336')
    a(f's_cmp_eq_u32 s{S_WAVE}, 3')
    a('s_cselect_b32 s43, 10240, s43')
    a(f's_mul_i32 s42, s{S_WAVE}, 20480')
    a('s_add_u32 s42, s42, s43')
    a('v_add_u32 v21, s42, v20')
    for i in range(4):
        a(f'ds_read_b128 v[{SV[1]+4*i}:{SV[1]+4*i+3}], v21 offset:{16*i}')
    a(f's_lshl_b32 s42, s{TB}, 2')
    a(f's_lshl_b32 s43, s{WT}, 1')
    a('s_add_u32 s42, s42, s43')
    a('s_mul_i32 s42, s42, 112')
    a(f's_lshl_b32 s43, s{FB_}, 3')
    a('s_add_u32 s42, s42, s43')
    a(f's_lshl_b32 s43, s{WF}, 2')
    a('s_add_u32 s42, s42, s43')
    a('s_lshl_b32 s42, s42, 10')
    a(f's_add_u32 s42, s42, {hex(WS_H)}')
    a(f'v_lshlrev_b32 v24, 4, v{V_LANE}')
    a('v_add_u32 v24, s42, v24')
    a(f'v_add_u32 v25, {112*1024}, v24')
    VH = [24, 25]
    TOKH = 80
    a(f's_mov_b32 s{TOKH}, s{WT}')
    g2_setup(a, g)
    a('s_waitcnt lgkmcnt(0)')
    NM, SD, AL, BE = [16, 17], [13, 15], [18, 19], [20, 21]
    T = 208
    toks = {}
    dq = []
    def queue_dma(ks):
        for k in ks:
            m, j, late = pos_mj(k)
            dq.append([f's_add_u32 m0, s84, {2048*(k % 10)}', f's_add_u32 s89, s{SQ[m]}, s{WE[2*late+j]}',
                       f'buffer_load_dwordx4 v2, s[{SRD2}:{SRD2+3}], s89 offen lds'])
            dq.append([(f'buffer_load_dwordx4 v3, s[{SRD2}:{SRD2+3}], s89 offen offset:1024 lds', k)])
    def drain_dma():
        while dq:
            for it in dq.pop(0):
                if isinstance(it, tuple): g.tokW[it[1]] = a(it[0])
                else: a(it)
    queue_dma(range(R1))
    cnt = [0]
    gap = [12]
    def e(text):
        r = a(text)
        cnt[0] += 1
        if cnt[0] % gap[0] == 0 and dq:
            for it in dq.pop(0):
                if isinstance(it, tuple): g.tokW[it[1]] = a(it[0])
                else: a(it)
        return r
    for l in range(2):
        for i in range(4):
            for h in range(2):
                e(f'v_lshlrev_b32 v{BV+16*l+4*i+2*h}, 16, v{RAW+8*l+2*i+h}')
                e(f'v_and_b32 v{BV+16*l+4*i+2*h+1}, 0xffff0000, v{RAW+8*l+2*i+h}')
    for tt in range(2):
        e(f'v_sub_f32 v{NM[tt]}, 0, v{MS[tt]}')
        e(f'v_rcp_f32 v22, v{SD[tt]}')
        e(f'v_mul_f32 v{AL[tt]}, {f32(-GELU_C)}, v22')
        e('v_mul_f32 v23, v22, v22')
        e(f'v_mul_f32 v23, v23, v{AL[tt]}')
        e(f'v_mul_f32 v{BE[tt]}, {f32(0.044715)}, v23')
    def hstore(l, tt, j):
        H = 216 + 4 * ((2 * tt + j) % 4)
        toks[(l, tt, j)] = a(f'buffer_store_dwordx4 v[{H}:{H+3}], v{VH[tt]}, s[{SRD0}:{SRD0+3}], s{HOFF[l]} offen offset:{j*1024} {SC}')
    def gelu(l, tt, store=True):
        acc = ACC + 32 * l + 16 * tt
        for j in range(2):
            r0 = 8 * j
            E = range(8)
            for x in E: e(f'v_fmac_f32 v{acc+r0+x}, v{BV+16*l+r0+x}, v{SD[tt]}')
            for x in E: e(f'v_fmac_f32 v{acc+r0+x}, v{SV[l]+r0+x}, v{NM[tt]}')
            for x in E: e(f'v_mul_f32 v{T+x}, v{acc+r0+x}, v{acc+r0+x}')
            for x in E: e(f'v_fma_f32 v{T+x}, v{T+x}, v{BE[tt]}, v{AL[tt]}')
            for x in E: e(f'v_mul_f32 v{T+x}, v{T+x}, v{acc+r0+x}')
            for x in E: e(f'v_exp_f32 v{T+x}, v{T+x}')
            for x in E: e(f'v_fma_f32 v{T+x}, v{T+x}, v{SD[tt]}, v{SD[tt]}')
            for x in E: e(f'v_rcp_f32 v{T+x}, v{T+x}')
            for x in E: e(f'v_mul_f32 v{T+x}, v{T+x}, v{acc+r0+x}')
            H = 216 + 4 * ((2 * tt + j) % 4)
            for x in range(4): e(f'v_cvt_pk_bf16_f32 v{H+x}, v{T+2*x}, v{T+2*x+1}')
            if store: hstore(l, tt, j)
    def publish(stage):
        def f():
            a(f's_mul_i32 s42, s{TB}, 14')
            a(f's_add_u32 s42, s42, s{FB_}')
            a(f's_lshl_b32 s42, s42, {FS}')
            a(f's_add_u32 s42, s42, {FL_H}')
            flag_store(a, 22, 42, extra=4 * stage)
        a('s_barrier')
        wave0_only(a, f'g1_pub{stage}', f)
    gelu(0, 0); gelu(0, 1)
    drain_dma()
    stamp(a, 7)
    g2_round1_reads(a, g)
    a('s_waitcnt lgkmcnt(0)')
    queue_dma(range(R1, R1 + 10))
    gap[0] = 13
    gelu(1, 0)
    a.wait_vm_token(toks[(0, 1, 1)])
    publish(0)
    gelu(1, 1)
    drain_dma()
    stamp(a, 8)
    a.wait_vm_token(toks[(1, 1, 1)])
    publish(1)
    stamp(a, 9)


def service_role(a, g):
    a(f's_cmp_eq_u32 s{JJ}, 28')
    a('s_cbranch_scc0 L_sv_done')
    a(f's_cmp_eq_u32 s{S_WAVE}, 3')
    a('s_cbranch_scc0 L_sv_zero')
    if 'nopf' not in ARGS:
        a('s_getpc_b64 s[44:45]')
        a.label('L_pf_pc')
        a('s_sub_u32 s44, s44, L_pf_pc-CODE_BEGIN')
        a('s_subb_u32 s45, s45, 0')
        a(f'v_lshlrev_b32 v37, 4, v{V_LANE}')
        NPF = 38
        for k in range(NPF):
            a('v_min_u32 v36, CODE_END-CODE_BEGIN-16, v37')
            a('global_load_dwordx4 v[252:255], v36, s[44:45]', opt=True, discard=True)
            a('v_add_u32 v37, 1024, v37')
    a('s_branch L_sv_join')
    a.label('L_sv_zero')
    a.reset()
    a('s_waitcnt lgkmcnt(0)')
    a(f's_cmp_eq_u32 s{XC}, 0')
    a('s_cbranch_scc0 L_sv_join')
    srd(a, SRDF, P_WS, WS_FL, FL_BYTES)
    a(f'v_lshlrev_b32 v2, 4, v{V_TID}')
    for k in range(4):
        a(f'v_mov_b32 v{4+k}, 0')
    for k in range(FL_BYTES // 3072):
        a(f'buffer_store_dwordx4 v[4:7], v2, s[{SRDF}:{SRDF+3}], 0 offen {SC}')
        a('v_add_u32 v2, 3072, v2')
    a('s_waitcnt vmcnt(0)')
    a.label('L_sv_join')
    a.reset()
    a('s_waitcnt lgkmcnt(0)')
    a('s_barrier')
    a(f's_cmp_eq_u32 s{XC}, 0')
    a('s_cbranch_scc0 L_sv_done')
    a(f's_cmp_eq_u32 s{S_WAVE}, 0')
    a('s_cbranch_scc0 L_sv_done')
    srd(a, SRDD, P_DBG, 0, 256)
    a('v_mov_b32 v2, 0')
    a('v_mov_b32 v3, 1')
    a('s_mov_b64 exec, 1')
    a(f'buffer_store_dword v3, v2, s[{SRDD}:{SRDD+3}], 0 offen {SC}', opt=True)
    a('s_mov_b64 exec, -1')
    a.label('L_sv_done')
    a.reset()
    a('s_waitcnt lgkmcnt(0)')
    setup_flag_srds(a)
    g2_index(a)
    g2_setup(a, g)
    for k in range(R1):
        g2_dma(a, g, k)
    srd(a, SRD0, P_WS, 0, 0x1000000)
    a('v_mov_b32 v33, 0')
    spin(a, 'sv_rdy', 34, 33, SRDD, 1)
    g2_round1_reads(a, g)
    g2_round2_dma(a, g)


def g2_main(a, g):
    VF, VT, VP = 12, 13, 14
    a(f's_lshr_b32 s42, s{TAU}, 1')
    a('s_mul_i32 s42, s42, 14')
    a(f's_mul_i32 s43, s{S_WAVE}, 7')
    a('s_lshr_b32 s43, s43, 1')
    a('s_add_u32 s42, s42, s43')
    a(f'v_add_u32 v{VF}, s42, v{V_LANE}')
    a(f'v_lshlrev_b32 v{VF}, {FS}, v{VF}')
    a(f'v_add_u32 v{VF}, {FL_H}, v{VF}')
    tok0 = poll_issue(a, VP, VF, SRDF, 0xf, 0)
    a(f's_lshl_b32 s42, s{DT}, 5')
    a(f'v_add_u32 v{VT}, s42, v{V_LANE}')
    a(f'v_lshlrev_b32 v{VT}, {FS}, v{VT}')
    a(f'v_add_u32 v{VT}, {FL_A}, v{VT}')
    a(f's_lshr_b32 s42, s{TAU}, 2')
    a(f's_and_b32 s43, s{TAU}, 3')
    a('s_lshl_b32 s43, s43, 6')
    a('s_add_u32 s42, s42, s43')
    a(f'v_subrev_u32 v15, 32, v{V_LANE}')
    a('v_lshlrev_b32 v15, 3, v15')
    a('v_add_u32 v15, s42, v15')
    a(f'v_lshlrev_b32 v15, {FS}, v15')
    a(f'v_add_u32 v15, {FL_P0}, v15')
    a(f'v_cmp_gt_u32 vcc, 32, v{V_LANE}')
    a(f'v_cndmask_b32 v{VT}, v15, v{VT}, vcc')
    TAILMASK = (1 << 40) - 1
    check_or_spin(a, 'g2_h0', tok0, VP, VF, SRDF, 0xf, 0)
    stamp(a, 10)
    def hload(k, tt):
        m, j, late = pos_mj(k)
        r = HRING[2 * (k % HD) + tt]
        return f'buffer_load_dwordx4 v[{r}:{r+3}], v{(10 if late else 6)+tt}, s[{SRD3}:{SRD3+3}], s{SP[m]} offen offset:{1024*j} {SC}'
    def wregs(k):
        return W2R[2*k:2*k+2] if k < R1 else [G2FA[k & 1], G2FA[k & 1] + 4]
    st_ = {}
    for k in range(HD - 1):
        for tt in range(2):
            t_ = a(hload(k, tt))
            st_.setdefault('first', t_)
    AV = [32 + r for r in range(16)]
    GV, B2 = 48, 50
    VTOK, VHI = 16, 17
    def tail_loads():
        check_or_spin(a, 'g2_t', st_['t'], VP, VT, SRDF, TAILMASK)
        a(f'v_and_b32 v{VTOK}, 31, v{V_LANE}')
        a(f'v_lshrrev_b32 v{VHI}, 5, v{V_LANE}')
        a(f's_lshl_b32 s42, s{TAU}, 6')
        a(f's_lshl_b32 s43, s{WT}, 5')
        a('s_add_u32 s42, s42, s43')
        a(f'v_add_u32 v{VTOK}, s42, v{VTOK}')
        a(f'v_lshlrev_b32 v18, 2, v{VTOK}')
        a(f'v_add_u32 v18, {hex(WS_G)}, v18')
        a(f'buffer_load_dword v{GV}, v18, s[{SRD0}:{SRD0+3}], 0 offen {SC}')
        a(f's_lshl_b32 s42, s{DT}, 6')
        a(f's_lshl_b32 s43, s{WF}, 5')
        a('s_add_u32 s85, s42, s43')
        a(f'v_lshlrev_b32 v18, 2, v{VHI}')
        a('v_add_u32 v18, s85, v18')
        a('v_lshlrev_b32 v19, 1, v18')
        for i in range(4):
            a(f'global_load_dwordx2 v[{B2+2*i}:{B2+2*i+1}], v19, s[{P_B2}:{P_B2+1}] offset:{16*i}')
        a('v_lshlrev_b32 v18, 12, v18')
        a(f'v_lshl_add_u32 v18, v{VTOK}, 1, v18')
    aq = [(i, r) for i in range(4) for r in range(4)]
    for k in range(28):
        rd = []
        if R1 <= k + 1 < 28:
            if k + 1 >= R1 + 10: a.wait_vm_token(g.tokW[k + 1])
            if k + 1 == R1: a.wait_vm_token(st_['first'])
            rd = g2_wread_list(k + 1, wregs(k + 1))
        f = wregs(k)
        kn = k + HD - 1
        if k == 14 - HD - 3: st_['h1'] = poll_issue(a, VP, VF, SRDF, 0xf, 4)
        if kn == 14: check_or_spin(a, 'g2_h1', st_['h1'], VP, VF, SRDF, 0xf, 4)
        if k == 15: st_['t'] = poll_issue(a, VP, VT, SRDF, TAILMASK)
        if k == 19: tail_loads()
        n = 0
        for tt in range(2):
            r = HRING[2 * (k % HD) + tt]
            for dd in range(2):
                acc = G2ACC[dd + 2 * tt]
                c = '0' if k == 0 else f'v[{acc}:{acc+15}]'
                a(f'v_mfma_f32_32x32x16_bf16 v[{acc}:{acc+15}], v[{f[dd]}:{f[dd]+3}], v[{r}:{r+3}], {c}')
                if n in (0, 2) and kn < 28: a(hload(kn, n // 2))
                if n in (0, 1):
                    for l in rd[2*n:2*n+2]: a(l)
                if n == 3 and k >= R1 + 1 and k - 1 + 10 < 28: g2_dma(a, g, k - 1 + 10)
                if k >= 19 and aq:
                    i, rr = aq.pop(0)
                    a(f's_mov_b32 s86, {hex(WS_AT + (8*i+rr)*4096)}')
                    a(f'buffer_load_ushort v{AV[4*i+rr]}, v18, s[{SRD0}:{SRD0+3}], s86 offen {SC}')
                n += 1
    assert not aq
    stamp(a, 11)
    a('s_waitcnt lgkmcnt(0)')
    a('s_barrier')
    a(f'v_lshlrev_b32 v14, 4, v{V_LANE}')
    for x in range(1, 4):
        a(f's_xor_b32 s42, s{S_WAVE}, {x}')
        a('s_mul_i32 s42, s42, 12288')
        a('v_add_u32 v15, s42, v14')
        for i in range(4):
            a(f'ds_write_b128 v15, v[{G2ACC[x]+4*i}:{G2ACC[x]+4*i+3}] offset:{4096*(x-1)+1024*i}')
    a(f'v_sub_f32 v20, 1.0, v{GV}')
    bf16_round(a, 20, 20)
    for r in range(16):
        a(f'v_lshlrev_b32 v{AV[r]}, 16, v{AV[r]}')
        a(f'v_mul_f32 v{AV[r]}, v{AV[r]}, v{GV}')
    a('s_waitcnt lgkmcnt(0)')
    a('s_barrier')
    a(f's_mul_i32 s42, s{S_WAVE}, 12288')
    a('v_add_u32 v15, s42, v14')
    PR = 160
    for x in range(3):
        for i in range(4):
            a(f'ds_read_b128 v[{PR+16*x+4*i}:{PR+16*x+4*i+3}], v15 offset:{4096*x+1024*i}')
    ACC = G2ACC[0]
    for x in range(3):
        for r in range(16):
            a(f'v_add_f32 v{ACC+r}, v{ACC+r}, v{PR+16*x+r}')
    O = 96
    for i in range(4):
        T = 104
        for h in range(2):
            a(f'v_lshlrev_b32 v{T+2*h}, 16, v{B2+2*i+h}')
            a(f'v_and_b32 v{T+2*h+1}, 0xffff0000, v{B2+2*i+h}')
        for r in range(4):
            a(f'v_add_f32 v{T+r}, v{T+r}, v{ACC+4*i+r}')
        for r in range(4):
            a(f'v_fma_f32 v{T+r}, v{T+r}, v20, v{AV[4*i+r]}')
        a(f'v_cvt_pk_bf16_f32 v{O+2*i}, v{T}, v{T+1}')
        a(f'v_cvt_pk_bf16_f32 v{O+2*i+1}, v{T+2}, v{T+3}')
    a(f'v_lshlrev_b32 v{VTOK}, 10, v{VTOK}')
    a('s_lshl_b32 s42, s85, 1')
    a(f'v_add_u32 v{VTOK}, s42, v{VTOK}')
    a(f'v_lshl_add_u32 v{VTOK}, v{VHI}, 4, v{VTOK}')
    srd(a, SRD1, P_OUT, 0, 2048 * 1024)
    for p in range(2):
        a(f'v_permlane32_swap_b32 v{O+4*p}, v{O+4*p+2}')
        a(f'v_permlane32_swap_b32 v{O+4*p+1}, v{O+4*p+3}')
        a(f'buffer_store_dwordx4 v[{O+4*p}:{O+4*p+3}], v{VTOK}, s[{SRD1}:{SRD1+3}], 0 offen offset:{32*p}')
    if G.STAMP:
        a('s_waitcnt vmcnt(0)')
    stamp(a, 12)


def gemm_role(a):
    g = G2State()
    a(f's_sub_u32 s{S_IDX}, s2, 256')
    a('s_setprio 2')
    a(f's_and_b32 s{XC}, s{S_IDX}, 7')
    a(f's_lshr_b32 s{JJ}, s{S_IDX}, 3')
    a(f's_cmp_ge_u32 s{JJ}, 28')
    a('s_cbranch_scc1 L_service')
    a(f's_mul_i32 s42, s{JJ}, 37')
    a('s_lshr_b32 s42, s42, 8')
    a('s_mul_i32 s43, s42, 7')
    a(f's_sub_u32 s43, s{JJ}, s43')
    a(f's_lshr_b32 s44, s{XC}, 1')
    a('s_lshl_b32 s44, s44, 2')
    a(f's_add_u32 s{TB}, s44, s42')
    a(f's_and_b32 s44, s{XC}, 1')
    a('s_mul_i32 s44, s44, 7')
    a(f's_add_u32 s{FB_}, s44, s43')
    a('s_lshl_b32 s42, s42, 1')
    a('s_add_u32 s42, s42, s43')
    a(f's_and_b32 s{ROT}, s42, 7')
    if 'norot' in ARGS: a(f's_mov_b32 s{ROT}, 0')
    g1_role(a, g)
    a('s_branch L_g2')
    a.label('L_service')
    a.reset()
    service_role(a, G2State())
    a.label('L_g2')
    a.reset()
    g.tokW = {}
    g2_main(a, g)


def build():
    a = Asm()
    name = NAME + '_kernel'
    a.raw(HEADER.rstrip())
    a.raw(f'; @launch grid=(512,1,1) block=(256,1,1) lds={LDS_BYTES}')
    a.raw('.amdgcn_target "amdgcn-amd-amdhsa--gfx950"')
    a.raw('.text')
    a.raw(f'.globl {name}')
    a.raw('.p2align 8')
    a.raw(f'.type {name},@function')
    a.label(name)
    a.label('CODE_BEGIN')
    a.reset()
    a('s_cmp_ge_u32 s2, 512')
    a(f's_cbranch_scc1 L_exit')
    a('s_load_dwordx16 s[4:19], s[0:1], 0')
    a('s_load_dwordx16 s[20:35], s[0:1], 64')
    a('s_load_dwordx4 s[36:39], s[0:1], 128')
    a(f'v_lshrrev_b32 v2, 6, v{V_TID}')
    a(f'v_and_b32 v{V_LANE}, 63, v{V_TID}')
    a(f'v_readfirstlane_b32 s{S_WAVE}, v2')
    a('s_cmp_lt_u32 s2, 256')
    a('s_cbranch_scc1 L_ssm')
    a.lgq = []
    if G.STAMP:
        a('s_waitcnt lgkmcnt(0)')
        stamp(a, 0)
    gemm_role(a)
    a.label('L_exit')
    a('s_endpgm')
    emit_slow_blocks(a)
    a.label('L_ssm')
    a.reset()
    a('s_waitcnt lgkmcnt(0)')
    ssm_role(a)
    a('s_endpgm')
    emit_slow_blocks(a)
    a.raw(table())
    a.raw('CODE_END:')
    a.raw('.section .rodata,"a"')
    a.raw('.p2align 6')
    a.raw(kd(name).strip('\n'))
    return a.text()


if __name__ == '__main__':
    out = [x for x in sys.argv[1:] if x.endswith('.s')]
    out = out[0] if out else 'cdna_kernels/' + NAME + '.s'
    txt = build()
    open(out, 'w').write(txt)
    print('wrote', out, len(txt), 'bytes')
```

```python
import math, struct, sys
from asmlib import Asm, v, s

NAME = "gated_mix__ssm_conv_s4__mixer_channel_mlp__prompt"

WS_UT, WS_AT, WS_H = 0x000000, 0x200000, 0x400000
WS_G, WS_ST, WS_S = 0xB00000, 0xB02000, 0xB06000
WS_FL = 0xB10000
FL_P0, FL_S, FL_H, FL_A = 0x0, 0x8000, 0x9000, 0x11000
FL_LINES = 0x19000 // 128
LDS_BYTES = 81920

P_U, P_ARE, P_AIM, P_BRE, P_BIM, P_CRE, P_CIM, P_LDT, P_DSK, P_X, P_W1, P_B1, P_W2, P_B2, P_GW, P_OUT, P_DBG, P_WS = \
    [4 + 2 * i for i in range(18)]
P_X = P_U
S_WAVE, S_IDX = 40, 41
ST = 42
SRD0, SRD1, SRD2, SRD3, SRD4, SRD5 = 48, 52, 56, 60, 64, 68
V_TID, V_LANE = 0, 1

def f32(x):
    return '0x%08x' % struct.unpack('<I', struct.pack('<f', x))[0]

LOG2E = 1.4426950408889634


def srd(a, dst, ptr, off, size):
    if isinstance(off, str):
        a(f's_add_u32 s{dst}, s{ptr}, {off}')
        a(f's_addc_u32 s{dst+1}, s{ptr+1}, 0')
    elif off:
        a(f's_add_u32 s{dst}, s{ptr}, {hex(off)}')
        a(f's_addc_u32 s{dst+1}, s{ptr+1}, 0')
    else:
        a(f's_mov_b32 s{dst}, s{ptr}')
        a(f's_mov_b32 s{dst+1}, s{ptr+1}')
    a(f's_mov_b32 s{dst+2}, {size if isinstance(size, str) else hex(size)}')
    a(f's_mov_b32 s{dst+3}, 0x20000')


def bf16_round(a, dst, src):
    a(f'v_cvt_pk_bf16_f32 v{dst}, v{src}, v{src}')
    a(f'v_lshlrev_b32 v{dst}, 16, v{dst}')


def entry(a, name, nwg):
    a.raw(f'.globl {name}')
    a.raw('.p2align 8')
    a.raw(f'.type {name},@function')
    a.label(name)
    a.reset()
    a(f's_cmp_ge_u32 s2, {nwg}')
    a(f's_cbranch_scc1 L_{name}_exit')
    a('s_load_dwordx16 s[4:19], s[0:1], 0')
    a('s_load_dwordx16 s[20:35], s[0:1], 64')
    a('s_load_dwordx4 s[36:39], s[0:1], 128')
    a(f'v_lshrrev_b32 v2, 6, v{V_TID}')
    a(f'v_and_b32 v{V_LANE}, 63, v{V_TID}')
    a(f'v_readfirstlane_b32 s{S_WAVE}, v2')
    a('s_waitcnt lgkmcnt(0)')


WS_STAMP = 0x1000000
STAMP = 'stamp' in sys.argv
_last = [None]
def stamp(a, k):
    if not STAMP:
        return
    if _last[0] is None:
        a.raw('    v_mov_b32 v253, 0')
    else:
        a.raw(f'    v_writelane_b32 v253, s0, {_last[0]}')
    a.raw('    ' + ('s_memtime s[0:1]' if 'cyc' in sys.argv else 's_memrealtime s[0:1]'))
    _last[0] = k


def stamp_restart(last):
    _last[0] = last


def stamp_flush(a):
    if not STAMP:
        return
    a('s_waitcnt lgkmcnt(0)')
    a.raw(f'    v_writelane_b32 v253, s0, {_last[0]}')
    a('s_lshl_b32 s3, s2, 2')
    a(f's_add_u32 s3, s3, s{S_WAVE}')
    a('s_lshl_b32 s3, s3, 6')
    a(f's_add_u32 s3, s3, {hex(WS_STAMP)}')
    a(f'v_lshlrev_b32 v252, 2, v{V_LANE}')
    a('v_add_u32 v252, s3, v252')
    a('s_mov_b64 exec, 0xffff')
    a(f'global_store_dword v252, v253, s[{P_WS}:{P_WS+1}]')
    a('s_mov_b64 exec, -1')


def red8(a, r):
    a(f'v_add_f32_dpp v{r}, v{r}, v{r} quad_perm:[1,0,3,2] row_mask:0xf bank_mask:0xf')
    a(f'v_add_f32_dpp v{r}, v{r}, v{r} quad_perm:[2,3,0,1] row_mask:0xf bank_mask:0xf')
    a(f'v_add_f32_dpp v{r}, v{r}, v{r} row_half_mirror row_mask:0xf bank_mask:0xf')


def emit_p0(a, tag, SC):
    X, J, T0, TT, DT = 72, 73, 74, 75, 76
    a(f's_and_b32 s{X}, s{S_IDX}, 7')
    a(f's_lshr_b32 s{J}, s{S_IDX}, 3')
    a(f's_lshl_b32 s{T0}, s{X}, 8')
    a(f's_lshl_b32 s42, s{J}, 3')
    a(f's_add_u32 s{T0}, s{T0}, s42')
    a(f's_lshl_b32 s{TT}, s{X}, 2')
    a(f's_lshr_b32 s42, s{J}, 3')
    a(f's_add_u32 s{TT}, s{TT}, s42')
    a(f's_and_b32 s{DT}, s{J}, 7')
    srd(a, SRD0, P_WS, 0, 0x1000000)
    a(f'v_lshrrev_b32 v2, 3, v{V_LANE}')
    a(f'v_and_b32 v3, 7, v{V_LANE}')
    a(f'v_lshlrev_b32 v4, 4, v3')
    a(f's_cmp_ge_u32 s{S_WAVE}, 2')
    a(f's_cbranch_scc1 L_{tag}_tr')
    st_tr = a.save()
    a(f's_cmp_eq_u32 s{S_WAVE}, 0')
    a(f's_cselect_b32 s44, s{P_U}, s{P_X}')
    a(f's_cselect_b32 s45, s{P_U+1}, s{P_X+1}')
    a(f'v_add_u32 v5, s{T0}, v2')
    a(f'v_lshlrev_b32 v5, 10, v5')
    a(f'v_add_u32 v5, v5, v4')
    for jj in range(8):
        a(f'global_load_dwordx4 v[{64+4*jj}:{67+4*jj}], v5, s[44:45] offset:{128*jj}')
    a(f's_cmp_eq_u32 s{S_WAVE}, 0')
    a(f's_cbranch_scc0 L_{tag}_stats')
    st_stats = a.save()
    for jj in range(8):
        a(f'global_load_dwordx4 v[{96+4*jj}:{99+4*jj}], v4, s[{P_GW}:{P_GW+1}] offset:{128*jj}')
    for k in range(4):
        a(f'v_mov_b32 v{8+k}, 0')
    for d in range(32):
        a(f'v_dot2_f32_bf16 v{8+d%4}, v{64+d}, v{96+d}, v{8+d%4}')
    a('v_add_f32 v8, v8, v9')
    a('v_add_f32 v10, v10, v11')
    a('v_add_f32 v8, v8, v10')
    red8(a, 8)
    bf16_round(a, 8, 8)
    a(f'v_mul_f32 v8, {f32(-LOG2E)}, v8')
    a('v_exp_f32 v8, v8')
    a('v_add_f32 v8, 1.0, v8')
    a('v_rcp_f32 v8, v8')
    bf16_round(a, 8, 8)
    a(f'v_add_u32 v5, s{T0}, v2')
    a('v_lshlrev_b32 v5, 2, v5')
    a(f'v_add_u32 v5, {hex(WS_G)}, v5')
    a('s_mov_b32 s46, 0x01010101')
    a('s_mov_b32 s47, 0x01010101')
    a('s_mov_b64 exec, s[46:47]')
    a(f'buffer_store_dword v8, v5, s[{SRD0}:{SRD0+3}], 0 offen {SC}')
    a('s_mov_b64 exec, -1')
    a(f's_branch L_{tag}_join')
    a.label(f'L_{tag}_stats')
    a.restore(st_stats)
    a('s_mov_b32 s46, 0x3f803f80')
    for k in range(4):
        a(f'v_mov_b32 v{8+k}, 0')
    for d in range(32):
        a(f'v_dot2_f32_bf16 v{8+d%4}, v{64+d}, s46, v{8+d%4}')
    a('v_add_f32 v8, v8, v9')
    a('v_add_f32 v10, v10, v11')
    a('v_add_f32 v8, v8, v10')
    red8(a, 8)
    a(f'v_mul_f32 v8, {f32(1/512)}, v8')
    for k in range(4):
        a(f'v_mov_b32 v{12+k}, 0')
    for d in range(0, 32, 2):
        for e in range(2):
            a(f'v_lshlrev_b32 v{16+4*e}, 16, v{64+d+e}')
            a(f'v_and_b32 v{17+4*e}, 0xffff0000, v{64+d+e}')
        for e in range(2):
            a(f'v_sub_f32 v{16+4*e}, v{16+4*e}, v8')
            a(f'v_sub_f32 v{17+4*e}, v{17+4*e}, v8')
        for e in range(2):
            a(f'v_fmac_f32 v{12+2*e}, v{16+4*e}, v{16+4*e}')
            a(f'v_fmac_f32 v{13+2*e}, v{17+4*e}, v{17+4*e}')
    a('v_add_f32 v12, v12, v13')
    a('v_add_f32 v14, v14, v15')
    a('v_add_f32 v12, v12, v14')
    red8(a, 12)
    a(f'v_mul_f32 v12, {f32(1/512)}, v12')
    bf16_round(a, 12, 12)
    a(f'v_add_f32 v12, {f32(1e-5)}, v12')
    bf16_round(a, 12, 12)
    a('v_sqrt_f32 v12, v12')
    bf16_round(a, 9, 12)
    bf16_round(a, 8, 8)
    a(f'v_add_u32 v5, s{T0}, v2')
    a('v_lshlrev_b32 v5, 3, v5')
    a(f'v_add_u32 v5, {hex(WS_ST)}, v5')
    a('s_mov_b32 s46, 0x01010101')
    a('s_mov_b32 s47, 0x01010101')
    a('s_mov_b64 exec, s[46:47]')
    a(f'buffer_store_dwordx2 v[8:9], v5, s[{SRD0}:{SRD0+3}], 0 offen {SC}')
    a('s_mov_b64 exec, -1')
    a(f's_branch L_{tag}_join')
    a.label(f'L_{tag}_tr')
    a.restore(st_tr)
    a(f's_sub_u32 s42, s{S_WAVE}, 2')
    a('s_lshl_b32 s42, s42, 5')
    a(f's_lshl_b32 s43, s{TT}, 6')
    a('s_add_u32 s43, s43, s42')
    a('v_add_u32 v5, s43, v2')
    a('v_lshlrev_b32 v5, 10, v5')
    a('v_add_u32 v5, v5, v4')
    a(f's_lshl_b32 s43, s{DT}, 7')
    a('v_add_u32 v5, s43, v5')
    for jj in range(4):
        if jj:
            a('v_add_u32 v5, 0x2000, v5')
        a(f'global_load_dwordx4 v[{64+4*jj}:{67+4*jj}], v5, s[{P_U}:{P_U+1}]')
    a('v_add_u32 v6, s42, v2')
    a('v_mul_u32_u24 v6, 144, v6')
    a('v_add_u32 v6, v6, v4')
    for jj in range(4):
        a(f'ds_write_b128 v6, v[{64+4*jj}:{67+4*jj}] offset:{jj*8*144}')
    a.label(f'L_{tag}_join')
    a.hist = []
    a('s_waitcnt lgkmcnt(0)')
    a.lgq = []
    a('s_barrier')
    a(f'v_and_b32 v2, 15, v{V_LANE}')
    a(f'v_lshrrev_b32 v3, 4, v{V_LANE}')
    a('v_lshrrev_b32 v4, 2, v2')
    a('v_lshl_add_u32 v4, v3, 3, v4')
    a('v_mul_u32_u24 v4, 144, v4')
    a('v_and_b32 v5, 3, v2')
    a('v_lshl_add_u32 v4, v5, 3, v4')
    a(f's_lshl_b32 s42, s{S_WAVE}, 5')
    a('v_add_u32 v4, s42, v4')
    for th in range(2):
        a(f'ds_read_b64_tr_b16 v[{64+4*th}:{65+4*th}], v4 offset:{th*32*144}')
        a(f'ds_read_b64_tr_b16 v[{66+4*th}:{67+4*th}], v4 offset:{th*32*144+4*144}')
    a(f's_lshl_b32 s42, s{DT}, 6')
    a(f's_lshl_b32 s43, s{S_WAVE}, 4')
    a('s_add_u32 s42, s42, s43')
    a('v_add_u32 v5, s42, v2')
    a('v_lshlrev_b32 v5, 12, v5')
    a('v_lshl_add_u32 v5, v3, 4, v5')
    a(f's_lshl_b32 s42, s{TT}, 7')
    a('v_add_u32 v5, s42, v5')
    for th in range(2):
        a(f'buffer_store_dwordx4 v[{64+4*th}:{67+4*th}], v5, s[{SRD0}:{SRD0+3}], 0 offen offset:{WS_UT+64*th} {SC}')


def emit_shelper(a, tag, SH, SC):
    srd(a, SRD0, P_WS, 0, 0x1000000)
    a(f'v_lshrrev_b32 v2, 3, v{V_LANE}')
    a(f'v_and_b32 v3, 7, v{V_LANE}')
    a(f's_lshl_b32 s42, s{S_WAVE}, 7')
    a('v_add_u32 v4, s42, v2')
    a('v_mul_u32_u24 v4, 3584, v4')
    a('v_lshl_add_u32 v4, v3, 4, v4')
    a(f's_lshl_b32 s42, s{SH}, 7')
    a('v_add_u32 v4, s42, v4')
    for jj in range(16):
        if jj:
            a(f'v_add_u32 v4, {8*3584}, v4')
        a(f'global_load_dwordx4 v[{64+4*jj}:{67+4*jj}], v4, s[{P_W1}:{P_W1+1}]')
    for k in range(8):
        a(f'v_mov_b32 v{8+k}, 0')
    for jj in range(16):
        for d in range(4):
            a(f'v_lshlrev_b32 v{16+2*d}, 16, v{64+4*jj+d}')
            a(f'v_and_b32 v{17+2*d}, 0xffff0000, v{64+4*jj+d}')
        for k in range(8):
            a(f'v_add_f32 v{8+k}, v{8+k}, v{16+k}')
    a(f's_lshl_b32 s42, s{S_WAVE}, 3')
    a('v_add_u32 v4, s42, v2')
    a('v_lshlrev_b32 v4, 8, v4')
    a('v_lshl_add_u32 v4, v3, 5, v4')
    a('ds_write_b128 v4, v[8:11]')
    a('ds_write_b128 v4, v[12:15] offset:16')
    a('s_waitcnt lgkmcnt(0)')
    a('s_barrier')
    a(f's_cmp_eq_u32 s{S_WAVE}, 0')
    a(f's_cbranch_scc0 L_{tag}_done')
    a(f'v_lshlrev_b32 v4, 2, v{V_LANE}')
    for r in range(32):
        a(f'ds_read_b32 v{64+r}, v4 offset:{256*r}')
    for r in range(1, 32):
        a(f'v_add_f32 v64, v64, v{64+r}')
    a(f's_lshl_b32 s42, s{SH}, 8')
    a(f's_add_u32 s42, s42, {hex(WS_S)}')
    a('v_add_u32 v4, s42, v4')
    a(f'buffer_store_dword v64, v4, s[{SRD0}:{SRD0+3}], 0 offen {SC}')
    a.label(f'L_{tag}_done')
    a.hist = []


L_PQ = 15360
PQ_ROW = 272
L_UC = 0
UC_COPY, UC_CH = 4160, 16640
L_XC = 33280
L_KT = 61440
KT_CH = 4576
L_KC = 70592
KC_CH = 1536
L_XK = 73664


def kidx(l):
    u = struct.unpack('<I', struct.pack('<f', float(l)))[0]
    b = (u + 0x7FFF + ((u >> 16) & 1)) >> 16
    return l if l < 128 else b - 17024


def cmul(a, cr, ci, ar, ai, br, bi, nbi):
    a(f'v_mul_f32 v{cr}, v{ar}, v{br}')
    a(f'v_mul_f32 v{ci}, v{ar}, v{bi}')
    a(f'v_fmac_f32 v{cr}, v{ai}, v{nbi}')
    a(f'v_fmac_f32 v{ci}, v{ai}, v{br}')


def emit_ssm_loads(a):
    C, MH = 79, 80
    a(f's_lshr_b32 s{C}, s{S_WAVE}, 1')
    a(f's_and_b32 s{MH}, s{S_WAVE}, 1')
    a(f's_lshl_b32 s42, s{S_IDX}, 1')
    a(f's_add_u32 s81, s42, s{C}')
    a('s_lshl_b32 s42, s81, 8')
    a(f's_lshl_b32 s43, s{MH}, 7')
    a('s_add_u32 s42, s42, s43')
    a(f'v_lshlrev_b32 v38, 1, v{V_LANE}')
    a('v_add_u32 v38, s42, v38')
    for k, p in enumerate((P_ARE, P_AIM, P_BRE, P_BIM, P_CRE, P_CIM)):
        a(f'global_load_ushort v{40+k}, v38, s[{p}:{p+1}]')
    a(f's_lshl_b32 s42, s{S_IDX}, 2')
    a(f's_load_dword s77, s[{P_LDT}:{P_LDT+1}], s42')
    a(f's_load_dword s78, s[{P_DSK}:{P_DSK+1}], s42')


def emit_cis(a, outr, outi, A, B, m, t0):
    a(f'v_mul_f32 v{t0}, {f32(float(m))}, v{A}')
    a(f'v_mul_f32 v{t0+1}, {f32(float(m))}, v{B}')
    a(f'v_exp_f32 v{t0}, v{t0}')
    a(f'v_fract_f32 v{t0+1}, v{t0+1}')
    a(f'v_cos_f32 v{outr}, v{t0+1}')
    a(f'v_sin_f32 v{outi}, v{t0+1}')
    a(f'v_mul_f32 v{outr}, v{outr}, v{t0}')
    a(f'v_mul_f32 v{outi}, v{outi}, v{t0}')


def emit_kgen(a, tag, mid_hook=None, pre_mfma=None, post_mfma=None, setup_hook=None):
    C, MH, D = 79, 80, 81
    a('s_waitcnt lgkmcnt(0)')
    a(f's_lshl_b32 s42, s{C}, 4')
    a('s_lshr_b32 s77, s77, s42')
    a('s_lshl_b32 s77, s77, 16')
    a('s_lshr_b32 s78, s78, s42')
    a('s_lshl_b32 s78, s78, 16')
    a('v_mov_b32 v2, s77')
    a(f'v_mul_f32 v3, {f32(LOG2E)}, v2')
    hi = struct.unpack('<f', struct.pack('<f', LOG2E))[0]
    a(f's_mov_b32 s42, {f32(LOG2E)}')
    a('v_fma_f32 v4, v2, s42, -v3')
    a(f'v_fmac_f32 v4, {f32(LOG2E - hi)}, v2')
    a('v_exp_f32 v3, v3')
    a(f'v_mul_f32 v4, {f32(math.log(2))}, v4')
    a('v_fmac_f32 v3, v3, v4')
    bf16_round(a, 2, 3)
    for k in range(6):
        a(f'v_lshlrev_b32 v{40+k}, 16, v{40+k}')
    ZA, ZB = 46, 47
    a(f'v_mul_f32 v{ZA}, v2, v40')
    a(f'v_mul_f32 v{ZB}, v2, v41')
    a(f'v_mul_f32 v{ZA}, {f32(LOG2E)}, v{ZA}')
    a(f'v_mul_f32 v{ZB}, {f32(1/(2*math.pi))}, v{ZB}')
    a('v_mul_f32 v42, v2, v42')
    a('v_mul_f32 v43, v2, v43')
    WR, WI = 48, 49
    a(f'v_mul_f32 v{WR}, v44, v42')
    a(f'v_mul_f32 v{WI}, v44, v43')
    a('v_mul_f32 v3, v45, v43')
    a(f'v_fmac_f32 v{WI}, v45, v42')
    a(f'v_sub_f32 v{WR}, v{WR}, v3')
    E1, E8, E256, E2, E4 = 50, 53, 56, 59, 62
    emit_cis(a, E1, E1 + 1, ZA, ZB, 1, 4)
    emit_cis(a, E8, E8 + 1, ZA, ZB, 8, 6)
    emit_cis(a, E256, E256 + 1, ZA, ZB, 256, 8)
    for e in (E1, E8, E256):
        a(f'v_sub_f32 v{e+2}, 0, v{e+1}')
    cmul(a, E2, E2 + 1, E1, E1 + 1, E1, E1 + 1, E1 + 2)
    a(f'v_sub_f32 v{E2+2}, 0, v{E2+1}')
    cmul(a, E4, E4 + 1, E2, E2 + 1, E2, E2 + 1, E2 + 2)
    a(f'v_sub_f32 v{E4+2}, 0, v{E4+1}')
    VA = 39
    a(f's_mul_i32 s42, s{S_WAVE}, {L_PQ}')
    a(f'v_lshlrev_b32 v{VA}, 2, v{V_LANE}')
    a(f'v_add_u32 v{VA}, s42, v{VA}')
    pk = [70, 71, 72, 73]
    cnt = [0]
    def put(row, re, im, neg):
        r = pk[cnt[0] % 4]; cnt[0] += 1
        a(f'v_cvt_pk_bf16_f32 v{r}, v{re}, {"-" if neg else ""}v{im}')
        a(f'ds_write_b32 v{VA}, v{r} offset:{row*PQ_ROW}')
    if setup_hook:
        setup_hook()
    q = [(66, 67), (68, 69)]
    a('v_mov_b32 v66, 1.0')
    a('v_mov_b32 v67, 0')
    put(24, 66, 67, False)
    put(25, E8, E8 + 1, False)
    cur = (E8, E8 + 1)
    for j in range(2, 32):
        nxt = q[j % 2]
        cmul(a, nxt[0], nxt[1], cur[0], cur[1], E8, E8 + 1, E8 + 2)
        put(24 + j, nxt[0], nxt[1], False)
        cur = nxt
    if mid_hook:
        mid_hook()
    put(0, WR, WI, True)
    cur = (WR, WI)
    for p in range(1, 8):
        nxt = q[p % 2]
        cmul(a, nxt[0], nxt[1], cur[0], cur[1], E1, E1 + 1, E1 + 2)
        put(p, nxt[0], nxt[1], True)
        cur = nxt
    g = [(74, 75), (76, 77)]
    gc = (WR, WI)
    for k in range(1, 9):
        gn = g[k % 2]
        cmul(a, gn[0], gn[1], gc[0], gc[1], E256, E256 + 1, E256 + 2)
        row = {1: 8, 2: 12, 3: 14, 4: 16, 5: 17, 6: 18, 7: 19, 8: 20}[k]
        put(row, gn[0], gn[1], True)
        if k == 1:
            cur = gn
            for p in range(1, 4):
                nxt = q[p % 2]
                cmul(a, nxt[0], nxt[1], cur[0], cur[1], E2, E2 + 1, E2 + 2)
                put(8 + p, nxt[0], nxt[1], True)
                cur = nxt
        if k in (2, 3):
            cmul(a, 66, 67, gn[0], gn[1], E4, E4 + 1, E4 + 2)
            put(row + 1, 66, 67, True)
        gc = gn
    if pre_mfma:
        pre_mfma()
    a(f'v_and_b32 v2, 31, v{V_LANE}')
    a(f'v_lshrrev_b32 v3, 5, v{V_LANE}')
    a(f'v_mul_u32_u24 v4, {PQ_ROW}, v2')
    a('v_lshl_add_u32 v4, v3, 4, v4')
    a(f's_mul_i32 s42, s{S_WAVE}, {L_PQ}')
    a('v_add_u32 v4, s42, v4')
    for st in range(8):
        a(f'ds_read_b128 v[{128+8*st}:{131+8*st}], v4 offset:{32*st}')
        a(f'ds_read_b128 v[{132+8*st}:{135+8*st}], v4 offset:{24*PQ_ROW+32*st}')
    ACC = 96
    for st in range(8):
        c = '0' if st == 0 else f'v[{ACC}:{ACC+15}]'
        a(f'v_mfma_f32_32x32x16_bf16 v[{ACC}:{ACC+15}], v[{128+8*st}:{131+8*st}], v[{132+8*st}:{135+8*st}], {c}')
    if post_mfma:
        post_mfma()
    a(f's_lshl_b32 s42, s{MH}, 12')
    a(f'v_lshlrev_b32 v5, 5, v{V_LANE}')
    a('v_add_u32 v5, s42, v5')
    a('s_getpc_b64 s[44:45]')
    a.label(f'L_{tag}_pc')
    a(f's_add_u32 s44, s44, KIDX_TABLE-L_{tag}_pc')
    a('s_addc_u32 s45, s45, 0')
    for q2 in range(2):
        a(f'global_load_dwordx4 v[{200+8*q2}:{203+8*q2}], v5, s[44:45] offset:{2048*q2}')
        a(f'global_load_dwordx4 v[{204+8*q2}:{207+8*q2}], v5, s[44:45] offset:{2048*q2+16}')
    a(f's_mul_i32 s42, s{C}, 3072')
    a(f's_add_u32 s42, s42, {L_XK}')
    a(f'v_lshlrev_b32 v6, 4, v{V_LANE}')
    a('v_add_u32 v6, s42, v6')
    a(f's_cmp_eq_u32 s{MH}, 0')
    a(f's_cbranch_scc1 L_{tag}_k1')
    for i in range(3):
        a(f'ds_write_b128 v6, v[{ACC+4*i}:{ACC+4*i+3}] offset:{1024*i}')
    a.label(f'L_{tag}_k1')
    a.nop(12)
    a('s_waitcnt lgkmcnt(0)')
    a('s_barrier')
    a(f's_cmp_eq_u32 s{MH}, 0')
    a(f's_cbranch_scc0 L_{tag}_k2')
    for i in range(3):
        a(f'ds_read_b128 v[{128+4*i}:{131+4*i}], v6 offset:{1024*i}')
    for r in range(12):
        a(f'v_add_f32 v{ACC+r}, v{ACC+r}, v{128+r}')
    for r in range(6):
        a(f'v_cvt_pk_bf16_f32 v{128+r}, v{ACC+2*r}, v{ACC+2*r+1}')
    a(f's_mul_i32 s42, s{C}, {KC_CH}')
    a(f's_add_u32 s42, s42, {L_KC}')
    a('v_lshlrev_b32 v7, 4, v2')
    a('v_lshl_add_u32 v7, v3, 3, v7')
    a('v_add_u32 v7, s42, v7')
    a('ds_write_b64 v7, v[128:129]')
    a('v_cmp_eq_u32 vcc, 0, v3')
    a('v_lshlrev_b32 v8, 3, v2')
    a('v_add_u32 v8, 512, v8')
    a('v_lshlrev_b32 v9, 2, v2')
    a('v_add_u32 v10, 768, v9')
    a('v_cndmask_b32 v10, v10, v8, vcc')
    a('v_add_u32 v8, 4, v8')
    a('v_add_u32 v9, 896, v9')
    a('v_cndmask_b32 v9, v9, v8, vcc')
    a('v_add_u32 v10, s42, v10')
    a('v_add_u32 v9, s42, v9')
    a('ds_write_b32 v10, v130')
    a('ds_write_b32 v9, v131')
    a('v_lshlrev_b32 v8, 1, v2')
    a('v_lshl_add_u32 v8, v3, 8, v8')
    a('v_add_u32 v8, s42, v8')
    a('ds_write_b16 v8, v132 offset:1024')
    a('ds_write_b16_d16_hi v8, v132 offset:1088')
    a('ds_write_b16 v8, v133 offset:1152')
    a('ds_write_b16_d16_hi v8, v133 offset:1216')
    a.label(f'L_{tag}_k2')
    a.hist = []
    a('s_waitcnt lgkmcnt(0)')
    a.lgq = []
    a('s_barrier')
    a(f's_mul_i32 s42, s{C}, {KC_CH}')
    a(f's_add_u32 s42, s42, {L_KC}')
    for e in range(16):
        a(f'v_add_u32 v{200+e}, s42, v{200+e}')
    for e in range(16):
        a(f'ds_read_u16 v{216+e}, v{200+e}')
    for k in range(8):
        a(f'v_lshl_or_b32 v{128+k}, v{216+2*k+1}, 16, v{216+2*k}')
    a(f's_mul_i32 s42, s{C}, {KT_CH}')
    a(f's_add_u32 s42, s42, {L_KT}')
    a(f's_lshl_b32 s43, s{MH}, 11')
    a('s_sub_u32 s43, s42, s43')
    a(f's_add_u32 s43, s43, {16*255}')
    a(f'v_lshlrev_b32 v7, 4, v{V_LANE}')
    a('v_sub_u32 v7, s43, v7')
    a('ds_write_b128 v7, v[128:131]')
    a('v_subrev_u32 v8, 1024, v7')
    a('ds_write_b128 v8, v[132:135]')
    for k in range(4):
        a(f'v_mov_b32 v{136+k}, 0')
    a(f'v_lshlrev_b32 v8, 4, v{V_LANE}')
    a('s_add_u32 s42, s42, 4096')
    a('v_add_u32 v8, s42, v8')
    a('s_mov_b64 exec, 0x3fffffff')
    a('ds_write_b128 v8, v[136:139]')
    a('s_mov_b64 exec, -1')


def emit_ucopies(a, tag, SC):
    C, MH, D = 79, 80, 81
    a(f's_lshl_b32 s42, s{D}, 12')
    srd(a, SRD1, P_WS, 's42', 4096)
    a(f's_lshl_b32 s42, s{MH}, 11')
    a(f'v_lshlrev_b32 v2, 4, v{V_LANE}')
    a('v_add_u32 v2, s42, v2')
    a('v_subrev_u32 v3, 32, v2')
    a('v_add_u32 v4, 1024, v3')
    a('v_add_u32 v5, 2048, v3')
    E = [128, 136, 144]
    for q2, vo in ((0, 3), (1, 4), (2, 5)):
        a(f'buffer_load_dwordx4 v[{E[q2]}:{E[q2]+3}], v{vo}, s[{SRD1}:{SRD1+3}], 0 offen {SC}')
        a(f'v_add_u32 v6, 16, v{vo}')
        a(f'buffer_load_dwordx2 v[{E[q2]+4}:{E[q2]+5}], v6, s[{SRD1}:{SRD1+3}], 0 offen {SC}')
    a(f's_mul_i32 s42, s{C}, {UC_CH}')
    a(f's_add_u32 s42, s42, {L_UC}')
    a('v_add_u32 v2, s42, v2')
    for q2 in range(3):
        e = E[q2]
        if q2 == 2:
            a(f's_cmp_eq_u32 s{MH}, 1')
            a('s_cselect_b64 exec, 3, 0')
        T = 152
        for k in range(4):
            a(f'v_alignbit_b32 v{T+k}, v{e+k+1}, v{e+k}, 16')
        for k in range(4):
            a(f'v_mov_b32 v{T+4+k}, v{e+k+1}')
        for k in range(4):
            a(f'v_alignbit_b32 v{T+8+k}, v{e+k+2}, v{e+k+1}, 16')
        off = 1024 * q2
        a(f'ds_write_b128 v2, v[{e}:{e+3}] offset:{off}')
        a(f'ds_write_b128 v2, v[{T}:{T+3}] offset:{off+UC_COPY}')
        a(f'ds_write_b128 v2, v[{T+4}:{T+7}] offset:{off+2*UC_COPY}')
        a(f'ds_write_b128 v2, v[{T+8}:{T+11}] offset:{off+3*UC_COPY}')
    a('s_mov_b64 exec, -1')


def emit_conv(a, tag, SC):
    C, MH, D = 79, 80, 81
    VK, VU = 2, 3
    ACC = 16
    FA = [[64 + 4 * p for p in range(8)], [128 + 4 * p for p in range(8)]]
    FB = [[96 + 4 * p for p in range(8)], [160 + 4 * p for p in range(8)]]
    a(f'v_and_b32 v4, 15, v{V_LANE}')
    a(f'v_lshrrev_b32 v5, 4, v{V_LANE}')
    a('v_lshlrev_b32 v6, 1, v4')
    a('v_sub_u32 v6, v5, v6')
    a('v_lshlrev_b32 v6, 4, v6')
    a(f's_mul_i32 s42, s{C}, {KT_CH}')
    a(f's_add_u32 s42, s42, {L_KT + 16*282 - 64*59}')
    a(f's_lshl_b32 s43, s{MH}, 8')
    a('s_sub_u32 s42, s42, s43')
    a(f'v_add_u32 v{VK}, s42, v6')
    a('v_add_u32 v6, 1, v4')
    a('v_and_b32 v7, 3, v6')
    a('v_sub_u32 v6, v6, v7')
    a('v_lshlrev_b32 v6, 1, v6')
    a(f'v_mul_u32_u24 v7, {UC_COPY}, v7')
    a('v_add_u32 v6, v6, v7')
    a('v_lshl_add_u32 v6, v5, 4, v6')
    a(f's_mul_i32 s42, s{C}, {UC_CH}')
    a(f's_add_u32 s42, s42, {L_UC + 256}')
    a('s_sub_u32 s42, s42, s43')
    a(f'v_add_u32 v{VU}, s42, v6')
    def reads(rr, st, k):
        a(f'ds_read_b128 v[{FB[st][k]}:{FB[st][k]+3}], v{VK} offset:{64*(59-8*k-rr)}')
        o = 512 * k + 64 * (3 - rr)
        a(f'ds_read_b64 v[{FA[st][k]}:{FA[st][k]+1}], v{VU} offset:{o}')
        a(f'ds_read_b64 v[{FA[st][k]+2}:{FA[st][k]+3}], v{VU} offset:{o+8}')
    for k in range(8):
        reads(0, 0, k)
    for rr in range(4):
        st = rr & 1
        pairs = sorted([(qq, p) for qq in range(8) for p in range(8 - qq)], key=lambda x: (max(x), x))
        nxt = list(range(8)) if rr < 3 else []
        for n, (qq, p) in enumerate(pairs):
            j = qq + p
            first = (rr == 0 and not any(q2 + p2 == j for q2, p2 in pairs[:n]))
            c = '0' if first else f'v[{ACC+4*j}:{ACC+4*j+3}]'
            a(f'v_mfma_f32_16x16x32_bf16 v[{ACC+4*j}:{ACC+4*j+3}], v[{FA[st][p]}:{FA[st][p]+3}], v[{FB[st][qq]}:{FB[st][qq]+3}], {c}')
            if nxt and n % 4 == 3:
                reads(rr + 1, st ^ 1, nxt.pop(0))
        while nxt:
            reads(rr + 1, st ^ 1, nxt.pop(0))
    a(f's_lshl_b32 s42, s{S_WAVE}, 12')
    a(f's_add_u32 s42, s42, {L_XC}')
    a(f'v_lshlrev_b32 v6, 4, v{V_LANE}')
    a('v_add_u32 v7, s42, v6')
    a(f's_xor_b32 s43, s{S_WAVE}, 1')
    a('s_lshl_b32 s43, s43, 12')
    a(f's_add_u32 s43, s43, {L_XC}')
    a('v_add_u32 v8, s43, v6')
    a(f's_cmp_eq_u32 s{MH}, 0')
    a(f's_cbranch_scc1 L_{tag}_x0')
    a.nop(8)
    for jj in range(4):
        a(f'ds_write_b128 v7, v[{ACC+4*jj}:{ACC+4*jj+3}] offset:{1024*jj}')
    a.nop(2)
    for r in range(16):
        a(f'v_mov_b32 v{ACC+r}, v{ACC+16+r}')
    a(f's_branch L_{tag}_x1')
    a.label(f'L_{tag}_x0')
    a.hist = []
    a.nop(8)
    for jj in range(4):
        a(f'ds_write_b128 v7, v[{ACC+16+4*jj}:{ACC+16+4*jj+3}] offset:{1024*jj}')
    a.label(f'L_{tag}_x1')
    a.hist = []
    a('s_waitcnt lgkmcnt(0)')
    a.lgq = []
    a('s_barrier')
    for jj in range(4):
        a(f'ds_read_b128 v[{64+4*jj}:{67+4*jj}], v8 offset:{1024*jj}')
    a('v_lshlrev_b32 v9, 5, v4')
    a('v_lshl_add_u32 v9, v5, 3, v9')
    a(f's_lshl_b32 s43, s{MH}, 11')
    a('v_add_u32 v9, s43, v9')
    a(f's_mul_i32 s42, s{C}, {UC_CH}')
    a(f's_add_u32 s42, s42, {L_UC + 32}')
    a('v_add_u32 v10, s42, v9')
    for jj in range(4):
        a(f'ds_read_b64 v[{96+2*jj}:{97+2*jj}], v10 offset:{512*jj}')
    a(f's_lshl_b32 s42, s{D}, 12')
    a(f's_add_u32 s42, s42, {hex(WS_AT)}')
    a('v_add_u32 v9, s42, v9')
    srd(a, SRD0, P_WS, 0, 0x1000000)
    for r in range(16):
        a(f'v_add_f32 v{ACC+r}, v{ACC+r}, v{64+r}')
    for jj in range(4):
        Y = ACC + 4 * jj
        U = 104
        a(f'v_lshlrev_b32 v{U}, 16, v{96+2*jj}')
        a(f'v_and_b32 v{U+1}, 0xffff0000, v{96+2*jj}')
        a(f'v_lshlrev_b32 v{U+2}, 16, v{97+2*jj}')
        a(f'v_and_b32 v{U+3}, 0xffff0000, v{97+2*jj}')
        for r in range(4):
            a(f'v_mul_f32 v{U+r}, s78, v{U+r}')
        a(f'v_cvt_pk_bf16_f32 v{U}, v{U}, v{U+1}')
        a(f'v_cvt_pk_bf16_f32 v{U+1}, v{U+2}, v{U+3}')
        a(f'v_cvt_pk_bf16_f32 v{Y}, v{Y}, v{Y+1}')
        a(f'v_cvt_pk_bf16_f32 v{Y+1}, v{Y+2}, v{Y+3}')
        for h in range(2):
            a(f'v_lshlrev_b32 v{U+4+2*h}, 16, v{U+h}')
            a(f'v_and_b32 v{U+5+2*h}, 0xffff0000, v{U+h}')
            a(f'v_lshlrev_b32 v{U+8+2*h}, 16, v{Y+h}')
            a(f'v_and_b32 v{U+9+2*h}, 0xffff0000, v{Y+h}')
        for r in range(4):
            a(f'v_add_f32 v{U+4+r}, v{U+4+r}, v{U+8+r}')
        a(f'v_cvt_pk_bf16_f32 v{112+2*jj}, v{U+4}, v{U+5}')
        a(f'v_cvt_pk_bf16_f32 v{113+2*jj}, v{U+6}, v{U+7}')
        a(f'buffer_store_dwordx2 v[{112+2*jj}:{113+2*jj}], v9, s[{SRD0}:{SRD0+3}], 0 offen offset:{512*jj} {SC}')


G1_XS = [0, 16384, 32768]
G1_WS = [49152 + 8192 * k for k in range(4)]
GELU_C = 2.0 * 0.7978845608028654 * LOG2E


def emit_g1_index(a):
    a(f's_and_b32 s75, s{S_IDX}, 7')
    a(f's_lshr_b32 s74, s{S_IDX}, 3')
    a('s_mul_i32 s42, s74, 37')
    a('s_lshr_b32 s42, s42, 8')
    a('s_mul_i32 s43, s42, 7')
    a('s_sub_u32 s43, s74, s43')
    a('s_lshr_b32 s44, s75, 1')
    a('s_lshl_b32 s44, s44, 2')
    a('s_add_u32 s72, s44, s42')
    a('s_and_b32 s44, s75, 1')
    a('s_mul_i32 s44, s44, 7')
    a('s_add_u32 s73, s44, s43')


def emit_g1(a, tag, SC, pre_epilogue=None, hooks=None):
    TB, FB_ = 72, 73
    WF, WT = 82, 83
    hooks = hooks or {}
    a(f's_and_b32 s{WF}, s{S_WAVE}, 1')
    a(f's_lshr_b32 s{WT}, s{S_WAVE}, 1')
    a(f's_lshl_b32 s42, s{TB}, 17')
    srd(a, SRD1, P_X, 's42', 131072)
    a(f's_lshl_b32 s42, s{FB_}, 8')
    a(f's_sub_u32 s43, {512*3584}, s42')
    srd(a, SRD2, P_W1, 's42', 's43')
    VX0, VX1, VW0, VW1 = 2, 3, 4, 5
    a(f'v_lshrrev_b32 v6, 3, v{V_LANE}')
    a(f'v_and_b32 v7, 7, v{V_LANE}')
    a('v_lshrrev_b32 v8, 1, v6')
    a('v_xor_b32 v9, v7, v8')
    a(f's_lshl_b32 s42, s{S_WAVE}, 4')
    a('v_add_u32 v10, s42, v6')
    a('v_lshlrev_b32 v10, 10, v10')
    a(f'v_lshl_add_u32 v{VX0}, v9, 4, v10')
    a('v_xor_b32 v9, 4, v9')
    a(f'v_lshl_add_u32 v{VX1}, v9, 4, v10')
    a(f'v_add_u32 v{VX1}, {8*1024-1024}, v{VX1}')
    a(f'v_lshrrev_b32 v6, 4, v{V_LANE}')
    a(f'v_and_b32 v7, 15, v{V_LANE}')
    a('v_lshrrev_b32 v8, 2, v7')
    a('v_xor_b32 v8, v8, v6')
    a('v_and_b32 v7, 3, v7')
    a('v_lshl_add_u32 v8, v8, 2, v7')
    a(f's_lshl_b32 s42, s{S_WAVE}, 3')
    a('v_add_u32 v10, s42, v6')
    a('v_mul_u32_u24 v10, 3584, v10')
    a(f'v_lshl_add_u32 v{VW0}, v8, 4, v10')
    a(f'v_add_u32 v{VW1}, {4*3584-1024}, v{VW0}')
    a(f's_lshl_b32 s84, s{S_WAVE}, 11')
    tokW, tokX = {}, {}
    def dma_w(st):
        a(f's_add_u32 m0, s84, {G1_WS[st % 4]}')
        a(f's_mov_b32 s85, {st*32*3584}')
        a(f'buffer_load_dwordx4 v{VW0}, s[{SRD2}:{SRD2+3}], s85 offen lds')
        tokW[st] = a(f'buffer_load_dwordx4 v{VW1}, s[{SRD2}:{SRD2+3}], s85 offen offset:1024 lds')
    def dma_x(c, h):
        a(f's_add_u32 m0, s84, {G1_XS[c % 3] + 8192*h}')
        a(f's_mov_b32 s86, {c*128 + h*65536}')
        a(f'buffer_load_dwordx4 v{VX0}, s[{SRD1}:{SRD1+3}], s86 offen lds')
        tokX[(c, h)] = a(f'buffer_load_dwordx4 v{VX1}, s[{SRD1}:{SRD1+3}], s86 offen offset:1024 lds')
    dma_w(0); dma_x(0, 0); dma_x(0, 1); dma_w(1); dma_x(1, 0); dma_x(1, 1); dma_w(2)
    VA = [6, 7]; VB = [8, 9, 10, 11]
    a(f'v_lshrrev_b32 v12, 4, v{V_LANE}')
    a(f'v_and_b32 v13, 15, v{V_LANE}')
    a('v_lshrrev_b32 v14, 2, v13')
    a('v_and_b32 v13, 3, v13')
    a('v_lshrrev_b32 v15, 1, v12')
    a('v_and_b32 v12, 1, v12')
    a('v_lshl_add_u32 v15, v15, 3, v14')
    a('v_lshlrev_b32 v15, 8, v15')
    a('v_lshl_add_u32 v15, v12, 5, v15')
    a('v_lshl_add_u32 v15, v13, 3, v15')
    a(f'v_add_u32 v15, {G1_WS[0]}, v15')
    a(f's_lshl_b32 s42, s{WF}, 1')
    for ft in range(2):
        a(f's_add_u32 s43, s42, {ft}')
        a('v_xor_b32 v12, s43, v14')
        a(f'v_lshl_add_u32 v{VA[ft]}, v12, 6, v15')
    a(f'v_and_b32 v12, 31, v{V_LANE}')
    a(f'v_lshrrev_b32 v13, 5, v{V_LANE}')
    a('v_lshrrev_b32 v14, 1, v12')
    a('v_and_b32 v14, 7, v14')
    a(f's_lshl_b32 s42, s{WT}, 6')
    a('v_add_u32 v12, s42, v12')
    a('v_lshlrev_b32 v12, 7, v12')
    for kk in range(4):
        a(f'v_add_u32 v15, {2*kk}, v13')
        a('v_xor_b32 v15, v15, v14')
        a(f'v_lshl_add_u32 v{VB[kk]}, v15, 4, v12')
    ACC = 32
    FR = [96, 112]
    def reads(st, kap):
        base = FR[kap]
        lst = []
        if 'g1noread' in sys.argv: return lst
        for ft in range(2):
            o = (st % 4) * 8192 + kap * 16 * 256
            lst.append(f'ds_read_b64_tr_b16 v[{base+4*ft}:{base+4*ft+1}], v{VA[ft]} offset:{o}')
            lst.append(f'ds_read_b64_tr_b16 v[{base+4*ft+2}:{base+4*ft+3}], v{VA[ft]} offset:{o+1024}')
        for tt in range(2):
            kk = 2 * (st & 1) + kap
            lst.append(f'ds_read_b128 v[{base+8+4*tt}:{base+11+4*tt}], v{VB[kk]} offset:{G1_XS[(st>>1) % 3] + 4096*tt}')
        return lst
    def mfmas(st, kap, fill):
        base = FR[kap]
        n = 0
        for ft in range(2):
            for tt in range(2):
                acc = ACC + 32 * ft + 16 * tt
                c = '0' if (st == 0 and kap == 0) else f'v[{acc}:{acc+15}]'
                if 'g1nomfma' not in sys.argv or st == 0:
                    a(f'v_mfma_f32_32x32x16_bf16 v[{acc}:{acc+15}], v[{base+4*ft}:{base+4*ft+3}], v[{base+8+4*tt}:{base+11+4*tt}], {c}')
                for _ in range(2):
                    if fill: a(fill.pop(0))
        while fill: a(fill.pop(0))
    for st in range(16):
        need = [tokW[st]] + [tokX[(st >> 1, h)] for h in range(2)]
        if st + 1 < 16:
            need += [tokW[st + 1]] + [tokX[((st + 1) >> 1, h)] for h in range(2)]
        a.wait_vm_token(max(need))
        if 'g1nobar' not in sys.argv: a('s_barrier')
        if 'g1nodma' in sys.argv:
            tokW.setdefault(st + 3, tokW[2]); tokX.setdefault(((st >> 1) + 2, st & 1), tokX[(1, 1)])
        else:
            if st + 3 < 16: dma_w(st + 3)
            c = (st >> 1) + 2
            if c < 8: dma_x(c, st & 1)
        if st in hooks: hooks[st]()
        if st == 0:
            for l in reads(0, 0): a(l)
        mfmas(st, 0, reads(st, 1))
        mfmas(st, 1, reads(st + 1, 0) if st + 1 < 16 else [])
    if pre_epilogue:
        pre_epilogue()
    SV, BV = 128, 160
    MS = [12, 14]
    a(f'v_and_b32 v2, 31, v{V_LANE}')
    a(f'v_lshrrev_b32 v3, 5, v{V_LANE}')
    srd(a, SRD0, P_WS, 0, 0x1000000)
    a(f's_lshl_b32 s42, s{TB}, 7')
    a(f's_lshl_b32 s43, s{WT}, 6')
    a('s_add_u32 s42, s42, s43')
    a('v_add_u32 v4, s42, v2')
    a('v_lshlrev_b32 v4, 3, v4')
    a(f'v_add_u32 v4, {hex(WS_ST)}, v4')
    for tt in range(2):
        a(f'buffer_load_dwordx2 v[{MS[tt]}:{MS[tt]+1}], v4, s[{SRD0}:{SRD0+3}], 0 offen offset:{256*tt} {SC}')
    a(f's_lshl_b32 s42, s{FB_}, 7')
    a(f's_lshl_b32 s43, s{WF}, 6')
    a('s_add_u32 s42, s42, s43')
    a('v_lshlrev_b32 v5, 2, v3')
    a('v_add_u32 v5, s42, v5')
    a('v_lshlrev_b32 v6, 2, v5')
    a(f'v_add_u32 v6, {hex(WS_S)}, v6')
    a('v_lshlrev_b32 v5, 1, v5')
    for ft in range(2):
        for i in range(4):
            a(f'buffer_load_dwordx4 v[{SV+16*ft+4*i}:{SV+16*ft+4*i+3}], v6, s[{SRD0}:{SRD0+3}], 0 offen offset:{128*ft+32*i} {SC}')
            a(f'global_load_dwordx2 v[{192+8*ft+2*i}:{193+8*ft+2*i}], v5, s[{P_B1}:{P_B1+1}] offset:{64*ft+16*i}')
    for ft in range(2):
        for i in range(4):
            for h in range(2):
                a(f'v_lshlrev_b32 v{BV+16*ft+4*i+2*h}, 16, v{192+8*ft+2*i+h}')
                a(f'v_and_b32 v{BV+16*ft+4*i+2*h+1}, 0xffff0000, v{192+8*ft+2*i+h}')
    NM, SD, AL, BE = [16, 17], [13, 15], [18, 19], [20, 21]
    for tt in range(2):
        a(f'v_sub_f32 v{NM[tt]}, 0, v{MS[tt]}')
        a(f'v_rcp_f32 v22, v{SD[tt]}')
        a(f'v_mul_f32 v{AL[tt]}, {f32(-GELU_C)}, v22')
        a('v_mul_f32 v23, v22, v22')
        a(f'v_mul_f32 v23, v23, v{AL[tt]}')
        a(f'v_mul_f32 v{BE[tt]}, {f32(0.044715)}, v23')
    a(f's_lshl_b32 s42, s{TB}, 2')
    a(f's_lshl_b32 s43, s{WT}, 1')
    a('s_add_u32 s42, s42, s43')
    a('s_mul_i32 s42, s42, 112')
    a(f's_lshl_b32 s43, s{FB_}, 3')
    a('s_add_u32 s42, s42, s43')
    a(f's_lshl_b32 s43, s{WF}, 2')
    a('s_add_u32 s42, s42, s43')
    a('s_lshl_b32 s42, s42, 10')
    a(f's_add_u32 s42, s42, {hex(WS_H)}')
    a(f'v_lshlrev_b32 v4, 4, v{V_LANE}')
    a('v_add_u32 v4, s42, v4')
    a(f'v_add_u32 v5, {112*1024}, v4')
    VH = [4, 5]
    T = 208
    for ft in range(2):
        for tt in range(2):
            acc = ACC + 32 * ft + 16 * tt
            for j in range(2):
                r0 = 8 * j
                E = range(8)
                for e in E: a(f'v_fmac_f32 v{acc+r0+e}, v{BV+16*ft+r0+e}, v{SD[tt]}')
                for e in E: a(f'v_fmac_f32 v{acc+r0+e}, v{SV+16*ft+r0+e}, v{NM[tt]}')
                for e in E: a(f'v_mul_f32 v{T+e}, v{acc+r0+e}, v{acc+r0+e}')
                for e in E: a(f'v_fma_f32 v{T+e}, v{T+e}, v{BE[tt]}, v{AL[tt]}')
                for e in E: a(f'v_mul_f32 v{T+e}, v{T+e}, v{acc+r0+e}')
                for e in E: a(f'v_exp_f32 v{T+e}, v{T+e}')
                for e in E: a(f'v_fma_f32 v{T+e}, v{T+e}, v{SD[tt]}, v{SD[tt]}')
                for e in E: a(f'v_rcp_f32 v{T+e}, v{T+e}')
                for e in E: a(f'v_mul_f32 v{T+e}, v{T+e}, v{acc+r0+e}')
                H = 216 + 4 * ((2 * tt + j) % 4)
                for e in range(4): a(f'v_cvt_pk_bf16_f32 v{H+e}, v{T+2*e}, v{T+2*e+1}')
                a(f'buffer_store_dwordx4 v[{H}:{H+3}], v{VH[tt]}, s[{SRD0}:{SRD0+3}], 0 offen offset:{(2*ft+j)*1024} {SC}')
        if ('ft', ft) in hooks: hooks[('ft', ft)]()


def emit_g2(a, tag, SC, pre_h=None, pre_mix=None):
    TAU, DT = 87, 88
    a(f's_and_b32 s42, s{S_IDX}, 7')
    a(f's_lshr_b32 s43, s{S_IDX}, 3')
    a('s_lshl_b32 s42, s42, 2')
    a('s_lshr_b32 s44, s43, 3')
    a(f's_add_u32 s{TAU}, s42, s44')
    a(f's_and_b32 s{DT}, s43, 7')
    a(f's_lshl_b32 s42, s{DT}, 7')
    a(f's_sub_u32 s43, {1792*1024}, s42')
    srd(a, SRD2, P_W2, 's42', 's43')
    a(f's_mul_i32 s42, s{TAU}, {2*112*1024}')
    a(f's_add_u32 s42, s42, {hex(WS_H)}')
    srd(a, SRD3, P_WS, 's42', 2 * 112 * 1024)
    WD, WT = 82, 83
    a(f's_and_b32 s{WD}, s{S_WAVE}, 1')
    a(f's_lshr_b32 s{WT}, s{S_WAVE}, 1')
    VW0, VW1 = 2, 3
    a(f'v_lshrrev_b32 v6, 3, v{V_LANE}')
    a(f'v_and_b32 v7, 7, v{V_LANE}')
    a('v_lshrrev_b32 v8, 2, v7')
    a('v_lshrrev_b32 v9, 1, v6')
    a('v_and_b32 v9, 1, v9')
    a('v_xor_b32 v8, v8, v9')
    a('v_and_b32 v7, 3, v7')
    a('v_lshl_add_u32 v8, v8, 2, v7')
    a('v_lshlrev_b32 v6, 10, v6')
    a(f'v_lshl_add_u32 v{VW0}, v8, 4, v6')
    a(f'v_add_u32 v{VW1}, {8*1024-1024}, v{VW0}')
    a(f's_mul_i32 s84, s{S_WAVE}, 20480')
    a(f's_mul_i32 s85, s{S_WAVE}, {28*16384}')
    a(f's_mul_i32 s86, s{S_WAVE}, {28*1024}')
    tokW = {}
    def dma(k):
        a(f's_add_u32 m0, s84, {2048*(k % 10)}')
        a(f's_add_u32 s89, s85, {k*16384}')
        a(f'buffer_load_dwordx4 v{VW0}, s[{SRD2}:{SRD2+3}], s89 offen lds')
        tokW[k] = a(f'buffer_load_dwordx4 v{VW1}, s[{SRD2}:{SRD2+3}], s89 offen offset:1024 lds')
    for k in range(10): dma(k)
    VA = [4, 5]; VH = [6, 7]
    a(f'v_lshrrev_b32 v12, 4, v{V_LANE}')
    a(f'v_and_b32 v13, 15, v{V_LANE}')
    a('v_lshrrev_b32 v14, 2, v13')
    a('v_and_b32 v13, 3, v13')
    a('v_lshrrev_b32 v15, 1, v12')
    a('v_and_b32 v12, 1, v12')
    a('v_lshl_add_u32 v15, v15, 2, v14')
    a('v_lshlrev_b32 v15, 7, v15')
    a('v_lshl_add_u32 v15, v12, 5, v15')
    a('v_lshl_add_u32 v15, v13, 3, v15')
    a('v_lshrrev_b32 v14, 1, v14')
    a(f'v_xor_b32 v12, s{WD}, v14')
    a('v_lshl_add_u32 v16, v12, 6, v15')
    a('v_xor_b32 v12, 1, v12')
    a('v_lshl_add_u32 v17, v12, 6, v15')
    a(f'v_add_u32 v{VA[0]}, s84, v16')
    a(f'v_add_u32 v{VA[1]}, s84, v17')
    a(f'v_xor_b32 v12, s{WT}, v14')
    a('v_lshl_add_u32 v18, v12, 6, v15')
    a(f'v_lshlrev_b32 v12, 4, v{V_LANE}')
    a(f's_mul_i32 s42, s{WT}, {112*1024}')
    a(f'v_add_u32 v{VH[0]}, s42, v12')
    a(f's_sub_u32 s42, {112*1024}, s42')
    a(f'v_add_u32 v{VH[1]}, s42, v12')
    if pre_h: pre_h()
    HD = 6
    HB = 128
    ACC = 32
    FA = [96, 104]
    def hload(k):
        b = HB + 8 * (k % HD)
        a(f's_add_u32 s90, s86, {k*1024}')
        for tt in range(2):
            a(f'buffer_load_dwordx4 v[{b+4*tt}:{b+4*tt+3}], v{VH[tt]}, s[{SRD3}:{SRD3+3}], s90 offen {SC}')
    def wread(k):
        b = FA[k & 1]
        for dd in range(2):
            a(f'ds_read_b64_tr_b16 v[{b+4*dd}:{b+4*dd+1}], v{VA[dd]} offset:{2048*(k % 10)}')
            a(f'ds_read_b64_tr_b16 v[{b+4*dd+2}:{b+4*dd+3}], v{VA[dd]} offset:{2048*(k % 10)+1024}')
    for k in range(HD): hload(k)
    a.wait_vm_token(tokW[0]); wread(0)
    for k in range(28):
        if k + 1 < 28:
            a.wait_vm_token(tokW[k + 1]); wread(k + 1)
        b = HB + 8 * (k % HD); f = FA[k & 1]
        for tt in range(2):
            for dd in range(2):
                acc = ACC + 16 * (dd + 2 * tt)
                c = '0' if k == 0 else f'v[{acc}:{acc+15}]'
                a(f'v_mfma_f32_32x32x16_bf16 v[{acc}:{acc+15}], v[{f+4*dd}:{f+4*dd+3}], v[{b+4*tt}:{b+4*tt+3}], {c}')
        if k + HD < 28: hload(k + HD)
        if k + 10 < 28: dma(k + 10)
    a('s_waitcnt lgkmcnt(0)')
    a('s_barrier')
    if pre_mix: pre_mix()
    srd(a, SRD0, P_WS, 0, 0x1000000)
    a(f's_lshl_b32 s42, s{DT}, 18')
    a(f's_lshl_b32 s43, s{TAU}, 7')
    a('s_add_u32 s42, s42, s43')
    a(f's_lshl_b32 s43, s{S_WAVE}, 16')
    a('s_add_u32 s42, s42, s43')
    a(f's_add_u32 s89, s42, {hex(WS_AT)}')
    a(f'v_lshrrev_b32 v6, 3, v{V_LANE}')
    a('v_mul_u32_u24 v6, 3072, v6')
    a(f'v_add_u32 v8, v{VW0}, v6')
    a(f'v_add_u32 v9, {8*4096-1024}, v8')
    a(f's_lshl_b32 s43, s{S_WAVE}, 11')
    a('s_add_u32 m0, s43, 49152')
    a(f'buffer_load_dwordx4 v8, s[{SRD0}:{SRD0+3}], s89 offen lds {SC}')
    tokA = a(f'buffer_load_dwordx4 v9, s[{SRD0}:{SRD0+3}], s89 offen offset:1024 lds {SC}')
    a(f'v_and_b32 v2, 31, v{V_LANE}')
    a(f'v_lshrrev_b32 v3, 5, v{V_LANE}')
    a(f's_lshl_b32 s42, s{TAU}, 6')
    a(f's_lshl_b32 s43, s{WT}, 5')
    a('s_add_u32 s42, s42, s43')
    a('v_add_u32 v10, s42, v2')
    a('v_lshlrev_b32 v11, 2, v10')
    a(f'v_add_u32 v11, {hex(WS_G)}, v11')
    a(f'buffer_load_dword v12, v11, s[{SRD0}:{SRD0+3}], 0 offen {SC}')
    a(f's_lshl_b32 s42, s{DT}, 6')
    a(f's_lshl_b32 s43, s{WD}, 5')
    a('s_add_u32 s42, s42, s43')
    a('v_lshlrev_b32 v11, 2, v3')
    a('v_add_u32 v11, s42, v11')
    a('v_lshlrev_b32 v13, 1, v11')
    for i in range(4):
        a(f'global_load_dwordx2 v[{112+2*i}:{113+2*i}], v13, s[{P_B2}:{P_B2+1}] offset:{16*i}')
    a(f'v_lshlrev_b32 v14, 4, v{V_LANE}')
    for x in range(1, 4):
        a(f's_xor_b32 s42, s{S_WAVE}, {x}')
        a('s_mul_i32 s42, s42, 12288')
        a(f'v_add_u32 v15, s42, v14')
        for i in range(4):
            a(f'ds_write_b128 v15, v[{ACC+16*x+4*i}:{ACC+16*x+4*i+3}] offset:{4096*(x-1)+1024*i}')
    a.wait_vm_token(tokA)
    a('s_waitcnt lgkmcnt(0)')
    a('s_barrier')
    a(f's_mul_i32 s42, s{S_WAVE}, 12288')
    a('v_add_u32 v15, s42, v14')
    for x in range(3):
        for i in range(4):
            a(f'ds_read_b128 v[{128+16*x+4*i}:{128+16*x+4*i+3}], v15 offset:{4096*x+1024*i}')
    a(f's_lshl_b32 s42, s{WD}, 12')
    a('s_add_u32 s42, s42, 49152')
    a('v_add_u32 v18, s42, v18')
    for i in range(4):
        a(f'ds_read_b64_tr_b16 v[{176+2*i}:{177+2*i}], v18 offset:{1024*i}')
    a('v_sub_f32 v16, 1.0, v12')
    bf16_round(a, 16, 16)
    for x in range(3):
        for r in range(16):
            a(f'v_add_f32 v{ACC+r}, v{ACC+r}, v{128+16*x+r}')
    O = 184
    for i in range(4):
        T = 192
        for h in range(2):
            a(f'v_lshlrev_b32 v{T+2*h}, 16, v{112+2*i+h}')
            a(f'v_and_b32 v{T+2*h+1}, 0xffff0000, v{112+2*i+h}')
            a(f'v_lshlrev_b32 v{T+4+2*h}, 16, v{176+2*i+h}')
            a(f'v_and_b32 v{T+4+2*h+1}, 0xffff0000, v{176+2*i+h}')
        for r in range(4):
            a(f'v_add_f32 v{T+r}, v{T+r}, v{ACC+4*i+r}')
        if 'outb' in sys.argv:
            pass
        elif 'outa' in sys.argv:
            for r in range(4):
                a(f'v_mov_b32 v{T+r}, v{T+4+r}')
        else:
            for r in range(4):
                a(f'v_mul_f32 v{T+r}, v{T+r}, v16')
            for r in range(4):
                a(f'v_fmac_f32 v{T+r}, v{T+4+r}, v12')
        a(f'v_cvt_pk_bf16_f32 v{O+2*i}, v{T}, v{T+1}')
        a(f'v_cvt_pk_bf16_f32 v{O+2*i+1}, v{T+2}, v{T+3}')
    a('v_lshlrev_b32 v10, 10, v10')
    a(f's_lshl_b32 s42, s{DT}, 6')
    a(f's_lshl_b32 s43, s{WD}, 5')
    a('s_add_u32 s42, s42, s43')
    a('s_lshl_b32 s42, s42, 1')
    a('v_add_u32 v10, s42, v10')
    a('v_lshl_add_u32 v10, v3, 4, v10')
    srd(a, SRD1, P_OUT, 0, 2048 * 1024)
    for p in range(2):
        a(f'v_permlane32_swap_b32 v{O+4*p}, v{O+4*p+2}')
        a(f'v_permlane32_swap_b32 v{O+4*p+1}, v{O+4*p+3}')
        a(f'buffer_store_dwordx4 v[{O+4*p}:{O+4*p+3}], v10, s[{SRD1}:{SRD1+3}], 0 offen offset:{32*p}')


WS_DBG = 0xC00000
def dump_lds(a, base, nbytes, slot_bytes):
    a('s_waitcnt vmcnt(0) lgkmcnt(0)')
    a('s_barrier')
    srd(a, SRD5, P_WS, 0, 0x4000000)
    a(f's_mul_i32 s42, s{S_IDX}, {slot_bytes}')
    a(f's_add_u32 s42, s42, {hex(WS_DBG)}')
    a(f'v_lshlrev_b32 v250, 4, v{V_TID}')
    for o in range(0, nbytes, 4096):
        a(f'v_add_u32 v251, {base + o}, v250')
        a('ds_read_b128 v[252:255], v251')
        a(f'v_add_u32 v251, {o}, v250')
        a(f'v_add_u32 v251, s42, v251')
        a(f'buffer_store_dwordx4 v[252:255], v251, s[{SRD5}:{SRD5+3}], 0 offen')
        a('s_waitcnt vmcnt(0)')
    a('s_barrier')


def kd(name):
    return f"""
.amdhsa_kernel {name}
  .amdhsa_next_free_vgpr 256
  .amdhsa_next_free_sgpr 102
  .amdhsa_accum_offset 256
  .amdhsa_group_segment_fixed_size 0
  .amdhsa_kernarg_size 144
  .amdhsa_user_sgpr_count 2
  .amdhsa_user_sgpr_kernarg_segment_ptr 1
  .amdhsa_system_sgpr_workgroup_id_x 1
.end_amdhsa_kernel"""


def table():
    rows = []
    for lam in range(256):
        rows.append('.long ' + ', '.join(str(2 * kidx(8 * lam + 7 - e)) for e in range(8)))
    return '.p2align 8\nKIDX_TABLE:\n' + '\n'.join(rows) + '\n'


DEBUG = 'debug' in sys.argv
HEADER = open('cdna_kernels/' + NAME + '.s.ref').read().split('; Override launch')[0]


def build_multi():
    a = Asm()
    names = ['p0_kernel', 'mid_kernel', 'g2_kernel']
    a.raw(HEADER.rstrip())
    a.raw(f'; @launch kernel=p0_kernel grid=(284,1,1) block=(256,1,1) lds={LDS_BYTES}')
    a.raw(f'; @launch kernel=mid_kernel grid=(512,1,1) block=(256,1,1) lds={LDS_BYTES}')
    a.raw(f'; @launch kernel=g2_kernel grid=(256,1,1) block=(256,1,1) lds={LDS_BYTES}')
    a.raw('.amdgcn_target "amdgcn-amd-amdhsa--gfx950"')
    a.raw('.text')
    entry(a, 'p0_kernel', 284)
    a(f's_mov_b32 s{S_IDX}, s2')
    stamp(a, 0)
    a('s_cmp_ge_u32 s2, 256')
    a('s_cbranch_scc1 L_p0_sh')
    emit_p0(a, 'p0', '')
    a('s_waitcnt vmcnt(0)') if STAMP else None
    stamp(a, 1)
    a('s_branch L_p0_kernel_exit')
    a.label('L_p0_sh'); a.reset()
    a('s_sub_u32 s72, s2, 256')
    emit_shelper(a, 'sh', 72, '')
    a.label('L_p0_kernel_exit')
    a('s_endpgm')
    entry(a, 'mid_kernel', 512)
    stamp(a, 16)
    a('s_cmp_ge_u32 s2, 256')
    a('s_cbranch_scc1 L_mid_g1')
    a(f's_mov_b32 s{S_IDX}, s2')
    if 'nossm' in sys.argv: a('s_branch L_mid_kernel_exit')
    emit_ssm_loads(a)
    emit_kgen(a, 'kg')
    a('s_waitcnt lgkmcnt(0)')
    a('s_barrier')
    if DEBUG: dump_lds(a, L_KT, 20480, 20480)
    stamp(a, 17)
    emit_ucopies(a, 'uc', '')
    a('s_waitcnt lgkmcnt(0)')
    a('s_barrier')
    stamp(a, 18)
    emit_conv(a, 'cv', '')
    a('s_waitcnt vmcnt(0)') if STAMP else None
    stamp(a, 19)
    a('s_branch L_mid_kernel_exit')
    a.label('L_mid_g1'); a.reset()
    a(f's_sub_u32 s{S_IDX}, s2, 256')
    emit_g1_index(a)
    if 'nog1' in sys.argv: a('s_branch L_mid_kernel_exit')
    a('s_cmp_ge_u32 s74, 28')
    a('s_cbranch_scc1 L_mid_kernel_exit')
    emit_g1(a, 'g1', '', pre_epilogue=lambda: stamp(a, 17), hooks={0: lambda: stamp(a, 20), 1: lambda: stamp(a, 21), 4: lambda: stamp(a, 22), 8: lambda: stamp(a, 23), 12: lambda: stamp(a, 24)} if STAMP else None)
    a('s_waitcnt vmcnt(0)') if STAMP else None
    stamp(a, 19)
    a.label('L_mid_kernel_exit')
    a('s_endpgm')
    entry(a, 'g2_kernel', 256)
    a(f's_mov_b32 s{S_IDX}, s2')
    stamp(a, 32)
    emit_g2(a, 'g2', '', pre_mix=lambda: stamp(a, 33))
    a('s_waitcnt vmcnt(0)') if STAMP else None
    stamp(a, 35)
    a.label('L_g2_kernel_exit')
    a('s_endpgm')
    a.raw(table())
    a.raw('.section .rodata,"a"')
    for n in names:
        a.raw('.p2align 6')
        a.raw(kd(n).strip('\n'))
    return a.text()


if __name__ == '__main__':
    mode = sys.argv[1] if len(sys.argv) > 1 else 'multi'
    out = sys.argv[2] if len(sys.argv) > 2 else 'cdna_kernels/' + NAME + '.s'
    txt = {'multi': build_multi}[mode]()
    open(out, 'w').write(txt)
    print('wrote', out, len(txt), 'bytes')
```

```python
import math, struct, sys
from asmlib import Asm
import gen as G
from gen import *

SC = 'sc1'
SRDF, SRDD = SRD4, SRD5
SPIN_LIMIT = 20000
FS = 6
FL_P0, FL_H, FL_A = 0x0, 0x4000, 0x8000
FL_BYTES = 0xC000
ARGS = set(sys.argv[1:])
slow_blocks = []


def setup_flag_srds(a):
    srd(a, SRDF, P_WS, WS_FL, FL_BYTES)
    srd(a, SRDD, P_DBG, 0, 256)


def set_exec(a, mask):
    if isinstance(mask, str):
        a(f's_mov_b64 exec, {mask}')
    elif mask < (1 << 31):
        a(f's_mov_b64 exec, {hex(mask)}')
    else:
        a(f's_mov_b32 exec_lo, {hex(mask & 0xffffffff)}')
        a(f's_mov_b32 exec_hi, {hex(mask >> 32)}')


def poll_issue(a, vd, vaddr, srd_, mask, off=0):
    set_exec(a, mask)
    tok = a(f'buffer_load_dword v{vd}, v{vaddr}, s[{srd_}:{srd_+3}], 0 offen offset:{off} {SC}')
    a('s_mov_b64 exec, -1')
    return tok


def cmp_mask(a, vd, mask):
    set_exec(a, mask)
    a(f'v_cmp_eq_u32 vcc, 1, v{vd}')
    a('s_mov_b64 s[46:47], exec')
    a('s_mov_b64 exec, -1')
    a('s_cmp_eq_u64 vcc, s[46:47]')


def spin(a, name, vd, vaddr, srd_, mask, off=0):
    a(f's_mov_b32 s45, {SPIN_LIMIT}')
    a.label(f'L_{name}_spin')
    set_exec(a, mask)
    a(f'buffer_load_dword v{vd}, v{vaddr}, s[{srd_}:{srd_+3}], 0 offen offset:{off} {SC}', opt=True)
    a('s_waitcnt vmcnt(0)')
    a(f'v_cmp_eq_u32 vcc, 1, v{vd}')
    a('s_mov_b64 s[46:47], exec')
    a('s_mov_b64 exec, -1')
    a('s_cmp_eq_u64 vcc, s[46:47]')
    a(f's_cbranch_scc1 L_{name}_done')
    a('s_sub_u32 s45, s45, 1')
    a('s_cmp_lg_u32 s45, 0')
    a(f's_cbranch_scc1 L_{name}_spin')
    a.label(f'L_{name}_done')


def check_or_spin(a, name, tok, vd, vaddr, srd_, mask, off=0):
    a.wait_vm_token(tok)
    cmp_mask(a, vd, mask)
    a(f's_cbranch_scc0 L_{name}_slow')
    a.label(f'L_{name}_back')
    slow_blocks.append((name, vd, vaddr, srd_, mask, off))


def emit_slow_blocks(a):
    for (name, vd, vaddr, srd_, mask, off) in slow_blocks:
        a.label(f'L_{name}_slow')
        a.reset()
        spin(a, name + 's', vd, vaddr, srd_, mask, off)
        a(f's_branch L_{name}_back')
    slow_blocks.clear()


def flag_store(a, vtmp, soff_expr_reg, extra=0, val=1):
    a(f'v_mov_b32 v{vtmp}, s{soff_expr_reg}')
    a(f'v_mov_b32 v{vtmp+1}, {val}')
    a('s_mov_b64 exec, 1')
    a(f'buffer_store_dword v{vtmp+1}, v{vtmp}, s[{SRDF}:{SRDF+3}], 0 offen offset:{extra} {SC}', opt=True)
    a('s_mov_b64 exec, -1')


def wave0_only(a, name, fn):
    a(f's_cmp_eq_u32 s{S_WAVE}, 0')
    a(f's_cbranch_scc0 L_{name}_skip')
    st = a.save()
    fn()
    a.label(f'L_{name}_skip')
    a.hist = []
    a.vmq = st[1]; a.lgq = st[2]


def red32(a, r, t):
    red8(a, r)
    a(f'v_add_f32_dpp v{r}, v{r}, v{r} row_mirror row_mask:0xf bank_mask:0xf')
    a(f'v_mov_b32 v{t}, v{r}')
    a(f'v_permlane16_swap_b32 v{r}, v{t}')
    a(f'v_add_f32 v{r}, v{r}, v{t}')


def p0_loads(a):
    X, J, T0, TT, DT = 72, 73, 74, 75, 76
    a(f's_and_b32 s{X}, s{S_IDX}, 7')
    a(f's_lshr_b32 s{J}, s{S_IDX}, 3')
    a(f's_lshl_b32 s{T0}, s{X}, 8')
    a(f's_lshl_b32 s42, s{J}, 3')
    a(f's_add_u32 s{T0}, s{T0}, s42')
    a(f's_lshl_b32 s{TT}, s{X}, 2')
    a(f's_lshr_b32 s42, s{J}, 3')
    a(f's_add_u32 s{TT}, s{TT}, s42')
    a(f's_and_b32 s{DT}, s{J}, 7')
    a(f'v_lshrrev_b32 v2, 3, v{V_LANE}')
    a(f'v_and_b32 v3, 7, v{V_LANE}')
    a(f's_lshl_b32 s42, s{TT}, 6')
    a(f's_lshl_b32 s43, s{S_WAVE}, 4')
    a('s_add_u32 s42, s42, s43')
    a('v_add_u32 v4, s42, v2')
    a('v_lshlrev_b32 v4, 10, v4')
    a('v_lshl_add_u32 v4, v3, 4, v4')
    a(f's_lshl_b32 s42, s{DT}, 7')
    a('v_add_u32 v4, s42, v4')
    a(f'global_load_dwordx4 v[64:67], v4, s[{P_U}:{P_U+1}]')
    a('v_add_u32 v4, 0x2000, v4')
    a(f'global_load_dwordx4 v[68:71], v4, s[{P_U}:{P_U+1}]')
    a(f'v_lshrrev_b32 v5, 5, v{V_LANE}')
    a(f'v_and_b32 v6, 31, v{V_LANE}')
    a(f's_lshl_b32 s42, s{S_WAVE}, 1')
    a(f's_add_u32 s42, s42, s{T0}')
    a('v_add_u32 v7, s42, v5')
    a('v_lshlrev_b32 v8, 10, v7')
    a('v_lshlrev_b32 v9, 5, v6')
    a('v_add_u32 v8, v8, v9')
    for k in range(2):
        a(f'global_load_dwordx4 v[{72+4*k}:{75+4*k}], v8, s[{P_U}:{P_U+1}] offset:{16*k}')
    for k in range(2):
        a(f'global_load_dwordx4 v[{80+4*k}:{83+4*k}], v9, s[{P_GW}:{P_GW+1}] offset:{16*k}')


def p0_compute(a):
    X, J, T0, TT, DT = 72, 73, 74, 75, 76
    srd(a, SRD0, P_WS, 0, 0x1000000)
    a(f's_lshl_b32 s42, s{S_WAVE}, 4')
    a('v_add_u32 v10, s42, v2')
    a('v_mul_u32_u24 v10, 144, v10')
    a('v_lshl_add_u32 v10, v3, 4, v10')
    a(f'v_add_u32 v10, {L_KT}, v10')
    a('ds_write_b128 v10, v[64:67]')
    a(f'ds_write_b128 v10, v[68:71] offset:{8*144}')
    a('s_mov_b32 s46, 0x3f803f80')
    for k in range(4):
        a(f'v_mov_b32 v{12+k}, 0')
    for d in range(8):
        a(f'v_dot2_f32_bf16 v{12+d%2}, v{72+d}, s46, v{12+d%2}')
        a(f'v_dot2_f32_bf16 v{14+d%2}, v{72+d}, v{80+d}, v{14+d%2}')
    a('v_add_f32 v12, v12, v13')
    a('v_add_f32 v14, v14, v15')
    red32(a, 12, 16)
    red32(a, 14, 17)
    a(f'v_mul_f32 v12, {f32(1/512)}, v12')
    for k in range(4):
        a(f'v_mov_b32 v{20+k}, 0')
    for d in range(0, 8, 2):
        for e in range(2):
            a(f'v_lshlrev_b32 v{24+2*e}, 16, v{72+d+e}')
            a(f'v_and_b32 v{25+2*e}, 0xffff0000, v{72+d+e}')
        for e in range(4):
            a(f'v_sub_f32 v{24+e}, v{24+e}, v12')
        for e in range(4):
            a(f'v_fmac_f32 v{20+e}, v{24+e}, v{24+e}')
    a('v_add_f32 v20, v20, v21')
    a('v_add_f32 v22, v22, v23')
    a('v_add_f32 v20, v20, v22')
    red32(a, 20, 16)
    bf16_round(a, 14, 14)
    a(f'v_mul_f32 v14, {f32(-LOG2E)}, v14')
    a('v_exp_f32 v14, v14')
    a(f'v_mul_f32 v20, {f32(1/512)}, v20')
    a('v_add_f32 v14, 1.0, v14')
    a('v_rcp_f32 v14, v14')
    bf16_round(a, 20, 20)
    a(f'v_add_f32 v20, {f32(1e-5)}, v20')
    bf16_round(a, 14, 14)
    bf16_round(a, 20, 20)
    a('v_sqrt_f32 v20, v20')
    bf16_round(a, 12, 12)
    bf16_round(a, 13, 20)
    a('v_lshlrev_b32 v8, 2, v7')
    a(f'v_add_u32 v8, {hex(WS_G)}, v8')
    a('v_lshlrev_b32 v9, 3, v7')
    a(f'v_add_u32 v9, {hex(WS_ST)}, v9')
    a('s_mov_b32 exec_lo, 1')
    a('s_mov_b32 exec_hi, 1')
    a(f'buffer_store_dword v14, v8, s[{SRD0}:{SRD0+3}], 0 offen {SC}')
    a(f'buffer_store_dwordx2 v[12:13], v9, s[{SRD0}:{SRD0+3}], 0 offen {SC}')
    a('s_mov_b64 exec, -1')
    a('s_waitcnt lgkmcnt(0)')
    a('s_barrier')
    a(f'v_and_b32 v2, 15, v{V_LANE}')
    a(f'v_lshrrev_b32 v3, 4, v{V_LANE}')
    a('v_lshrrev_b32 v4, 2, v2')
    a('v_lshl_add_u32 v4, v3, 3, v4')
    a('v_mul_u32_u24 v4, 144, v4')
    a('v_and_b32 v5, 3, v2')
    a('v_lshl_add_u32 v4, v5, 3, v4')
    a(f's_lshl_b32 s42, s{S_WAVE}, 5')
    a(f's_add_u32 s42, s42, {L_KT}')
    a('v_add_u32 v4, s42, v4')
    for th in range(2):
        a(f'ds_read_b64_tr_b16 v[{64+4*th}:{65+4*th}], v4 offset:{th*32*144}')
        a(f'ds_read_b64_tr_b16 v[{66+4*th}:{67+4*th}], v4 offset:{th*32*144+4*144}')
    a(f's_lshl_b32 s42, s{DT}, 6')
    a(f's_lshl_b32 s43, s{S_WAVE}, 4')
    a('s_add_u32 s42, s42, s43')
    a('v_add_u32 v5, s42, v2')
    a('v_lshlrev_b32 v5, 12, v5')
    a('v_lshl_add_u32 v5, v3, 4, v5')
    a(f's_lshl_b32 s42, s{TT}, 7')
    a('v_add_u32 v5, s42, v5')
    for th in range(2):
        a(f'buffer_store_dwordx4 v[{64+4*th}:{67+4*th}], v5, s[{SRD0}:{SRD0+3}], 0 offen offset:{WS_UT+64*th} {SC}')


def ucopy_loads(a, opt):
    MH, D = 80, 81
    E = [160, 168, 176]
    for q2, vo in ((0, 30), (1, 31), (2, 32)):
        a(f'buffer_load_dwordx4 v[{E[q2]}:{E[q2]+3}], v{vo}, s[{SRD1}:{SRD1+3}], 0 offen {SC}', opt=opt)
        a(f'buffer_load_dwordx2 v[{E[q2]+4}:{E[q2]+5}], v{vo}, s[{SRD1}:{SRD1+3}], 0 offen offset:16 {SC}', opt=opt)


def ucopy_addr(a):
    MH, D = 80, 81
    a(f's_lshl_b32 s42, s{D}, 12')
    srd(a, SRD1, P_WS, 's42', 4096)
    a(f's_lshl_b32 s42, s{MH}, 11')
    a(f'v_lshlrev_b32 v29, 4, v{V_LANE}')
    a('v_add_u32 v29, s42, v29')
    a('v_subrev_u32 v30, 32, v29')
    a('v_add_u32 v31, 1024, v30')
    a('v_add_u32 v32, 2048, v30')


def ucopy_writes(a):
    C, MH = 79, 80
    E = [160, 168, 176]
    a(f's_mul_i32 s42, s{C}, {UC_CH}')
    a(f's_add_u32 s42, s42, {L_UC}')
    a('v_add_u32 v2, s42, v29')
    for q2 in range(3):
        e = E[q2]
        if q2 == 2:
            a(f's_cmp_eq_u32 s{MH}, 1')
            a('s_cselect_b64 exec, 3, 0')
        T = 184 + 12 * (q2 & 1)
        for k in range(4):
            a(f'v_alignbit_b32 v{T+k}, v{e+k+1}, v{e+k}, 16')
        for k in range(4):
            a(f'v_mov_b32 v{T+4+k}, v{e+k+1}')
        for k in range(4):
            a(f'v_alignbit_b32 v{T+8+k}, v{e+k+2}, v{e+k+1}, 16')
        off = 1024 * q2
        a(f'ds_write_b128 v2, v[{e}:{e+3}] offset:{off}')
        a(f'ds_write_b128 v2, v[{T}:{T+3}] offset:{off+UC_COPY}')
        a(f'ds_write_b128 v2, v[{T+4}:{T+7}] offset:{off+2*UC_COPY}')
        a(f'ds_write_b128 v2, v[{T+8}:{T+11}] offset:{off+3*UC_COPY}')
    a('s_mov_b64 exec, -1')


def ssm_role(a):
    a(f's_mov_b32 s{S_IDX}, s2')
    stamp(a, 0)
    p0_loads(a)
    emit_ssm_loads(a)
    setup_flag_srds(a)
    p0_compute(a)
    stamp(a, 1)
    a('v_mov_b32 v33, 0')
    tok_rdy = poll_issue(a, 34, 33, SRDD, 1)
    DTC = 77
    def publish():
        a('s_waitcnt vmcnt(0)')
        check_or_spin(a, 'ssm_rdy', tok_rdy, 34, 33, SRDD, 1)
        a('s_barrier')
        def f():
            a(f's_lshl_b32 s42, s{S_IDX}, {FS}')
            a(f's_add_u32 s42, s42, {FL_P0}')
            flag_store(a, 35, 42)
        wave0_only(a, 'ssm_pub', f)
        stamp(a, 2)
    if 'ssmlite' in ARGS:
        publish()
        def f0():
            a(f's_lshl_b32 s42, s{S_IDX}, {FS}')
            a(f's_add_u32 s42, s42, {FL_A}')
            flag_store(a, 35, 42)
        wave0_only(a, 'ssm_pubx', f0)
        G.stamp_flush(a)
        return
    state = {}
    def mid():
        publish()
    def pre_mfma():
        a(f's_lshr_b32 s42, s{S_IDX}, 5')
        a(f'v_and_b32 v35, 7, v{V_LANE}')
        a(f'v_lshrrev_b32 v36, 3, v{V_LANE}')
        a('v_lshlrev_b32 v36, 3, v36')
        a('v_add_u32 v36, s42, v36')
        a('v_lshl_add_u32 v35, v36, 3, v35')
        a(f'v_lshlrev_b32 v35, {FS}, v35')
        state['tok'] = poll_issue(a, 34, 35, SRDF, 0xffffffff, FL_P0)
        ucopy_addr(a)
    def post_mfma():
        a.wait_vm_token(state['tok'])
        cmp_mask(a, 34, 0xffffffff)
        a('s_cselect_b32 s82, 1, 0')
        a('s_cbranch_scc0 L_ssm_noearly')
        st = a.save()
        ucopy_loads(a, True)
        a.label('L_ssm_noearly')
        a.hist = []; a.vmq = st[1]; a.lgq = st[2]
    G.emit_kgen(a, 'kg', mid_hook=mid, pre_mfma=pre_mfma, post_mfma=post_mfma)
    stamp(a, 3)
    a('s_cmp_eq_u32 s82, 1')
    a('s_cbranch_scc1 L_ssm_have')
    spin(a, 'ssm_ut', 34, 35, SRDF, 0xffffffff, FL_P0)
    ucopy_loads(a, True)
    a.label('L_ssm_have')
    a.hist = []
    a('s_waitcnt vmcnt(0) lgkmcnt(0)')
    a('s_barrier')
    stamp(a, 4)
    ucopy_writes(a)
    a('s_waitcnt lgkmcnt(0)')
    a('s_barrier')
    stamp(a, 5)
    emit_conv(a, 'cv', SC)
    stamp(a, 6)
    a('s_waitcnt vmcnt(0)')
    a('s_barrier')
    def f():
        a(f's_lshl_b32 s42, s{S_IDX}, {FS}')
        a(f's_add_u32 s42, s42, {FL_A}')
        flag_store(a, 35, 42)
    wave0_only(a, 'ssm_pub2', f)
    stamp(a, 7)
    G.stamp_flush(a)


TB, FB_, JJ, XC, PAR = 72, 73, 74, 75, 76
HOFF = [77, 78]
ROT = 79
WF, WT = 82, 83
G2LDS = 81
TAU, DT = 87, 88
KX = list(range(6, 14))
KW = list(range(14, 22))
SP = list(range(90, 97))
WE = [97, 98, 99, 100]
SRDW2 = 24
R1 = 10
GW, GA, GH, VF, VT, VP = [128, 129], [130, 131], [132, 133, 134, 135], 136, 137, 20
W2R = [138 + 4 * k for k in range(20)]
G2ACC = [32, 48, 64, 80]
HD = 6
HRING = [220, 224, 228, 232, 96, 100, 120, 124, 104, 108, 112, 116]
G2FA = [236, 244]
TAILMASK = (1 << 40) - 1
PFDEPTH = int([x[3:] for x in ARGS if x.startswith('pfd')][0]) if any(x.startswith('pfd') for x in ARGS) else 1


class G2State:
    pass


def pos_mj(k):
    return (k % 14) >> 1, k & 1, k >= 14


def g2_setup(a):
    a(f's_lshl_b32 s42, s{XC}, 2')
    a(f's_lshr_b32 s44, s{JJ}, 3')
    a(f's_add_u32 s{TAU}, s42, s44')
    a(f's_and_b32 s{DT}, s{JJ}, 7')
    a(f's_and_b32 s{PAR}, s{TAU}, 1')
    a(f's_cmp_eq_u32 s{DT}, 7')
    a(f's_cselect_b32 s42, 0, s{DT}')
    a(f's_mul_i32 s44, s{S_WAVE}, {28*1024}')
    for m in range(7):
        a('s_lshl_b32 s43, s42, 12')
        a(f's_add_u32 s{SP[m]}, s43, s44')
        if m < 6:
            a('s_add_u32 s42, s42, 1')
            a('s_cmp_eq_u32 s42, 7')
            a('s_cselect_b32 s42, 0, s42')
    a(f's_lshl_b32 s{WE[0]}, s{PAR}, 15')
    a(f's_add_u32 s{WE[1]}, s{WE[0]}, 16384')
    a(f's_sub_u32 s{WE[2]}, 32768, s{WE[0]}')
    a(f's_add_u32 s{WE[3]}, s{WE[2]}, 16384')
    a(f's_lshl_b32 s42, s{DT}, 7')
    a(f's_sub_u32 s43, {1792*1024}, s42')
    srd(a, SRDW2, P_W2, 's42', 's43')
    a(f's_mul_i32 s42, s{TAU}, {2*112*1024}')
    a(f's_add_u32 s42, s42, {hex(WS_H)}')
    srd(a, SRD3, P_WS, 's42', 2 * 112 * 1024)
    a(f's_and_b32 s{WF}, s{S_WAVE}, 1')
    a(f's_lshr_b32 s{WT}, s{S_WAVE}, 1')
    t0, t1, t2, t3 = 96, 97, 98, 99
    a(f'v_lshrrev_b32 v{t0}, 3, v{V_LANE}')
    a(f'v_and_b32 v{t1}, 7, v{V_LANE}')
    a(f'v_lshrrev_b32 v{t2}, 2, v{t1}')
    a(f'v_lshrrev_b32 v{t3}, 1, v{t0}')
    a(f'v_and_b32 v{t3}, 1, v{t3}')
    a(f'v_xor_b32 v{t2}, v{t2}, v{t3}')
    a(f'v_and_b32 v{t1}, 3, v{t1}')
    a(f'v_lshl_add_u32 v{t2}, v{t2}, 2, v{t1}')
    a(f'v_lshlrev_b32 v{t0}, 10, v{t0}')
    a(f'v_lshl_add_u32 v{GW[0]}, v{t2}, 4, v{t0}')
    a(f'v_add_u32 v{GW[1]}, {8*1024-1024}, v{GW[0]}')
    a(f's_mul_i32 s{G2LDS}, s{S_WAVE}, 20480')
    a(f'v_lshrrev_b32 v{t0}, 4, v{V_LANE}')
    a(f'v_and_b32 v{t1}, 15, v{V_LANE}')
    a(f'v_lshrrev_b32 v{t2}, 2, v{t1}')
    a(f'v_and_b32 v{t1}, 3, v{t1}')
    a(f'v_lshrrev_b32 v{t3}, 1, v{t0}')
    a(f'v_and_b32 v{t0}, 1, v{t0}')
    a(f'v_lshl_add_u32 v{t3}, v{t3}, 2, v{t2}')
    a(f'v_lshlrev_b32 v{t3}, 7, v{t3}')
    a(f'v_lshl_add_u32 v{t3}, v{t0}, 5, v{t3}')
    a(f'v_lshl_add_u32 v{t3}, v{t1}, 3, v{t3}')
    a(f'v_add_u32 v{t3}, s{G2LDS}, v{t3}')
    a(f'v_lshrrev_b32 v{t2}, 1, v{t2}')
    a(f'v_xor_b32 v{t2}, s{WF}, v{t2}')
    a(f'v_lshl_add_u32 v{GA[0]}, v{t2}, 6, v{t3}')
    a(f'v_xor_b32 v{t2}, 1, v{t2}')
    a(f'v_lshl_add_u32 v{GA[1]}, v{t2}, 6, v{t3}')
    a(f'v_lshlrev_b32 v{t2}, 4, v{V_LANE}')
    a(f's_lshl_b32 s43, s{PAR}, 11')
    a(f'v_add_u32 v{t2}, s43, v{t2}')
    a(f's_mul_i32 s42, s{WT}, {112*1024}')
    a(f'v_add_u32 v{GH[0]}, s42, v{t2}')
    a(f's_sub_u32 s42, {112*1024}, s42')
    a(f'v_add_u32 v{GH[1]}, s42, v{t2}')
    a('s_lshl_b32 s43, s43, 1')
    a('s_sub_u32 s43, 2048, s43')
    a(f'v_add_u32 v{GH[2]}, s43, v{GH[0]}')
    a(f'v_add_u32 v{GH[3]}, s43, v{GH[1]}')
    a(f's_lshr_b32 s42, s{TAU}, 1')
    a('s_mul_i32 s42, s42, 14')
    a(f's_mul_i32 s43, s{S_WAVE}, 7')
    a('s_lshr_b32 s43, s43, 1')
    a('s_add_u32 s42, s42, s43')
    a(f'v_add_u32 v{VF}, s42, v{V_LANE}')
    a(f'v_lshlrev_b32 v{VF}, {FS}, v{VF}')
    a(f'v_add_u32 v{VF}, {FL_H}, v{VF}')
    a(f's_lshl_b32 s42, s{DT}, 5')
    a(f'v_add_u32 v{VT}, s42, v{V_LANE}')
    a(f'v_lshlrev_b32 v{VT}, {FS}, v{VT}')
    a(f'v_add_u32 v{VT}, {FL_A}, v{VT}')
    a(f's_lshr_b32 s42, s{TAU}, 2')
    a(f's_and_b32 s43, s{TAU}, 3')
    a('s_lshl_b32 s43, s43, 6')
    a('s_add_u32 s42, s42, s43')
    a(f'v_subrev_u32 v{t0}, 32, v{V_LANE}')
    a(f'v_lshlrev_b32 v{t0}, 3, v{t0}')
    a(f'v_add_u32 v{t0}, s42, v{t0}')
    a(f'v_lshlrev_b32 v{t0}, {FS}, v{t0}')
    a(f'v_add_u32 v{t0}, {FL_P0}, v{t0}')
    a(f'v_cmp_gt_u32 vcc, 32, v{V_LANE}')
    a(f'v_cndmask_b32 v{VT}, v{t0}, v{VT}, vcc')


def g2_dma_items(k):
    m, j, late = pos_mj(k)
    return [[f's_add_u32 m0, s{G2LDS}, {2048*(k % 10)}', f's_lshl4_add_u32 s89, s{SP[m]}, s{WE[2*late+j]}',
             f'buffer_load_dwordx4 v{GW[0]}, s[{SRDW2}:{SRDW2+3}], s89 offen lds'],
            [(f'buffer_load_dwordx4 v{GW[1]}, s[{SRDW2}:{SRDW2+3}], s89 offen offset:1024 lds', k)]]


def put_items(a, g, items):
    for it in items:
        if isinstance(it, tuple): g.tokW[it[1]] = a(it[0])
        else: a(it)


def g2_dma(a, g, k):
    for grp in g2_dma_items(k): put_items(a, g, grp)


def g2_wread_list(k, regs):
    slot = k % 10
    l = []
    for dd in range(2):
        l.append(f'ds_read_b64_tr_b16 v[{regs[dd]}:{regs[dd]+1}], v{GA[dd]} offset:{2048*slot}')
        l.append(f'ds_read_b64_tr_b16 v[{regs[dd]+2}:{regs[dd]+3}], v{GA[dd]} offset:{2048*slot+1024}')
    return l


def g2_round1_reads(a, g):
    a.wait_vm_token(g.tokW[R1 - 1])
    for k in range(R1):
        for l in g2_wread_list(k, W2R[2*k:2*k+2]): a(l)


def hload(k, tt):
    m, j, late = pos_mj(k)
    r = HRING[2 * (k % HD) + tt]
    return f'buffer_load_dwordx4 v[{r}:{r+3}], v{GH[2*late+tt]}, s[{SRD3}:{SRD3+3}], s{SP[m]} offen offset:{1024*j} {SC}'


def h_prologue(a, opt=False):
    for k in range(HD - 1):
        for tt in range(2): a(hload(k, tt), opt=opt)


def g1_role(a, g):
    VX = [2, 3, 4, 5]
    VW = [6, 7, 8, 9]
    a(f's_and_b32 s{WF}, s{S_WAVE}, 1')
    a(f's_lshr_b32 s{WT}, s{S_WAVE}, 1')
    a(f'v_lshrrev_b32 v12, 3, v{V_LANE}')
    a(f'v_and_b32 v13, 7, v{V_LANE}')
    a('v_lshrrev_b32 v14, 1, v12')
    a('v_xor_b32 v14, v13, v14')
    a(f's_lshl_b32 s42, s{S_WAVE}, 4')
    a('v_add_u32 v15, s42, v12')
    a('v_lshlrev_b32 v15, 10, v15')
    a(f'v_lshl_add_u32 v{VX[0]}, v14, 4, v15')
    a('v_xor_b32 v14, 4, v14')
    a(f'v_lshl_add_u32 v{VX[1]}, v14, 4, v15')
    a(f'v_add_u32 v{VX[1]}, {8*1024-1024}, v{VX[1]}')
    a(f'v_lshrrev_b32 v12, 4, v{V_LANE}')
    a(f'v_and_b32 v13, 15, v{V_LANE}')
    a('v_lshrrev_b32 v14, 2, v13')
    a('v_xor_b32 v14, v14, v12')
    a('v_and_b32 v13, 3, v13')
    a('v_lshl_add_u32 v14, v14, 2, v13')
    a(f's_lshl_b32 s42, s{S_WAVE}, 3')
    a('v_add_u32 v15, s42, v12')
    a('v_mul_u32_u24 v15, 3584, v15')
    a(f'v_lshl_add_u32 v{VW[0]}, v14, 4, v15')
    a(f'v_add_u32 v{VW[1]}, {4*3584-1024}, v{VW[0]}')
    a(f's_lshl_b32 s84, s{S_WAVE}, 11')
    def ktab(c):
        a(f's_add_u32 s42, s{ROT}, {c}')
        a('s_and_b32 s42, s42, 7')
        a(f's_lshl_b32 s{KX[c]}, s42, 7')
        a(f's_mul_i32 s{KW[c]}, s42, 229376')
    a('s_waitcnt lgkmcnt(0)')
    a.lgq = []
    ktab(0); ktab(1)
    a(f's_lshl_b32 s42, s{TB}, 17')
    srd(a, SRD1, P_X, 's42', 131072)
    a(f's_lshl_b32 s42, s{FB_}, 8')
    a(f's_sub_u32 s43, {512*3584}, s42')
    srd(a, SRD2, P_W1, 's42', 's43')
    tokW, tokX = {}, {}
    def dma_w_list(st):
        o = 2 * (st & 1)
        return [f's_add_u32 m0, s84, {G1_WS[st % 4]}',
                f'buffer_load_dwordx4 v{VW[o]}, s[{SRD2}:{SRD2+3}], s{KW[st >> 1]} offen lds',
                (f'buffer_load_dwordx4 v{VW[o+1]}, s[{SRD2}:{SRD2+3}], s{KW[st >> 1]} offen offset:1024 lds', ('w', st))]
    def dma_x_list(c, h):
        return [f's_add_u32 m0, s84, {G1_XS[c % 3] + 8192*h}',
                f'buffer_load_dwordx4 v{VX[2*h]}, s[{SRD1}:{SRD1+3}], s{KX[c]} offen lds',
                (f'buffer_load_dwordx4 v{VX[2*h+1]}, s[{SRD1}:{SRD1+3}], s{KX[c]} offen offset:1024 lds', ('x', (c, h)))]
    def put(item):
        if isinstance(item, tuple):
            t = a(item[0])
            (tokW if item[1][0] == 'w' else tokX)[item[1][1]] = t
        elif callable(item):
            item()
        else:
            a(item)
    for it in dma_w_list(0) + dma_x_list(0, 0): put(it)
    a(f'v_add_u32 v{VX[2]}, 65536, v{VX[0]}')
    a(f'v_add_u32 v{VX[3]}, 65536, v{VX[1]}')
    a(f'v_add_u32 v{VW[2]}, {32*3584}, v{VW[0]}')
    a(f'v_add_u32 v{VW[3]}, {32*3584}, v{VW[1]}')
    for it in dma_x_list(0, 1) + dma_w_list(1) + dma_x_list(1, 0) + dma_x_list(1, 1) + dma_w_list(2): put(it)
    stamp(a, 1)
    for c in range(2, 8): ktab(c)
    B1V = [26, 27]
    a(f's_lshl_b32 s42, s{FB_}, 7')
    a(f's_lshl_b32 s43, s{WF}, 6')
    a('s_add_u32 s42, s42, s43')
    a(f'v_and_b32 v21, 31, v{V_LANE}')
    a('v_add_u32 v22, s42, v21')
    a('v_lshlrev_b32 v22, 1, v22')
    a(f's_lshl_b32 s42, s{WT}, 6')
    a('v_add_u32 v23, s42, v22')
    a(f'global_load_ushort v{B1V[0]}, v23, s[{P_B1}:{P_B1+1}]')
    a('s_sub_u32 s42, 64, s42')
    a('v_add_u32 v23, s42, v22')
    a(f'global_load_ushort v{B1V[1]}, v23, s[{P_B1}:{P_B1+1}]')
    setup_flag_srds(a)
    srd(a, SRD0, P_WS, 0, 0x1000000)
    g2_setup(a)
    VA = [10, 11]; VB = [16, 17, 18, 19]
    a(f'v_lshrrev_b32 v12, 4, v{V_LANE}')
    a(f'v_and_b32 v13, 15, v{V_LANE}')
    a('v_lshrrev_b32 v14, 2, v13')
    a('v_and_b32 v13, 3, v13')
    a('v_lshrrev_b32 v15, 1, v12')
    a('v_and_b32 v12, 1, v12')
    a('v_lshl_add_u32 v15, v15, 3, v14')
    a('v_lshlrev_b32 v15, 8, v15')
    a('v_lshl_add_u32 v15, v12, 5, v15')
    a('v_lshl_add_u32 v15, v13, 3, v15')
    a(f'v_add_u32 v15, {G1_WS[0]}, v15')
    a(f's_lshl_b32 s42, s{WF}, 1')
    a(f's_add_u32 s42, s42, s{WT}')
    for l in range(2):
        if l: a('s_xor_b32 s42, s42, 1')
        a('v_xor_b32 v12, s42, v14')
        a(f'v_lshl_add_u32 v{VA[l]}, v12, 6, v15')
    a(f'v_and_b32 v12, 31, v{V_LANE}')
    a(f'v_lshrrev_b32 v13, 5, v{V_LANE}')
    a('v_lshrrev_b32 v14, 1, v12')
    a('v_and_b32 v14, 7, v14')
    a(f's_lshl_b32 s42, s{WT}, 6')
    a('v_add_u32 v12, s42, v12')
    a('v_lshlrev_b32 v12, 7, v12')
    for kk in range(4):
        a(f'v_add_u32 v15, {2*kk}, v13')
        a('v_xor_b32 v15, v15, v14')
        a(f'v_lshl_add_u32 v{VB[kk]}, v15, 4, v12')
    ONES, SACC = 248, 232
    for k in range(4):
        a(f'v_mov_b32 v{ONES+k}, 0x3f803f80')
    MS = [12, 14]
    a('v_mov_b32 v28, 0')
    a(f's_lshr_b32 s42, s{TB}, 1')
    a(f's_and_b32 s43, s{TB}, 1')
    a('s_lshl_b32 s43, s43, 7')
    a('s_add_u32 s42, s42, s43')
    a(f'v_lshlrev_b32 v29, 3, v{V_LANE}')
    a('v_add_u32 v29, s42, v29')
    a(f'v_lshlrev_b32 v29, {FS}, v29')
    a(f's_lshl_b32 s42, s{TB}, 7')
    a(f's_lshl_b32 s43, s{WT}, 6')
    a('s_add_u32 s42, s42, s43')
    a('v_add_u32 v30, s42, v21')
    a('v_lshlrev_b32 v30, 3, v30')
    a(f'v_add_u32 v30, {hex(WS_ST)}, v30')
    a(f's_lshl_b32 s{HOFF[0]}, s{WT}, 11')
    a(f's_sub_u32 s{HOFF[1]}, 2048, s{HOFF[0]}')
    a(f's_lshl_b32 s42, s{TB}, 2')
    a(f's_lshl_b32 s43, s{WT}, 1')
    a('s_add_u32 s42, s42, s43')
    a('s_mul_i32 s42, s42, 112')
    a(f's_lshl_b32 s43, s{FB_}, 3')
    a('s_add_u32 s42, s42, s43')
    a(f's_lshl_b32 s43, s{WF}, 2')
    a('s_add_u32 s42, s42, s43')
    a('s_lshl_b32 s42, s42, 10')
    a(f's_add_u32 s42, s42, {hex(WS_H)}')
    VH = [24, 25]
    a(f'v_lshlrev_b32 v24, 4, v{V_LANE}')
    a('v_add_u32 v24, s42, v24')
    a(f'v_add_u32 v25, {112*1024}, v24')
    def xarea(dst, wreg):
        a('s_mov_b32 s43, 14336')
        a(f's_cmp_eq_u32 s{wreg}, 3')
        a('s_cselect_b32 s43, 10240, s43')
        a(f's_mul_i32 s{dst}, s{wreg}, 20480')
        a(f's_add_u32 s{dst}, s{dst}, s43')
    xarea(44, S_WAVE)
    a(f's_xor_b32 s45, s{S_WAVE}, 2')
    xarea(45, 45)
    a(f'v_lshrrev_b32 v31, 5, v{V_LANE}')
    a('v_lshlrev_b32 v31, 4, v31')
    a('v_add_u32 v22, s44, v31')
    a('v_add_u32 v23, s45, v31')
    a('v_lshlrev_b32 v21, 2, v21')
    a('v_add_u32 v21, s44, v21')
    st_ = {}
    def h_rdy_issue(): st_['r'] = poll_issue(a, 31, 28, SRDD, 1)
    def h_rdy_check(): check_or_spin(a, 'g1_rdy', st_['r'], 31, 28, SRDD, 1)
    def h_fl_issue(): st_['f'] = poll_issue(a, 31, 29, SRDF, 0xffff, FL_P0)
    def h_fl_check():
        check_or_spin(a, 'g1_fl', st_['f'], 31, 29, SRDF, 0xffff, FL_P0)
        for tt in range(2):
            a(f'buffer_load_dwordx2 v[{MS[tt]}:{MS[tt]+1}], v30, s[{SRD0}:{SRD0+3}], 0 offen offset:{256*tt} {SC}')
    hk = {7: h_rdy_issue, 10: h_rdy_check, 11: h_fl_issue, 14: h_fl_check}
    ACC = 32
    FR = [96, 112]
    def reads(st, kap):
        base = FR[kap]
        lst = []
        for l in range(2):
            o = (st % 4) * 8192 + kap * 16 * 256
            lst.append(f'ds_read_b64_tr_b16 v[{base+4*l}:{base+4*l+1}], v{VA[l]} offset:{o}')
            lst.append(f'ds_read_b64_tr_b16 v[{base+4*l+2}:{base+4*l+3}], v{VA[l]} offset:{o+1024}')
        for tt in range(2):
            kk = 2 * (st & 1) + kap
            lst.append(f'ds_read_b128 v[{base+8+4*tt}:{base+11+4*tt}], v{VB[kk]} offset:{G1_XS[(st>>1) % 3] + 4096*tt}')
        return lst
    def mfmas(st, kap, rd, dm):
        base = FR[kap]
        first = (st == 0 and kap == 0)
        ms = []
        c = '0' if first else f'v[{SACC}:{SACC+15}]'
        ms.append(f'v_mfma_f32_32x32x16_bf16 v[{SACC}:{SACC+15}], v[{base}:{base+3}], v[{ONES}:{ONES+3}], {c}')
        for l in range(2):
            for tt in range(2):
                acc = ACC + 32 * l + 16 * tt
                c = '0' if first else f'v[{acc}:{acc+15}]'
                ms.append(f'v_mfma_f32_32x32x16_bf16 v[{acc}:{acc+15}], v[{base+4*l}:{base+4*l+3}], v[{base+8+4*tt}:{base+11+4*tt}], {c}')
        gaps = [rd[0:2], dm[0:2] + rd[2:3], rd[3:5], dm[2:3] + rd[5:6], []]
        for m, gp in zip(ms, gaps):
            a(m)
            for it in gp: put(it)
    for st in range(16):
        need = [tokW[st]] + [tokX[(st >> 1, h)] for h in range(2)]
        if st + 1 < 16:
            need += [tokW[st + 1]] + [tokX[((st + 1) >> 1, h)] for h in range(2)]
        a.wait_vm_token(max(need))
        a('s_barrier')
        if st in (0, 4, 8, 12): stamp(a, 2 + st // 4)
        if st in hk: hk[st]()
        if st == 0:
            for l in reads(0, 0): a(l)
        c = (st >> 1) + 2
        mfmas(st, 0, reads(st, 1), dma_w_list(st + 3) if st + 3 < 16 else [])
        mfmas(st, 1, reads(st + 1, 0) if st + 1 < 16 else [], dma_x_list(c, st & 1) if c < 8 else [])
    a('s_mov_b32 exec_lo, 1')
    a('s_mov_b32 exec_hi, 1')
    for i in range(4):
        a(f'ds_write_b128 v22, v[{SACC+4*i}:{SACC+4*i+3}] offset:{32*i}')
        a(f'ds_write_b128 v23, v[{SACC+4*i}:{SACC+4*i+3}] offset:{128+32*i}')
    a('s_mov_b64 exec, -1')
    a('s_waitcnt lgkmcnt(0)')
    a('s_barrier')
    stamp(a, 6)
    SR = [28, 29]
    for l in range(2):
        a(f'ds_read_b32 v{SR[l]}, v21 offset:{128*l}')
    AF, BF = [120, 124], [220, 224]
    SD = [13, 15]
    a('s_mov_b32 s42, 0xffff0000')
    a(f'v_cmp_gt_u32 vcc, 32, v{V_LANE}')
    for tt in range(2):
        b = BF[tt]
        a(f'v_xor_b32 v30, 0x80000000, v{MS[tt]}')
        a(f'v_lshrrev_b32 v{b}, 16, v{SD[tt]}')
        a(f'v_and_or_b32 v{b}, v30, s42, v{b}')
        a(f'v_lshrrev_b32 v{b+1}, 16, v30')
        a(f'v_and_or_b32 v{b+1}, v30, s42, v{b+1}')
        a(f'v_cndmask_b32 v{b}, 0, v{b}, vcc')
        a(f'v_cndmask_b32 v{b+1}, 0, v{b+1}, vcc')
        a(f'v_mov_b32 v{b+2}, 0')
        a(f'v_mov_b32 v{b+3}, 0')
    for l in range(2):
        f = AF[l]
        a(f'v_cvt_pk_bf16_f32 v{f}, v{SR[l]}, v{SR[l]}')
        a(f'v_lshlrev_b32 v{f}, 16, v{f}')
        a(f'v_sub_f32 v30, v{SR[l]}, v{f}')
        a(f'v_cvt_pk_bf16_f32 v31, v30, v30')
        a('v_lshlrev_b32 v31, 16, v31')
        a('v_sub_f32 v31, v30, v31')
        a(f'v_cvt_pk_bf16_f32 v{f+1}, v30, v31')
        a(f'v_or_b32 v{f}, v{f}, v{B1V[l]}')
        a(f'v_cndmask_b32 v{f}, 0, v{f}, vcc')
        a(f'v_cndmask_b32 v{f+1}, 0, v{f+1}, vcc')
        a(f'v_mov_b32 v{f+2}, 0')
        a(f'v_mov_b32 v{f+3}, 0')
    for l in range(2):
        for tt in range(2):
            acc = ACC + 32 * l + 16 * tt
            a(f'v_mfma_f32_32x32x16_bf16 v[{acc}:{acc+15}], v[{AF[l]}:{AF[l]+3}], v[{BF[tt]}:{BF[tt]+3}], v[{acc}:{acc+15}]')
    dq = []
    def queue_dma(ks):
        for k in ks: dq.extend(g2_dma_items(k))
    def drain_dma():
        while dq: put_items(a, g, dq.pop(0))
    g.tokW = {}
    queue_dma(range(R1))
    cnt = [0]
    gap = [11]
    def e(text):
        r = a(text)
        cnt[0] += 1
        if cnt[0] % gap[0] == 0 and dq: put_items(a, g, dq.pop(0))
        return r
    put_items(a, g, dq.pop(0)); put_items(a, g, dq.pop(0))
    AL, BE = [16, 17], [18, 19]
    for tt in range(2):
        e(f'v_rcp_f32 v22, v{SD[tt]}')
        e(f'v_mul_f32 v{AL[tt]}, {f32(-GELU_C)}, v22')
        e('v_mul_f32 v23, v22, v22')
        e(f'v_mul_f32 v23, v23, v{AL[tt]}')
        e(f'v_mul_f32 v{BE[tt]}, {f32(0.044715)}, v23')
    T = 96
    toks = {}
    def gelu(l, tt, hook=None):
        acc = ACC + 32 * l + 16 * tt
        for j in range(2):
            r0 = 8 * j
            E = range(8)
            for x in E: e(f'v_mul_f32 v{T+x}, v{acc+r0+x}, v{acc+r0+x}')
            for x in E: e(f'v_fma_f32 v{T+x}, v{T+x}, v{BE[tt]}, v{AL[tt]}')
            for x in E: e(f'v_mul_f32 v{T+x}, v{T+x}, v{acc+r0+x}')
            for x in E: e(f'v_exp_f32 v{T+x}, v{T+x}')
            for x in E: e(f'v_fma_f32 v{T+x}, v{T+x}, v{SD[tt]}, v{SD[tt]}')
            for x in E: e(f'v_rcp_f32 v{T+x}, v{T+x}')
            for x in E: e(f'v_mul_f32 v{T+x}, v{T+x}, v{acc+r0+x}')
            H = 104 + 4 * ((2 * tt + j) % 4)
            for x in range(4): e(f'v_cvt_pk_bf16_f32 v{H+x}, v{T+2*x}, v{T+2*x+1}')
            toks[(l, tt, j)] = a(f'buffer_store_dwordx4 v[{H}:{H+3}], v{VH[tt]}, s[{SRD0}:{SRD0+3}], s{HOFF[l]} offen offset:{j*1024} {SC}')
            if hook and j == 0: hook()
    def publish(stage):
        def f():
            a(f's_mul_i32 s42, s{TB}, 14')
            a(f's_add_u32 s42, s42, s{FB_}')
            a(f's_lshl_b32 s42, s42, {FS}')
            a(f's_add_u32 s42, s42, {FL_H}')
            flag_store(a, 22, 42, extra=4 * stage)
        a('s_barrier')
        wave0_only(a, f'g1_pub{stage}', f)
    gelu(0, 0); gelu(0, 1)
    drain_dma()
    stamp(a, 7)
    g2_round1_reads(a, g)
    a('s_waitcnt lgkmcnt(0)')
    queue_dma(range(R1, R1 + 10))
    gap[0] = 10
    gelu(1, 0)
    a.wait_vm_token(toks[(0, 1, 1)])
    publish(0)
    def early_poll(): st_['h0'] = poll_issue(a, VP, VF, SRDF, 0xf, 0)
    gelu(1, 1, hook=early_poll)
    drain_dma()
    stamp(a, 8)
    a.wait_vm_token(st_['h0'])
    cmp_mask(a, VP, 0xf)
    a('s_cbranch_scc0 L_g1_late')
    sv = a.save()
    h_prologue(a)
    a.wait_vm_token(toks[(1, 1, 1)])
    publish(1)
    stamp(a, 9)
    a('s_branch L_g2')
    G.stamp_restart(8)
    a.label('L_g1_late')
    a.restore(sv)
    a.wait_vm_token(toks[(1, 1, 1)])
    def f():
        a(f's_mul_i32 s42, s{TB}, 14')
        a(f's_add_u32 s42, s42, s{FB_}')
        a(f's_lshl_b32 s42, s42, {FS}')
        a(f's_add_u32 s42, s42, {FL_H}')
        flag_store(a, 22, 42, extra=4)
    a('s_barrier')
    wave0_only(a, 'g1_pub1b', f)
    spin(a, 'g1_h0', VP, VF, SRDF, 0xf, 0)
    h_prologue(a)
    stamp(a, 9)


def service_role(a, g):
    a(f's_cmp_eq_u32 s{JJ}, 28')
    a('s_cbranch_scc0 L_sv_done')
    a(f's_cmp_eq_u32 s{S_WAVE}, 3')
    a('s_cbranch_scc0 L_sv_zero')
    if 'nopf' not in ARGS:
        a('s_getpc_b64 s[44:45]')
        a.label('L_pf_pc')
        a('s_sub_u32 s44, s44, L_pf_pc-CODE_BEGIN')
        a('s_subb_u32 s45, s45, 0')
        a(f'v_lshlrev_b32 v37, 4, v{V_LANE}')
        NPF = 38
        for k in range(NPF):
            a('v_min_u32 v36, CODE_END-CODE_BEGIN-16, v37')
            a('global_load_dwordx4 v[244:247], v36, s[44:45]', opt=True, discard=True)
            a('v_add_u32 v37, 1024, v37')
    a('s_branch L_sv_join')
    a.label('L_sv_zero')
    a.reset()
    a('s_waitcnt lgkmcnt(0)')
    a(f's_cmp_eq_u32 s{XC}, 0')
    a('s_cbranch_scc0 L_sv_join')
    srd(a, SRDF, P_WS, WS_FL, FL_BYTES)
    a(f'v_lshlrev_b32 v2, 4, v{V_TID}')
    for k in range(4):
        a(f'v_mov_b32 v{4+k}, 0')
    for k in range(FL_BYTES // 3072):
        a(f'buffer_store_dwordx4 v[4:7], v2, s[{SRDF}:{SRDF+3}], 0 offen {SC}')
        a('v_add_u32 v2, 3072, v2')
    a('s_waitcnt vmcnt(0)')
    a.label('L_sv_join')
    a.reset()
    a('s_waitcnt lgkmcnt(0)')
    a('s_barrier')
    a(f's_cmp_eq_u32 s{XC}, 0')
    a('s_cbranch_scc0 L_sv_done')
    a(f's_cmp_eq_u32 s{S_WAVE}, 0')
    a('s_cbranch_scc0 L_sv_done')
    srd(a, SRDD, P_DBG, 0, 256)
    a('v_mov_b32 v2, 0')
    a('v_mov_b32 v3, 1')
    a('s_mov_b64 exec, 1')
    a(f'buffer_store_dword v3, v2, s[{SRDD}:{SRDD+3}], 0 offen {SC}', opt=True)
    a('s_mov_b64 exec, -1')
    a.label('L_sv_done')
    a.reset()
    a('s_waitcnt lgkmcnt(0)')
    setup_flag_srds(a)
    a('v_mov_b32 v33, 0')
    spin(a, 'sv_rdy', 34, 33, SRDD, 1)
    if 'now2pf' not in ARGS:
        a(f's_lshl_b32 s42, s{S_IDX}, {FS}')
        a(f's_add_u32 s42, s42, {FL_P0}')
        a('v_mov_b32 v33, s42')
        spin(a, 'sv_p0', 34, 33, SRDF, 1)
        srd(a, SRD1, P_W2, 0, 1792 * 1024)
        a(f's_sub_u32 s42, s{JJ}, 28')
        a('s_lshl_b32 s42, s42, 2')
        a(f's_add_u32 s42, s42, s{S_WAVE}')
        a(f's_mul_i32 s42, s42, {112*1024}')
        a(f'v_lshlrev_b32 v2, 7, v{V_LANE}')
        a('s_mov_b32 s43, 14')
        a.label('L_w2pf')
        a(f'buffer_load_dword v40, v2, s[{SRD1}:{SRD1+3}], s42 offen', opt=True, discard=True)
        a('s_add_u32 s42, s42, 8192')
        a(f's_waitcnt vmcnt({PFDEPTH})')
        a('s_sub_u32 s43, s43, 1')
        a('s_cmp_lg_u32 s43, 0')
        a('s_cbranch_scc1 L_w2pf')
        a.reset()
    g2_setup(a)
    g.tokW = {}
    for k in range(R1):
        g2_dma(a, g, k)
    srd(a, SRD0, P_WS, 0, 0x1000000)
    g2_round1_reads(a, g)
    a('s_waitcnt lgkmcnt(0)')
    for k in range(R1, R1 + 10):
        g2_dma(a, g, k)
    spin(a, 'sv_h0', VP, VF, SRDF, 0xf, 0)
    h_prologue(a)


def g2_main(a, g):
    for k in range(HD - 1):
        for tt in range(2):
            r = HRING[2 * (k % HD) + tt]
            a.vseq += 1
            a.vmq.append((a.vseq, {('v', r + i) for i in range(4)}, False))
    def wregs(k):
        return W2R[2*k:2*k+2] if k < R1 else [G2FA[k & 1], G2FA[k & 1] + 4]
    st_ = {}
    AV = [138 + r for r in range(16)]
    GV, B2 = 154, 156
    VTOK, VHI = 16, 17
    def tail_loads():
        check_or_spin(a, 'g2_t', st_['t'], VP, VT, SRDF, TAILMASK)
        a(f'v_and_b32 v{VTOK}, 31, v{V_LANE}')
        a(f'v_lshrrev_b32 v{VHI}, 5, v{V_LANE}')
        a(f's_lshl_b32 s42, s{TAU}, 6')
        a(f's_lshl_b32 s43, s{WT}, 5')
        a('s_add_u32 s42, s42, s43')
        a(f'v_add_u32 v{VTOK}, s42, v{VTOK}')
        a(f'v_lshlrev_b32 v18, 2, v{VTOK}')
        a(f'v_add_u32 v18, {hex(WS_G)}, v18')
        a(f'buffer_load_dword v{GV}, v18, s[{SRD0}:{SRD0+3}], 0 offen {SC}')
        a(f's_lshl_b32 s42, s{DT}, 6')
        a(f's_lshl_b32 s43, s{WF}, 5')
        a('s_add_u32 s85, s42, s43')
        a(f'v_lshlrev_b32 v18, 2, v{VHI}')
        a('v_add_u32 v18, s85, v18')
        a('v_lshlrev_b32 v19, 1, v18')
        for i in range(4):
            a(f'global_load_dwordx2 v[{B2+2*i}:{B2+2*i+1}], v19, s[{P_B2}:{P_B2+1}] offset:{16*i}')
        a('v_lshlrev_b32 v18, 12, v18')
        a(f'v_lshl_add_u32 v18, v{VTOK}, 1, v18')
    aq = [(i, r) for i in range(4) for r in range(4)]
    for k in range(28):
        rd = []
        if R1 <= k + 1 < 28:
            if k + 1 >= R1 + 10: a.wait_vm_token(g.tokW[k + 1])
            rd = g2_wread_list(k + 1, wregs(k + 1))
        if k in (1, 9, 14, 20): stamp(a, {1: 11, 9: 12, 14: 13, 20: 14}[k])
        f = wregs(k)
        kn = k + HD - 1
        if k == 14 - HD - 3: st_['h1'] = poll_issue(a, VP, VF, SRDF, 0xf, 4)
        if kn == 14: check_or_spin(a, 'g2_h1', st_['h1'], VP, VF, SRDF, 0xf, 4)
        if k == 13: st_['t'] = poll_issue(a, VP, VT, SRDF, TAILMASK)
        if k == 17: tail_loads()
        n = 0
        for tt in range(2):
            r = HRING[2 * (k % HD) + tt]
            for dd in range(2):
                acc = G2ACC[dd + 2 * tt]
                c = '0' if k == 0 else f'v[{acc}:{acc+15}]'
                a(f'v_mfma_f32_32x32x16_bf16 v[{acc}:{acc+15}], v[{f[dd]}:{f[dd]+3}], v[{r}:{r+3}], {c}')
                if n in (0, 2) and kn < 28: a(hload(kn, n // 2))
                if n in (0, 1):
                    for l in rd[2*n:2*n+2]: a(l)
                if n == 3 and k >= R1 + 1 and k - 1 + 10 < 28: g2_dma(a, g, k - 1 + 10)
                if k >= 19 and n in (1, 3) and aq:
                    i, rr = aq.pop(0)
                    a(f's_mov_b32 s86, {hex(WS_AT + (8*i+rr)*4096)}')
                    a(f'buffer_load_ushort v{AV[4*i+rr]}, v18, s[{SRD0}:{SRD0+3}], s86 offen {SC}')
                if k == 18 and aq and n in (1, 3):
                    pass
                n += 1
    while aq:
        i, rr = aq.pop(0)
        a(f's_mov_b32 s86, {hex(WS_AT + (8*i+rr)*4096)}')
        a(f'buffer_load_ushort v{AV[4*i+rr]}, v18, s[{SRD0}:{SRD0+3}], s86 offen {SC}')
    a(f'v_lshlrev_b32 v14, 4, v{V_LANE}')
    a(f'v_add_u32 v15, s{G2LDS}, v14')
    for x in range(1, 4):
        for i in range(4):
            a(f'ds_write_b128 v15, v[{G2ACC[x]+4*i}:{G2ACC[x]+4*i+3}] offset:{4096*(x-1)+1024*i}')
    a(f'v_sub_f32 v20, 1.0, v{GV}')
    bf16_round(a, 20, 20)
    for i in range(4):
        for h in range(2):
            a(f'v_lshlrev_b32 v{96+2*h}, 16, v{B2+2*i+h}')
            a(f'v_and_b32 v{97+2*h}, 0xffff0000, v{B2+2*i+h}')
        for r in range(4):
            a(f'v_lshlrev_b32 v{AV[4*i+r]}, 16, v{AV[4*i+r]}')
        for r in range(4):
            a(f'v_mul_f32 v{AV[4*i+r]}, v{AV[4*i+r]}, v{GV}')
        for r in range(4):
            a(f'v_fmac_f32 v{AV[4*i+r]}, v{96+r}, v20')
    a('s_waitcnt lgkmcnt(0)')
    a('s_barrier')
    PR = 170
    for x in range(1, 4):
        a(f's_xor_b32 s42, s{S_WAVE}, {x}')
        a('s_mul_i32 s42, s42, 20480')
        a('v_add_u32 v15, s42, v14')
        for i in range(4):
            a(f'ds_read_b128 v[{PR+16*(x-1)+4*i}:{PR+16*(x-1)+4*i+3}], v15 offset:{4096*(x-1)+1024*i}')
    a(f'v_lshlrev_b32 v{VTOK}, 10, v{VTOK}')
    a('s_lshl_b32 s42, s85, 1')
    a(f'v_add_u32 v{VTOK}, s42, v{VTOK}')
    a(f'v_lshl_add_u32 v{VTOK}, v{VHI}, 4, v{VTOK}')
    srd(a, SRD1, P_OUT, 0, 2048 * 1024)
    ACC = G2ACC[0]
    for x in range(3):
        for r in range(16):
            a(f'v_add_f32 v{ACC+r}, v{ACC+r}, v{PR+16*x+r}')
    O = 96
    for r in range(16):
        a(f'v_fmac_f32 v{AV[r]}, v{ACC+r}, v20')
    for i in range(4):
        a(f'v_cvt_pk_bf16_f32 v{O+2*i}, v{AV[4*i]}, v{AV[4*i+1]}')
        a(f'v_cvt_pk_bf16_f32 v{O+2*i+1}, v{AV[4*i+2]}, v{AV[4*i+3]}')
    for p in range(2):
        a(f'v_permlane32_swap_b32 v{O+4*p}, v{O+4*p+2}')
        a(f'v_permlane32_swap_b32 v{O+4*p+1}, v{O+4*p+3}')
        a(f'buffer_store_dwordx4 v[{O+4*p}:{O+4*p+3}], v{VTOK}, s[{SRD1}:{SRD1+3}], 0 offen offset:{32*p}')
    stamp(a, 15)
    if G.STAMP:
        a('s_waitcnt vmcnt(0)')
    G.stamp_flush(a)


def gemm_role(a):
    g = G2State()
    a(f's_sub_u32 s{S_IDX}, s2, 256')
    a('s_setprio 2')
    a(f's_and_b32 s{XC}, s{S_IDX}, 7')
    a(f's_lshr_b32 s{JJ}, s{S_IDX}, 3')
    a(f's_cmp_ge_u32 s{JJ}, 28')
    a('s_cbranch_scc1 L_service')
    a(f's_mul_i32 s42, s{JJ}, 37')
    a('s_lshr_b32 s42, s42, 8')
    a('s_mul_i32 s43, s42, 7')
    a(f's_sub_u32 s43, s{JJ}, s43')
    a(f's_lshr_b32 s44, s{XC}, 1')
    a('s_lshl_b32 s44, s44, 2')
    a(f's_add_u32 s{TB}, s44, s42')
    a(f's_and_b32 s44, s{XC}, 1')
    a('s_mul_i32 s44, s44, 7')
    a(f's_add_u32 s{FB_}, s44, s43')
    a('s_lshl_b32 s42, s42, 1')
    a('s_add_u32 s42, s42, s43')
    a(f's_and_b32 s{ROT}, s42, 7')
    if 'norot' in ARGS: a(f's_mov_b32 s{ROT}, 0')
    g1_role(a, g)
    a('s_branch L_g2')
    a.label('L_service')
    a.reset()
    last_g1 = G._last[0]
    G.stamp_restart(0)
    service_role(a, G2State())
    stamp(a, 9)
    a.label('L_g2')
    a.reset()
    G.stamp_restart(9)
    g.tokW = {}
    g2_main(a, g)


def build():
    a = Asm()
    name = NAME + '_kernel'
    a.raw(HEADER.rstrip())
    a.raw(f'; @launch grid=(512,1,1) block=(256,1,1) lds={LDS_BYTES}')
    a.raw('.amdgcn_target "amdgcn-amd-amdhsa--gfx950"')
    a.raw('.text')
    a.raw(f'.globl {name}')
    a.raw('.p2align 8')
    a.raw(f'.type {name},@function')
    a.label(name)
    a.label('CODE_BEGIN')
    a.reset()
    a('s_cmp_ge_u32 s2, 512')
    a(f's_cbranch_scc1 L_exit')
    a('s_load_dwordx16 s[4:19], s[0:1], 0')
    a('s_load_dwordx16 s[20:35], s[0:1], 64')
    a('s_load_dwordx4 s[36:39], s[0:1], 128')
    a(f'v_lshrrev_b32 v2, 6, v{V_TID}')
    a(f'v_and_b32 v{V_LANE}, 63, v{V_TID}')
    a(f'v_readfirstlane_b32 s{S_WAVE}, v2')
    a('s_cmp_lt_u32 s2, 256')
    a('s_cbranch_scc1 L_ssm')
    a.lgq = []
    stamp(a, 0)
    gemm_role(a)
    a.label('L_exit')
    a('s_endpgm')
    emit_slow_blocks(a)
    a.label('L_ssm')
    a.reset()
    G.stamp_restart(None)
    a('s_waitcnt lgkmcnt(0)')
    ssm_role(a)
    a('s_endpgm')
    emit_slow_blocks(a)
    a.raw(table())
    a.raw('CODE_END:')
    a.raw('.section .rodata,"a"')
    a.raw('.p2align 6')
    a.raw(kd(name).strip('\n'))
    return a.text()


if __name__ == '__main__':
    out = [x for x in sys.argv[1:] if x.endswith('.s')]
    out = out[0] if out else 'cdna_kernels/' + NAME + '.s'
    txt = build()
    open(out, 'w').write(txt)
    print('wrote', out, len(txt), 'bytes')
```

```python
import math, struct, sys
from asmlib import Asm
import gen as G
from gen import *

SC = 'sc1'
SRDF, SRDD = SRD4, SRD5
SPIN_LIMIT = 20000
FS = 6
FL_P0, FL_A, FL_H = 0x0, 0x4000, 0x8000
FL_BYTES = 0xF000
ARGS = set(sys.argv[1:])
slow_blocks = []


def setup_flag_srds(a):
    srd(a, SRDF, P_WS, WS_FL, FL_BYTES)
    srd(a, SRDD, P_DBG, 0, 256)


def set_exec(a, mask):
    if isinstance(mask, str):
        a(f's_mov_b64 exec, {mask}')
    elif mask < (1 << 31):
        a(f's_mov_b64 exec, {hex(mask)}')
    else:
        a(f's_mov_b32 exec_lo, {hex(mask & 0xffffffff)}')
        a(f's_mov_b32 exec_hi, {hex(mask >> 32)}')


def poll_issue(a, vd, vaddr, srd_, mask, off=0):
    set_exec(a, mask)
    tok = a(f'buffer_load_dword v{vd}, v{vaddr}, s[{srd_}:{srd_+3}], 0 offen offset:{off} {SC}')
    a('s_mov_b64 exec, -1')
    return tok


def cmp_mask(a, vd, mask):
    set_exec(a, mask)
    a(f'v_cmp_eq_u32 vcc, 1, v{vd}')
    a('s_mov_b64 s[46:47], exec')
    a('s_mov_b64 exec, -1')
    a('s_cmp_eq_u64 vcc, s[46:47]')


def spin(a, name, vd, vaddr, srd_, mask, off=0):
    a(f's_mov_b32 s45, {SPIN_LIMIT}')
    a.label(f'L_{name}_spin')
    set_exec(a, mask)
    a(f'buffer_load_dword v{vd}, v{vaddr}, s[{srd_}:{srd_+3}], 0 offen offset:{off} {SC}', opt=True)
    a('s_waitcnt vmcnt(0)')
    a(f'v_cmp_eq_u32 vcc, 1, v{vd}')
    a('s_mov_b64 s[46:47], exec')
    a('s_mov_b64 exec, -1')
    a('s_cmp_eq_u64 vcc, s[46:47]')
    a(f's_cbranch_scc1 L_{name}_done')
    a('s_sub_u32 s45, s45, 1')
    a('s_cmp_lg_u32 s45, 0')
    a(f's_cbranch_scc1 L_{name}_spin')
    a.label(f'L_{name}_done')


def check_or_spin(a, name, tok, vd, vaddr, srd_, mask, off=0):
    a.wait_vm_token(tok)
    cmp_mask(a, vd, mask)
    a(f's_cbranch_scc0 L_{name}_slow')
    a.label(f'L_{name}_back')
    slow_blocks.append((name, vd, vaddr, srd_, mask, off))


def emit_slow_blocks(a):
    for (name, vd, vaddr, srd_, mask, off) in slow_blocks:
        a.label(f'L_{name}_slow')
        a.reset()
        spin(a, name + 's', vd, vaddr, srd_, mask, off)
        a(f's_branch L_{name}_back')
    slow_blocks.clear()


def flag_store(a, vtmp, soff_expr_reg, extra=0, val=1):
    a(f'v_mov_b32 v{vtmp}, s{soff_expr_reg}')
    a(f'v_mov_b32 v{vtmp+1}, {val}')
    a('s_mov_b64 exec, 1')
    a(f'buffer_store_dword v{vtmp+1}, v{vtmp}, s[{SRDF}:{SRDF+3}], 0 offen offset:{extra} {SC}', opt=True)
    a('s_mov_b64 exec, -1')


def wave0_only(a, name, fn):
    a(f's_cmp_eq_u32 s{S_WAVE}, 0')
    a(f's_cbranch_scc0 L_{name}_skip')
    st = a.save()
    fn()
    a.label(f'L_{name}_skip')
    a.hist = []
    a.vmq = st[1]; a.lgq = st[2]


def red32(a, r, t):
    red8(a, r)
    a(f'v_add_f32_dpp v{r}, v{r}, v{r} row_mirror row_mask:0xf bank_mask:0xf')
    a(f'v_mov_b32 v{t}, v{r}')
    a(f'v_permlane16_swap_b32 v{r}, v{t}')
    a(f'v_add_f32 v{r}, v{r}, v{t}')


def p0_loads(a):
    X, J, T0, TT, DT = 72, 73, 74, 75, 76
    a(f's_and_b32 s{X}, s{S_IDX}, 7')
    a(f's_lshr_b32 s{J}, s{S_IDX}, 3')
    a(f's_lshl_b32 s{T0}, s{X}, 8')
    a(f's_lshl_b32 s42, s{J}, 3')
    a(f's_add_u32 s{T0}, s{T0}, s42')
    a(f's_lshl_b32 s{TT}, s{X}, 2')
    a(f's_lshr_b32 s42, s{J}, 3')
    a(f's_add_u32 s{TT}, s{TT}, s42')
    a(f's_and_b32 s{DT}, s{J}, 7')
    a(f'v_lshrrev_b32 v2, 3, v{V_LANE}')
    a(f'v_and_b32 v3, 7, v{V_LANE}')
    a(f's_lshl_b32 s42, s{TT}, 6')
    a(f's_lshl_b32 s43, s{S_WAVE}, 4')
    a('s_add_u32 s42, s42, s43')
    a('v_add_u32 v4, s42, v2')
    a('v_lshlrev_b32 v4, 10, v4')
    a('v_lshl_add_u32 v4, v3, 4, v4')
    a(f's_lshl_b32 s42, s{DT}, 7')
    a('v_add_u32 v4, s42, v4')
    a(f'global_load_dwordx4 v[64:67], v4, s[{P_U}:{P_U+1}]')
    a('v_add_u32 v4, 0x2000, v4')
    a(f'global_load_dwordx4 v[68:71], v4, s[{P_U}:{P_U+1}]')
    a(f'v_lshrrev_b32 v5, 5, v{V_LANE}')
    a(f'v_and_b32 v6, 31, v{V_LANE}')
    a(f's_lshl_b32 s42, s{S_WAVE}, 1')
    a(f's_add_u32 s42, s42, s{T0}')
    a('v_add_u32 v7, s42, v5')
    a('v_lshlrev_b32 v8, 10, v7')
    a('v_lshlrev_b32 v9, 5, v6')
    a('v_add_u32 v8, v8, v9')
    for k in range(2):
        a(f'global_load_dwordx4 v[{72+4*k}:{75+4*k}], v8, s[{P_U}:{P_U+1}] offset:{16*k}')
    for k in range(2):
        a(f'global_load_dwordx4 v[{80+4*k}:{83+4*k}], v9, s[{P_GW}:{P_GW+1}] offset:{16*k}')


def p0_compute(a):
    X, J, T0, TT, DT = 72, 73, 74, 75, 76
    srd(a, SRD0, P_WS, 0, 0x1000000)
    a(f's_lshl_b32 s42, s{S_WAVE}, 4')
    a('v_add_u32 v10, s42, v2')
    a('v_mul_u32_u24 v10, 144, v10')
    a('v_lshl_add_u32 v10, v3, 4, v10')
    a(f'v_add_u32 v10, {L_KT}, v10')
    a('ds_write_b128 v10, v[64:67]')
    a(f'ds_write_b128 v10, v[68:71] offset:{8*144}')
    a('s_mov_b32 s46, 0x3f803f80')
    for k in range(4):
        a(f'v_mov_b32 v{12+k}, 0')
    for d in range(8):
        a(f'v_dot2_f32_bf16 v{12+d%2}, v{72+d}, s46, v{12+d%2}')
        a(f'v_dot2_f32_bf16 v{14+d%2}, v{72+d}, v{80+d}, v{14+d%2}')
    a('v_add_f32 v12, v12, v13')
    a('v_add_f32 v14, v14, v15')
    red32(a, 12, 16)
    red32(a, 14, 17)
    a(f'v_mul_f32 v12, {f32(1/512)}, v12')
    for k in range(4):
        a(f'v_mov_b32 v{20+k}, 0')
    for d in range(0, 8, 2):
        for e in range(2):
            a(f'v_lshlrev_b32 v{24+2*e}, 16, v{72+d+e}')
            a(f'v_and_b32 v{25+2*e}, 0xffff0000, v{72+d+e}')
        for e in range(4):
            a(f'v_sub_f32 v{24+e}, v{24+e}, v12')
        for e in range(4):
            a(f'v_fmac_f32 v{20+e}, v{24+e}, v{24+e}')
    a('v_add_f32 v20, v20, v21')
    a('v_add_f32 v22, v22, v23')
    a('v_add_f32 v20, v20, v22')
    red32(a, 20, 16)
    bf16_round(a, 14, 14)
    a(f'v_mul_f32 v14, {f32(-LOG2E)}, v14')
    a('v_exp_f32 v14, v14')
    a(f'v_mul_f32 v20, {f32(1/512)}, v20')
    a('v_add_f32 v14, 1.0, v14')
    a('v_rcp_f32 v14, v14')
    bf16_round(a, 20, 20)
    a(f'v_add_f32 v20, {f32(1e-5)}, v20')
    bf16_round(a, 14, 14)
    bf16_round(a, 20, 20)
    a('v_sqrt_f32 v20, v20')
    bf16_round(a, 12, 12)
    bf16_round(a, 13, 20)
    a('v_lshlrev_b32 v8, 2, v7')
    a(f'v_add_u32 v8, {hex(WS_G)}, v8')
    a('v_lshlrev_b32 v9, 3, v7')
    a(f'v_add_u32 v9, {hex(WS_ST)}, v9')
    a('s_mov_b32 exec_lo, 1')
    a('s_mov_b32 exec_hi, 1')
    a(f'buffer_store_dword v14, v8, s[{SRD0}:{SRD0+3}], 0 offen {SC}')
    a(f'buffer_store_dwordx2 v[12:13], v9, s[{SRD0}:{SRD0+3}], 0 offen {SC}')
    a('s_mov_b64 exec, -1')
    a('s_waitcnt lgkmcnt(0)')
    a('s_barrier')
    a(f'v_and_b32 v2, 15, v{V_LANE}')
    a(f'v_lshrrev_b32 v3, 4, v{V_LANE}')
    a('v_lshrrev_b32 v4, 2, v2')
    a('v_lshl_add_u32 v4, v3, 3, v4')
    a('v_mul_u32_u24 v4, 144, v4')
    a('v_and_b32 v5, 3, v2')
    a('v_lshl_add_u32 v4, v5, 3, v4')
    a(f's_lshl_b32 s42, s{S_WAVE}, 5')
    a(f's_add_u32 s42, s42, {L_KT}')
    a('v_add_u32 v4, s42, v4')
    for th in range(2):
        a(f'ds_read_b64_tr_b16 v[{64+4*th}:{65+4*th}], v4 offset:{th*32*144}')
        a(f'ds_read_b64_tr_b16 v[{66+4*th}:{67+4*th}], v4 offset:{th*32*144+4*144}')
    a(f's_lshl_b32 s42, s{DT}, 6')
    a(f's_lshl_b32 s43, s{S_WAVE}, 4')
    a('s_add_u32 s42, s42, s43')
    a('v_add_u32 v5, s42, v2')
    a('v_lshlrev_b32 v5, 12, v5')
    a('v_lshl_add_u32 v5, v3, 4, v5')
    a(f's_lshl_b32 s42, s{TT}, 7')
    a('v_add_u32 v5, s42, v5')
    for th in range(2):
        a(f'buffer_store_dwordx4 v[{64+4*th}:{67+4*th}], v5, s[{SRD0}:{SRD0+3}], 0 offen offset:{WS_UT+64*th} {SC}')


def ucopy_loads(a, opt):
    MH, D = 80, 81
    E = [160, 168, 176]
    for q2, vo in ((0, 30), (1, 31), (2, 32)):
        a(f'buffer_load_dwordx4 v[{E[q2]}:{E[q2]+3}], v{vo}, s[{SRD1}:{SRD1+3}], 0 offen {SC}', opt=opt)
        a(f'buffer_load_dwordx2 v[{E[q2]+4}:{E[q2]+5}], v{vo}, s[{SRD1}:{SRD1+3}], 0 offen offset:16 {SC}', opt=opt)


def ucopy_addr(a):
    MH, D = 80, 81
    a(f's_lshl_b32 s42, s{D}, 12')
    srd(a, SRD1, P_WS, 's42', 4096)
    a(f's_lshl_b32 s42, s{MH}, 11')
    a(f'v_lshlrev_b32 v29, 4, v{V_LANE}')
    a('v_add_u32 v29, s42, v29')
    a('v_subrev_u32 v30, 32, v29')
    a('v_add_u32 v31, 1024, v30')
    a('v_add_u32 v32, 2048, v30')


def ucopy_writes(a):
    C, MH = 79, 80
    E = [160, 168, 176]
    a(f's_mul_i32 s42, s{C}, {UC_CH}')
    a(f's_add_u32 s42, s42, {L_UC}')
    a('v_add_u32 v2, s42, v29')
    for q2 in range(3):
        e = E[q2]
        if q2 == 2:
            a(f's_cmp_eq_u32 s{MH}, 1')
            a('s_cselect_b64 exec, 3, 0')
        T = 184 + 12 * (q2 & 1)
        for k in range(4):
            a(f'v_alignbit_b32 v{T+k}, v{e+k+1}, v{e+k}, 16')
        for k in range(4):
            a(f'v_mov_b32 v{T+4+k}, v{e+k+1}')
        for k in range(4):
            a(f'v_alignbit_b32 v{T+8+k}, v{e+k+2}, v{e+k+1}, 16')
        off = 1024 * q2
        a(f'ds_write_b128 v2, v[{e}:{e+3}] offset:{off}')
        a(f'ds_write_b128 v2, v[{T}:{T+3}] offset:{off+UC_COPY}')
        a(f'ds_write_b128 v2, v[{T+4}:{T+7}] offset:{off+2*UC_COPY}')
        a(f'ds_write_b128 v2, v[{T+8}:{T+11}] offset:{off+3*UC_COPY}')
    a('s_mov_b64 exec, -1')


def ssm_role(a):
    a(f's_mov_b32 s{S_IDX}, s2')
    stamp(a, 0)
    p0_loads(a)
    emit_ssm_loads(a)
    setup_flag_srds(a)
    p0_compute(a)
    stamp(a, 1)
    a('v_mov_b32 v33, 0')
    tok_rdy = poll_issue(a, 34, 33, SRDD, 1)
    DTC = 77
    def publish():
        a('s_waitcnt vmcnt(0)')
        check_or_spin(a, 'ssm_rdy', tok_rdy, 34, 33, SRDD, 1)
        a('s_barrier')
        def f():
            a(f's_lshl_b32 s42, s{S_IDX}, {FS}')
            a(f's_add_u32 s42, s42, {FL_P0}')
            flag_store(a, 35, 42)
        wave0_only(a, 'ssm_pub', f)
        stamp(a, 2)
    if 'ssmlite' in ARGS:
        publish()
        def f0():
            a(f's_lshl_b32 s42, s{S_IDX}, {FS}')
            a(f's_add_u32 s42, s42, {FL_A}')
            flag_store(a, 35, 42)
        wave0_only(a, 'ssm_pubx', f0)
        G.stamp_flush(a)
        return
    state = {}
    def mid():
        publish()
    def pre_mfma():
        a(f's_lshr_b32 s42, s{S_IDX}, 5')
        a(f'v_and_b32 v35, 7, v{V_LANE}')
        a(f'v_lshrrev_b32 v36, 3, v{V_LANE}')
        a('v_lshlrev_b32 v36, 3, v36')
        a('v_add_u32 v36, s42, v36')
        a('v_lshl_add_u32 v35, v36, 3, v35')
        a(f'v_lshlrev_b32 v35, {FS}, v35')
        state['tok'] = poll_issue(a, 34, 35, SRDF, 0xffffffff, FL_P0)
        ucopy_addr(a)
    def post_mfma():
        a.wait_vm_token(state['tok'])
        cmp_mask(a, 34, 0xffffffff)
        a('s_cselect_b32 s82, 1, 0')
        a('s_cbranch_scc0 L_ssm_noearly')
        st = a.save()
        ucopy_loads(a, True)
        a.label('L_ssm_noearly')
        a.hist = []; a.vmq = st[1]; a.lgq = st[2]
    G.emit_kgen(a, 'kg', mid_hook=mid, pre_mfma=pre_mfma, post_mfma=post_mfma)
    stamp(a, 3)
    a('s_cmp_eq_u32 s82, 1')
    a('s_cbranch_scc1 L_ssm_have')
    spin(a, 'ssm_ut', 34, 35, SRDF, 0xffffffff, FL_P0)
    ucopy_loads(a, True)
    a.label('L_ssm_have')
    a.hist = []
    a('s_waitcnt vmcnt(0) lgkmcnt(0)')
    a('s_barrier')
    stamp(a, 4)
    ucopy_writes(a)
    a('s_waitcnt lgkmcnt(0)')
    a('s_barrier')
    stamp(a, 5)
    emit_conv(a, 'cv', SC)
    stamp(a, 6)
    a('s_waitcnt vmcnt(0)')
    a('s_barrier')
    def f():
        a(f's_lshl_b32 s42, s{S_IDX}, {FS}')
        a(f's_add_u32 s42, s42, {FL_A}')
        flag_store(a, 35, 42)
    wave0_only(a, 'ssm_pub2', f)
    stamp(a, 7)
    G.stamp_flush(a)


TB, FB_, JJ, XC, PAR = 72, 73, 74, 75, 76
HOFF = [77, 78]
ROT = 79
WF, WT = 82, 83
W4, W2K = 81, 80
SLOTS = [(4, 32768), (4, 32768 + 2048), (2, 49152), (4, 0), (4, 2048), (2, 57344), (2, 65536), (4, 16384), (4, 16384 + 2048), (2, 73728)]
TAU, DT = 87, 88
KX = list(range(6, 14))
KW = list(range(14, 22))
SP = list(range(90, 97))
WE = [97, 98, 99, 100]
SRDW2 = 24
R1 = 10
GW, GA, GH, VF, VT, VP = [128, 129], [130, 131], [132, 133, 134, 135], 136, 137, 20
GA2 = [218, 219]
W2R = [138 + 4 * k for k in range(20)]
G2ACC = [32, 48, 64, 80]
HD = 6
HRING = [220, 224, 228, 232, 96, 100, 120, 124, 104, 108, 112, 116]
G2FA = [236, 244]
TAILMASK = (1 << 40) - 1
GAP = int([x[3:] for x in ARGS if x.startswith('gap')][0]) if any(x.startswith('gap') for x in ARGS) else 17
R1_READ_AT = int([x[3:] for x in ARGS if x.startswith('rra')][0]) if any(x.startswith('rra') for x in ARGS) else 1
TOUCH_ST = int([x[3:] for x in ARGS if x.startswith('tst')][0]) if any(x.startswith('tst') for x in ARGS) else 12
PFDEPTH = int([x[3:] for x in ARGS if x.startswith('pfd')][0]) if any(x.startswith('pfd') for x in ARGS) else 1


class G2State:
    pass


def pos_mj(k):
    return k % 7, (k // 7) & 1, k >= 14


def g2_setup(a):
    if 'map48' in ARGS:
        a(f's_lshl_b32 s42, s{XC}, 2')
        a(f's_lshr_b32 s44, s{JJ}, 3')
        a(f's_add_u32 s{TAU}, s42, s44')
        a(f's_and_b32 s{DT}, s{JJ}, 7')
        a(f's_and_b32 s{PAR}, s{TAU}, 1')
        a(f's_cmp_eq_u32 s{DT}, 7')
        a(f's_cselect_b32 s42, 0, s{DT}')
    else:
        a(f's_lshr_b32 s42, s{XC}, 1')
        a('s_lshl_b32 s42, s42, 3')
        a(f's_lshr_b32 s44, s{JJ}, 2')
        a(f's_add_u32 s{TAU}, s42, s44')
        a(f's_and_b32 s42, s{XC}, 1')
        a('s_lshl_b32 s42, s42, 2')
        a(f's_and_b32 s43, s{JJ}, 3')
        a(f's_add_u32 s{DT}, s42, s43')
        a(f's_and_b32 s{PAR}, s{TAU}, 1')
        a('s_lshl_b32 s42, s43, 1')
        a('s_add_u32 s42, s42, s44')
        a('s_cmp_ge_u32 s42, 7')
        a('s_cselect_b32 s43, 7, 0')
        a('s_sub_u32 s42, s42, s43')
    a(f's_mul_i32 s44, s{S_WAVE}, {28*1024}')
    for m in range(7):
        a('s_lshl_b32 s43, s42, 12')
        a(f's_add_u32 s{SP[m]}, s43, s44')
        if m < 6:
            a('s_add_u32 s42, s42, 1')
            a('s_cmp_eq_u32 s42, 7')
            a('s_cselect_b32 s42, 0, s42')
    a(f's_lshl_b32 s{WE[0]}, s{PAR}, 15')
    a(f's_add_u32 s{WE[1]}, s{WE[0]}, 16384')
    a(f's_sub_u32 s{WE[2]}, 32768, s{WE[0]}')
    a(f's_add_u32 s{WE[3]}, s{WE[2]}, 16384')
    a(f's_lshl_b32 s42, s{DT}, 7')
    a(f's_sub_u32 s43, {1792*1024}, s42')
    srd(a, SRDW2, P_W2, 's42', 's43')
    a(f's_mul_i32 s42, s{TAU}, {2*112*1024}')
    a(f's_add_u32 s42, s42, {hex(WS_H)}')
    srd(a, SRD3, P_WS, 's42', 2 * 112 * 1024)
    a(f's_and_b32 s{WF}, s{S_WAVE}, 1')
    a(f's_lshr_b32 s{WT}, s{S_WAVE}, 1')
    t0, t1, t2, t3 = 96, 97, 98, 99
    a(f'v_lshrrev_b32 v{t0}, 3, v{V_LANE}')
    a(f'v_and_b32 v{t1}, 7, v{V_LANE}')
    a(f'v_lshrrev_b32 v{t2}, 2, v{t1}')
    a(f'v_lshrrev_b32 v{t3}, 1, v{t0}')
    a(f'v_and_b32 v{t3}, 1, v{t3}')
    a(f'v_xor_b32 v{t2}, v{t2}, v{t3}')
    a(f'v_and_b32 v{t1}, 3, v{t1}')
    a(f'v_lshl_add_u32 v{t2}, v{t2}, 2, v{t1}')
    a(f'v_lshlrev_b32 v{t0}, 10, v{t0}')
    a(f'v_lshl_add_u32 v{GW[0]}, v{t2}, 4, v{t0}')
    a(f'v_add_u32 v{GW[1]}, {8*1024-1024}, v{GW[0]}')
    a(f's_lshl_b32 s{W4}, s{S_WAVE}, 12')
    a(f's_lshl_b32 s{W2K}, s{S_WAVE}, 11')
    a(f'v_lshrrev_b32 v{t0}, 4, v{V_LANE}')
    a(f'v_and_b32 v{t1}, 15, v{V_LANE}')
    a(f'v_lshrrev_b32 v{t2}, 2, v{t1}')
    a(f'v_and_b32 v{t1}, 3, v{t1}')
    a(f'v_lshrrev_b32 v{t3}, 1, v{t0}')
    a(f'v_and_b32 v{t0}, 1, v{t0}')
    a(f'v_lshl_add_u32 v{t3}, v{t3}, 2, v{t2}')
    a(f'v_lshlrev_b32 v{t3}, 7, v{t3}')
    a(f'v_lshl_add_u32 v{t3}, v{t0}, 5, v{t3}')
    a(f'v_lshl_add_u32 v{t3}, v{t1}, 3, v{t3}')
    a(f'v_lshrrev_b32 v{t2}, 1, v{t2}')
    a(f'v_xor_b32 v{t2}, s{WF}, v{t2}')
    a(f'v_lshl_add_u32 v{GA[0]}, v{t2}, 6, v{t3}')
    a(f'v_xor_b32 v{t2}, 1, v{t2}')
    a(f'v_lshl_add_u32 v{GA[1]}, v{t2}, 6, v{t3}')
    a(f's_add_u32 s42, s{W2K}, 49152')
    for dd in range(2):
        a(f'v_add_u32 v{GA2[dd]}, s42, v{GA[dd]}')
        a(f'v_add_u32 v{GA[dd]}, s{W4}, v{GA[dd]}')
    a(f'v_lshlrev_b32 v{t2}, 4, v{V_LANE}')
    a(f's_lshl_b32 s43, s{PAR}, 11')
    a(f'v_add_u32 v{t2}, s43, v{t2}')
    a(f's_mul_i32 s42, s{WT}, {112*1024}')
    a(f'v_add_u32 v{GH[0]}, s42, v{t2}')
    a(f's_sub_u32 s42, {112*1024}, s42')
    a(f'v_add_u32 v{GH[1]}, s42, v{t2}')
    a('s_lshl_b32 s43, s43, 1')
    a('s_sub_u32 s43, 2048, s43')
    a(f'v_add_u32 v{GH[2]}, s43, v{GH[0]}')
    a(f'v_add_u32 v{GH[3]}, s43, v{GH[1]}')
    a(f's_lshr_b32 s42, s{TAU}, 1')
    a('s_mul_i32 s42, s42, 14')
    a(f's_mul_i32 s43, s{S_WAVE}, 7')
    a('s_lshr_b32 s43, s43, 1')
    a('s_add_u32 s42, s42, s43')
    a('s_lshl_b32 s42, s42, 7')
    a(f's_lshl_b32 s43, s{PAR}, 3')
    a('s_add_u32 s42, s42, s43')
    a(f's_add_u32 s42, s42, {hex(WS_FL + FL_H)}')
    a(f's_add_u32 s{SFL}, s{P_WS}, s42')
    a(f's_addc_u32 s{SFL+1}, s{P_WS+1}, 0')
    a(f's_lshl_b32 s42, s{DT}, 5')
    a(f'v_add_u32 v{VT}, s42, v{V_LANE}')
    a(f'v_lshlrev_b32 v{VT}, {FS}, v{VT}')
    a(f'v_add_u32 v{VT}, {FL_A}, v{VT}')
    a(f's_lshr_b32 s42, s{TAU}, 2')
    a(f's_and_b32 s43, s{TAU}, 3')
    a('s_lshl_b32 s43, s43, 6')
    a('s_add_u32 s42, s42, s43')
    a(f'v_subrev_u32 v{t0}, 32, v{V_LANE}')
    a(f'v_lshlrev_b32 v{t0}, 3, v{t0}')
    a(f'v_add_u32 v{t0}, s42, v{t0}')
    a(f'v_lshlrev_b32 v{t0}, {FS}, v{t0}')
    a(f'v_add_u32 v{t0}, {FL_P0}, v{t0}')
    a(f'v_cmp_gt_u32 vcc, 32, v{V_LANE}')
    a(f'v_cndmask_b32 v{VT}, v{t0}, v{VT}, vcc')


def g2_dma_items(k):
    m, j, late = pos_mj(k)
    kind, off = SLOTS[k % 10]
    pre = [f's_add_u32 m0, s{W4 if kind == 4 else W2K}, {off}']
    if 'w2same' in ARGS: pre.append('s_mov_b32 s89, 0')
    else: pre.append(f's_lshl4_add_u32 s89, s{SP[m]}, s{WE[2*late+j]}')
    if 'w2small' in ARGS: pre.append('s_and_b32 s89, s89, 0x1ffff')
    return [pre + [f'buffer_load_dwordx4 v{GW[0]}, s[{SRDW2}:{SRDW2+3}], s89 offen lds'],
            [(f'buffer_load_dwordx4 v{GW[1]}, s[{SRDW2}:{SRDW2+3}], s89 offen offset:1024 lds', k)]]


def put_items(a, g, items):
    for it in items:
        if isinstance(it, tuple): g.tokW[it[1]] = a(it[0])
        else: a(it)


def g2_dma(a, g, k):
    for grp in g2_dma_items(k): put_items(a, g, grp)


def g2_wread_list(k, regs):
    kind, off = SLOTS[k % 10]
    l = []
    for dd in range(2):
        v_, o = (GA[dd], off) if kind == 4 else (GA2[dd], off - 49152)
        l.append(f'ds_read_b64_tr_b16 v[{regs[dd]}:{regs[dd]+1}], v{v_} offset:{o}')
        l.append(f'ds_read_b64_tr_b16 v[{regs[dd]+2}:{regs[dd]+3}], v{v_} offset:{o+1024}')
    return l


def g2_round1_reads(a, g):
    a.wait_vm_token(max(g.tokW[k] for k in range(R1)))
    for k in range(R1):
        for l in g2_wread_list(k, W2R[2*k:2*k+2]): a(l)


def h_schedule():
    free = list(HRING)
    regs, when = {}, {}
    nxt = 0
    for p in range(HD - 1):
        regs[p] = (free.pop(0), free.pop(0)); when[p] = -1; nxt += 1
    for k in range(28):
        if k >= 1:
            free += list(regs[k - 1])
            if RESERVED <= k - 1 < R1: free += W2R[2*(k-1):2*(k-1)+2]
        n = 0
        while nxt < 28 and len(free) >= 2 and n < 2:
            regs[nxt] = (free.pop(0), free.pop(0)); when[nxt] = k; nxt += 1; n += 1
    return regs, when


RESERVED = 4
HREGS, HWHEN = h_schedule()


SFL = 32
PSET = [6, 14]
sc_slow = []
NREST = [0]


def sc_issue(a, stage):
    d = PSET[stage & 1]
    for i in range(4):
        a(f's_load_dwordx2 s[{d+2*i}:{d+2*i+1}], s[{SFL}:{SFL+1}], {128*i + 16*stage} glc')


def sc_test(a, stage):
    d = PSET[stage & 1]
    a(f's_and_b32 s42, s{d}, s{d+1}')
    for i in range(2, 8):
        a(f's_and_b32 s42, s42, s{d+i}')
    a('s_cmp_eq_u32 s42, 1')


def sc_spin(a, name, stage):
    a(f's_mov_b32 s45, {SPIN_LIMIT}')
    a.label(f'L_{name}_spin')
    a.lgq = []
    sc_issue(a, stage)
    sc_test(a, stage)
    a(f's_cbranch_scc1 L_{name}_done')
    a('s_sub_u32 s45, s45, 1')
    a('s_cmp_lg_u32 s45, 0')
    a(f's_cbranch_scc1 L_{name}_spin')
    a.label(f'L_{name}_done')


def sc_check(a, name, stage):
    sc_test(a, stage)
    a(f's_cbranch_scc0 L_{name}_slow')
    a.label(f'L_{name}_back')
    sc_slow.append((name, stage))


def emit_sc_slow(a):
    for name, stage in sc_slow:
        a.label(f'L_{name}_slow')
        a.reset()
        a('s_waitcnt lgkmcnt(0)')
        sc_spin(a, name + 's', stage)
        a(f's_branch L_{name}_back')
    sc_slow.clear()


def hload(k, tt):
    m, j, late = pos_mj(k)
    r = HREGS[k][tt]
    return f'buffer_load_dwordx4 v[{r}:{r+3}], v{GH[2*late+tt]}, s[{SRD3}:{SRD3+3}], s{SP[m]} offen offset:{1024*j} {SC}'


def h_prologue(a, opt=False):
    for k in range(HD - 1):
        for tt in range(2): a(hload(k, tt), opt=opt)


def g1_role(a, g):
    VX = [2, 3, 4, 5]
    VW = [6, 7, 8, 9]
    a(f's_and_b32 s{WF}, s{S_WAVE}, 1')
    a(f's_lshr_b32 s{WT}, s{S_WAVE}, 1')
    a(f'v_lshrrev_b32 v12, 3, v{V_LANE}')
    a(f'v_and_b32 v13, 7, v{V_LANE}')
    a('v_lshrrev_b32 v14, 1, v12')
    a('v_xor_b32 v14, v13, v14')
    a(f's_lshl_b32 s42, s{S_WAVE}, 4')
    a('v_add_u32 v15, s42, v12')
    a('v_lshlrev_b32 v15, 10, v15')
    a(f'v_lshl_add_u32 v{VX[0]}, v14, 4, v15')
    a('v_xor_b32 v14, 4, v14')
    a(f'v_lshl_add_u32 v{VX[1]}, v14, 4, v15')
    a(f'v_add_u32 v{VX[1]}, {8*1024-1024}, v{VX[1]}')
    a(f'v_lshrrev_b32 v12, 4, v{V_LANE}')
    a(f'v_and_b32 v13, 15, v{V_LANE}')
    a('v_lshrrev_b32 v14, 2, v13')
    a('v_xor_b32 v14, v14, v12')
    a('v_and_b32 v13, 3, v13')
    a('v_lshl_add_u32 v14, v14, 2, v13')
    a(f's_lshl_b32 s42, s{S_WAVE}, 3')
    a('v_add_u32 v15, s42, v12')
    a('v_mul_u32_u24 v15, 3584, v15')
    a(f'v_lshl_add_u32 v{VW[0]}, v14, 4, v15')
    a(f'v_add_u32 v{VW[1]}, {4*3584-1024}, v{VW[0]}')
    a(f's_lshl_b32 s84, s{S_WAVE}, 11')
    def ktab(c):
        a(f's_add_u32 s42, s{ROT}, {c}')
        a('s_and_b32 s42, s42, 7')
        a(f's_lshl_b32 s{KX[c]}, s42, 7')
        a(f's_mul_i32 s{KW[c]}, s42, 229376')
    a('s_waitcnt lgkmcnt(0)')
    a.lgq = []
    ktab(0); ktab(1)
    a(f's_lshl_b32 s42, s{TB}, 17')
    srd(a, SRD1, P_X, 's42', 131072)
    a(f's_lshl_b32 s42, s{FB_}, 8')
    a(f's_sub_u32 s43, {512*3584}, s42')
    srd(a, SRD2, P_W1, 's42', 's43')
    tokW, tokX = {}, {}
    def dma_w_list(st):
        o = 2 * (st & 1)
        return [f's_add_u32 m0, s84, {G1_WS[st % 4]}',
                f'buffer_load_dwordx4 v{VW[o]}, s[{SRD2}:{SRD2+3}], s{KW[st >> 1]} offen lds',
                (f'buffer_load_dwordx4 v{VW[o+1]}, s[{SRD2}:{SRD2+3}], s{KW[st >> 1]} offen offset:1024 lds', ('w', st))]
    def dma_x_list(c, h):
        return [f's_add_u32 m0, s84, {G1_XS[c % 3] + 8192*h}',
                f'buffer_load_dwordx4 v{VX[2*h]}, s[{SRD1}:{SRD1+3}], s{KX[c]} offen lds',
                (f'buffer_load_dwordx4 v{VX[2*h+1]}, s[{SRD1}:{SRD1+3}], s{KX[c]} offen offset:1024 lds', ('x', (c, h)))]
    g.tokW = {}
    def w2_items(k):
        out = []
        for grp in g2_dma_items(k):
            for it in grp:
                out.append((it[0], ('g', it[1])) if isinstance(it, tuple) else it)
        return out
    def put(item):
        if isinstance(item, tuple):
            t = a(item[0])
            {'w': tokW, 'x': tokX, 'g': g.tokW}[item[1][0]][item[1][1]] = t
        elif callable(item):
            item()
        else:
            a(item)
    for it in dma_w_list(0) + dma_x_list(0, 0): put(it)
    a(f'v_add_u32 v{VX[2]}, 65536, v{VX[0]}')
    a(f'v_add_u32 v{VX[3]}, 65536, v{VX[1]}')
    a(f'v_add_u32 v{VW[2]}, {32*3584}, v{VW[0]}')
    a(f'v_add_u32 v{VW[3]}, {32*3584}, v{VW[1]}')
    for it in dma_x_list(0, 1) + dma_w_list(1) + dma_x_list(1, 0) + dma_x_list(1, 1) + dma_w_list(2): put(it)
    stamp(a, 1)
    for c in range(2, 8): ktab(c)
    B1V = [26, 27]
    a(f's_lshl_b32 s42, s{FB_}, 7')
    a(f's_lshl_b32 s43, s{WF}, 6')
    a('s_add_u32 s42, s42, s43')
    a(f'v_and_b32 v21, 31, v{V_LANE}')
    a('v_add_u32 v22, s42, v21')
    a('v_lshlrev_b32 v22, 1, v22')
    a(f's_lshl_b32 s42, s{WT}, 6')
    a('v_add_u32 v23, s42, v22')
    a(f'global_load_ushort v{B1V[0]}, v23, s[{P_B1}:{P_B1+1}]')
    a('s_sub_u32 s42, 64, s42')
    a('v_add_u32 v23, s42, v22')
    a(f'global_load_ushort v{B1V[1]}, v23, s[{P_B1}:{P_B1+1}]')
    setup_flag_srds(a)
    srd(a, SRD0, P_WS, 0, 0x1000000)
    g2_setup(a)
    VA = [10, 11]; VB = [16, 17, 18, 19]
    a(f'v_lshrrev_b32 v12, 4, v{V_LANE}')
    a(f'v_and_b32 v13, 15, v{V_LANE}')
    a('v_lshrrev_b32 v14, 2, v13')
    a('v_and_b32 v13, 3, v13')
    a('v_lshrrev_b32 v15, 1, v12')
    a('v_and_b32 v12, 1, v12')
    a('v_lshl_add_u32 v15, v15, 3, v14')
    a('v_lshlrev_b32 v15, 8, v15')
    a('v_lshl_add_u32 v15, v12, 5, v15')
    a('v_lshl_add_u32 v15, v13, 3, v15')
    a(f'v_add_u32 v15, {G1_WS[0]}, v15')
    a(f's_lshl_b32 s42, s{WF}, 1')
    a(f's_add_u32 s42, s42, s{WT}')
    for l in range(2):
        if l: a('s_xor_b32 s42, s42, 1')
        a('v_xor_b32 v12, s42, v14')
        a(f'v_lshl_add_u32 v{VA[l]}, v12, 6, v15')
    a(f'v_and_b32 v12, 31, v{V_LANE}')
    a(f'v_lshrrev_b32 v13, 5, v{V_LANE}')
    a('v_lshrrev_b32 v14, 1, v12')
    a('v_and_b32 v14, 7, v14')
    a(f's_lshl_b32 s42, s{WT}, 6')
    a('v_add_u32 v12, s42, v12')
    a('v_lshlrev_b32 v12, 7, v12')
    for kk in range(4):
        a(f'v_add_u32 v15, {2*kk}, v13')
        a('v_xor_b32 v15, v15, v14')
        a(f'v_lshl_add_u32 v{VB[kk]}, v15, 4, v12')
    ONES, SACC = 248, 232
    for k in range(4):
        a(f'v_mov_b32 v{ONES+k}, 0x3f803f80')
    MS = [12, 14]
    a('v_mov_b32 v28, 0')
    a(f's_lshr_b32 s42, s{TB}, 1')
    a(f's_and_b32 s43, s{TB}, 1')
    a('s_lshl_b32 s43, s43, 7')
    a('s_add_u32 s42, s42, s43')
    a(f'v_lshlrev_b32 v29, 3, v{V_LANE}')
    a('v_add_u32 v29, s42, v29')
    a(f'v_lshlrev_b32 v29, {FS}, v29')
    a(f's_lshl_b32 s42, s{TB}, 7')
    a(f's_lshl_b32 s43, s{WT}, 6')
    a('s_add_u32 s42, s42, s43')
    a('v_add_u32 v30, s42, v21')
    a('v_lshlrev_b32 v30, 3, v30')
    a(f'v_add_u32 v30, {hex(WS_ST)}, v30')
    a(f's_lshl_b32 s{HOFF[0]}, s{WT}, 11')
    a(f's_sub_u32 s{HOFF[1]}, 2048, s{HOFF[0]}')
    a(f's_lshl_b32 s42, s{TB}, 2')
    a(f's_lshl_b32 s43, s{WT}, 1')
    a('s_add_u32 s42, s42, s43')
    a('s_mul_i32 s42, s42, 112')
    a(f's_lshl_b32 s43, s{FB_}, 3')
    a('s_add_u32 s42, s42, s43')
    a(f's_lshl_b32 s43, s{WF}, 2')
    a('s_add_u32 s42, s42, s43')
    a('s_lshl_b32 s42, s42, 10')
    a(f's_add_u32 s42, s42, {hex(WS_H)}')
    VH = [24, 25]
    a(f'v_lshlrev_b32 v24, 4, v{V_LANE}')
    a('v_add_u32 v24, s42, v24')
    a(f'v_add_u32 v25, {112*1024}, v24')
    a(f's_add_u32 s44, s{W2K}, 65536')
    a(f's_xor_b32 s45, s{S_WAVE}, 2')
    a('s_lshl_b32 s45, s45, 11')
    a('s_add_u32 s45, s45, 65536')
    a(f'v_lshrrev_b32 v31, 5, v{V_LANE}')
    a('v_lshlrev_b32 v31, 4, v31')
    a('v_add_u32 v22, s44, v31')
    a('v_add_u32 v23, s45, v31')
    a('v_lshlrev_b32 v21, 2, v21')
    a('v_add_u32 v21, s44, v21')
    st_ = {}
    def h_rdy_issue(): st_['r'] = poll_issue(a, 31, 28, SRDD, 1)
    def h_rdy_check(): check_or_spin(a, 'g1_rdy', st_['r'], 31, 28, SRDD, 1)
    def h_fl_issue(): st_['f'] = poll_issue(a, 31, 29, SRDF, 0xffff, FL_P0)
    def h_fl_check():
        check_or_spin(a, 'g1_fl', st_['f'], 31, 29, SRDF, 0xffff, FL_P0)
        for tt in range(2):
            a(f'buffer_load_dwordx2 v[{MS[tt]}:{MS[tt]+1}], v30, s[{SRD0}:{SRD0+3}], 0 offen offset:{256*tt} {SC}')
    def w2_touch():
        if 'notouch' in ARGS: return
        a(f's_lshl_b32 s42, s{JJ}, 6')
        a(f's_lshl_b32 s43, s{S_WAVE}, 4')
        a('s_add_u32 s42, s42, s43')
        a(f'v_lshrrev_b32 v140, 2, v{V_LANE}')
        a('v_add_u32 v140, s42, v140')
        a('v_lshlrev_b32 v140, 10, v140')
        a(f'v_and_b32 v141, 3, v{V_LANE}')
        a('v_lshl_add_u32 v140, v141, 7, v140')
        a(f's_and_b32 s42, s{XC}, 1')
        a('s_lshl_b32 s42, s42, 9')
        a('v_add_u32 v140, s42, v140')
        a(f'global_load_dword v141, v140, s[{P_W2}:{P_W2+1}]', discard=True)
        if 'touch1' not in ARGS:
            a(f'global_load_dword v141, v140, s[{P_W2}:{P_W2+1}] offset:64', discard=True)
    hk = {7: h_rdy_issue, 10: h_rdy_check, 11: h_fl_issue, TOUCH_ST: w2_touch, 14: h_fl_check}
    ACC = 32
    FR = [96, 112]
    def reads(st, kap):
        base = FR[kap]
        lst = []
        for l in range(2):
            o = (st % 4) * 8192 + kap * 16 * 256
            lst.append(f'ds_read_b64_tr_b16 v[{base+4*l}:{base+4*l+1}], v{VA[l]} offset:{o}')
            lst.append(f'ds_read_b64_tr_b16 v[{base+4*l+2}:{base+4*l+3}], v{VA[l]} offset:{o+1024}')
        for tt in range(2):
            kk = 2 * (st & 1) + kap
            lst.append(f'ds_read_b128 v[{base+8+4*tt}:{base+11+4*tt}], v{VB[kk]} offset:{G1_XS[(st>>1) % 3] + 4096*tt}')
        return lst
    def mfmas(st, kap, rd, dm):
        base = FR[kap]
        first = (st == 0 and kap == 0)
        ms = []
        c = '0' if first else f'v[{SACC}:{SACC+15}]'
        ms.append(f'v_mfma_f32_32x32x16_bf16 v[{SACC}:{SACC+15}], v[{base}:{base+3}], v[{ONES}:{ONES+3}], {c}')
        for l in range(2):
            for tt in range(2):
                acc = ACC + 32 * l + 16 * tt
                c = '0' if first else f'v[{acc}:{acc+15}]'
                ms.append(f'v_mfma_f32_32x32x16_bf16 v[{acc}:{acc+15}], v[{base+4*l}:{base+4*l+3}], v[{base+8+4*tt}:{base+11+4*tt}], {c}')
        if len(dm) <= 3:
            gaps = [rd[0:2], dm[0:2] + rd[2:3], rd[3:5], dm[2:3] + rd[5:6], []]
        else:
            q = (len(dm) + 3) // 4
            gaps = [rd[0:2] + dm[0:q], rd[2:4] + dm[q:2*q], rd[4:6] + dm[2*q:3*q], dm[3*q:], []]
        for m, gp in zip(ms, gaps):
            a(m)
            for it in gp: put(it)
    for st in range(16):
        need = [tokW[st]] + [tokX[(st >> 1, h)] for h in range(2)]
        if st + 1 < 16:
            need += [tokW[st + 1]] + [tokX[((st + 1) >> 1, h)] for h in range(2)]
        a.wait_vm_token(max(need))
        a('s_barrier')
        if st in (0, 4, 8, 12): stamp(a, 2 + st // 4)
        if st in hk: hk[st]()
        if st == 0:
            for l in reads(0, 0): a(l)
        c = (st >> 1) + 2
        d0 = dma_w_list(st + 3) if st + 3 < 16 else []
        d1 = dma_x_list(c, st & 1) if c < 8 else []
        early = {12: ([], [0, 1]), 13: ([2], []), 14: ([3, 4], [5])}.get(st)
        if early:
            d0 = d0 + [x for k in early[0] for x in w2_items(k)]
            d1 = d1 + [x for k in early[1] for x in w2_items(k)]
        mfmas(st, 0, reads(st, 1), d0)
        mfmas(st, 1, reads(st + 1, 0) if st + 1 < 16 else [], d1)
    a('s_mov_b32 exec_lo, 1')
    a('s_mov_b32 exec_hi, 1')
    for i in range(4):
        a(f'ds_write_b128 v22, v[{SACC+4*i}:{SACC+4*i+3}] offset:{32*i}')
        a(f'ds_write_b128 v23, v[{SACC+4*i}:{SACC+4*i+3}] offset:{128+32*i}')
    a('s_mov_b64 exec, -1')
    a('s_waitcnt lgkmcnt(0)')
    a('s_barrier')
    stamp(a, 6)
    if 'lat' in ARGS:
        a('s_waitcnt vmcnt(0)')
        stamp(a, 11)
        for k_ in range(10, 20):
            m_, j_, late_ = pos_mj(k_)
            a(f's_lshl4_add_u32 s89, s{SP[m_]}, s{WE[2*late_+j_]}')
            a(f'buffer_load_dwordx4 v[140:143], v{GW[0]}, s[{SRDW2}:{SRDW2+3}], s89 offen', discard=True)
            a(f'buffer_load_dwordx4 v[144:147], v{GW[1]}, s[{SRDW2}:{SRDW2+3}], s89 offen offset:1024', discard=True)
        a('s_waitcnt vmcnt(0)')
        stamp(a, 12)
        for k_ in range(20, 28):
            m_, j_, late_ = pos_mj(k_)
            a(f's_lshl4_add_u32 s89, s{SP[m_]}, s{WE[2*late_+j_]}')
            a(f'buffer_load_dwordx4 v[140:143], v{GW[0]}, s[{SRDW2}:{SRDW2+3}], s89 offen', discard=True)
            a(f'buffer_load_dwordx4 v[144:147], v{GW[1]}, s[{SRDW2}:{SRDW2+3}], s89 offen offset:1024', discard=True)
        a('s_waitcnt vmcnt(0)')
        stamp(a, 13)
        G.stamp_flush(a)
        a('s_endpgm')
    SR = [28, 29]
    for l in range(2):
        a(f'ds_read_b32 v{SR[l]}, v21 offset:{128*l}')
    AF, BF = [120, 124], [220, 224]
    SD = [13, 15]
    a('s_waitcnt lgkmcnt(0)')
    for k in (7, 8): g2_dma(a, g, k)
    a('s_mov_b32 s42, 0xffff0000')
    a(f'v_cmp_gt_u32 vcc, 32, v{V_LANE}')
    for tt in range(2):
        b = BF[tt]
        a(f'v_xor_b32 v30, 0x80000000, v{MS[tt]}')
        a(f'v_lshrrev_b32 v{b}, 16, v{SD[tt]}')
        a(f'v_and_or_b32 v{b}, v30, s42, v{b}')
        a(f'v_lshrrev_b32 v{b+1}, 16, v30')
        a(f'v_and_or_b32 v{b+1}, v30, s42, v{b+1}')
        a(f'v_cndmask_b32 v{b}, 0, v{b}, vcc')
        a(f'v_cndmask_b32 v{b+1}, 0, v{b+1}, vcc')
        a(f'v_mov_b32 v{b+2}, 0')
        a(f'v_mov_b32 v{b+3}, 0')
    for k in (9, 6): g2_dma(a, g, k)
    for l in range(2):
        f = AF[l]
        a(f'v_cvt_pk_bf16_f32 v{f}, v{SR[l]}, v{SR[l]}')
        a(f'v_lshlrev_b32 v{f}, 16, v{f}')
        a(f'v_sub_f32 v30, v{SR[l]}, v{f}')
        a(f'v_cvt_pk_bf16_f32 v31, v30, v30')
        a('v_lshlrev_b32 v31, 16, v31')
        a('v_sub_f32 v31, v30, v31')
        a(f'v_cvt_pk_bf16_f32 v{f+1}, v30, v31')
        a(f'v_or_b32 v{f}, v{f}, v{B1V[l]}')
        a(f'v_cndmask_b32 v{f}, 0, v{f}, vcc')
        a(f'v_cndmask_b32 v{f+1}, 0, v{f+1}, vcc')
        a(f'v_mov_b32 v{f+2}, 0')
        a(f'v_mov_b32 v{f+3}, 0')
    for l in range(2):
        for tt in range(2):
            acc = ACC + 32 * l + 16 * tt
            a(f'v_mfma_f32_32x32x16_bf16 v[{acc}:{acc+15}], v[{AF[l]}:{AF[l]+3}], v[{BF[tt]}:{BF[tt]+3}], v[{acc}:{acc+15}]')
    dq = []
    def queue_dma(ks):
        for k in ks: dq.extend(g2_dma_items(k))
    def drain_dma():
        while dq: put_items(a, g, dq.pop(0))
    cnt = [0]
    gap = [GAP]
    def e(text):
        r = a(text)
        cnt[0] += 1
        if cnt[0] % gap[0] == 0 and dq: put_items(a, g, dq.pop(0))
        return r
    AL, BE = [16, 17], [18, 19]
    for tt in range(2):
        e(f'v_rcp_f32 v22, v{SD[tt]}')
        e(f'v_mul_f32 v{AL[tt]}, {f32(-GELU_C)}, v22')
        e('v_mul_f32 v23, v22, v22')
        e(f'v_mul_f32 v23, v23, v{AL[tt]}')
        e(f'v_mul_f32 v{BE[tt]}, {f32(0.044715)}, v23')
    T = 96
    toks = {}
    def block(l, j, tt):
        acc = ACC + 32 * l + 16 * tt
        r0 = 8 * j
        E = range(8)
        for x in E: e(f'v_mul_f32 v{T+x}, v{acc+r0+x}, v{acc+r0+x}')
        for x in E: e(f'v_fma_f32 v{T+x}, v{T+x}, v{BE[tt]}, v{AL[tt]}')
        for x in E: e(f'v_mul_f32 v{T+x}, v{T+x}, v{acc+r0+x}')
        for x in E: e(f'v_exp_f32 v{T+x}, v{T+x}')
        for x in E: e(f'v_fma_f32 v{T+x}, v{T+x}, v{SD[tt]}, v{SD[tt]}')
        for x in E: e(f'v_rcp_f32 v{T+x}, v{T+x}')
        for x in E: e(f'v_mul_f32 v{T+x}, v{T+x}, v{acc+r0+x}')
        H = 104 + 4 * ((2 * j + tt) % 4)
        for x in range(4): e(f'v_cvt_pk_bf16_f32 v{H+x}, v{T+2*x}, v{T+2*x+1}')
        toks[(l, j, tt)] = a(f'buffer_store_dwordx4 v[{H}:{H+3}], v{VH[tt]}, s[{SRD0}:{SRD0+3}], s{HOFF[l]} offen offset:{j*1024} {SC if "hplain" not in ARGS else ""}')
    a(f's_mul_i32 s42, s{TB}, 14')
    a(f's_add_u32 s42, s42, s{FB_}')
    a('s_lshl_b32 s42, s42, 7')
    a(f's_lshl_b32 s43, s{S_WAVE}, 2')
    a('s_add_u32 s42, s42, s43')
    a(f's_add_u32 s42, s42, {FL_H}')
    a('v_mov_b32 v26, s42')
    a('v_mov_b32 v27, 1')
    def publish(stage):
        a.wait_vm_token(toks[(stage >> 1, stage & 1, 1)])
        a('s_mov_b64 exec, 1')
        a(f'buffer_store_dword v27, v26, s[{SRDF}:{SRDF+3}], 0 offen offset:{16*stage} {SC}')
        a('s_mov_b64 exec, -1')
    order = [(l, j, tt) for l in range(2) for j in range(2) for tt in range(2)]
    for n, (l, j, tt) in enumerate(order):
        block(l, j, tt)
        if n == 4: publish(0)
        if n == R1_READ_AT:
            drain_dma()
            stamp(a, 7)
            g2_round1_reads(a, g)
            a('s_waitcnt lgkmcnt(0)')
            stamp(a, 10)
            queue_dma(range(R1, R1 + 10))
        if n == 6:
            publish(1)
            sc_issue(a, 0)
    stamp(a, 8)
    g.nrest = len(dq)
    NREST[0] = g.nrest
    dq.clear()
    publish(2)
    sc_check(a, 'g1_h0', 0)
    h_prologue(a)
    publish(3)
    stamp(a, 9)


def service_role(a, g):
    a(f's_cmp_eq_u32 s{JJ}, 28')
    a('s_cbranch_scc0 L_sv_done')
    a(f's_cmp_eq_u32 s{S_WAVE}, 3')
    a('s_cbranch_scc0 L_sv_zero')
    if 'nopf' not in ARGS:
        a('s_getpc_b64 s[44:45]')
        a.label('L_pf_pc')
        a('s_sub_u32 s44, s44, L_pf_pc-CODE_BEGIN')
        a('s_subb_u32 s45, s45, 0')
        a(f'v_lshlrev_b32 v37, 4, v{V_LANE}')
        NPF = 38
        for k in range(NPF):
            a('v_min_u32 v36, CODE_END-CODE_BEGIN-16, v37')
            a('global_load_dwordx4 v[244:247], v36, s[44:45]', opt=True, discard=True)
            a('v_add_u32 v37, 1024, v37')
    a('s_branch L_sv_join')
    a.label('L_sv_zero')
    a.reset()
    a('s_waitcnt lgkmcnt(0)')
    a(f's_cmp_eq_u32 s{XC}, 0')
    a('s_cbranch_scc0 L_sv_join')
    srd(a, SRDF, P_WS, WS_FL, FL_BYTES)
    a(f'v_lshlrev_b32 v2, 4, v{V_TID}')
    for k in range(4):
        a(f'v_mov_b32 v{4+k}, 0')
    for k in range(FL_BYTES // 3072):
        a(f'buffer_store_dwordx4 v[4:7], v2, s[{SRDF}:{SRDF+3}], 0 offen {SC}')
        a('v_add_u32 v2, 3072, v2')
    a('s_waitcnt vmcnt(0)')
    a.label('L_sv_join')
    a.reset()
    a('s_waitcnt lgkmcnt(0)')
    a('s_barrier')
    a(f's_cmp_eq_u32 s{XC}, 0')
    a('s_cbranch_scc0 L_sv_done')
    a(f's_cmp_eq_u32 s{S_WAVE}, 0')
    a('s_cbranch_scc0 L_sv_done')
    srd(a, SRDD, P_DBG, 0, 256)
    a('v_mov_b32 v2, 0')
    a('v_mov_b32 v3, 1')
    a('s_mov_b64 exec, 1')
    a(f'buffer_store_dword v3, v2, s[{SRDD}:{SRDD+3}], 0 offen {SC}', opt=True)
    a('s_mov_b64 exec, -1')
    a.label('L_sv_done')
    a.reset()
    a('s_waitcnt lgkmcnt(0)')
    setup_flag_srds(a)
    a('v_mov_b32 v33, 0')
    spin(a, 'sv_rdy', 34, 33, SRDD, 1)
    if 'now2pf' not in ARGS:
        a(f's_lshl_b32 s42, s{S_IDX}, {FS}')
        a(f's_add_u32 s42, s42, {FL_P0}')
        a('v_mov_b32 v33, s42')
        spin(a, 'sv_p0', 34, 33, SRDF, 1)
        srd(a, SRD1, P_W2, 0, 1792 * 1024)
        a(f's_sub_u32 s42, s{JJ}, 28')
        a('s_lshl_b32 s42, s42, 2')
        a(f's_add_u32 s42, s42, s{S_WAVE}')
        a(f's_mul_i32 s42, s42, {112*1024}')
        if 'map48' in ARGS:
            a(f'v_lshlrev_b32 v2, 7, v{V_LANE}')
            a('s_mov_b32 s43, 14')
        else:
            a(f'v_lshrrev_b32 v2, 2, v{V_LANE}')
            a('v_lshlrev_b32 v2, 10, v2')
            a(f'v_and_b32 v3, 3, v{V_LANE}')
            a('v_lshl_add_u32 v2, v3, 7, v2')
            a(f's_and_b32 s43, s{XC}, 1')
            a('s_lshl_b32 s43, s43, 9')
            a('v_add_u32 v2, s43, v2')
            a('s_mov_b32 s43, 7')
        a.label('L_w2pf')
        a(f'buffer_load_dword v40, v2, s[{SRD1}:{SRD1+3}], s42 offen', opt=True, discard=True)
        a(f's_add_u32 s42, s42, {8192 if "map48" in ARGS else 16384}')
        a(f's_waitcnt vmcnt({PFDEPTH})')
        a('s_sub_u32 s43, s43, 1')
        a('s_cmp_lg_u32 s43, 0')
        a('s_cbranch_scc1 L_w2pf')
        a.reset()
    g2_setup(a)
    g.tokW = {}
    for k in range(R1):
        g2_dma(a, g, k)
    srd(a, SRD0, P_WS, 0, 0x1000000)
    g2_round1_reads(a, g)
    a('s_waitcnt lgkmcnt(0)')
    items = [grp for k in range(R1, R1 + 10) for grp in g2_dma_items(k)]
    for grp in items[:20 - NREST[0]]: put_items(a, g, grp)
    sc_spin(a, 'sv_h0', 0)
    h_prologue(a)
    a('v_mov_b32 v21, 0')
    a('s_mov_b64 exec, 1')
    a(f'buffer_load_dword v22, v21, s[{SRDD}:{SRDD+3}], 0 offen', discard=True)
    a('s_mov_b64 exec, -1')


def g2_main(a, g):
    for k in range(HD - 1):
        for tt in range(2):
            r = HREGS[k][tt]
            a.vseq += 1
            a.vmq.append((a.vseq, {('v', r + i) for i in range(4)}, False))
    a.vseq += 1
    a.vmq.append((a.vseq, set(), False))
    rest = [grp for k in range(R1, R1 + 10) for grp in g2_dma_items(k)][20 - NREST[0]:]
    for k in range(R1, R1 + 10): g.tokW[k] = 0
    def wregs(k):
        return W2R[2*k:2*k+2] if k < R1 else [G2FA[k & 1], G2FA[k & 1] + 4]
    st_ = {}
    VPS = {1: 21, 2: 22, 3: 23}
    AV = [138 + r for r in range(16)]
    GV, B2 = 154, 156
    VTOK, VHI = 16, 17
    def tail_loads():
        check_or_spin(a, 'g2_t', st_['t'], VP, VT, SRDF, TAILMASK)
        a(f'v_and_b32 v{VTOK}, 31, v{V_LANE}')
        a(f'v_lshrrev_b32 v{VHI}, 5, v{V_LANE}')
        a(f's_lshl_b32 s42, s{TAU}, 6')
        a(f's_lshl_b32 s43, s{WT}, 5')
        a('s_add_u32 s42, s42, s43')
        a(f'v_add_u32 v{VTOK}, s42, v{VTOK}')
        a(f'v_lshlrev_b32 v18, 2, v{VTOK}')
        a(f'v_add_u32 v18, {hex(WS_G)}, v18')
        a(f'buffer_load_dword v{GV}, v18, s[{SRD0}:{SRD0+3}], 0 offen {SC}')
        a(f's_lshl_b32 s42, s{DT}, 6')
        a(f's_lshl_b32 s43, s{WF}, 5')
        a('s_add_u32 s85, s42, s43')
        a(f'v_lshlrev_b32 v18, 2, v{VHI}')
        a('v_add_u32 v18, s85, v18')
        a('v_lshlrev_b32 v19, 1, v18')
        for i in range(4):
            a(f'global_load_dwordx2 v[{B2+2*i}:{B2+2*i+1}], v19, s[{P_B2}:{P_B2+1}] offset:{16*i}')
        a('v_lshlrev_b32 v18, 12, v18')
        a(f'v_lshl_add_u32 v18, v{VTOK}, 1, v18')
    aq = [(i, r) for i in range(4) for r in range(4)]
    for k in range(28):
        rd = []
        if R1 <= k + 1 < 28:
            a.wait_vm_token(g.tokW[k + 1])
            rd = g2_wread_list(k + 1, wregs(k + 1))
        if k in (1, 9, 14, 20): stamp(a, {1: 11, 9: 12, 14: 13, 20: 14}[k])
        f = wregs(k)
        newp = [p for p in range(28) if HWHEN[p] == k]
        for stg in (1, 2, 3):
            first = HWHEN[7 * stg]
            if k == max(first - 2, 0): sc_issue(a, stg)
            if k == first: sc_check(a, f'g2_h{stg}', stg)
        if k == 17: st_['t'] = poll_issue(a, VP, VT, SRDF, TAILMASK)
        if k == 20: tail_loads()
        hq = [hload(p, tt) for p in newp for tt in range(2)]
        n = 0
        for tt in range(2):
            r = HREGS[k][tt]
            for dd in range(2):
                acc = G2ACC[dd + 2 * tt]
                c = '0' if k == 0 else f'v[{acc}:{acc+15}]'
                a(f'v_mfma_f32_32x32x16_bf16 v[{acc}:{acc+15}], v[{f[dd]}:{f[dd]+3}], v[{r}:{r+3}], {c}')
                if hq: a(hq.pop(0))
                if n in (0, 1):
                    for l in rd[2*n:2*n+2]: a(l)
                if rest and (n in (1, 3) or len(rest) > 2 * (R1 - 2 - k)): put_items(a, g, rest.pop(0))
                if n == 3 and k >= R1 + 1 and k - 1 + 10 < 28: g2_dma(a, g, k - 1 + 10)
                if k >= 21 and aq:
                    i, rr = aq.pop(0)
                    a(f's_mov_b32 s86, {hex(WS_AT + (8*i+rr)*4096)}')
                    a(f'buffer_load_ushort v{AV[4*i+rr]}, v18, s[{SRD0}:{SRD0+3}], s86 offen {SC}')
                n += 1
        assert not hq
    while aq:
        i, rr = aq.pop(0)
        a(f's_mov_b32 s86, {hex(WS_AT + (8*i+rr)*4096)}')
        a(f'buffer_load_ushort v{AV[4*i+rr]}, v18, s[{SRD0}:{SRD0+3}], s86 offen {SC}')
    a(f'v_lshlrev_b32 v14, 4, v{V_LANE}')
    a(f'v_add_u32 v15, s{W4}, v14')
    XR = [32768, 0, 16384]
    for x in range(1, 4):
        for i in range(4):
            a(f'ds_write_b128 v15, v[{G2ACC[x]+4*i}:{G2ACC[x]+4*i+3}] offset:{XR[x-1]+1024*i}')
    a(f'v_sub_f32 v20, 1.0, v{GV}')
    bf16_round(a, 20, 20)
    for i in range(4):
        for h in range(2):
            a(f'v_lshlrev_b32 v{96+2*h}, 16, v{B2+2*i+h}')
            a(f'v_and_b32 v{97+2*h}, 0xffff0000, v{B2+2*i+h}')
        for r in range(4):
            a(f'v_lshlrev_b32 v{AV[4*i+r]}, 16, v{AV[4*i+r]}')
        for r in range(4):
            a(f'v_mul_f32 v{AV[4*i+r]}, v{AV[4*i+r]}, v{GV}')
        for r in range(4):
            a(f'v_fmac_f32 v{AV[4*i+r]}, v{96+r}, v20')
    a('s_waitcnt lgkmcnt(0)')
    a('s_barrier')
    PR = 170
    for x in range(1, 4):
        a(f's_xor_b32 s42, s{S_WAVE}, {x}')
        a('s_lshl_b32 s42, s42, 12')
        a('v_add_u32 v15, s42, v14')
        for i in range(4):
            a(f'ds_read_b128 v[{PR+16*(x-1)+4*i}:{PR+16*(x-1)+4*i+3}], v15 offset:{XR[x-1]+1024*i}')
    a(f'v_lshlrev_b32 v{VTOK}, 10, v{VTOK}')
    a('s_lshl_b32 s42, s85, 1')
    a(f'v_add_u32 v{VTOK}, s42, v{VTOK}')
    a(f'v_lshl_add_u32 v{VTOK}, v{VHI}, 4, v{VTOK}')
    srd(a, SRD1, P_OUT, 0, 2048 * 1024)
    ACC = G2ACC[0]
    for x in range(3):
        for r in range(16):
            a(f'v_add_f32 v{ACC+r}, v{ACC+r}, v{PR+16*x+r}')
    O = 96
    for r in range(16):
        a(f'v_fmac_f32 v{AV[r]}, v{ACC+r}, v20')
    for i in range(4):
        a(f'v_cvt_pk_bf16_f32 v{O+2*i}, v{AV[4*i]}, v{AV[4*i+1]}')
        a(f'v_cvt_pk_bf16_f32 v{O+2*i+1}, v{AV[4*i+2]}, v{AV[4*i+3]}')
    for p in range(2):
        a(f'v_permlane32_swap_b32 v{O+4*p}, v{O+4*p+2}')
        a(f'v_permlane32_swap_b32 v{O+4*p+1}, v{O+4*p+3}')
        a(f'buffer_store_dwordx4 v[{O+4*p}:{O+4*p+3}], v{VTOK}, s[{SRD1}:{SRD1+3}], 0 offen offset:{32*p}')
    stamp(a, 15)
    if G.STAMP:
        a('s_waitcnt vmcnt(0)')
    G.stamp_flush(a)


def gemm_role(a):
    g = G2State()
    a(f's_sub_u32 s{S_IDX}, s2, 256')
    a('s_setprio 2')
    a(f's_and_b32 s{XC}, s{S_IDX}, 7')
    a(f's_lshr_b32 s{JJ}, s{S_IDX}, 3')
    a(f's_cmp_ge_u32 s{JJ}, 28')
    a('s_cbranch_scc1 L_service')
    a(f's_mul_i32 s42, s{JJ}, 37')
    a('s_lshr_b32 s42, s42, 8')
    a('s_mul_i32 s43, s42, 7')
    a(f's_sub_u32 s43, s{JJ}, s43')
    a(f's_lshr_b32 s44, s{XC}, 1')
    a('s_lshl_b32 s44, s44, 2')
    a(f's_add_u32 s{TB}, s44, s42')
    a(f's_and_b32 s44, s{XC}, 1')
    a('s_mul_i32 s44, s44, 7')
    a(f's_add_u32 s{FB_}, s44, s43')
    a('s_lshl_b32 s42, s42, 1')
    a('s_add_u32 s42, s42, s43')
    a(f's_and_b32 s{ROT}, s42, 7')
    if 'norot' in ARGS: a(f's_mov_b32 s{ROT}, 0')
    g1_role(a, g)
    a('s_branch L_g2')
    a.label('L_service')
    a.reset()
    last_g1 = G._last[0]
    G.stamp_restart(0)
    service_role(a, G2State())
    stamp(a, 9)
    a.label('L_g2')
    a.reset()
    G.stamp_restart(9)
    g.tokW = {}
    g2_main(a, g)


def build():
    a = Asm()
    name = NAME + '_kernel'
    a.raw(HEADER.rstrip())
    a.raw(f'; @launch grid=(512,1,1) block=(256,1,1) lds={LDS_BYTES}')
    a.raw('.amdgcn_target "amdgcn-amd-amdhsa--gfx950"')
    a.raw('.text')
    a.raw(f'.globl {name}')
    a.raw('.p2align 8')
    a.raw(f'.type {name},@function')
    a.label(name)
    a.label('CODE_BEGIN')
    a.reset()
    a('s_cmp_ge_u32 s2, 512')
    a(f's_cbranch_scc1 L_exit')
    a('s_load_dwordx16 s[4:19], s[0:1], 0')
    a('s_load_dwordx16 s[20:35], s[0:1], 64')
    a('s_load_dwordx4 s[36:39], s[0:1], 128')
    a(f'v_lshrrev_b32 v2, 6, v{V_TID}')
    a(f'v_and_b32 v{V_LANE}, 63, v{V_TID}')
    a(f'v_readfirstlane_b32 s{S_WAVE}, v2')
    a('s_cmp_lt_u32 s2, 256')
    a('s_cbranch_scc1 L_ssm')
    a.lgq = []
    stamp(a, 0)
    gemm_role(a)
    a.label('L_exit')
    a('s_endpgm')
    emit_slow_blocks(a)
    emit_sc_slow(a)
    a.label('L_ssm')
    a.reset()
    G.stamp_restart(None)
    a('s_waitcnt lgkmcnt(0)')
    ssm_role(a)
    a('s_endpgm')
    emit_slow_blocks(a)
    a.raw(table())
    a.raw('CODE_END:')
    a.raw('.section .rodata,"a"')
    a.raw('.p2align 6')
    a.raw(kd(name).strip('\n'))
    return a.text()


if __name__ == '__main__':
    out = [x for x in sys.argv[1:] if x.endswith('.s')]
    out = out[0] if out else 'cdna_kernels/' + NAME + '.s'
    txt = build()
    open(out, 'w').write(txt)
    print('wrote', out, len(txt), 'bytes')
```

```python
import math, struct, sys
from asmlib import Asm
import gen as G
from gen import *

SC = 'sc1'
SRDF, SRDD = SRD4, SRD5
SPIN_LIMIT = 20000
FS = 5
FL_P0, FL_A, FL_H = 0x0, 0x2000, 0x4000
HS = 6
FL_BYTES = 0x8000
ARGS = set(sys.argv[1:])
slow_blocks = []


def setup_flag_srds(a):
    srd(a, SRDF, P_WS, WS_FL, FL_BYTES)
    srd(a, SRDD, P_DBG, 0, 256)


def set_exec(a, mask):
    if isinstance(mask, str):
        a(f's_mov_b64 exec, {mask}')
    elif mask < (1 << 31):
        a(f's_mov_b64 exec, {hex(mask)}')
    else:
        a(f's_mov_b32 exec_lo, {hex(mask & 0xffffffff)}')
        a(f's_mov_b32 exec_hi, {hex(mask >> 32)}')


def poll_issue(a, vd, vaddr, srd_, mask, off=0):
    set_exec(a, mask)
    tok = a(f'buffer_load_dword v{vd}, v{vaddr}, s[{srd_}:{srd_+3}], 0 offen offset:{off} {SC}')
    a('s_mov_b64 exec, -1')
    return tok


def cmp_mask(a, vd, mask):
    set_exec(a, mask)
    a(f'v_cmp_eq_u32 vcc, 1, v{vd}')
    a('s_mov_b64 s[46:47], exec')
    a('s_mov_b64 exec, -1')
    a('s_cmp_eq_u64 vcc, s[46:47]')


def spin(a, name, vd, vaddr, srd_, mask, off=0, sleep=2):
    a(f's_mov_b32 s45, {SPIN_LIMIT}')
    a.label(f'L_{name}_spin')
    set_exec(a, mask)
    a(f'buffer_load_dword v{vd}, v{vaddr}, s[{srd_}:{srd_+3}], 0 offen offset:{off} {SC}', opt=True)
    a('s_waitcnt vmcnt(0)')
    a(f'v_cmp_eq_u32 vcc, 1, v{vd}')
    a('s_mov_b64 s[46:47], exec')
    a('s_mov_b64 exec, -1')
    a('s_cmp_eq_u64 vcc, s[46:47]')
    a(f's_cbranch_scc1 L_{name}_done')
    a(f's_sleep {sleep}')
    a('s_sub_u32 s45, s45, 1')
    a('s_cmp_lg_u32 s45, 0')
    a(f's_cbranch_scc1 L_{name}_spin')
    a.label(f'L_{name}_done')


def check_or_spin(a, name, tok, vd, vaddr, srd_, mask, off=0):
    a.wait_vm_token(tok)
    cmp_mask(a, vd, mask)
    a(f's_cbranch_scc0 L_{name}_slow')
    a.label(f'L_{name}_back')
    slow_blocks.append((name, vd, vaddr, srd_, mask, off))


def emit_slow_blocks(a):
    for (name, vd, vaddr, srd_, mask, off) in slow_blocks:
        a.label(f'L_{name}_slow')
        a.reset()
        spin(a, name + 's', vd, vaddr, srd_, mask, off)
        a(f's_branch L_{name}_back')
    slow_blocks.clear()


def flag_store(a, vtmp, soff_expr_reg, extra=0, val=1):
    a(f'v_mov_b32 v{vtmp}, s{soff_expr_reg}')
    a(f'v_mov_b32 v{vtmp+1}, {val}')
    a('s_mov_b64 exec, 1')
    a(f'buffer_store_dword v{vtmp+1}, v{vtmp}, s[{SRDF}:{SRDF+3}], 0 offen offset:{extra} {SC}', opt=True)
    a('s_mov_b64 exec, -1')


def wave0_only(a, name, fn):
    a(f's_cmp_eq_u32 s{S_WAVE}, 0')
    a(f's_cbranch_scc0 L_{name}_skip')
    st = a.save()
    fn()
    a.label(f'L_{name}_skip')
    a.hist = []
    a.vmq = st[1]; a.lgq = st[2]


def red32(a, r, t):
    red8(a, r)
    a(f'v_add_f32_dpp v{r}, v{r}, v{r} row_mirror row_mask:0xf bank_mask:0xf')
    a(f'v_mov_b32 v{t}, v{r}')
    a(f'v_permlane16_swap_b32 v{r}, v{t}')
    a(f'v_add_f32 v{r}, v{r}, v{t}')


def p0_loads(a):
    X, J, T0, TT, DT = 72, 73, 74, 75, 76
    a(f's_and_b32 s{X}, s{S_IDX}, 7')
    a(f's_lshr_b32 s{J}, s{S_IDX}, 3')
    a(f's_lshl_b32 s{T0}, s{X}, 8')
    a(f's_lshl_b32 s42, s{J}, 3')
    a(f's_add_u32 s{T0}, s{T0}, s42')
    a(f's_lshl_b32 s{TT}, s{X}, 2')
    a(f's_lshr_b32 s42, s{J}, 3')
    a(f's_add_u32 s{TT}, s{TT}, s42')
    a(f's_and_b32 s{DT}, s{J}, 7')
    a(f'v_lshrrev_b32 v184, 3, v{V_LANE}')
    a(f'v_and_b32 v185, 7, v{V_LANE}')
    a(f's_lshl_b32 s42, s{TT}, 6')
    a(f's_lshl_b32 s43, s{S_WAVE}, 4')
    a('s_add_u32 s42, s42, s43')
    a('v_add_u32 v4, s42, v184')
    a('v_lshlrev_b32 v4, 10, v4')
    a('v_lshl_add_u32 v4, v185, 4, v4')
    a(f's_lshl_b32 s42, s{DT}, 7')
    a('v_add_u32 v4, s42, v4')
    a(f'global_load_dwordx4 v[160:163], v4, s[{P_U}:{P_U+1}]')
    a('v_add_u32 v4, 0x2000, v4')
    a(f'global_load_dwordx4 v[164:167], v4, s[{P_U}:{P_U+1}]')
    a(f'v_lshrrev_b32 v5, 5, v{V_LANE}')
    a(f'v_and_b32 v6, 31, v{V_LANE}')
    a(f's_lshl_b32 s42, s{S_WAVE}, 1')
    a(f's_add_u32 s42, s42, s{T0}')
    a('v_add_u32 v186, s42, v5')
    a('v_lshlrev_b32 v8, 10, v186')
    a('v_lshlrev_b32 v9, 5, v6')
    a('v_add_u32 v8, v8, v9')
    for k in range(2):
        a(f'global_load_dwordx4 v[{168+4*k}:{171+4*k}], v8, s[{P_U}:{P_U+1}] offset:{16*k}')
    for k in range(2):
        a(f'global_load_dwordx4 v[{176+4*k}:{179+4*k}], v9, s[{P_GW}:{P_GW+1}] offset:{16*k}')


def p0_compute(a):
    X, J, T0, TT, DT = 72, 73, 74, 75, 76
    srd(a, SRD0, P_WS, 0, 0x1000000)
    a(f's_lshl_b32 s42, s{S_WAVE}, 4')
    a('v_add_u32 v10, s42, v184')
    a('v_mul_u32_u24 v10, 144, v10')
    a('v_lshl_add_u32 v10, v185, 4, v10')
    a(f'v_add_u32 v10, {L_KT}, v10')
    a('ds_write_b128 v10, v[160:163]')
    a(f'ds_write_b128 v10, v[164:167] offset:{8*144}')
    if 'ssmst' in ARGS: stamp(a, 11)
    a('s_mov_b32 s46, 0x3f803f80')
    for k in range(4):
        a(f'v_mov_b32 v{12+k}, 0')
    for d in range(8):
        a(f'v_dot2_f32_bf16 v{12+d%2}, v{168+d}, s46, v{12+d%2}')
        a(f'v_dot2_f32_bf16 v{14+d%2}, v{168+d}, v{176+d}, v{14+d%2}')
    a('v_add_f32 v12, v12, v13')
    a('v_add_f32 v14, v14, v15')
    red32(a, 12, 16)
    red32(a, 14, 17)
    a(f'v_mul_f32 v12, {f32(1/512)}, v12')
    for k in range(4):
        a(f'v_mov_b32 v{20+k}, 0')
    for d in range(0, 8, 2):
        for e in range(2):
            a(f'v_lshlrev_b32 v{24+2*e}, 16, v{168+d+e}')
            a(f'v_and_b32 v{25+2*e}, 0xffff0000, v{168+d+e}')
        for e in range(4):
            a(f'v_sub_f32 v{24+e}, v{24+e}, v12')
        for e in range(4):
            a(f'v_fmac_f32 v{20+e}, v{24+e}, v{24+e}')
    a('v_add_f32 v20, v20, v21')
    a('v_add_f32 v22, v22, v23')
    a('v_add_f32 v20, v20, v22')
    red32(a, 20, 16)
    bf16_round(a, 14, 14)
    a(f'v_mul_f32 v14, {f32(-LOG2E)}, v14')
    a('v_exp_f32 v14, v14')
    a(f'v_mul_f32 v20, {f32(1/512)}, v20')
    a('v_add_f32 v14, 1.0, v14')
    a('v_rcp_f32 v14, v14')
    bf16_round(a, 20, 20)
    a(f'v_add_f32 v20, {f32(1e-5)}, v20')
    bf16_round(a, 14, 14)
    bf16_round(a, 20, 20)
    a('v_sqrt_f32 v20, v20')
    bf16_round(a, 12, 12)
    bf16_round(a, 13, 20)
    a('v_lshlrev_b32 v8, 2, v186')
    a(f'v_add_u32 v8, {hex(WS_G)}, v8')
    a('v_lshlrev_b32 v9, 3, v186')
    a(f'v_add_u32 v9, {hex(WS_ST)}, v9')
    a('s_mov_b32 exec_lo, 1')
    a('s_mov_b32 exec_hi, 1')
    a(f'buffer_store_dword v14, v8, s[{SRD0}:{SRD0+3}], 0 offen {SC}')
    a(f'buffer_store_dwordx2 v[12:13], v9, s[{SRD0}:{SRD0+3}], 0 offen {SC}')
    a('s_mov_b64 exec, -1')
    if 'ssmst' in ARGS: stamp(a, 12)
    a('s_waitcnt lgkmcnt(0)')
    a('s_barrier')
    if 'ssmst' in ARGS: stamp(a, 13)
    a(f'v_and_b32 v2, 15, v{V_LANE}')
    a(f'v_lshrrev_b32 v3, 4, v{V_LANE}')
    a('v_lshrrev_b32 v4, 2, v2')
    a('v_lshl_add_u32 v4, v3, 3, v4')
    a('v_mul_u32_u24 v4, 144, v4')
    a('v_and_b32 v5, 3, v2')
    a('v_lshl_add_u32 v4, v5, 3, v4')
    a(f's_lshl_b32 s42, s{S_WAVE}, 5')
    a(f's_add_u32 s42, s42, {L_KT}')
    a('v_add_u32 v4, s42, v4')
    for th in range(2):
        a(f'ds_read_b64_tr_b16 v[{64+4*th}:{65+4*th}], v4 offset:{th*32*144}')
        a(f'ds_read_b64_tr_b16 v[{66+4*th}:{67+4*th}], v4 offset:{th*32*144+4*144}')
    a(f's_lshl_b32 s42, s{DT}, 6')
    a(f's_lshl_b32 s43, s{S_WAVE}, 4')
    a('s_add_u32 s42, s42, s43')
    a('v_add_u32 v5, s42, v2')
    a('v_lshlrev_b32 v5, 12, v5')
    a('v_lshl_add_u32 v5, v3, 4, v5')
    a(f's_lshl_b32 s42, s{TT}, 7')
    a('v_add_u32 v5, s42, v5')
    for th in range(2):
        a(f'buffer_store_dwordx4 v[{64+4*th}:{67+4*th}], v5, s[{SRD0}:{SRD0+3}], 0 offen offset:{WS_UT+64*th} {SC}')


def ucopy_loads(a, opt):
    MH, D = 80, 81
    E = [160, 168, 176]
    for q2, vo in ((0, 30), (1, 31), (2, 32)):
        a(f'buffer_load_dwordx4 v[{E[q2]}:{E[q2]+3}], v{vo}, s[{SRD1}:{SRD1+3}], 0 offen {SC}', opt=opt)
        a(f'buffer_load_dwordx2 v[{E[q2]+4}:{E[q2]+5}], v{vo}, s[{SRD1}:{SRD1+3}], 0 offen offset:16 {SC}', opt=opt)


def ucopy_addr(a):
    MH, D = 80, 81
    a(f's_lshl_b32 s42, s{D}, 12')
    srd(a, SRD1, P_WS, 's42', 4096)
    a(f's_lshl_b32 s42, s{MH}, 11')
    a(f'v_lshlrev_b32 v29, 4, v{V_LANE}')
    a('v_add_u32 v29, s42, v29')
    a('v_subrev_u32 v30, 32, v29')
    a('v_add_u32 v31, 1024, v30')
    a('v_add_u32 v32, 2048, v30')


def ucopy_writes(a):
    C, MH = 79, 80
    E = [160, 168, 176]
    a(f's_mul_i32 s42, s{C}, {UC_CH}')
    a(f's_add_u32 s42, s42, {L_UC}')
    a('v_add_u32 v2, s42, v29')
    for q2 in range(3):
        e = E[q2]
        if q2 == 2:
            a(f's_cmp_eq_u32 s{MH}, 1')
            a('s_cselect_b64 exec, 3, 0')
        T = 184 + 12 * (q2 & 1)
        for k in range(4):
            a(f'v_alignbit_b32 v{T+k}, v{e+k+1}, v{e+k}, 16')
        for k in range(4):
            a(f'v_mov_b32 v{T+4+k}, v{e+k+1}')
        for k in range(4):
            a(f'v_alignbit_b32 v{T+8+k}, v{e+k+2}, v{e+k+1}, 16')
        off = 1024 * q2
        a(f'ds_write_b128 v2, v[{e}:{e+3}] offset:{off}')
        a(f'ds_write_b128 v2, v[{T}:{T+3}] offset:{off+UC_COPY}')
        a(f'ds_write_b128 v2, v[{T+4}:{T+7}] offset:{off+2*UC_COPY}')
        a(f'ds_write_b128 v2, v[{T+8}:{T+11}] offset:{off+3*UC_COPY}')
    a('s_mov_b64 exec, -1')


def ssm_role(a):
    X, J, T0, TT, DT = 72, 73, 74, 75, 76
    a(f's_mov_b32 s{S_IDX}, s2')
    stamp(a, 0)
    if 'kfirst' not in ARGS and 'noprio' not in ARGS: a('s_setprio 3')
    p0_loads(a)
    emit_ssm_loads(a)
    if 'hiprio' not in ARGS: a('s_setprio 0')
    if 'ssmst' in ARGS: stamp(a, 10)
    setup_flag_srds(a)
    st_ = {}
    def rdy_issue():
        pass
    def publish_p0():
        a('s_waitcnt vmcnt(0)')
        def chk():
            a('v_mov_b32 v33, 0')
            spin(a, 'ssm_rdy', 34, 33, SRDD, 1, sleep=3)
        wave0_only(a, 'ssm_rdyw', chk)
        a('s_barrier')
        def f():
            a(f's_lshl_b32 s42, s{S_IDX}, {FS}')
            a(f's_add_u32 s42, s42, {FL_P0}')
            flag_store(a, 35, 42)
        wave0_only(a, 'ssm_pub', f)
        stamp(a, 3 if 'kfirst' in ARGS else 9)
    def publish_a():
        def f():
            a(f's_lshl_b32 s42, s{S_IDX}, {FS}')
            a(f's_add_u32 s42, s42, {FL_A}')
            flag_store(a, 35, 42)
        wave0_only(a, 'ssm_pub2', f)
    if 'ssmlite' in ARGS:
        a('s_waitcnt lgkmcnt(0)')
        p0_compute(a)
        rdy_issue()
        publish_p0()
        publish_a()
        G.stamp_flush(a)
        return
    def ut_addr():
        a(f's_lshr_b32 s42, s{S_IDX}, 5')
        a(f'v_and_b32 v35, 7, v{V_LANE}')
        a(f'v_lshrrev_b32 v36, 3, v{V_LANE}')
        a('v_lshlrev_b32 v36, 3, v36')
        a('v_add_u32 v36, s42, v36')
        a('v_lshl_add_u32 v35, v36, 3, v35')
        a(f'v_lshlrev_b32 v35, {FS}, v35')
        ucopy_addr(a)
    if 'kfirst' in ARGS:
        def pre_mfma():
            stamp(a, 1)
            p0_compute(a)
            stamp(a, 2)
            rdy_issue()
        def post_mfma():
            publish_p0()
            ut_addr()
        G.emit_kgen(a, 'kg', pre_mfma=pre_mfma, post_mfma=post_mfma)
    else:
        p0_compute(a)
        stamp(a, 1)
        rdy_issue()
        def setup_hook():
            publish_p0()
            a('s_setprio 0')
        def pre_mfma():
            stamp(a, 2)
            ut_addr()
            st_['ut'] = poll_issue(a, 34, 35, SRDF, 0xffffffff, FL_P0)
        def post_mfma():
            a.wait_vm_token(st_['ut'])
            cmp_mask(a, 34, 0xffffffff)
            a('s_cselect_b32 s82, 1, 0')
            a('s_cbranch_scc0 L_ssm_noearly')
            sv = a.save()
            ucopy_loads(a, True)
            a.label('L_ssm_noearly')
            a.hist = []; a.vmq = sv[1]; a.lgq = sv[2]
        G.emit_kgen(a, 'kg', setup_hook=setup_hook, pre_mfma=pre_mfma, post_mfma=post_mfma)
    stamp(a, 4)
    a('s_cmp_eq_u32 s82, 1')
    a('s_cbranch_scc1 L_ssm_have')
    spin(a, 'ssm_ut', 34, 35, SRDF, 0xffffffff, FL_P0)
    ucopy_loads(a, True)
    a.label('L_ssm_have')
    a.hist = []
    a('s_waitcnt vmcnt(0) lgkmcnt(0)')
    a('s_barrier')
    ucopy_writes(a)
    a('s_waitcnt lgkmcnt(0)')
    a('s_barrier')
    stamp(a, 5)
    if 'nogate' not in ARGS:
        a(f's_cmp_ge_u32 s{J}, 28')
        a('s_cbranch_scc1 L_ssm_go')
        a(f's_mul_i32 s42, s{J}, 37')
        a('s_lshr_b32 s42, s42, 8')
        a('s_mul_i32 s43, s42, 7')
        a(f's_sub_u32 s43, s{J}, s43')
        a(f's_lshr_b32 s44, s{X}, 1')
        a('s_lshl_b32 s44, s44, 2')
        a('s_add_u32 s42, s44, s42')
        a(f's_and_b32 s44, s{X}, 1')
        a('s_mul_i32 s44, s44, 7')
        a('s_add_u32 s43, s44, s43')
        a('s_mul_i32 s42, s42, 14')
        a('s_add_u32 s42, s42, s43')
        a(f's_lshl_b32 s42, s42, {HS}')
        a(f's_lshl_b32 s43, s{S_WAVE}, 2')
        a('s_add_u32 s42, s42, s43')
        a(f's_add_u32 s83, s42, {hex(WS_FL + FL_H)}')
        a('s_mov_b32 s45, 300')
        a.label('L_ssm_gate')
        a.lgq = []
        a(f's_load_dword s84, s[{P_WS}:{P_WS+1}], s83 glc')
        a(f's_cmp_ge_u32 s84, {GATE_LEVEL}')
        a('s_cbranch_scc1 L_ssm_go')
        a('s_sleep 4')
        a('s_sub_u32 s45, s45, 1')
        a('s_cmp_lg_u32 s45, 0')
        a('s_cbranch_scc1 L_ssm_gate')
        a.label('L_ssm_go')
        a.reset()
    stamp(a, 6)
    if 'cvp0' not in ARGS: a('s_setprio 3')
    emit_conv(a, 'cv', SC)
    stamp(a, 7)
    a('s_waitcnt vmcnt(0)')
    a('s_barrier')
    publish_a()
    stamp(a, 8)
    G.stamp_flush(a)


TB, FB_, JJ, XC, PAR = 72, 73, 74, 75, 76
HOFF = [77, 78]
ROT = 79
WF, WT = 82, 83
W4, W2K = 81, 80
SLOTS = [(4, 32768), (4, 32768 + 2048), (2, 49152), (4, 0), (4, 2048), (2, 57344), (2, 65536), (4, 16384), (4, 16384 + 2048), (2, 73728)]
TAU, DT = 87, 88
KX = list(range(6, 14))
KW = list(range(14, 22))
SP = list(range(90, 97))
WE = [97, 98, 99, 100]
SRDW2 = 24
R1 = 10
GW, GA, GH, VF, VT, VP = [128, 129], [130, 131], [132, 133, 134, 135], 136, 137, 20
GA2 = [218, 219]
W2R = [138 + 4 * k for k in range(20)]
G2ACC = [32, 48, 64, 80]
HD = 6
HRING = [220, 224, 228, 232, 96, 100, 120, 124, 104, 108, 112, 116]
G2FA = [236, 244]
TAILMASK = (1 << 40) - 1
GAP = int([x[3:] for x in ARGS if x.startswith('gap')][0]) if any(x.startswith('gap') for x in ARGS) else 17
R1_READ_AT = int([x[3:] for x in ARGS if x.startswith('rra')][0]) if any(x.startswith('rra') for x in ARGS) else 1
PUB0 = int([x[3:] for x in ARGS if x.startswith('pub')][0]) if any(x.startswith('pub') for x in ARGS) else 3
GATE_LEVEL = int([x[4:] for x in ARGS if x.startswith('gate') and x[4:].isdigit()][0]) if any(x.startswith('gate') and x[4:].isdigit() for x in ARGS) else 3
ZWG = 256 + 8 * 29
TAILK = int([x[2:] for x in ARGS if x.startswith('tk')][0]) if any(x.startswith('tk') for x in ARGS) else 20
HSC = '' if 'hplain' in ARGS else 'sc1 nt' if 'hnt' in ARGS else 'sc0 sc1' if 'hsc01' in ARGS else 'sc0 sc1 nt' if 'hsc01nt' in ARGS else 'sc1'
TOUCH_ST = int([x[3:] for x in ARGS if x.startswith('tst')][0]) if any(x.startswith('tst') for x in ARGS) else 12
PFDEPTH = int([x[3:] for x in ARGS if x.startswith('pfd')][0]) if any(x.startswith('pfd') for x in ARGS) else 1


class G2State:
    pass


def pos_mj(k):
    return k % 7, (k // 7) & 1, k >= 14


def g2_setup(a):
    if 'map48' in ARGS:
        a(f's_lshl_b32 s42, s{XC}, 2')
        a(f's_lshr_b32 s44, s{JJ}, 3')
        a(f's_add_u32 s{TAU}, s42, s44')
        a(f's_and_b32 s{DT}, s{JJ}, 7')
        a(f's_and_b32 s{PAR}, s{TAU}, 1')
        a(f's_cmp_eq_u32 s{DT}, 7')
        a(f's_cselect_b32 s42, 0, s{DT}')
    else:
        a(f's_lshr_b32 s42, s{XC}, 1')
        a('s_lshl_b32 s42, s42, 3')
        a(f's_lshr_b32 s44, s{JJ}, 2')
        a(f's_add_u32 s{TAU}, s42, s44')
        a(f's_and_b32 s42, s{XC}, 1')
        a('s_lshl_b32 s42, s42, 2')
        if 'dtshift' in ARGS:
            a(f's_add_u32 s43, s{JJ}, 1')
            a('s_and_b32 s43, s43, 3')
        else:
            a(f's_and_b32 s43, s{JJ}, 3')
        a(f's_add_u32 s{DT}, s42, s43')
        a(f's_and_b32 s{PAR}, s{TAU}, 1')
        a('s_lshl_b32 s42, s43, 1')
        a('s_add_u32 s42, s42, s44')
        a('s_cmp_ge_u32 s42, 7')
        a('s_cselect_b32 s43, 7, 0')
        a('s_sub_u32 s42, s42, s43')
    a(f's_mul_i32 s44, s{S_WAVE}, {28*1024}')
    for m in range(7):
        a('s_lshl_b32 s43, s42, 12')
        a(f's_add_u32 s{SP[m]}, s43, s44')
        if m < 6:
            a('s_add_u32 s42, s42, 1')
            a('s_cmp_eq_u32 s42, 7')
            a('s_cselect_b32 s42, 0, s42')
    a(f's_lshl_b32 s{WE[0]}, s{PAR}, 15')
    a(f's_add_u32 s{WE[1]}, s{WE[0]}, 16384')
    a(f's_sub_u32 s{WE[2]}, 32768, s{WE[0]}')
    a(f's_add_u32 s{WE[3]}, s{WE[2]}, 16384')
    a(f's_lshl_b32 s42, s{DT}, 7')
    a(f's_sub_u32 s43, {1792*1024}, s42')
    srd(a, SRDW2, P_W2, 's42', 's43')
    a(f's_mul_i32 s42, s{TAU}, {2*112*1024}')
    a(f's_add_u32 s42, s42, {hex(WS_H)}')
    srd(a, SRD3, P_WS, 's42', 2 * 112 * 1024)
    a(f's_and_b32 s{WF}, s{S_WAVE}, 1')
    a(f's_lshr_b32 s{WT}, s{S_WAVE}, 1')
    t0, t1, t2, t3 = 96, 97, 98, 99
    a(f'v_lshrrev_b32 v{t0}, 3, v{V_LANE}')
    a(f'v_and_b32 v{t1}, 7, v{V_LANE}')
    a(f'v_lshrrev_b32 v{t2}, 2, v{t1}')
    a(f'v_lshrrev_b32 v{t3}, 1, v{t0}')
    a(f'v_and_b32 v{t3}, 1, v{t3}')
    a(f'v_xor_b32 v{t2}, v{t2}, v{t3}')
    a(f'v_and_b32 v{t1}, 3, v{t1}')
    a(f'v_lshl_add_u32 v{t2}, v{t2}, 2, v{t1}')
    a(f'v_lshlrev_b32 v{t0}, 10, v{t0}')
    a(f'v_lshl_add_u32 v{GW[0]}, v{t2}, 4, v{t0}')
    a(f'v_add_u32 v{GW[1]}, {8*1024-1024}, v{GW[0]}')
    a(f's_lshl_b32 s{W4}, s{S_WAVE}, 12')
    a(f's_lshl_b32 s{W2K}, s{S_WAVE}, 11')
    a(f'v_lshrrev_b32 v{t0}, 4, v{V_LANE}')
    a(f'v_and_b32 v{t1}, 15, v{V_LANE}')
    a(f'v_lshrrev_b32 v{t2}, 2, v{t1}')
    a(f'v_and_b32 v{t1}, 3, v{t1}')
    a(f'v_lshrrev_b32 v{t3}, 1, v{t0}')
    a(f'v_and_b32 v{t0}, 1, v{t0}')
    a(f'v_lshl_add_u32 v{t3}, v{t3}, 2, v{t2}')
    a(f'v_lshlrev_b32 v{t3}, 7, v{t3}')
    a(f'v_lshl_add_u32 v{t3}, v{t0}, 5, v{t3}')
    a(f'v_lshl_add_u32 v{t3}, v{t1}, 3, v{t3}')
    a(f'v_lshrrev_b32 v{t2}, 1, v{t2}')
    a(f'v_xor_b32 v{t2}, s{WF}, v{t2}')
    a(f'v_lshl_add_u32 v{GA[0]}, v{t2}, 6, v{t3}')
    a(f'v_xor_b32 v{t2}, 1, v{t2}')
    a(f'v_lshl_add_u32 v{GA[1]}, v{t2}, 6, v{t3}')
    a(f's_add_u32 s42, s{W2K}, 49152')
    for dd in range(2):
        a(f'v_add_u32 v{GA2[dd]}, s42, v{GA[dd]}')
        a(f'v_add_u32 v{GA[dd]}, s{W4}, v{GA[dd]}')
    a(f'v_lshlrev_b32 v{t2}, 4, v{V_LANE}')
    a(f's_lshl_b32 s43, s{PAR}, 11')
    a(f'v_add_u32 v{t2}, s43, v{t2}')
    a(f's_mul_i32 s42, s{WT}, {112*1024}')
    a(f'v_add_u32 v{GH[0]}, s42, v{t2}')
    a(f's_sub_u32 s42, {112*1024}, s42')
    a(f'v_add_u32 v{GH[1]}, s42, v{t2}')
    a('s_lshl_b32 s43, s43, 1')
    a('s_sub_u32 s43, 2048, s43')
    a(f'v_add_u32 v{GH[2]}, s43, v{GH[0]}')
    a(f'v_add_u32 v{GH[3]}, s43, v{GH[1]}')
    a(f's_lshr_b32 s42, s{TAU}, 1')
    a('s_mul_i32 s42, s42, 14')
    a(f's_mul_i32 s43, s{S_WAVE}, 7')
    a('s_lshr_b32 s43, s43, 1')
    a('s_add_u32 s42, s42, s43')
    a(f's_lshl_b32 s42, s42, {HS}')
    a(f's_lshl_b32 s43, s{PAR}, 3')
    a('s_add_u32 s42, s42, s43')
    a(f's_add_u32 s42, s42, {hex(WS_FL + FL_H)}')
    a(f's_add_u32 s{SFL}, s{P_WS}, s42')
    a(f's_addc_u32 s{SFL+1}, s{P_WS+1}, 0')
    a(f's_lshl_b32 s42, s{DT}, 5')
    a(f'v_add_u32 v{VT}, s42, v{V_LANE}')
    a(f'v_lshlrev_b32 v{VT}, {FS}, v{VT}')
    a(f'v_add_u32 v{VT}, {FL_A}, v{VT}')
    a(f's_lshr_b32 s42, s{TAU}, 2')
    a(f's_and_b32 s43, s{TAU}, 3')
    a('s_lshl_b32 s43, s43, 6')
    a('s_add_u32 s42, s42, s43')
    a(f'v_subrev_u32 v{t0}, 32, v{V_LANE}')
    a(f'v_lshlrev_b32 v{t0}, 3, v{t0}')
    a(f'v_add_u32 v{t0}, s42, v{t0}')
    a(f'v_lshlrev_b32 v{t0}, {FS}, v{t0}')
    a(f'v_add_u32 v{t0}, {FL_P0}, v{t0}')
    a(f'v_cmp_gt_u32 vcc, 32, v{V_LANE}')
    a(f'v_cndmask_b32 v{VT}, v{t0}, v{VT}, vcc')


def g2_dma_items(k):
    m, j, late = pos_mj(k)
    kind, off = SLOTS[k % 10]
    pre = [f's_add_u32 m0, s{W4 if kind == 4 else W2K}, {off}']
    if 'w2same' in ARGS: pre.append('s_mov_b32 s89, 0')
    else: pre.append(f's_lshl4_add_u32 s89, s{SP[m]}, s{WE[2*late+j]}')
    if 'w2small' in ARGS: pre.append('s_and_b32 s89, s89, 0x1ffff')
    return [pre + [f'buffer_load_dwordx4 v{GW[0]}, s[{SRDW2}:{SRDW2+3}], s89 offen lds'],
            [(f'buffer_load_dwordx4 v{GW[1]}, s[{SRDW2}:{SRDW2+3}], s89 offen offset:1024 lds', k)]]


def put_items(a, g, items):
    for it in items:
        if isinstance(it, tuple): g.tokW[it[1]] = a(it[0])
        else: a(it)


def g2_dma(a, g, k):
    for grp in g2_dma_items(k): put_items(a, g, grp)


def g2_wread_list(k, regs):
    kind, off = SLOTS[k % 10]
    l = []
    for dd in range(2):
        v_, o = (GA[dd], off) if kind == 4 else (GA2[dd], off - 49152)
        l.append(f'ds_read_b64_tr_b16 v[{regs[dd]}:{regs[dd]+1}], v{v_} offset:{o}')
        l.append(f'ds_read_b64_tr_b16 v[{regs[dd]+2}:{regs[dd]+3}], v{v_} offset:{o+1024}')
    return l


def g2_round1_reads(a, g):
    a.wait_vm_token(max(g.tokW[k] for k in range(R1)))
    for k in range(R1):
        for l in g2_wread_list(k, W2R[2*k:2*k+2]): a(l)


def h_schedule():
    free = list(HRING)
    regs, when = {}, {}
    nxt = 0
    for p in range(HD - 1):
        regs[p] = (free.pop(0), free.pop(0)); when[p] = -1; nxt += 1
    for k in range(28):
        if k >= 1:
            free += list(regs[k - 1])
            if RESERVED <= k - 1 < R1: free += W2R[2*(k-1):2*(k-1)+2]
        n = 0
        while nxt < 28 and len(free) >= 2 and n < 2:
            regs[nxt] = (free.pop(0), free.pop(0)); when[nxt] = k; nxt += 1; n += 1
    return regs, when


RESERVED = 4
HREGS, HWHEN = h_schedule()


SFL = 32
PSET = [6, 14]
SPINSET = 72
sc_slow = []
NREST = [0]


LVL = 101


def sc_issue(a, st):
    d = PSET[st]
    for i in range(4):
        a(f's_load_dwordx2 s[{d+2*i}:{d+2*i+1}], s[{SFL}:{SFL+1}], {(1 << HS)*i} glc')


def sc_eval(a, st):
    d = PSET[st]
    a(f's_min_u32 s42, s{d}, s{d+1}')
    for i in range(2, 8):
        a(f's_min_u32 s42, s42, s{d+i}')
    a(f's_max_u32 s{LVL}, s{LVL}, s42')


def sc_need(a, name, level):
    a(f's_cmp_ge_u32 s{LVL}, {level}')
    a(f's_cbranch_scc0 L_{name}_slow')
    a.label(f'L_{name}_back')
    sc_slow.append((name, level))


def sc_spin(a, name, level):
    a(f's_mov_b32 s45, {SPIN_LIMIT}')
    a.label(f'L_{name}_spin')
    a.lgq = []
    for i in range(4):
        a(f's_load_dwordx2 s[{SPINSET+2*i}:{SPINSET+2*i+1}], s[{SFL}:{SFL+1}], {(1 << HS)*i} glc')
    a(f's_min_u32 s42, s{SPINSET}, s{SPINSET+1}')
    for i in range(2, 8):
        a(f's_min_u32 s42, s42, s{SPINSET+i}')
    a(f's_max_u32 s{LVL}, s{LVL}, s42')
    a(f's_cmp_ge_u32 s{LVL}, {level}')
    a(f's_cbranch_scc1 L_{name}_done')
    a('s_sleep 2')
    a('s_sub_u32 s45, s45, 1')
    a('s_cmp_lg_u32 s45, 0')
    a(f's_cbranch_scc1 L_{name}_spin')
    a.label(f'L_{name}_done')


def emit_sc_slow(a):
    for name, level in sc_slow:
        a.label(f'L_{name}_slow')
        a.reset()
        a('s_waitcnt lgkmcnt(0)')
        sc_spin(a, name + 's', level)
        a(f's_branch L_{name}_back')
    sc_slow.clear()


def hload(k, tt):
    m, j, late = pos_mj(k)
    r = HREGS[k][tt]
    return f'buffer_load_dwordx4 v[{r}:{r+3}], v{GH[2*late+tt]}, s[{SRD3}:{SRD3+3}], s{SP[m]} offen offset:{1024*j} {SC}'


def h_prologue(a, opt=False):
    for k in range(HD - 1):
        for tt in range(2): a(hload(k, tt), opt=opt)


def g1_role(a, g):
    VX = [2, 3, 4, 5]
    VW = [6, 7, 8, 9]
    a(f's_and_b32 s{WF}, s{S_WAVE}, 1')
    a(f's_lshr_b32 s{WT}, s{S_WAVE}, 1')
    a(f'v_lshrrev_b32 v12, 3, v{V_LANE}')
    a(f'v_and_b32 v13, 7, v{V_LANE}')
    a('v_lshrrev_b32 v14, 1, v12')
    a('v_xor_b32 v14, v13, v14')
    a(f's_lshl_b32 s42, s{S_WAVE}, 4')
    a('v_add_u32 v15, s42, v12')
    a('v_lshlrev_b32 v15, 10, v15')
    a(f'v_lshl_add_u32 v{VX[0]}, v14, 4, v15')
    a('v_xor_b32 v14, 4, v14')
    a(f'v_lshl_add_u32 v{VX[1]}, v14, 4, v15')
    a(f'v_add_u32 v{VX[1]}, {8*1024-1024}, v{VX[1]}')
    a(f'v_lshrrev_b32 v12, 4, v{V_LANE}')
    a(f'v_and_b32 v13, 15, v{V_LANE}')
    a('v_lshrrev_b32 v14, 2, v13')
    a('v_xor_b32 v14, v14, v12')
    a('v_and_b32 v13, 3, v13')
    a('v_lshl_add_u32 v14, v14, 2, v13')
    a(f's_lshl_b32 s42, s{S_WAVE}, 3')
    a('v_add_u32 v15, s42, v12')
    a('v_mul_u32_u24 v15, 3584, v15')
    a(f'v_lshl_add_u32 v{VW[0]}, v14, 4, v15')
    a(f'v_add_u32 v{VW[1]}, {4*3584-1024}, v{VW[0]}')
    a(f's_lshl_b32 s84, s{S_WAVE}, 11')
    def ktab(c):
        if 'rot7' in ARGS:
            if c == 0:
                a('s_mov_b32 s42, 0')
            else:
                a(f's_add_u32 s42, s{ROT}, {c - 1}')
                a('s_cmp_ge_u32 s42, 7')
                a('s_cselect_b32 s43, 7, 0')
                a('s_sub_u32 s42, s42, s43')
                a('s_add_u32 s42, s42, 1')
        else:
            a(f's_add_u32 s42, s{ROT}, {c}')
            a('s_and_b32 s42, s42, 7')
        a(f's_lshl_b32 s{KX[c]}, s42, 7')
        a(f's_mul_i32 s{KW[c]}, s42, 229376')
    if 'prost' in ARGS: stamp(a, 3)
    a('s_waitcnt lgkmcnt(0)')
    a.lgq = []
    if 'prost' in ARGS: stamp(a, 4)
    ktab(0); ktab(1)
    a(f's_lshl_b32 s42, s{TB}, 17')
    srd(a, SRD1, P_X, 's42', 131072)
    a(f's_lshl_b32 s42, s{FB_}, 8')
    a(f's_sub_u32 s43, {512*3584}, s42')
    srd(a, SRD2, P_W1, 's42', 's43')
    tokW, tokX = {}, {}
    def dma_w_list(st):
        o = 2 * (st & 1)
        return [f's_add_u32 m0, s84, {G1_WS[st % 4]}',
                f'buffer_load_dwordx4 v{VW[o]}, s[{SRD2}:{SRD2+3}], s{KW[st >> 1]} offen lds',
                (f'buffer_load_dwordx4 v{VW[o+1]}, s[{SRD2}:{SRD2+3}], s{KW[st >> 1]} offen offset:1024 lds', ('w', st))]
    def dma_x_list(c, h):
        return [f's_add_u32 m0, s84, {G1_XS[c % 3] + 8192*h}',
                f'buffer_load_dwordx4 v{VX[2*h]}, s[{SRD1}:{SRD1+3}], s{KX[c]} offen lds',
                (f'buffer_load_dwordx4 v{VX[2*h+1]}, s[{SRD1}:{SRD1+3}], s{KX[c]} offen offset:1024 lds', ('x', (c, h)))]
    g.tokW = {}
    def w2_items(k):
        out = []
        for grp in g2_dma_items(k):
            for it in grp:
                out.append((it[0], ('g', it[1])) if isinstance(it, tuple) else it)
        return out
    def put(item):
        if isinstance(item, tuple):
            t = a(item[0])
            {'w': tokW, 'x': tokX, 'g': g.tokW}[item[1][0]][item[1][1]] = t
        elif callable(item):
            item()
        else:
            a(item)
    if 'prost' in ARGS: stamp(a, 5)
    for it in dma_w_list(0) + dma_x_list(0, 0): put(it)
    if 'prost' in ARGS: stamp(a, 6)
    a(f'v_add_u32 v{VX[2]}, 65536, v{VX[0]}')
    a(f'v_add_u32 v{VX[3]}, 65536, v{VX[1]}')
    a(f'v_add_u32 v{VW[2]}, {32*3584}, v{VW[0]}')
    a(f'v_add_u32 v{VW[3]}, {32*3584}, v{VW[1]}')
    for it in dma_x_list(0, 1) + dma_w_list(1) + dma_x_list(1, 0) + dma_x_list(1, 1) + dma_w_list(2): put(it)
    if 'g2st' not in ARGS and 'blkst' not in ARGS: stamp(a, 1)
    for c in range(2, 8): ktab(c)
    B1V = [26, 27]
    a(f's_lshl_b32 s42, s{FB_}, 7')
    a(f's_lshl_b32 s43, s{WF}, 6')
    a('s_add_u32 s42, s42, s43')
    a(f'v_and_b32 v21, 31, v{V_LANE}')
    a('v_add_u32 v22, s42, v21')
    a('v_lshlrev_b32 v22, 1, v22')
    a(f's_lshl_b32 s42, s{WT}, 6')
    a('v_add_u32 v23, s42, v22')
    a(f'global_load_ushort v{B1V[0]}, v23, s[{P_B1}:{P_B1+1}]')
    a('s_sub_u32 s42, 64, s42')
    a('v_add_u32 v23, s42, v22')
    a(f'global_load_ushort v{B1V[1]}, v23, s[{P_B1}:{P_B1+1}]')
    setup_flag_srds(a)
    srd(a, SRD0, P_WS, 0, 0x1000000)
    g2_setup(a)
    VA = [10, 11]; VB = [16, 17, 18, 19]
    a(f'v_lshrrev_b32 v12, 4, v{V_LANE}')
    a(f'v_and_b32 v13, 15, v{V_LANE}')
    a('v_lshrrev_b32 v14, 2, v13')
    a('v_and_b32 v13, 3, v13')
    a('v_lshrrev_b32 v15, 1, v12')
    a('v_and_b32 v12, 1, v12')
    a('v_lshl_add_u32 v15, v15, 3, v14')
    a('v_lshlrev_b32 v15, 8, v15')
    a('v_lshl_add_u32 v15, v12, 5, v15')
    a('v_lshl_add_u32 v15, v13, 3, v15')
    a(f'v_add_u32 v15, {G1_WS[0]}, v15')
    a(f's_lshl_b32 s42, s{WF}, 1')
    a(f's_add_u32 s42, s42, s{WT}')
    for l in range(2):
        if l: a('s_xor_b32 s42, s42, 1')
        a('v_xor_b32 v12, s42, v14')
        a(f'v_lshl_add_u32 v{VA[l]}, v12, 6, v15')
    a(f'v_and_b32 v12, 31, v{V_LANE}')
    a(f'v_lshrrev_b32 v13, 5, v{V_LANE}')
    a('v_lshrrev_b32 v14, 1, v12')
    a('v_and_b32 v14, 7, v14')
    a(f's_lshl_b32 s42, s{WT}, 6')
    a('v_add_u32 v12, s42, v12')
    a('v_lshlrev_b32 v12, 7, v12')
    for kk in range(4):
        a(f'v_add_u32 v15, {2*kk}, v13')
        a('v_xor_b32 v15, v15, v14')
        a(f'v_lshl_add_u32 v{VB[kk]}, v15, 4, v12')
    ONES, SACC = 248, 232
    for k in range(4):
        a(f'v_mov_b32 v{ONES+k}, 0x3f803f80')
    MS = [12, 14]
    a('v_mov_b32 v28, 0')
    a(f's_lshr_b32 s42, s{TB}, 1')
    a(f's_and_b32 s43, s{TB}, 1')
    a('s_lshl_b32 s43, s43, 7')
    a('s_add_u32 s42, s42, s43')
    a(f'v_lshlrev_b32 v29, 3, v{V_LANE}')
    a('v_add_u32 v29, s42, v29')
    a(f'v_lshlrev_b32 v29, {FS}, v29')
    a(f's_lshl_b32 s42, s{TB}, 7')
    a(f's_lshl_b32 s43, s{WT}, 6')
    a('s_add_u32 s42, s42, s43')
    a('v_add_u32 v30, s42, v21')
    a('v_lshlrev_b32 v30, 3, v30')
    a(f'v_add_u32 v30, {hex(WS_ST)}, v30')
    a(f's_lshl_b32 s{HOFF[0]}, s{WT}, 11')
    a(f's_sub_u32 s{HOFF[1]}, 2048, s{HOFF[0]}')
    a(f's_lshl_b32 s42, s{TB}, 2')
    a(f's_lshl_b32 s43, s{WT}, 1')
    a('s_add_u32 s42, s42, s43')
    a('s_mul_i32 s42, s42, 112')
    a(f's_lshl_b32 s43, s{FB_}, 3')
    a('s_add_u32 s42, s42, s43')
    a(f's_lshl_b32 s43, s{WF}, 2')
    a('s_add_u32 s42, s42, s43')
    a('s_lshl_b32 s42, s42, 10')
    a(f's_add_u32 s42, s42, {hex(WS_H)}')
    VH = [24, 25]
    a(f'v_lshlrev_b32 v24, 4, v{V_LANE}')
    a('v_add_u32 v24, s42, v24')
    a(f'v_add_u32 v25, {112*1024}, v24')
    a(f's_add_u32 s44, s{W2K}, 65536')
    a(f's_xor_b32 s45, s{S_WAVE}, 2')
    a('s_lshl_b32 s45, s45, 11')
    a('s_add_u32 s45, s45, 65536')
    a(f'v_lshrrev_b32 v31, 5, v{V_LANE}')
    a('v_lshlrev_b32 v31, 4, v31')
    a('v_add_u32 v22, s44, v31')
    a('v_add_u32 v23, s45, v31')
    a('v_lshlrev_b32 v21, 2, v21')
    a('v_add_u32 v21, s44, v21')
    st_ = {}
    def h_rdy_issue(): st_['r'] = poll_issue(a, 31, 28, SRDD, 1)
    def h_rdy_check(): check_or_spin(a, 'g1_rdy', st_['r'], 31, 28, SRDD, 1)
    def h_fl_issue(): st_['f'] = poll_issue(a, 31, 29, SRDF, 0xffff, FL_P0)
    def h_fl_check():
        check_or_spin(a, 'g1_fl', st_['f'], 31, 29, SRDF, 0xffff, FL_P0)
        for tt in range(2):
            a(f'buffer_load_dwordx2 v[{MS[tt]}:{MS[tt]+1}], v30, s[{SRD0}:{SRD0+3}], 0 offen offset:{256*tt} {SC}')
    def w2_touch():
        if 'notouch' in ARGS: return
        a(f's_lshl_b32 s42, s{JJ}, 6')
        a(f's_lshl_b32 s43, s{S_WAVE}, 4')
        a('s_add_u32 s42, s42, s43')
        a(f'v_lshrrev_b32 v140, 2, v{V_LANE}')
        a('v_add_u32 v140, s42, v140')
        a('v_lshlrev_b32 v140, 10, v140')
        a(f'v_and_b32 v141, 3, v{V_LANE}')
        a('v_lshl_add_u32 v140, v141, 7, v140')
        a(f's_and_b32 s42, s{XC}, 1')
        a('s_lshl_b32 s42, s42, 9')
        a('v_add_u32 v140, s42, v140')
        a(f'global_load_dword v141, v140, s[{P_W2}:{P_W2+1}]', discard=True)
        if 'touch1' not in ARGS:
            a(f'global_load_dword v141, v140, s[{P_W2}:{P_W2+1}] offset:64', discard=True)
    hk = {7: h_rdy_issue, 10: h_rdy_check, 11: h_fl_issue, TOUCH_ST: w2_touch, 14: h_fl_check}
    if 'earlyst' in ARGS: hk = {4: h_rdy_issue, 7: h_rdy_check, 8: h_fl_issue, 11: h_fl_check}
    ACC = 32
    FR = [96, 112]
    def reads(st, kap):
        base = FR[kap]
        lst = []
        for l in range(2):
            o = (st % 4) * 8192 + kap * 16 * 256
            lst.append(f'ds_read_b64_tr_b16 v[{base+4*l}:{base+4*l+1}], v{VA[l]} offset:{o}')
            lst.append(f'ds_read_b64_tr_b16 v[{base+4*l+2}:{base+4*l+3}], v{VA[l]} offset:{o+1024}')
        for tt in range(2):
            kk = 2 * (st & 1) + kap
            lst.append(f'ds_read_b128 v[{base+8+4*tt}:{base+11+4*tt}], v{VB[kk]} offset:{G1_XS[(st>>1) % 3] + 4096*tt}')
        return lst
    def mfmas(st, kap, rd, dm):
        base = FR[kap]
        first = (st == 0 and kap == 0)
        ms = []
        c = '0' if first else f'v[{SACC}:{SACC+15}]'
        ms.append(f'v_mfma_f32_32x32x16_bf16 v[{SACC}:{SACC+15}], v[{base}:{base+3}], v[{ONES}:{ONES+3}], {c}')
        for l in range(2):
            for tt in range(2):
                acc = ACC + 32 * l + 16 * tt
                c = '0' if first else f'v[{acc}:{acc+15}]'
                ms.append(f'v_mfma_f32_32x32x16_bf16 v[{acc}:{acc+15}], v[{base+4*l}:{base+4*l+3}], v[{base+8+4*tt}:{base+11+4*tt}], {c}')
        if len(dm) <= 3:
            gaps = [rd[0:2], dm[0:2] + rd[2:3], rd[3:5], dm[2:3] + rd[5:6], []]
        else:
            q = (len(dm) + 3) // 4
            gaps = [rd[0:2] + dm[0:q], rd[2:4] + dm[q:2*q], rd[4:6] + dm[2*q:3*q], dm[3*q:], []]
        for m, gp in zip(ms, gaps):
            a(m)
            for it in gp: put(it)
    for st in range(16):
        need = [tokW[st]] + [tokX[(st >> 1, h)] for h in range(2)]
        if st + 1 < 16:
            need += [tokW[st + 1]] + [tokX[((st + 1) >> 1, h)] for h in range(2)]
        a.wait_vm_token(max(need))
        a('s_barrier')
        if st in (0, 4, 8, 12) and 'g2st' not in ARGS and 'blkst' not in ARGS and ('prost' not in ARGS or st == 0): stamp(a, 2 + st // 4)
        if st in hk: hk[st]()
        if st == 0:
            for l in reads(0, 0): a(l)
        c = (st >> 1) + 2
        d0 = dma_w_list(st + 3) if st + 3 < 16 else []
        d1 = dma_x_list(c, st & 1) if c < 8 else []
        early = {12: ([], [0, 1]), 13: ([2], []), 14: ([3, 4], [5])}.get(st)
        if early:
            d0 = d0 + [x for k in early[0] for x in w2_items(k)]
            d1 = d1 + [x for k in early[1] for x in w2_items(k)]
        mfmas(st, 0, reads(st, 1), d0)
        mfmas(st, 1, reads(st + 1, 0) if st + 1 < 16 else [], d1)
    a('s_mov_b32 exec_lo, 1')
    a('s_mov_b32 exec_hi, 1')
    for i in range(4):
        a(f'ds_write_b128 v22, v[{SACC+4*i}:{SACC+4*i+3}] offset:{32*i}')
        a(f'ds_write_b128 v23, v[{SACC+4*i}:{SACC+4*i+3}] offset:{128+32*i}')
    a('s_mov_b64 exec, -1')
    a('s_waitcnt lgkmcnt(0)')
    a('s_barrier')
    if 'g2st' not in ARGS and 'blkst' not in ARGS and 'prost' not in ARGS: stamp(a, 6)
    if 'blkst' in ARGS: stamp(a, 10)
    if 'lat' in ARGS:
        a('s_waitcnt vmcnt(0)')
        stamp(a, 11)
        for k_ in range(10, 20):
            m_, j_, late_ = pos_mj(k_)
            a(f's_lshl4_add_u32 s89, s{SP[m_]}, s{WE[2*late_+j_]}')
            a(f'buffer_load_dwordx4 v[140:143], v{GW[0]}, s[{SRDW2}:{SRDW2+3}], s89 offen', discard=True)
            a(f'buffer_load_dwordx4 v[144:147], v{GW[1]}, s[{SRDW2}:{SRDW2+3}], s89 offen offset:1024', discard=True)
        a('s_waitcnt vmcnt(0)')
        stamp(a, 12)
        for k_ in range(20, 28):
            m_, j_, late_ = pos_mj(k_)
            a(f's_lshl4_add_u32 s89, s{SP[m_]}, s{WE[2*late_+j_]}')
            a(f'buffer_load_dwordx4 v[140:143], v{GW[0]}, s[{SRDW2}:{SRDW2+3}], s89 offen', discard=True)
            a(f'buffer_load_dwordx4 v[144:147], v{GW[1]}, s[{SRDW2}:{SRDW2+3}], s89 offen offset:1024', discard=True)
        a('s_waitcnt vmcnt(0)')
        stamp(a, 13)
        G.stamp_flush(a)
        a('s_endpgm')
    SR = [28, 29]
    for l in range(2):
        a(f'ds_read_b32 v{SR[l]}, v21 offset:{128*l}')
    AF, BF = [120, 124], [220, 224]
    SD = [13, 15]
    a('s_waitcnt lgkmcnt(0)')
    for k in (7, 8): g2_dma(a, g, k)
    a('s_mov_b32 s42, 0xffff0000')
    a(f'v_cmp_gt_u32 vcc, 32, v{V_LANE}')
    for tt in range(2):
        b = BF[tt]
        a(f'v_xor_b32 v30, 0x80000000, v{MS[tt]}')
        a(f'v_lshrrev_b32 v{b}, 16, v{SD[tt]}')
        a(f'v_and_or_b32 v{b}, v30, s42, v{b}')
        a(f'v_lshrrev_b32 v{b+1}, 16, v30')
        a(f'v_and_or_b32 v{b+1}, v30, s42, v{b+1}')
        a(f'v_cndmask_b32 v{b}, 0, v{b}, vcc')
        a(f'v_cndmask_b32 v{b+1}, 0, v{b+1}, vcc')
        a(f'v_mov_b32 v{b+2}, 0')
        a(f'v_mov_b32 v{b+3}, 0')
    for k in (9, 6): g2_dma(a, g, k)
    for l in range(2):
        f = AF[l]
        a(f'v_cvt_pk_bf16_f32 v{f}, v{SR[l]}, v{SR[l]}')
        a(f'v_lshlrev_b32 v{f}, 16, v{f}')
        a(f'v_sub_f32 v30, v{SR[l]}, v{f}')
        a(f'v_cvt_pk_bf16_f32 v31, v30, v30')
        a('v_lshlrev_b32 v31, 16, v31')
        a('v_sub_f32 v31, v30, v31')
        a(f'v_cvt_pk_bf16_f32 v{f+1}, v30, v31')
        a(f'v_or_b32 v{f}, v{f}, v{B1V[l]}')
        a(f'v_cndmask_b32 v{f}, 0, v{f}, vcc')
        a(f'v_cndmask_b32 v{f+1}, 0, v{f+1}, vcc')
        a(f'v_mov_b32 v{f+2}, 0')
        a(f'v_mov_b32 v{f+3}, 0')
    for l in range(2):
        for tt in range(2):
            acc = ACC + 32 * l + 16 * tt
            a(f'v_mfma_f32_32x32x16_bf16 v[{acc}:{acc+15}], v[{AF[l]}:{AF[l]+3}], v[{BF[tt]}:{BF[tt]+3}], v[{acc}:{acc+15}]')
    dq = []
    def queue_dma(ks):
        for k in ks: dq.extend(g2_dma_items(k))
    def drain_dma():
        while dq: put_items(a, g, dq.pop(0))
    cnt = [0]
    gap = [GAP]
    def e(text):
        r = a(text)
        cnt[0] += 1
        if cnt[0] % gap[0] == 0 and dq: put_items(a, g, dq.pop(0))
        return r
    AL, BE = [16, 17], [18, 19]
    for tt in range(2):
        e(f'v_rcp_f32 v22, v{SD[tt]}')
        e(f'v_mul_f32 v{AL[tt]}, {f32(-GELU_C)}, v22')
        e('v_mul_f32 v23, v22, v22')
        e(f'v_mul_f32 v23, v23, v{AL[tt]}')
        e(f'v_mul_f32 v{BE[tt]}, {f32(0.044715)}, v23')
    T = 96
    toks = {}
    def block(l, j, tt):
        acc = ACC + 32 * l + 16 * tt
        r0 = 8 * j
        E = range(8)
        for x in E: e(f'v_mul_f32 v{T+x}, v{acc+r0+x}, v{acc+r0+x}')
        for x in E: e(f'v_fma_f32 v{T+x}, v{T+x}, v{BE[tt]}, v{AL[tt]}')
        for x in E: e(f'v_mul_f32 v{T+x}, v{T+x}, v{acc+r0+x}')
        for x in E: e(f'v_exp_f32 v{T+x}, v{T+x}')
        for x in E: e(f'v_fma_f32 v{T+x}, v{T+x}, v{SD[tt]}, v{SD[tt]}')
        for x in E: e(f'v_rcp_f32 v{T+x}, v{T+x}')
        for x in E: e(f'v_mul_f32 v{T+x}, v{T+x}, v{acc+r0+x}')
        H = 104 + 4 * ((2 * j + tt) % 4)
        for x in range(4): e(f'v_cvt_pk_bf16_f32 v{H+x}, v{T+2*x}, v{T+2*x+1}')
        toks[(l, j, tt)] = a(f'buffer_store_dwordx4 v[{H}:{H+3}], v{VH[tt]}, s[{SRD0}:{SRD0+3}], s{HOFF[l]} offen offset:{j*1024} {HSC}')
    a(f's_mul_i32 s42, s{TB}, 14')
    a(f's_add_u32 s42, s42, s{FB_}')
    a(f's_lshl_b32 s42, s42, {HS}')
    a(f's_lshl_b32 s43, s{S_WAVE}, 2')
    a('s_add_u32 s42, s42, s43')
    a(f's_add_u32 s42, s42, {FL_H}')
    a('v_mov_b32 v26, s42')
    a('v_mov_b32 v27, 1')
    def publish(stage):
        a.wait_vm_token(toks[(stage >> 1, stage & 1, 1)])
        a(f'v_mov_b32 v27, {stage + 1}')
        a('s_mov_b64 exec, 1')
        a(f'buffer_store_dword v27, v26, s[{SRDF}:{SRDF+3}], 0 offen {SC}')
        a('s_mov_b64 exec, -1')
    a(f's_mov_b32 s{LVL}, 0')
    order = [(l, j, tt) for l in range(2) for j in range(2) for tt in range(2)]
    for n, (l, j, tt) in enumerate(order):
        block(l, j, tt)
        if 'blkst' in ARGS: stamp(a, 1 + n) if n < 7 else None
        if n == PUB0: publish(0)
        if n == R1_READ_AT:
            drain_dma()
            if 'g2st' not in ARGS and 'blkst' not in ARGS: stamp(a, 7)
            g2_round1_reads(a, g)
            a('s_waitcnt lgkmcnt(0)')
            if 'g2st' not in ARGS and 'blkst' not in ARGS: stamp(a, 10)
            queue_dma(range(R1, R1 + 10))
        if n == PUB0 + 2: publish(1)
        if n == 6: sc_issue(a, 0)
    stamp(a, 8)
    g.nrest = len(dq)
    NREST[0] = g.nrest
    dq.clear()
    publish(2)
    sc_eval(a, 0)
    a(f's_cmp_ge_u32 s{LVL}, 1')
    a('s_cbranch_scc0 L_g1_late')
    sv = a.save()
    sc_issue(a, 1)
    h_prologue(a)
    publish(3)
    stamp(a, 9)
    a('s_branch L_g2')
    G.stamp_restart(8)
    a.label('L_g1_late')
    a.restore(sv)
    publish(3)
    sc_spin(a, 'g1_h0', 1)
    sc_issue(a, 1)
    h_prologue(a)
    a('v_mov_b32 v23, 0')
    a('s_mov_b64 exec, 1')
    a(f'buffer_load_dword v22, v23, s[{SRDD}:{SRDD+3}], 0 offen', discard=True)
    a('s_mov_b64 exec, -1')
    stamp(a, 9)


def service_role(a, g):
    a(f's_cmp_eq_u32 s{JJ}, 28')
    a('s_cbranch_scc0 L_sv_done')
    a(f's_cmp_eq_u32 s{S_WAVE}, 3')
    a('s_cbranch_scc0 L_sv_done')
    if 'nopf' not in ARGS:
        a('s_getpc_b64 s[44:45]')
        a.label('L_pf_pc')
        a('s_sub_u32 s44, s44, L_pf_pc-CODE_BEGIN')
        a('s_subb_u32 s45, s45, 0')
        a(f'v_lshlrev_b32 v37, 4, v{V_LANE}')
        NPF = 38
        for k in range(NPF):
            a('v_min_u32 v36, CODE_END-CODE_BEGIN-16, v37')
            a('global_load_dwordx4 v[244:247], v36, s[44:45]', opt=True, discard=True)
            a('v_add_u32 v37, 1024, v37')
    a.label('L_sv_done')
    a.reset()
    a('s_waitcnt lgkmcnt(0)')
    setup_flag_srds(a)
    def chk():
        a('v_mov_b32 v33, 0')
        spin(a, 'sv_rdy', 34, 33, SRDD, 1, sleep=12)
    wave0_only(a, 'sv_rdyw', chk)
    a('s_barrier')
    if 'now2pf' not in ARGS:
        a(f's_lshl_b32 s42, s{S_IDX}, {FS}')
        a(f's_add_u32 s42, s42, {FL_P0}')
        a('v_mov_b32 v33, s42')
        if 'pfnogate' not in ARGS: spin(a, 'sv_p0', 34, 33, SRDF, 1)
        srd(a, SRD1, P_W2, 0, 1792 * 1024)
        a(f's_sub_u32 s42, s{JJ}, 28')
        a('s_lshl_b32 s42, s42, 2')
        a(f's_add_u32 s42, s42, s{S_WAVE}')
        a(f's_mul_i32 s42, s42, {112*1024}')
        if 'map48' in ARGS:
            a(f'v_lshlrev_b32 v2, 7, v{V_LANE}')
            a('s_mov_b32 s43, 14')
        else:
            a(f'v_lshrrev_b32 v2, 2, v{V_LANE}')
            a('v_lshlrev_b32 v2, 10, v2')
            a(f'v_and_b32 v3, 3, v{V_LANE}')
            a('v_lshl_add_u32 v2, v3, 7, v2')
            a(f's_and_b32 s43, s{XC}, 1')
            a('s_lshl_b32 s43, s43, 9')
            a('v_add_u32 v2, s43, v2')
            a('s_mov_b32 s43, 7')
        a.label('L_w2pf')
        a(f'buffer_load_dword v40, v2, s[{SRD1}:{SRD1+3}], s42 offen', opt=True, discard=True)
        if 'pf64' in ARGS: a(f'buffer_load_dword v41, v2, s[{SRD1}:{SRD1+3}], s42 offen offset:64', opt=True, discard=True)
        a(f's_add_u32 s42, s42, {8192 if "map48" in ARGS else 16384}')
        a(f's_waitcnt vmcnt({PFDEPTH})')
        a('s_sub_u32 s43, s43, 1')
        a('s_cmp_lg_u32 s43, 0')
        a('s_cbranch_scc1 L_w2pf')
        a.reset()
    g2_setup(a)
    g.tokW = {}
    for k in range(R1):
        g2_dma(a, g, k)
    srd(a, SRD0, P_WS, 0, 0x1000000)
    g2_round1_reads(a, g)
    a('s_waitcnt lgkmcnt(0)')
    items = [grp for k in range(R1, R1 + 10) for grp in g2_dma_items(k)]
    for grp in items[:20 - NREST[0]]: put_items(a, g, grp)
    a(f's_mov_b32 s{LVL}, 0')
    sc_spin(a, 'sv_h0', 1)
    sc_issue(a, 1)
    h_prologue(a)
    a('v_mov_b32 v21, 0')
    a('s_mov_b64 exec, 1')
    a(f'buffer_load_dword v22, v21, s[{SRDD}:{SRDD+3}], 0 offen', discard=True)
    a('s_mov_b64 exec, -1')


def g2_main(a, g):
    for k in range(HD - 1):
        for tt in range(2):
            r = HREGS[k][tt]
            a.vseq += 1
            a.vmq.append((a.vseq, {('v', r + i) for i in range(4)}, False))
    a.vseq += 1
    a.vmq.append((a.vseq, set(), False))
    a.lseq += 1
    a.lgq.append((a.lseq, {('s', PSET[1] + i) for i in range(8)}, 'smem'))
    rest = [grp for k in range(R1, R1 + 10) for grp in g2_dma_items(k)][20 - NREST[0]:]
    for k in range(R1, R1 + 10): g.tokW[k] = 0
    def wregs(k):
        return W2R[2*k:2*k+2] if k < R1 else [G2FA[k & 1], G2FA[k & 1] + 4]
    st_ = {}
    VPS = {1: 21, 2: 22, 3: 23}
    AV = [138 + r for r in range(16)]
    GV, B2 = 154, 156
    VTOK, VHI = 16, 17
    def tail_loads():
        check_or_spin(a, 'g2_t', st_['t'], VP, VT, SRDF, TAILMASK)
        a(f'v_and_b32 v{VTOK}, 31, v{V_LANE}')
        a(f'v_lshrrev_b32 v{VHI}, 5, v{V_LANE}')
        a(f's_lshl_b32 s42, s{TAU}, 6')
        a(f's_lshl_b32 s43, s{WT}, 5')
        a('s_add_u32 s42, s42, s43')
        a(f'v_add_u32 v{VTOK}, s42, v{VTOK}')
        a(f'v_lshlrev_b32 v18, 2, v{VTOK}')
        a(f'v_add_u32 v18, {hex(WS_G)}, v18')
        a(f'buffer_load_dword v{GV}, v18, s[{SRD0}:{SRD0+3}], 0 offen {SC}')
        a(f's_lshl_b32 s42, s{DT}, 6')
        a(f's_lshl_b32 s43, s{WF}, 5')
        a('s_add_u32 s85, s42, s43')
        a(f'v_lshlrev_b32 v18, 2, v{VHI}')
        a('v_add_u32 v18, s85, v18')
        a('v_lshlrev_b32 v19, 1, v18')
        for i in range(4):
            a(f'global_load_dwordx2 v[{B2+2*i}:{B2+2*i+1}], v19, s[{P_B2}:{P_B2+1}] offset:{16*i}')
        a('v_lshlrev_b32 v18, 12, v18')
        a(f'v_lshl_add_u32 v18, v{VTOK}, 1, v18')
    aq = [(i, r) for i in range(4) for r in range(4)]
    for k in range(28):
        rd = []
        if R1 <= k + 1 < 28:
            a.wait_vm_token(g.tokW[k + 1])
            rd = g2_wread_list(k + 1, wregs(k + 1))
        if 'g2st' in ARGS:
            if k in (1, 2, 3, 5, 7, 8, 10, 11, 14, 20): stamp(a, {1: 1, 2: 2, 3: 3, 5: 4, 7: 5, 8: 6, 10: 7, 11: 10, 14: 11, 20: 12}[k])
        elif k in (1, 9, 14, 20): stamp(a, {1: 11, 9: 12, 14: 13, 20: 14}[k])
        f = wregs(k)
        newp = [p for p in range(28) if HWHEN[p] == k]
        if k == HWHEN[7]:
            sc_eval(a, 1)
            sc_need(a, 'g2_h1', 2)
            sc_issue(a, 0)
        if k == HWHEN[14]: sc_need(a, 'g2_h2', 3)
        if k == HWHEN[21]:
            sc_eval(a, 0)
            sc_need(a, 'g2_h3', 4)
        if k == TAILK - 4: st_['t'] = poll_issue(a, VP, VT, SRDF, TAILMASK)
        if k == TAILK: tail_loads()
        hq = [hload(p, tt) for p in newp for tt in range(2)]
        n = 0
        for tt in range(2):
            r = HREGS[k][tt]
            for dd in range(2):
                acc = G2ACC[dd + 2 * tt]
                c = '0' if k == 0 else f'v[{acc}:{acc+15}]'
                a(f'v_mfma_f32_32x32x16_bf16 v[{acc}:{acc+15}], v[{f[dd]}:{f[dd]+3}], v[{r}:{r+3}], {c}')
                if hq: a(hq.pop(0))
                if n in (0, 1):
                    for l in rd[2*n:2*n+2]: a(l)
                if rest and (n in (1, 3) or len(rest) > 2 * (R1 - 2 - k)): put_items(a, g, rest.pop(0))
                if n == 3 and k >= R1 + 1 and k - 1 + 10 < 28: g2_dma(a, g, k - 1 + 10)
                if k >= TAILK + 1 and aq:
                    i, rr = aq.pop(0)
                    a(f's_mov_b32 s86, {hex(WS_AT + (8*i+rr)*4096)}')
                    a(f'buffer_load_ushort v{AV[4*i+rr]}, v18, s[{SRD0}:{SRD0+3}], s86 offen {SC}')
                n += 1
        assert not hq
    while aq:
        i, rr = aq.pop(0)
        a(f's_mov_b32 s86, {hex(WS_AT + (8*i+rr)*4096)}')
        a(f'buffer_load_ushort v{AV[4*i+rr]}, v18, s[{SRD0}:{SRD0+3}], s86 offen {SC}')
    a(f'v_lshlrev_b32 v14, 4, v{V_LANE}')
    a(f'v_add_u32 v15, s{W4}, v14')
    XR = [32768, 0, 16384]
    for x in range(1, 4):
        for i in range(4):
            a(f'ds_write_b128 v15, v[{G2ACC[x]+4*i}:{G2ACC[x]+4*i+3}] offset:{XR[x-1]+1024*i}')
    a(f'v_sub_f32 v20, 1.0, v{GV}')
    bf16_round(a, 20, 20)
    for i in range(4):
        for h in range(2):
            a(f'v_lshlrev_b32 v{96+2*h}, 16, v{B2+2*i+h}')
            a(f'v_and_b32 v{97+2*h}, 0xffff0000, v{B2+2*i+h}')
        for r in range(4):
            a(f'v_lshlrev_b32 v{AV[4*i+r]}, 16, v{AV[4*i+r]}')
        for r in range(4):
            a(f'v_mul_f32 v{AV[4*i+r]}, v{AV[4*i+r]}, v{GV}')
        for r in range(4):
            a(f'v_fmac_f32 v{AV[4*i+r]}, v{96+r}, v20')
    a('s_waitcnt lgkmcnt(0)')
    a('s_barrier')
    PR = 170
    for x in range(1, 4):
        a(f's_xor_b32 s42, s{S_WAVE}, {x}')
        a('s_lshl_b32 s42, s42, 12')
        a('v_add_u32 v15, s42, v14')
        for i in range(4):
            a(f'ds_read_b128 v[{PR+16*(x-1)+4*i}:{PR+16*(x-1)+4*i+3}], v15 offset:{XR[x-1]+1024*i}')
    a(f'v_lshlrev_b32 v{VTOK}, 10, v{VTOK}')
    a('s_lshl_b32 s42, s85, 1')
    a(f'v_add_u32 v{VTOK}, s42, v{VTOK}')
    a(f'v_lshl_add_u32 v{VTOK}, v{VHI}, 4, v{VTOK}')
    srd(a, SRD1, P_OUT, 0, 2048 * 1024)
    ACC = G2ACC[0]
    for x in range(3):
        for r in range(16):
            a(f'v_add_f32 v{ACC+r}, v{ACC+r}, v{PR+16*x+r}')
    O = 96
    for r in range(16):
        a(f'v_fmac_f32 v{AV[r]}, v{ACC+r}, v20')
    for i in range(4):
        a(f'v_cvt_pk_bf16_f32 v{O+2*i}, v{AV[4*i]}, v{AV[4*i+1]}')
        a(f'v_cvt_pk_bf16_f32 v{O+2*i+1}, v{AV[4*i+2]}, v{AV[4*i+3]}')
    for p in range(2):
        a(f'v_permlane32_swap_b32 v{O+4*p}, v{O+4*p+2}')
        a(f'v_permlane32_swap_b32 v{O+4*p+1}, v{O+4*p+3}')
        a(f'buffer_store_dwordx4 v[{O+4*p}:{O+4*p+3}], v{VTOK}, s[{SRD1}:{SRD1+3}], 0 offen offset:{32*p}')
    stamp(a, 15)
    if G.STAMP:
        a('s_waitcnt vmcnt(0)')
    G.stamp_flush(a)


def gemm_role(a):
    g = G2State()
    a(f's_sub_u32 s{S_IDX}, s2, 256')
    a('s_setprio 2')
    a(f's_and_b32 s{XC}, s{S_IDX}, 7')
    a(f's_lshr_b32 s{JJ}, s{S_IDX}, 3')
    a(f's_cmp_ge_u32 s{JJ}, 28')
    a('s_cbranch_scc1 L_service')
    a(f's_mul_i32 s42, s{JJ}, 37')
    a('s_lshr_b32 s42, s42, 8')
    a('s_mul_i32 s43, s42, 7')
    a(f's_sub_u32 s43, s{JJ}, s43')
    a(f's_lshr_b32 s44, s{XC}, 1')
    a('s_lshl_b32 s44, s44, 2')
    a(f's_add_u32 s{TB}, s44, s42')
    a(f's_and_b32 s44, s{XC}, 1')
    a('s_mul_i32 s44, s44, 7')
    a(f's_add_u32 s{FB_}, s44, s43')
    a('s_lshl_b32 s42, s42, 1')
    a('s_add_u32 s42, s42, s43')
    if 'rot7' in ARGS:
        a('s_cmp_ge_u32 s42, 7')
        a('s_cselect_b32 s43, 7, 0')
        a(f's_sub_u32 s{ROT}, s42, s43')
    else:
        a(f's_and_b32 s{ROT}, s42, 7')
    if 'norot' in ARGS: a(f's_mov_b32 s{ROT}, 0')
    g1_role(a, g)
    a('s_branch L_g2')
    a.label('L_service')
    a.reset()
    last_g1 = G._last[0]
    G.stamp_restart(0)
    service_role(a, G2State())
    stamp(a, 9)
    a.label('L_g2')
    a.reset()
    G.stamp_restart(9)
    g.tokW = {}
    g2_main(a, g)


def build():
    a = Asm()
    name = NAME + '_kernel'
    a.raw(HEADER.rstrip())
    a.raw(f'; @launch grid=(512,1,1) block=(256,1,1) lds={LDS_BYTES}')
    a.raw('.amdgcn_target "amdgcn-amd-amdhsa--gfx950"')
    a.raw('.text')
    a.raw(f'.globl {name}')
    a.raw('.p2align 8')
    a.raw(f'.type {name},@function')
    a.label(name)
    a.label('CODE_BEGIN')
    a.reset()
    a('s_cmp_ge_u32 s2, 512')
    a(f's_cbranch_scc1 L_exit')
    a('s_load_dwordx16 s[4:19], s[0:1], 0')
    a('s_load_dwordx16 s[20:35], s[0:1], 64')
    a('s_load_dwordx4 s[36:39], s[0:1], 128')
    a(f'v_lshrrev_b32 v2, 6, v{V_TID}')
    a(f'v_and_b32 v{V_LANE}, 63, v{V_TID}')
    a(f'v_readfirstlane_b32 s{S_WAVE}, v2')
    a('s_cmp_lt_u32 s2, 256')
    a('s_cbranch_scc1 L_ssm')
    a(f's_cmp_eq_u32 s2, {ZWG}')
    a('s_cbranch_scc0 L_gemm')
    a('s_setprio 3')
    if 'zst' in ARGS: a.raw('    s_memrealtime s[72:73]')
    a(f'v_lshlrev_b32 v2, 4, v{V_TID}')
    for k in range(4):
        a(f'v_mov_b32 v{4+k}, 0')
    a('s_waitcnt lgkmcnt(0)')
    a.lgq = []
    if 'zst' in ARGS: a.raw('    s_memrealtime s[74:75]')
    srd(a, SRDF, P_WS, WS_FL, FL_BYTES)
    for k in range(FL_BYTES // 4096):
        a(f'buffer_store_dwordx4 v[4:7], v2, s[{SRDF}:{SRDF+3}], 0 offen {SC}')
        if k + 1 < FL_BYTES // 4096: a('v_add_u32 v2, 4096, v2')
    srd(a, SRDD, P_DBG, 0, 256)
    a('v_mov_b32 v2, 0')
    a('v_mov_b32 v3, 1')
    if 'zst' in ARGS: a.raw('    s_memrealtime s[76:77]')
    a('s_waitcnt vmcnt(0)')
    if 'zst' in ARGS: a.raw('    s_memrealtime s[78:79]')
    a('s_barrier')
    a(f's_cmp_eq_u32 s{S_WAVE}, 0')
    a('s_cbranch_scc0 L_gemm')
    a('s_mov_b64 exec, 1')
    a(f'buffer_store_dword v3, v2, s[{SRDD}:{SRDD+3}], 0 offen {SC}', opt=True)
    if 'zst' in ARGS:
        a('s_waitcnt vmcnt(0)')
        a.raw('    s_memrealtime s[80:81]')
        a('s_waitcnt lgkmcnt(0)')
        for q, sr in enumerate((72, 74, 76, 78, 80)):
            a(f'v_mov_b32 v8, s{sr}')
            a(f'v_mov_b32 v9, {4 + 4*q}')
            a(f'buffer_store_dword v8, v9, s[{SRDD}:{SRDD+3}], 0 offen')
    a('s_mov_b64 exec, -1')
    a.label('L_gemm')
    a.reset()
    stamp(a, 0)
    gemm_role(a)
    a.label('L_exit')
    a('s_endpgm')
    emit_slow_blocks(a)
    emit_sc_slow(a)
    a.label('L_ssm')
    a.reset()
    G.stamp_restart(None)
    a('s_waitcnt lgkmcnt(0)')
    ssm_role(a)
    a('s_endpgm')
    emit_slow_blocks(a)
    a.raw(table())
    a.raw('CODE_END:')
    a.raw('.section .rodata,"a"')
    a.raw('.p2align 6')
    a.raw(kd(name).strip('\n'))
    return a.text()


if __name__ == '__main__':
    out = [x for x in sys.argv[1:] if x.endswith('.s')]
    out = out[0] if out else 'cdna_kernels/' + NAME + '.s'
    txt = build()
    open(out, 'w').write(txt)
    print('wrote', out, len(txt), 'bytes')
```

```python
import math, struct, sys
from asmlib import Asm
import gen as G
from gen import *

SC = 'sc1'
SRDF, SRDD = SRD4, SRD5
SPIN_LIMIT = 20000
FS = 5
FL_P0, FL_A, FL_H = 0x0, 0x2000, 0x4000
HS = 6
FL_BYTES = 0x8000
ARGS = set(sys.argv[1:])
slow_blocks = []


def setup_flag_srds(a):
    srd(a, SRDF, P_WS, WS_FL, FL_BYTES)
    srd(a, SRDD, P_DBG, 0, 256)


def set_exec(a, mask):
    if isinstance(mask, str):
        a(f's_mov_b64 exec, {mask}')
    elif mask < (1 << 31):
        a(f's_mov_b64 exec, {hex(mask)}')
    else:
        a(f's_mov_b32 exec_lo, {hex(mask & 0xffffffff)}')
        a(f's_mov_b32 exec_hi, {hex(mask >> 32)}')


def poll_issue(a, vd, vaddr, srd_, mask, off=0):
    set_exec(a, mask)
    tok = a(f'buffer_load_dword v{vd}, v{vaddr}, s[{srd_}:{srd_+3}], 0 offen offset:{off} {SC}')
    a('s_mov_b64 exec, -1')
    return tok


def cmp_mask(a, vd, mask):
    set_exec(a, mask)
    a(f'v_cmp_eq_u32 vcc, 1, v{vd}')
    a('s_mov_b64 s[46:47], exec')
    a('s_mov_b64 exec, -1')
    a('s_cmp_eq_u64 vcc, s[46:47]')


def spin(a, name, vd, vaddr, srd_, mask, off=0, sleep=2):
    a(f's_mov_b32 s45, {SPIN_LIMIT}')
    a.label(f'L_{name}_spin')
    set_exec(a, mask)
    a(f'buffer_load_dword v{vd}, v{vaddr}, s[{srd_}:{srd_+3}], 0 offen offset:{off} {SC}', opt=True)
    a('s_waitcnt vmcnt(0)')
    a(f'v_cmp_eq_u32 vcc, 1, v{vd}')
    a('s_mov_b64 s[46:47], exec')
    a('s_mov_b64 exec, -1')
    a('s_cmp_eq_u64 vcc, s[46:47]')
    a(f's_cbranch_scc1 L_{name}_done')
    a(f's_sleep {sleep}')
    a('s_sub_u32 s45, s45, 1')
    a('s_cmp_lg_u32 s45, 0')
    a(f's_cbranch_scc1 L_{name}_spin')
    a.label(f'L_{name}_done')


def check_or_spin(a, name, tok, vd, vaddr, srd_, mask, off=0):
    a.wait_vm_token(tok)
    cmp_mask(a, vd, mask)
    a(f's_cbranch_scc0 L_{name}_slow')
    a.label(f'L_{name}_back')
    slow_blocks.append((name, vd, vaddr, srd_, mask, off))


def emit_slow_blocks(a):
    for (name, vd, vaddr, srd_, mask, off) in slow_blocks:
        a.label(f'L_{name}_slow')
        a.reset()
        spin(a, name + 's', vd, vaddr, srd_, mask, off)
        a(f's_branch L_{name}_back')
    slow_blocks.clear()


def flag_store(a, vtmp, soff_expr_reg, extra=0, val=1):
    a(f'v_mov_b32 v{vtmp}, s{soff_expr_reg}')
    a(f'v_mov_b32 v{vtmp+1}, {val}')
    a('s_mov_b64 exec, 1')
    a(f'buffer_store_dword v{vtmp+1}, v{vtmp}, s[{SRDF}:{SRDF+3}], 0 offen offset:{extra} {SC}', opt=True)
    a('s_mov_b64 exec, -1')


def wave0_only(a, name, fn):
    a(f's_cmp_eq_u32 s{S_WAVE}, 0')
    a(f's_cbranch_scc0 L_{name}_skip')
    st = a.save()
    fn()
    a.label(f'L_{name}_skip')
    a.hist = []
    a.vmq = st[1]; a.lgq = st[2]


def red32(a, r, t):
    red8(a, r)
    a(f'v_add_f32_dpp v{r}, v{r}, v{r} row_mirror row_mask:0xf bank_mask:0xf')
    a(f'v_mov_b32 v{t}, v{r}')
    a(f'v_permlane16_swap_b32 v{r}, v{t}')
    a(f'v_add_f32 v{r}, v{r}, v{t}')


def p0_loads(a):
    X, J, T0, TT, DT = 72, 73, 74, 75, 76
    a(f's_and_b32 s{X}, s{S_IDX}, 7')
    a(f's_lshr_b32 s{J}, s{S_IDX}, 3')
    a(f's_lshl_b32 s{T0}, s{X}, 8')
    a(f's_lshl_b32 s42, s{J}, 3')
    a(f's_add_u32 s{T0}, s{T0}, s42')
    a(f's_lshl_b32 s{TT}, s{X}, 2')
    a(f's_lshr_b32 s42, s{J}, 3')
    a(f's_add_u32 s{TT}, s{TT}, s42')
    a(f's_and_b32 s{DT}, s{J}, 7')
    a(f'v_lshrrev_b32 v184, 3, v{V_LANE}')
    a(f'v_and_b32 v185, 7, v{V_LANE}')
    a(f's_lshl_b32 s42, s{TT}, 6')
    a(f's_lshl_b32 s43, s{S_WAVE}, 4')
    a('s_add_u32 s42, s42, s43')
    a('v_add_u32 v4, s42, v184')
    a('v_lshlrev_b32 v4, 10, v4')
    a('v_lshl_add_u32 v4, v185, 4, v4')
    a(f's_lshl_b32 s42, s{DT}, 7')
    a('v_add_u32 v4, s42, v4')
    a(f'global_load_dwordx4 v[160:163], v4, s[{P_U}:{P_U+1}]')
    a('v_add_u32 v4, 0x2000, v4')
    a(f'global_load_dwordx4 v[164:167], v4, s[{P_U}:{P_U+1}]')
    a(f'v_lshrrev_b32 v5, 5, v{V_LANE}')
    a(f'v_and_b32 v6, 31, v{V_LANE}')
    a(f's_lshl_b32 s42, s{S_WAVE}, 1')
    a(f's_add_u32 s42, s42, s{T0}')
    a('v_add_u32 v186, s42, v5')
    a('v_lshlrev_b32 v8, 10, v186')
    a('v_lshlrev_b32 v9, 5, v6')
    a('v_add_u32 v8, v8, v9')
    for k in range(2):
        a(f'global_load_dwordx4 v[{168+4*k}:{171+4*k}], v8, s[{P_U}:{P_U+1}] offset:{16*k}')
    for k in range(2):
        a(f'global_load_dwordx4 v[{176+4*k}:{179+4*k}], v9, s[{P_GW}:{P_GW+1}] offset:{16*k}')


def p0_compute(a):
    X, J, T0, TT, DT = 72, 73, 74, 75, 76
    srd(a, SRD0, P_WS, 0, 0x1000000)
    a(f's_lshl_b32 s42, s{S_WAVE}, 4')
    a('v_add_u32 v10, s42, v184')
    a('v_mul_u32_u24 v10, 144, v10')
    a('v_lshl_add_u32 v10, v185, 4, v10')
    a(f'v_add_u32 v10, {L_KT}, v10')
    a('ds_write_b128 v10, v[160:163]')
    a(f'ds_write_b128 v10, v[164:167] offset:{8*144}')
    if 'ssmst' in ARGS: stamp(a, 11)
    a('s_mov_b32 s46, 0x3f803f80')
    for k in range(4):
        a(f'v_mov_b32 v{12+k}, 0')
    for d in range(8):
        a(f'v_dot2_f32_bf16 v{12+d%2}, v{168+d}, s46, v{12+d%2}')
        a(f'v_dot2_f32_bf16 v{14+d%2}, v{168+d}, v{176+d}, v{14+d%2}')
    a('v_add_f32 v12, v12, v13')
    a('v_add_f32 v14, v14, v15')
    red32(a, 12, 16)
    red32(a, 14, 17)
    a(f'v_mul_f32 v12, {f32(1/512)}, v12')
    for k in range(4):
        a(f'v_mov_b32 v{20+k}, 0')
    for d in range(0, 8, 2):
        for e in range(2):
            a(f'v_lshlrev_b32 v{24+2*e}, 16, v{168+d+e}')
            a(f'v_and_b32 v{25+2*e}, 0xffff0000, v{168+d+e}')
        for e in range(4):
            a(f'v_sub_f32 v{24+e}, v{24+e}, v12')
        for e in range(4):
            a(f'v_fmac_f32 v{20+e}, v{24+e}, v{24+e}')
    a('v_add_f32 v20, v20, v21')
    a('v_add_f32 v22, v22, v23')
    a('v_add_f32 v20, v20, v22')
    red32(a, 20, 16)
    bf16_round(a, 14, 14)
    a(f'v_mul_f32 v14, {f32(-LOG2E)}, v14')
    a('v_exp_f32 v14, v14')
    a(f'v_mul_f32 v20, {f32(1/512)}, v20')
    a('v_add_f32 v14, 1.0, v14')
    a('v_rcp_f32 v14, v14')
    bf16_round(a, 20, 20)
    a(f'v_add_f32 v20, {f32(1e-5)}, v20')
    bf16_round(a, 14, 14)
    bf16_round(a, 20, 20)
    a('v_sqrt_f32 v20, v20')
    bf16_round(a, 12, 12)
    bf16_round(a, 13, 20)
    a('v_lshlrev_b32 v8, 2, v186')
    a(f'v_add_u32 v8, {hex(WS_G)}, v8')
    a('v_lshlrev_b32 v9, 3, v186')
    a(f'v_add_u32 v9, {hex(WS_ST)}, v9')
    a('s_mov_b32 exec_lo, 1')
    a('s_mov_b32 exec_hi, 1')
    a(f'buffer_store_dword v14, v8, s[{SRD0}:{SRD0+3}], 0 offen {SC}')
    a(f'buffer_store_dwordx2 v[12:13], v9, s[{SRD0}:{SRD0+3}], 0 offen {SC}')
    a('s_mov_b64 exec, -1')
    if 'ssmst' in ARGS: stamp(a, 12)
    a('s_waitcnt lgkmcnt(0)')
    a('s_barrier')
    if 'ssmst' in ARGS: stamp(a, 13)
    a(f'v_and_b32 v2, 15, v{V_LANE}')
    a(f'v_lshrrev_b32 v3, 4, v{V_LANE}')
    a('v_lshrrev_b32 v4, 2, v2')
    a('v_lshl_add_u32 v4, v3, 3, v4')
    a('v_mul_u32_u24 v4, 144, v4')
    a('v_and_b32 v5, 3, v2')
    a('v_lshl_add_u32 v4, v5, 3, v4')
    a(f's_lshl_b32 s42, s{S_WAVE}, 5')
    a(f's_add_u32 s42, s42, {L_KT}')
    a('v_add_u32 v4, s42, v4')
    for th in range(2):
        a(f'ds_read_b64_tr_b16 v[{64+4*th}:{65+4*th}], v4 offset:{th*32*144}')
        a(f'ds_read_b64_tr_b16 v[{66+4*th}:{67+4*th}], v4 offset:{th*32*144+4*144}')
    a(f's_lshl_b32 s42, s{DT}, 6')
    a(f's_lshl_b32 s43, s{S_WAVE}, 4')
    a('s_add_u32 s42, s42, s43')
    a('v_add_u32 v5, s42, v2')
    a('v_lshlrev_b32 v5, 12, v5')
    a('v_lshl_add_u32 v5, v3, 4, v5')
    a(f's_lshl_b32 s42, s{TT}, 7')
    a('v_add_u32 v5, s42, v5')
    for th in range(2):
        a(f'buffer_store_dwordx4 v[{64+4*th}:{67+4*th}], v5, s[{SRD0}:{SRD0+3}], 0 offen offset:{WS_UT+64*th} {SC}')


def ucopy_loads(a, opt):
    MH, D = 80, 81
    E = [160, 168, 176]
    for q2, vo in ((0, 30), (1, 31), (2, 32)):
        a(f'buffer_load_dwordx4 v[{E[q2]}:{E[q2]+3}], v{vo}, s[{SRD1}:{SRD1+3}], 0 offen {SC}', opt=opt)
        a(f'buffer_load_dwordx2 v[{E[q2]+4}:{E[q2]+5}], v{vo}, s[{SRD1}:{SRD1+3}], 0 offen offset:16 {SC}', opt=opt)


def ucopy_addr(a):
    MH, D = 80, 81
    a(f's_lshl_b32 s42, s{D}, 12')
    srd(a, SRD1, P_WS, 's42', 4096)
    a(f's_lshl_b32 s42, s{MH}, 11')
    a(f'v_lshlrev_b32 v29, 4, v{V_LANE}')
    a('v_add_u32 v29, s42, v29')
    a('v_subrev_u32 v30, 32, v29')
    a('v_add_u32 v31, 1024, v30')
    a('v_add_u32 v32, 2048, v30')


def ucopy_writes(a):
    C, MH = 79, 80
    E = [160, 168, 176]
    a(f's_mul_i32 s42, s{C}, {UC_CH}')
    a(f's_add_u32 s42, s42, {L_UC}')
    a('v_add_u32 v2, s42, v29')
    for q2 in range(3):
        e = E[q2]
        if q2 == 2:
            a(f's_cmp_eq_u32 s{MH}, 1')
            a('s_cselect_b64 exec, 3, 0')
        T = 184 + 12 * (q2 & 1)
        for k in range(4):
            a(f'v_alignbit_b32 v{T+k}, v{e+k+1}, v{e+k}, 16')
        for k in range(4):
            a(f'v_mov_b32 v{T+4+k}, v{e+k+1}')
        for k in range(4):
            a(f'v_alignbit_b32 v{T+8+k}, v{e+k+2}, v{e+k+1}, 16')
        off = 1024 * q2
        a(f'ds_write_b128 v2, v[{e}:{e+3}] offset:{off}')
        a(f'ds_write_b128 v2, v[{T}:{T+3}] offset:{off+UC_COPY}')
        a(f'ds_write_b128 v2, v[{T+4}:{T+7}] offset:{off+2*UC_COPY}')
        a(f'ds_write_b128 v2, v[{T+8}:{T+11}] offset:{off+3*UC_COPY}')
    a('s_mov_b64 exec, -1')


def ssm_role(a):
    X, J, T0, TT, DT = 72, 73, 74, 75, 76
    a(f's_mov_b32 s{S_IDX}, s2')
    stamp(a, 0)
    if 'kfirst' not in ARGS and 'noprio' not in ARGS: a('s_setprio 3')
    p0_loads(a)
    emit_ssm_loads(a)
    if 'hiprio' not in ARGS: a('s_setprio 0')
    if 'ssmst' in ARGS: stamp(a, 10)
    setup_flag_srds(a)
    st_ = {}
    def rdy_issue():
        pass
    def publish_p0():
        a('s_waitcnt vmcnt(0)')
        def chk():
            a('v_mov_b32 v33, 0')
            spin(a, 'ssm_rdy', 34, 33, SRDD, 1, sleep=3)
        wave0_only(a, 'ssm_rdyw', chk)
        a('s_barrier')
        def f():
            a(f's_lshl_b32 s42, s{S_IDX}, {FS}')
            a(f's_add_u32 s42, s42, {FL_P0}')
            flag_store(a, 35, 42)
        wave0_only(a, 'ssm_pub', f)
        stamp(a, 3 if 'kfirst' in ARGS else 9)
    def publish_a():
        def f():
            a(f's_lshl_b32 s42, s{S_IDX}, {FS}')
            a(f's_add_u32 s42, s42, {FL_A}')
            flag_store(a, 35, 42)
        wave0_only(a, 'ssm_pub2', f)
    if 'ssmlite' in ARGS:
        a('s_waitcnt lgkmcnt(0)')
        p0_compute(a)
        rdy_issue()
        publish_p0()
        publish_a()
        G.stamp_flush(a)
        return
    def ut_addr():
        a(f's_lshr_b32 s42, s{S_IDX}, 5')
        a(f'v_and_b32 v35, 7, v{V_LANE}')
        a(f'v_lshrrev_b32 v36, 3, v{V_LANE}')
        a('v_lshlrev_b32 v36, 3, v36')
        a('v_add_u32 v36, s42, v36')
        a('v_lshl_add_u32 v35, v36, 3, v35')
        a(f'v_lshlrev_b32 v35, {FS}, v35')
        ucopy_addr(a)
    if 'kfirst' in ARGS:
        def pre_mfma():
            stamp(a, 1)
            p0_compute(a)
            stamp(a, 2)
            rdy_issue()
        def post_mfma():
            publish_p0()
            ut_addr()
        G.emit_kgen(a, 'kg', pre_mfma=pre_mfma, post_mfma=post_mfma)
    else:
        p0_compute(a)
        stamp(a, 1)
        rdy_issue()
        def setup_hook():
            publish_p0()
            a('s_setprio 0')
        def pre_mfma():
            stamp(a, 2)
            ut_addr()
            st_['ut'] = poll_issue(a, 34, 35, SRDF, 0xffffffff, FL_P0)
        def post_mfma():
            a.wait_vm_token(st_['ut'])
            cmp_mask(a, 34, 0xffffffff)
            a('s_cselect_b32 s82, 1, 0')
            a('s_cbranch_scc0 L_ssm_noearly')
            sv = a.save()
            ucopy_loads(a, True)
            a.label('L_ssm_noearly')
            a.hist = []; a.vmq = sv[1]; a.lgq = sv[2]
        G.emit_kgen(a, 'kg', setup_hook=setup_hook, pre_mfma=pre_mfma, post_mfma=post_mfma)
    stamp(a, 4)
    a('s_cmp_eq_u32 s82, 1')
    a('s_cbranch_scc1 L_ssm_have')
    spin(a, 'ssm_ut', 34, 35, SRDF, 0xffffffff, FL_P0)
    ucopy_loads(a, True)
    a.label('L_ssm_have')
    a.hist = []
    a('s_waitcnt vmcnt(0) lgkmcnt(0)')
    a('s_barrier')
    ucopy_writes(a)
    a('s_waitcnt lgkmcnt(0)')
    a('s_barrier')
    stamp(a, 5)
    if 'nogate' not in ARGS:
        a(f's_cmp_ge_u32 s{J}, 28')
        a('s_cbranch_scc1 L_ssm_go')
        a(f's_mul_i32 s42, s{J}, 37')
        a('s_lshr_b32 s42, s42, 8')
        a('s_mul_i32 s43, s42, 7')
        a(f's_sub_u32 s43, s{J}, s43')
        a(f's_lshr_b32 s44, s{X}, 1')
        a('s_lshl_b32 s44, s44, 2')
        a('s_add_u32 s42, s44, s42')
        a(f's_and_b32 s44, s{X}, 1')
        a('s_mul_i32 s44, s44, 7')
        a('s_add_u32 s43, s44, s43')
        a('s_mul_i32 s42, s42, 14')
        a('s_add_u32 s42, s42, s43')
        a(f's_lshl_b32 s42, s42, {HS}')
        a(f's_lshl_b32 s43, s{S_WAVE}, 2')
        a('s_add_u32 s42, s42, s43')
        a(f's_add_u32 s83, s42, {hex(WS_FL + FL_H)}')
        a('s_mov_b32 s45, 300')
        a.label('L_ssm_gate')
        a.lgq = []
        a(f's_load_dword s84, s[{P_WS}:{P_WS+1}], s83 glc')
        a(f's_cmp_ge_u32 s84, {GATE_LEVEL}')
        a('s_cbranch_scc1 L_ssm_go')
        a('s_sleep 4')
        a('s_sub_u32 s45, s45, 1')
        a('s_cmp_lg_u32 s45, 0')
        a('s_cbranch_scc1 L_ssm_gate')
        a.label('L_ssm_go')
        a.reset()
    stamp(a, 6)
    if 'cvp0' not in ARGS: a('s_setprio 3')
    emit_conv(a, 'cv', SC)
    stamp(a, 7)
    a('s_waitcnt vmcnt(0)')
    a('s_barrier')
    publish_a()
    stamp(a, 8)
    G.stamp_flush(a)


TB, FB_, JJ, XC, PAR = 72, 73, 74, 75, 76
HOFF = [77, 78]
ROT = 79
WF, WT = 82, 83
W4, W2K = 81, 80
SLOTS = [(4, 32768), (4, 32768 + 2048), (2, 49152), (4, 0), (4, 2048), (2, 57344), (2, 65536), (4, 16384), (4, 16384 + 2048), (2, 73728)]
TAU, DT = 87, 88
KX = list(range(6, 14))
KW = list(range(14, 22))
SP = list(range(90, 97))
WE = [97, 98, 99, 100]
SRDW2 = 24
R1 = 10
GW, GA, GH, VF, VT, VP = [128, 129], [130, 131], [132, 133, 134, 135], 136, 137, 20
GA2 = [218, 219]
W2R = [138 + 4 * k for k in range(20)]
G2ACC = [32, 48, 64, 80]
HD = 6
HRING = [220, 224, 228, 232, 96, 100, 120, 124, 104, 108, 112, 116]
G2FA = [236, 244]
TAILMASK = (1 << 40) - 1
GAP = int([x[3:] for x in ARGS if x.startswith('gap')][0]) if any(x.startswith('gap') for x in ARGS) else 17
R1_READ_AT = int([x[3:] for x in ARGS if x.startswith('rra')][0]) if any(x.startswith('rra') for x in ARGS) else 1
PUB0 = int([x[3:] for x in ARGS if x.startswith('pub')][0]) if any(x.startswith('pub') for x in ARGS) else 3
GATE_LEVEL = int([x[4:] for x in ARGS if x.startswith('gate') and x[4:].isdigit()][0]) if any(x.startswith('gate') and x[4:].isdigit() for x in ARGS) else 3
ZWG = 256 + 8 * 29
TAILK = int([x[2:] for x in ARGS if x.startswith('tk')][0]) if any(x.startswith('tk') for x in ARGS) else 20
HSC = '' if 'hplain' in ARGS else 'sc1 nt' if 'hnt' in ARGS else 'sc0 sc1' if 'hsc01' in ARGS else 'sc0 sc1 nt' if 'hsc01nt' in ARGS else 'sc1'
OSC = 'sc1' if 'osc1' in ARGS else 'nt' if 'ont' in ARGS else 'sc0 sc1' if 'osc01' in ARGS else ''
ASTG = int([x[3:] for x in ARGS if x.startswith('ast')][0]) if any(x.startswith('ast') for x in ARGS) else 3
TOUCH_ST = int([x[3:] for x in ARGS if x.startswith('tst')][0]) if any(x.startswith('tst') for x in ARGS) else 12
PFDEPTH = int([x[3:] for x in ARGS if x.startswith('pfd')][0]) if any(x.startswith('pfd') for x in ARGS) else 1


class G2State:
    pass


def pos_mj(k):
    return k % 7, (k // 7) & 1, k >= 14


def g2_setup(a):
    if 'map48' in ARGS:
        a(f's_lshl_b32 s42, s{XC}, 2')
        a(f's_lshr_b32 s44, s{JJ}, 3')
        a(f's_add_u32 s{TAU}, s42, s44')
        a(f's_and_b32 s{DT}, s{JJ}, 7')
        a(f's_and_b32 s{PAR}, s{TAU}, 1')
        a(f's_cmp_eq_u32 s{DT}, 7')
        a(f's_cselect_b32 s42, 0, s{DT}')
    else:
        a(f's_lshr_b32 s42, s{XC}, 1')
        a('s_lshl_b32 s42, s42, 3')
        a(f's_lshr_b32 s44, s{JJ}, 2')
        a(f's_add_u32 s{TAU}, s42, s44')
        a(f's_and_b32 s42, s{XC}, 1')
        a('s_lshl_b32 s42, s42, 2')
        if 'dtshift' in ARGS:
            a(f's_add_u32 s43, s{JJ}, 1')
            a('s_and_b32 s43, s43, 3')
        else:
            a(f's_and_b32 s43, s{JJ}, 3')
        a(f's_add_u32 s{DT}, s42, s43')
        a(f's_and_b32 s{PAR}, s{TAU}, 1')
        a('s_lshl_b32 s42, s43, 1')
        a('s_add_u32 s42, s42, s44')
        a('s_cmp_ge_u32 s42, 7')
        a('s_cselect_b32 s43, 7, 0')
        a('s_sub_u32 s42, s42, s43')
    a(f's_mul_i32 s44, s{S_WAVE}, {28*1024}')
    for m in range(7):
        a('s_lshl_b32 s43, s42, 12')
        a(f's_add_u32 s{SP[m]}, s43, s44')
        if m < 6:
            a('s_add_u32 s42, s42, 1')
            a('s_cmp_eq_u32 s42, 7')
            a('s_cselect_b32 s42, 0, s42')
    a(f's_lshl_b32 s{WE[0]}, s{PAR}, 15')
    a(f's_add_u32 s{WE[1]}, s{WE[0]}, 16384')
    a(f's_sub_u32 s{WE[2]}, 32768, s{WE[0]}')
    a(f's_add_u32 s{WE[3]}, s{WE[2]}, 16384')
    a(f's_lshl_b32 s42, s{DT}, 7')
    a(f's_sub_u32 s43, {1792*1024}, s42')
    srd(a, SRDW2, P_W2, 's42', 's43')
    a(f's_mul_i32 s42, s{TAU}, {2*112*1024}')
    a(f's_add_u32 s42, s42, {hex(WS_H)}')
    srd(a, SRD3, P_WS, 's42', 2 * 112 * 1024)
    a(f's_and_b32 s{WF}, s{S_WAVE}, 1')
    a(f's_lshr_b32 s{WT}, s{S_WAVE}, 1')
    t0, t1, t2, t3 = 96, 97, 98, 99
    a(f'v_lshrrev_b32 v{t0}, 3, v{V_LANE}')
    a(f'v_and_b32 v{t1}, 7, v{V_LANE}')
    a(f'v_lshrrev_b32 v{t2}, 2, v{t1}')
    a(f'v_lshrrev_b32 v{t3}, 1, v{t0}')
    a(f'v_and_b32 v{t3}, 1, v{t3}')
    a(f'v_xor_b32 v{t2}, v{t2}, v{t3}')
    a(f'v_and_b32 v{t1}, 3, v{t1}')
    a(f'v_lshl_add_u32 v{t2}, v{t2}, 2, v{t1}')
    a(f'v_lshlrev_b32 v{t0}, 10, v{t0}')
    a(f'v_lshl_add_u32 v{GW[0]}, v{t2}, 4, v{t0}')
    a(f'v_add_u32 v{GW[1]}, {8*1024-1024}, v{GW[0]}')
    a(f's_lshl_b32 s{W4}, s{S_WAVE}, 12')
    a(f's_lshl_b32 s{W2K}, s{S_WAVE}, 11')
    a(f'v_lshrrev_b32 v{t0}, 4, v{V_LANE}')
    a(f'v_and_b32 v{t1}, 15, v{V_LANE}')
    a(f'v_lshrrev_b32 v{t2}, 2, v{t1}')
    a(f'v_and_b32 v{t1}, 3, v{t1}')
    a(f'v_lshrrev_b32 v{t3}, 1, v{t0}')
    a(f'v_and_b32 v{t0}, 1, v{t0}')
    a(f'v_lshl_add_u32 v{t3}, v{t3}, 2, v{t2}')
    a(f'v_lshlrev_b32 v{t3}, 7, v{t3}')
    a(f'v_lshl_add_u32 v{t3}, v{t0}, 5, v{t3}')
    a(f'v_lshl_add_u32 v{t3}, v{t1}, 3, v{t3}')
    a(f'v_lshrrev_b32 v{t2}, 1, v{t2}')
    a(f'v_xor_b32 v{t2}, s{WF}, v{t2}')
    a(f'v_lshl_add_u32 v{GA[0]}, v{t2}, 6, v{t3}')
    a(f'v_xor_b32 v{t2}, 1, v{t2}')
    a(f'v_lshl_add_u32 v{GA[1]}, v{t2}, 6, v{t3}')
    a(f's_add_u32 s42, s{W2K}, 49152')
    for dd in range(2):
        a(f'v_add_u32 v{GA2[dd]}, s42, v{GA[dd]}')
        a(f'v_add_u32 v{GA[dd]}, s{W4}, v{GA[dd]}')
    a(f'v_lshlrev_b32 v{t2}, 4, v{V_LANE}')
    a(f's_lshl_b32 s43, s{PAR}, 11')
    a(f'v_add_u32 v{t2}, s43, v{t2}')
    a(f's_mul_i32 s42, s{WT}, {112*1024}')
    a(f'v_add_u32 v{GH[0]}, s42, v{t2}')
    a(f's_sub_u32 s42, {112*1024}, s42')
    a(f'v_add_u32 v{GH[1]}, s42, v{t2}')
    a('s_lshl_b32 s43, s43, 1')
    a('s_sub_u32 s43, 2048, s43')
    a(f'v_add_u32 v{GH[2]}, s43, v{GH[0]}')
    a(f'v_add_u32 v{GH[3]}, s43, v{GH[1]}')
    a(f's_lshr_b32 s42, s{TAU}, 1')
    a('s_mul_i32 s42, s42, 14')
    a(f's_mul_i32 s43, s{S_WAVE}, 7')
    a('s_lshr_b32 s43, s43, 1')
    a('s_add_u32 s42, s42, s43')
    a(f's_lshl_b32 s42, s42, {HS}')
    a(f's_lshl_b32 s43, s{PAR}, 3')
    a('s_add_u32 s42, s42, s43')
    a(f's_add_u32 s42, s42, {hex(WS_FL + FL_H)}')
    a(f's_add_u32 s{SFL}, s{P_WS}, s42')
    a(f's_addc_u32 s{SFL+1}, s{P_WS+1}, 0')
    a(f's_lshl_b32 s42, s{DT}, 5')
    a(f'v_add_u32 v{VT}, s42, v{V_LANE}')
    a(f'v_lshlrev_b32 v{VT}, {FS}, v{VT}')
    a(f'v_add_u32 v{VT}, {FL_A}, v{VT}')
    a(f's_lshr_b32 s42, s{TAU}, 2')
    a(f's_and_b32 s43, s{TAU}, 3')
    a('s_lshl_b32 s43, s43, 6')
    a('s_add_u32 s42, s42, s43')
    a(f'v_subrev_u32 v{t0}, 32, v{V_LANE}')
    a(f'v_lshlrev_b32 v{t0}, 3, v{t0}')
    a(f'v_add_u32 v{t0}, s42, v{t0}')
    a(f'v_lshlrev_b32 v{t0}, {FS}, v{t0}')
    a(f'v_add_u32 v{t0}, {FL_P0}, v{t0}')
    a(f'v_cmp_gt_u32 vcc, 32, v{V_LANE}')
    a(f'v_cndmask_b32 v{VT}, v{t0}, v{VT}, vcc')


def g2_dma_items(k):
    m, j, late = pos_mj(k)
    kind, off = SLOTS[k % 10]
    pre = [f's_add_u32 m0, s{W4 if kind == 4 else W2K}, {off}']
    if 'w2same' in ARGS: pre.append('s_mov_b32 s89, 0')
    else: pre.append(f's_lshl4_add_u32 s89, s{SP[m]}, s{WE[2*late+j]}')
    if 'w2small' in ARGS: pre.append('s_and_b32 s89, s89, 0x1ffff')
    return [pre + [f'buffer_load_dwordx4 v{GW[0]}, s[{SRDW2}:{SRDW2+3}], s89 offen lds'],
            [(f'buffer_load_dwordx4 v{GW[1]}, s[{SRDW2}:{SRDW2+3}], s89 offen offset:1024 lds', k)]]


def put_items(a, g, items):
    for it in items:
        if isinstance(it, tuple): g.tokW[it[1]] = a(it[0])
        else: a(it)


def g2_dma(a, g, k):
    for grp in g2_dma_items(k): put_items(a, g, grp)


def g2_wread_list(k, regs):
    kind, off = SLOTS[k % 10]
    l = []
    for dd in range(2):
        v_, o = (GA[dd], off) if kind == 4 else (GA2[dd], off - 49152)
        l.append(f'ds_read_b64_tr_b16 v[{regs[dd]}:{regs[dd]+1}], v{v_} offset:{o}')
        l.append(f'ds_read_b64_tr_b16 v[{regs[dd]+2}:{regs[dd]+3}], v{v_} offset:{o+1024}')
    return l


def g2_round1_reads(a, g):
    a.wait_vm_token(max(g.tokW[k] for k in range(R1)))
    for k in range(R1):
        for l in g2_wread_list(k, W2R[2*k:2*k+2]): a(l)


def h_schedule():
    free = list(HRING)
    regs, when = {}, {}
    nxt = 0
    for p in range(HD - 1):
        regs[p] = (free.pop(0), free.pop(0)); when[p] = -1; nxt += 1
    for k in range(28):
        if k >= 1:
            free += list(regs[k - 1])
            if RESERVED <= k - 1 < R1: free += W2R[2*(k-1):2*(k-1)+2]
        n = 0
        while nxt < 28 and len(free) >= 2 and n < 2:
            regs[nxt] = (free.pop(0), free.pop(0)); when[nxt] = k; nxt += 1; n += 1
    return regs, when


RESERVED = 4
HREGS, HWHEN = h_schedule()


SFL = 32
PSET = [6, 14]
SPINSET = 72
sc_slow = []
NREST = [0]


LVL = 101


def sc_issue(a, st):
    d = PSET[st]
    for i in range(4):
        a(f's_load_dwordx2 s[{d+2*i}:{d+2*i+1}], s[{SFL}:{SFL+1}], {(1 << HS)*i} glc')


def sc_eval(a, st):
    d = PSET[st]
    a(f's_min_u32 s42, s{d}, s{d+1}')
    for i in range(2, 8):
        a(f's_min_u32 s42, s42, s{d+i}')
    a(f's_max_u32 s{LVL}, s{LVL}, s42')


def sc_need(a, name, level):
    a(f's_cmp_ge_u32 s{LVL}, {level}')
    a(f's_cbranch_scc0 L_{name}_slow')
    a.label(f'L_{name}_back')
    sc_slow.append((name, level))


def sc_spin(a, name, level):
    a(f's_mov_b32 s45, {SPIN_LIMIT}')
    a.label(f'L_{name}_spin')
    a.lgq = []
    for i in range(4):
        a(f's_load_dwordx2 s[{SPINSET+2*i}:{SPINSET+2*i+1}], s[{SFL}:{SFL+1}], {(1 << HS)*i} glc')
    a(f's_min_u32 s42, s{SPINSET}, s{SPINSET+1}')
    for i in range(2, 8):
        a(f's_min_u32 s42, s42, s{SPINSET+i}')
    a(f's_max_u32 s{LVL}, s{LVL}, s42')
    a(f's_cmp_ge_u32 s{LVL}, {level}')
    a(f's_cbranch_scc1 L_{name}_done')
    a('s_sleep 2')
    a('s_sub_u32 s45, s45, 1')
    a('s_cmp_lg_u32 s45, 0')
    a(f's_cbranch_scc1 L_{name}_spin')
    a.label(f'L_{name}_done')


def emit_sc_slow(a):
    for name, level in sc_slow:
        a.label(f'L_{name}_slow')
        a.reset()
        a('s_waitcnt lgkmcnt(0)')
        sc_spin(a, name + 's', level)
        a(f's_branch L_{name}_back')
    sc_slow.clear()


def hload(k, tt):
    m, j, late = pos_mj(k)
    r = HREGS[k][tt]
    return f'buffer_load_dwordx4 v[{r}:{r+3}], v{GH[2*late+tt]}, s[{SRD3}:{SRD3+3}], s{SP[m]} offen offset:{1024*j} {SC}'


def h_prologue(a, opt=False):
    for k in range(HD - 1):
        for tt in range(2): a(hload(k, tt), opt=opt)


def g1_role(a, g):
    VX = [2, 3, 4, 5]
    VW = [6, 7, 8, 9]
    a(f's_and_b32 s{WF}, s{S_WAVE}, 1')
    a(f's_lshr_b32 s{WT}, s{S_WAVE}, 1')
    a(f'v_lshrrev_b32 v12, 3, v{V_LANE}')
    a(f'v_and_b32 v13, 7, v{V_LANE}')
    a('v_lshrrev_b32 v14, 1, v12')
    a('v_xor_b32 v14, v13, v14')
    a(f's_lshl_b32 s42, s{S_WAVE}, 4')
    a('v_add_u32 v15, s42, v12')
    a('v_lshlrev_b32 v15, 10, v15')
    a(f'v_lshl_add_u32 v{VX[0]}, v14, 4, v15')
    a('v_xor_b32 v14, 4, v14')
    a(f'v_lshl_add_u32 v{VX[1]}, v14, 4, v15')
    a(f'v_add_u32 v{VX[1]}, {8*1024-1024}, v{VX[1]}')
    a(f'v_lshrrev_b32 v12, 4, v{V_LANE}')
    a(f'v_and_b32 v13, 15, v{V_LANE}')
    a('v_lshrrev_b32 v14, 2, v13')
    a('v_xor_b32 v14, v14, v12')
    a('v_and_b32 v13, 3, v13')
    a('v_lshl_add_u32 v14, v14, 2, v13')
    a(f's_lshl_b32 s42, s{S_WAVE}, 3')
    a('v_add_u32 v15, s42, v12')
    a('v_mul_u32_u24 v15, 3584, v15')
    a(f'v_lshl_add_u32 v{VW[0]}, v14, 4, v15')
    a(f'v_add_u32 v{VW[1]}, {4*3584-1024}, v{VW[0]}')
    a(f's_lshl_b32 s84, s{S_WAVE}, 11')
    def ktab(c):
        if 'rot7' in ARGS:
            if c == 0:
                a('s_mov_b32 s42, 0')
            else:
                a(f's_add_u32 s42, s{ROT}, {c - 1}')
                a('s_cmp_ge_u32 s42, 7')
                a('s_cselect_b32 s43, 7, 0')
                a('s_sub_u32 s42, s42, s43')
                a('s_add_u32 s42, s42, 1')
        else:
            a(f's_add_u32 s42, s{ROT}, {c}')
            a('s_and_b32 s42, s42, 7')
        a(f's_lshl_b32 s{KX[c]}, s42, 7')
        a(f's_mul_i32 s{KW[c]}, s42, 229376')
    if 'prost' in ARGS: stamp(a, 3)
    a('s_waitcnt lgkmcnt(0)')
    a.lgq = []
    if 'prost' in ARGS: stamp(a, 4)
    ktab(0); ktab(1)
    a(f's_lshl_b32 s42, s{TB}, 17')
    srd(a, SRD1, P_X, 's42', 131072)
    a(f's_lshl_b32 s42, s{FB_}, 8')
    a(f's_sub_u32 s43, {512*3584}, s42')
    srd(a, SRD2, P_W1, 's42', 's43')
    tokW, tokX = {}, {}
    def dma_w_list(st):
        o = 2 * (st & 1)
        return [f's_add_u32 m0, s84, {G1_WS[st % 4]}',
                f'buffer_load_dwordx4 v{VW[o]}, s[{SRD2}:{SRD2+3}], s{KW[st >> 1]} offen lds',
                (f'buffer_load_dwordx4 v{VW[o+1]}, s[{SRD2}:{SRD2+3}], s{KW[st >> 1]} offen offset:1024 lds', ('w', st))]
    def dma_x_list(c, h):
        return [f's_add_u32 m0, s84, {G1_XS[c % 3] + 8192*h}',
                f'buffer_load_dwordx4 v{VX[2*h]}, s[{SRD1}:{SRD1+3}], s{KX[c]} offen lds',
                (f'buffer_load_dwordx4 v{VX[2*h+1]}, s[{SRD1}:{SRD1+3}], s{KX[c]} offen offset:1024 lds', ('x', (c, h)))]
    g.tokW = {}
    def w2_items(k):
        out = []
        for grp in g2_dma_items(k):
            for it in grp:
                out.append((it[0], ('g', it[1])) if isinstance(it, tuple) else it)
        return out
    def put(item):
        if isinstance(item, tuple):
            t = a(item[0])
            {'w': tokW, 'x': tokX, 'g': g.tokW}[item[1][0]][item[1][1]] = t
        elif callable(item):
            item()
        else:
            a(item)
    if 'prost' in ARGS: stamp(a, 5)
    for it in dma_w_list(0) + dma_x_list(0, 0): put(it)
    if 'prost' in ARGS: stamp(a, 6)
    a(f'v_add_u32 v{VX[2]}, 65536, v{VX[0]}')
    a(f'v_add_u32 v{VX[3]}, 65536, v{VX[1]}')
    a(f'v_add_u32 v{VW[2]}, {32*3584}, v{VW[0]}')
    a(f'v_add_u32 v{VW[3]}, {32*3584}, v{VW[1]}')
    for it in dma_x_list(0, 1) + dma_w_list(1) + dma_x_list(1, 0) + dma_x_list(1, 1) + dma_w_list(2): put(it)
    if 'g2st' not in ARGS and 'blkst' not in ARGS and 'lastst' not in ARGS and 'tailst' not in ARGS: stamp(a, 1)
    for c in range(2, 8): ktab(c)
    B1V = [26, 27]
    a(f's_lshl_b32 s42, s{FB_}, 7')
    a(f's_lshl_b32 s43, s{WF}, 6')
    a('s_add_u32 s42, s42, s43')
    a(f'v_and_b32 v21, 31, v{V_LANE}')
    a('v_add_u32 v22, s42, v21')
    a('v_lshlrev_b32 v22, 1, v22')
    a(f's_lshl_b32 s42, s{WT}, 6')
    a('v_add_u32 v23, s42, v22')
    a(f'global_load_ushort v{B1V[0]}, v23, s[{P_B1}:{P_B1+1}]')
    a('s_sub_u32 s42, 64, s42')
    a('v_add_u32 v23, s42, v22')
    a(f'global_load_ushort v{B1V[1]}, v23, s[{P_B1}:{P_B1+1}]')
    setup_flag_srds(a)
    srd(a, SRD0, P_WS, 0, 0x1000000)
    g2_setup(a)
    VA = [10, 11]; VB = [16, 17, 18, 19]
    a(f'v_lshrrev_b32 v12, 4, v{V_LANE}')
    a(f'v_and_b32 v13, 15, v{V_LANE}')
    a('v_lshrrev_b32 v14, 2, v13')
    a('v_and_b32 v13, 3, v13')
    a('v_lshrrev_b32 v15, 1, v12')
    a('v_and_b32 v12, 1, v12')
    a('v_lshl_add_u32 v15, v15, 3, v14')
    a('v_lshlrev_b32 v15, 8, v15')
    a('v_lshl_add_u32 v15, v12, 5, v15')
    a('v_lshl_add_u32 v15, v13, 3, v15')
    a(f'v_add_u32 v15, {G1_WS[0]}, v15')
    a(f's_lshl_b32 s42, s{WF}, 1')
    a(f's_add_u32 s42, s42, s{WT}')
    for l in range(2):
        if l: a('s_xor_b32 s42, s42, 1')
        a('v_xor_b32 v12, s42, v14')
        a(f'v_lshl_add_u32 v{VA[l]}, v12, 6, v15')
    a(f'v_and_b32 v12, 31, v{V_LANE}')
    a(f'v_lshrrev_b32 v13, 5, v{V_LANE}')
    a('v_lshrrev_b32 v14, 1, v12')
    a('v_and_b32 v14, 7, v14')
    a(f's_lshl_b32 s42, s{WT}, 6')
    a('v_add_u32 v12, s42, v12')
    a('v_lshlrev_b32 v12, 7, v12')
    for kk in range(4):
        a(f'v_add_u32 v15, {2*kk}, v13')
        a('v_xor_b32 v15, v15, v14')
        a(f'v_lshl_add_u32 v{VB[kk]}, v15, 4, v12')
    ONES, SACC = 248, 232
    for k in range(4):
        a(f'v_mov_b32 v{ONES+k}, 0x3f803f80')
    MS = [12, 14]
    a('v_mov_b32 v28, 0')
    a(f's_lshr_b32 s42, s{TB}, 1')
    a(f's_and_b32 s43, s{TB}, 1')
    a('s_lshl_b32 s43, s43, 7')
    a('s_add_u32 s42, s42, s43')
    a(f'v_lshlrev_b32 v29, 3, v{V_LANE}')
    a('v_add_u32 v29, s42, v29')
    a(f'v_lshlrev_b32 v29, {FS}, v29')
    a(f's_lshl_b32 s42, s{TB}, 7')
    a(f's_lshl_b32 s43, s{WT}, 6')
    a('s_add_u32 s42, s42, s43')
    a('v_add_u32 v30, s42, v21')
    a('v_lshlrev_b32 v30, 3, v30')
    a(f'v_add_u32 v30, {hex(WS_ST)}, v30')
    a(f's_lshl_b32 s{HOFF[0]}, s{WT}, 11')
    a(f's_sub_u32 s{HOFF[1]}, 2048, s{HOFF[0]}')
    a(f's_lshl_b32 s42, s{TB}, 2')
    a(f's_lshl_b32 s43, s{WT}, 1')
    a('s_add_u32 s42, s42, s43')
    a('s_mul_i32 s42, s42, 112')
    a(f's_lshl_b32 s43, s{FB_}, 3')
    a('s_add_u32 s42, s42, s43')
    a(f's_lshl_b32 s43, s{WF}, 2')
    a('s_add_u32 s42, s42, s43')
    a('s_lshl_b32 s42, s42, 10')
    a(f's_add_u32 s42, s42, {hex(WS_H)}')
    VH = [24, 25]
    a(f'v_lshlrev_b32 v24, 4, v{V_LANE}')
    a('v_add_u32 v24, s42, v24')
    a(f'v_add_u32 v25, {112*1024}, v24')
    a(f's_add_u32 s44, s{W2K}, 65536')
    a(f's_xor_b32 s45, s{S_WAVE}, 2')
    a('s_lshl_b32 s45, s45, 11')
    a('s_add_u32 s45, s45, 65536')
    a('v_lshlrev_b32 v21, 2, v21')
    a('v_add_u32 v23, s45, v21')
    a('v_add_u32 v21, s44, v21')
    st_ = {}
    def h_rdy_issue(): st_['r'] = poll_issue(a, 31, 28, SRDD, 1)
    def h_rdy_check(): check_or_spin(a, 'g1_rdy', st_['r'], 31, 28, SRDD, 1)
    def h_fl_issue(): st_['f'] = poll_issue(a, 31, 29, SRDF, 0xffff, FL_P0)
    def h_fl_check():
        check_or_spin(a, 'g1_fl', st_['f'], 31, 29, SRDF, 0xffff, FL_P0)
        for tt in range(2):
            a(f'buffer_load_dwordx2 v[{MS[tt]}:{MS[tt]+1}], v30, s[{SRD0}:{SRD0+3}], 0 offen offset:{256*tt} {SC}')
    def w2_touch():
        if 'notouch' in ARGS: return
        a(f's_lshl_b32 s42, s{JJ}, 6')
        a(f's_lshl_b32 s43, s{S_WAVE}, 4')
        a('s_add_u32 s42, s42, s43')
        a(f'v_lshrrev_b32 v140, 2, v{V_LANE}')
        a('v_add_u32 v140, s42, v140')
        a('v_lshlrev_b32 v140, 10, v140')
        a(f'v_and_b32 v141, 3, v{V_LANE}')
        a('v_lshl_add_u32 v140, v141, 7, v140')
        a(f's_and_b32 s42, s{XC}, 1')
        a('s_lshl_b32 s42, s42, 9')
        a('v_add_u32 v140, s42, v140')
        a(f'global_load_dword v141, v140, s[{P_W2}:{P_W2+1}]', discard=True)
        if 'touch1' not in ARGS:
            a(f'global_load_dword v141, v140, s[{P_W2}:{P_W2+1}] offset:64', discard=True)
    hk = {7: h_rdy_issue, 10: h_rdy_check, 11: h_fl_issue, TOUCH_ST: w2_touch, 14: h_fl_check}
    AF, BF = [104, 228], [220, 224]
    SD = [13, 15]
    AL, BE = [28, 29], [30, 31]
    def token_operands(tt):
        b = BF[tt]
        a('s_mov_b32 s42, 0xffff0000')
        a(f'v_cmp_gt_u32 vcc, 32, v{V_LANE}')
        a(f'v_xor_b32 v22, 0x80000000, v{MS[tt]}')
        a(f'v_lshrrev_b32 v{b}, 16, v{SD[tt]}')
        a(f'v_and_or_b32 v{b}, v22, s42, v{b}')
        a(f'v_lshrrev_b32 v{b+1}, 16, v22')
        a(f'v_and_or_b32 v{b+1}, v22, s42, v{b+1}')
        a(f'v_cndmask_b32 v{b}, 0, v{b}, vcc')
        a(f'v_cndmask_b32 v{b+1}, 0, v{b+1}, vcc')
        a(f'v_mov_b32 v{b+2}, 0')
        a(f'v_mov_b32 v{b+3}, 0')
        a(f'v_rcp_f32 v22, v{SD[tt]}')
        a(f'v_mul_f32 v{AL[tt]}, {f32(-GELU_C)}, v22')
        a('v_mul_f32 v22, v22, v22')
        a(f'v_mul_f32 v22, v22, v{AL[tt]}')
        a(f'v_mul_f32 v{BE[tt]}, {f32(0.044715)}, v22')
    hk = {4: h_rdy_issue, 7: h_rdy_check, 8: h_fl_issue, 11: h_fl_check, 14: lambda: token_operands(0), 15: lambda: token_operands(1)}
    ACC = 32
    FR = [96, 112]
    def reads(st, kap):
        base = FR[kap]
        lst = []
        for l in range(2):
            o = (st % 4) * 8192 + kap * 16 * 256
            lst.append(f'ds_read_b64_tr_b16 v[{base+4*l}:{base+4*l+1}], v{VA[l]} offset:{o}')
            lst.append(f'ds_read_b64_tr_b16 v[{base+4*l+2}:{base+4*l+3}], v{VA[l]} offset:{o+1024}')
        for tt in range(2):
            kk = 2 * (st & 1) + kap
            lst.append(f'ds_read_b128 v[{base+8+4*tt}:{base+11+4*tt}], v{VB[kk]} offset:{G1_XS[(st>>1) % 3] + 4096*tt}')
        return lst
    def mfmas(st, kap, rd, dm):
        base = FR[kap]
        first = (st == 0 and kap == 0)
        ms = []
        c = '0' if first else f'v[{SACC}:{SACC+15}]'
        ms.append(f'v_mfma_f32_32x32x16_bf16 v[{SACC}:{SACC+15}], v[{ONES}:{ONES+3}], v[{base}:{base+3}], {c}')
        for l in range(2):
            for tt in range(2):
                acc = ACC + 32 * l + 16 * tt
                c = '0' if first else f'v[{acc}:{acc+15}]'
                ms.append(f'v_mfma_f32_32x32x16_bf16 v[{acc}:{acc+15}], v[{base+4*l}:{base+4*l+3}], v[{base+8+4*tt}:{base+11+4*tt}], {c}')
        if len(dm) <= 3:
            gaps = [rd[0:2], dm[0:2] + rd[2:3], rd[3:5], dm[2:3] + rd[5:6], []]
        else:
            q = (len(dm) + 3) // 4
            gaps = [rd[0:2] + dm[0:q], rd[2:4] + dm[q:2*q], rd[4:6] + dm[2*q:3*q], dm[3*q:], []]
        for m, gp in zip(ms, gaps):
            a(m)
            for it in gp: put(it)
    for st in range(16):
        need = [tokW[st]] + [tokX[(st >> 1, h)] for h in range(2)]
        if st + 1 < 16:
            need += [tokW[st + 1]] + [tokX[((st + 1) >> 1, h)] for h in range(2)]
        a.wait_vm_token(max(need))
        a('s_barrier')
        if st in (0, 4, 8, 12) and 'g2st' not in ARGS and 'blkst' not in ARGS and 'lastst' not in ARGS and 'tailst' not in ARGS and ('prost' not in ARGS or st == 0): stamp(a, 2 + st // 4)
        if 'lastst' in ARGS and st >= 11: stamp(a, {11: 1, 12: 2, 13: 3, 14: 4, 15: 5}[st])
        if st in hk: hk[st]()
        if st == 0:
            for l in reads(0, 0): a(l)
        c = (st >> 1) + 2
        d0 = dma_w_list(st + 3) if st + 3 < 16 else []
        d1 = dma_x_list(c, st & 1) if c < 8 else []
        early = {12: ([], [0, 1]), 13: ([2], []), 14: ([3, 4], [5])}.get(st)
        if early:
            d0 = d0 + [x for k in early[0] for x in w2_items(k)]
            d1 = d1 + [x for k in early[1] for x in w2_items(k)]
        mfmas(st, 0, reads(st, 1), d0)
        mfmas(st, 1, reads(st + 1, 0) if st + 1 < 16 else [], d1)
    if 'lastst' in ARGS: stamp(a, 12)
    def a_operand(l, sreg):
        f = AF[l]
        a(f'v_cmp_gt_u32 vcc, 32, v{V_LANE}')
        a(f'v_cvt_pk_bf16_f32 v{f}, v{sreg}, v{sreg}')
        a(f'v_lshlrev_b32 v{f}, 16, v{f}')
        a(f'v_sub_f32 v22, v{sreg}, v{f}')
        a(f'v_cvt_pk_bf16_f32 v{f+2}, v22, v22')
        a(f'v_lshlrev_b32 v{f+2}, 16, v{f+2}')
        a(f'v_sub_f32 v{f+2}, v22, v{f+2}')
        a(f'v_cvt_pk_bf16_f32 v{f+1}, v22, v{f+2}')
        a(f'v_or_b32 v{f}, v{f}, v{B1V[l]}')
        a(f'v_cndmask_b32 v{f}, 0, v{f}, vcc')
        a(f'v_cndmask_b32 v{f+1}, 0, v{f+1}, vcc')
        a(f'v_mov_b32 v{f+2}, 0')
        a(f'v_mov_b32 v{f+3}, 0')
    def aug(l):
        for tt in range(2):
            acc = ACC + 32 * l + 16 * tt
            a(f'v_mfma_f32_32x32x16_bf16 v[{acc}:{acc+15}], v[{AF[l]}:{AF[l]+3}], v[{BF[tt]}:{BF[tt]+3}], v[{acc}:{acc+15}]')
    a(f'ds_write_b32 v23, v{SACC}')
    a_operand(0, SACC)
    aug(0)
    a('s_waitcnt lgkmcnt(0)')
    a('s_barrier')
    if 'g2st' not in ARGS and 'blkst' not in ARGS and 'prost' not in ARGS and 'tailst' not in ARGS: stamp(a, 6)
    if 'blkst' in ARGS: stamp(a, 10)
    SR1 = 233
    a(f'ds_read_b32 v{SR1}, v21')
    for k in (7, 8, 9): g2_dma(a, g, k)
    a('s_waitcnt lgkmcnt(0)')
    g2_dma(a, g, 6)
    a_operand(1, SR1)
    aug(1)
    dq = []
    def queue_dma(ks):
        for k in ks: dq.extend(g2_dma_items(k))
    def drain_dma():
        while dq: put_items(a, g, dq.pop(0))
    cnt = [0]
    gap = [GAP]
    rq = []
    def e(text):
        r = a(text)
        cnt[0] += 1
        if cnt[0] % gap[0] == 0 and dq: put_items(a, g, dq.pop(0))
        if cnt[0] % 3 == 0 and rq: a(rq.pop(0))
        return r
    T = 96
    toks = {}
    def block(l, j, tt):
        acc = ACC + 32 * l + 16 * tt
        r0 = 8 * j
        E = range(8)
        for x in E: e(f'v_mul_f32 v{T+x}, v{acc+r0+x}, v{acc+r0+x}')
        for x in E: e(f'v_fma_f32 v{T+x}, v{T+x}, v{BE[tt]}, v{AL[tt]}')
        for x in E: e(f'v_mul_f32 v{T+x}, v{T+x}, v{acc+r0+x}')
        for x in E: e(f'v_exp_f32 v{T+x}, v{T+x}')
        for x in E: e(f'v_fma_f32 v{T+x}, v{T+x}, v{SD[tt]}, v{SD[tt]}')
        for x in E: e(f'v_rcp_f32 v{T+x}, v{T+x}')
        for x in E: e(f'v_mul_f32 v{T+x}, v{T+x}, v{acc+r0+x}')
        H = 104 + 4 * ((2 * j + tt) % 4)
        for x in range(4): e(f'v_cvt_pk_bf16_f32 v{H+x}, v{T+2*x}, v{T+2*x+1}')
        toks[(l, j, tt)] = a(f'buffer_store_dwordx4 v[{H}:{H+3}], v{VH[tt]}, s[{SRD0}:{SRD0+3}], s{HOFF[l]} offen offset:{j*1024} {HSC}')
    a(f's_mul_i32 s42, s{TB}, 14')
    a(f's_add_u32 s42, s42, s{FB_}')
    a(f's_lshl_b32 s42, s42, {HS}')
    a(f's_lshl_b32 s43, s{S_WAVE}, 2')
    a('s_add_u32 s42, s42, s43')
    a(f's_add_u32 s42, s42, {FL_H}')
    a('v_mov_b32 v26, s42')
    a('v_mov_b32 v27, 1')
    def publish(stage):
        a.wait_vm_token(toks[(stage >> 1, stage & 1, 1)])
        a(f'v_mov_b32 v27, {stage + 1}')
        a('s_mov_b64 exec, 1')
        a(f'buffer_store_dword v27, v26, s[{SRDF}:{SRDF+3}], 0 offen {SC}')
        a('s_mov_b64 exec, -1')
    a(f's_mov_b32 s{LVL}, 0')
    order = [(l, j, tt) for l in range(2) for j in range(2) for tt in range(2)]
    for n, (l, j, tt) in enumerate(order):
        block(l, j, tt)
        if 'blkst' in ARGS: stamp(a, 1 + n) if n < 7 else None
        if n == PUB0: publish(0)
        if n == R1_READ_AT:
            a.wait_vm_token(max(g.tokW[k] for k in range(R1)))
            for k in range(R1): rq.extend(g2_wread_list(k, W2R[2*k:2*k+2]))
            if 'rdspread' not in ARGS:
                while rq: a(rq.pop(0))
        if n == R1_READ_AT + 2:
            while rq: a(rq.pop(0))
            a('s_waitcnt lgkmcnt(0)')
            queue_dma(range(R1, R1 + 10))
        if n == PUB0 + 2: publish(1)
        if n == 6: sc_issue(a, 0)
    stamp(a, 8)
    if 'r2burst' in ARGS:
        publish(2)
        drain_dma()
    g.nrest = len(dq)
    NREST[0] = g.nrest
    dq.clear()
    if 'r2burst' not in ARGS: publish(2)
    sc_eval(a, 0)
    a(f's_cmp_ge_u32 s{LVL}, 1')
    a('s_cbranch_scc0 L_g1_late')
    sv = a.save()
    sc_issue(a, 1)
    h_prologue(a)
    publish(3)
    stamp(a, 9)
    a('s_branch L_g2')
    G.stamp_restart(8)
    a.label('L_g1_late')
    a.restore(sv)
    publish(3)
    sc_spin(a, 'g1_h0', 1)
    sc_issue(a, 1)
    h_prologue(a)
    a('v_mov_b32 v23, 0')
    a('s_mov_b64 exec, 1')
    a(f'buffer_load_dword v22, v23, s[{SRDD}:{SRDD+3}], 0 offen', discard=True)
    a('s_mov_b64 exec, -1')
    stamp(a, 9)


def service_role(a, g):
    a(f's_cmp_eq_u32 s{JJ}, 28')
    a('s_cbranch_scc0 L_sv_done')
    a(f's_cmp_eq_u32 s{S_WAVE}, 3')
    a('s_cbranch_scc0 L_sv_done')
    if 'nopf' not in ARGS:
        a('s_getpc_b64 s[44:45]')
        a.label('L_pf_pc')
        a('s_sub_u32 s44, s44, L_pf_pc-CODE_BEGIN')
        a('s_subb_u32 s45, s45, 0')
        a(f'v_lshlrev_b32 v37, 4, v{V_LANE}')
        NPF = 38
        for k in range(NPF):
            a('v_min_u32 v36, CODE_END-CODE_BEGIN-16, v37')
            a('global_load_dwordx4 v[244:247], v36, s[44:45]', opt=True, discard=True)
            a('v_add_u32 v37, 1024, v37')
    a.label('L_sv_done')
    a.reset()
    a('s_waitcnt lgkmcnt(0)')
    setup_flag_srds(a)
    def chk():
        a('v_mov_b32 v33, 0')
        spin(a, 'sv_rdy', 34, 33, SRDD, 1, sleep=12)
    wave0_only(a, 'sv_rdyw', chk)
    a('s_barrier')
    if 'now2pf' not in ARGS:
        a(f's_lshl_b32 s42, s{S_IDX}, {FS}')
        a(f's_add_u32 s42, s42, {FL_P0}')
        a('v_mov_b32 v33, s42')
        if 'pfnogate' not in ARGS: spin(a, 'sv_p0', 34, 33, SRDF, 1)
        srd(a, SRD1, P_W2, 0, 1792 * 1024)
        a(f's_sub_u32 s42, s{JJ}, 28')
        a('s_lshl_b32 s42, s42, 2')
        a(f's_add_u32 s42, s42, s{S_WAVE}')
        a(f's_mul_i32 s42, s42, {112*1024}')
        if 'map48' in ARGS:
            a(f'v_lshlrev_b32 v2, 7, v{V_LANE}')
            a('s_mov_b32 s43, 14')
        else:
            a(f'v_lshrrev_b32 v2, 2, v{V_LANE}')
            a('v_lshlrev_b32 v2, 10, v2')
            a(f'v_and_b32 v3, 3, v{V_LANE}')
            a('v_lshl_add_u32 v2, v3, 7, v2')
            a(f's_and_b32 s43, s{XC}, 1')
            a('s_lshl_b32 s43, s43, 9')
            a('v_add_u32 v2, s43, v2')
            a('s_mov_b32 s43, 7')
        a.label('L_w2pf')
        a(f'buffer_load_dword v40, v2, s[{SRD1}:{SRD1+3}], s42 offen', opt=True, discard=True)
        if 'pf64' in ARGS: a(f'buffer_load_dword v41, v2, s[{SRD1}:{SRD1+3}], s42 offen offset:64', opt=True, discard=True)
        a(f's_add_u32 s42, s42, {8192 if "map48" in ARGS else 16384}')
        a(f's_waitcnt vmcnt({PFDEPTH})')
        a('s_sub_u32 s43, s43, 1')
        a('s_cmp_lg_u32 s43, 0')
        a('s_cbranch_scc1 L_w2pf')
        a.reset()
    g2_setup(a)
    g.tokW = {}
    for k in range(R1):
        g2_dma(a, g, k)
    srd(a, SRD0, P_WS, 0, 0x1000000)
    g2_round1_reads(a, g)
    a('s_waitcnt lgkmcnt(0)')
    items = [grp for k in range(R1, R1 + 10) for grp in g2_dma_items(k)]
    for grp in items[:20 - NREST[0]]: put_items(a, g, grp)
    a(f's_mov_b32 s{LVL}, 0')
    sc_spin(a, 'sv_h0', 1)
    sc_issue(a, 1)
    h_prologue(a)
    a('v_mov_b32 v21, 0')
    a('s_mov_b64 exec, 1')
    a(f'buffer_load_dword v22, v21, s[{SRDD}:{SRDD+3}], 0 offen', discard=True)
    a('s_mov_b64 exec, -1')


def g2_main(a, g):
    for k in range(HD - 1):
        for tt in range(2):
            r = HREGS[k][tt]
            a.vseq += 1
            a.vmq.append((a.vseq, {('v', r + i) for i in range(4)}, False))
    a.vseq += 1
    a.vmq.append((a.vseq, set(), False))
    a.lseq += 1
    a.lgq.append((a.lseq, {('s', PSET[1] + i) for i in range(8)}, 'smem'))
    rest = [grp for k in range(R1, R1 + 10) for grp in g2_dma_items(k)][20 - NREST[0]:]
    for k in range(R1, R1 + 10): g.tokW[k] = 0
    def wregs(k):
        return W2R[2*k:2*k+2] if k < R1 else [G2FA[k & 1], G2FA[k & 1] + 4]
    st_ = {}
    VPS = {1: 21, 2: 22, 3: 23}
    AV = [138 + r for r in range(16)]
    GV, B2 = 154, 156
    VTOK, VHI = 16, 17
    def tail_loads():
        check_or_spin(a, 'g2_t', st_['t'], VP, VT, SRDF, TAILMASK)
        a(f'v_and_b32 v{VTOK}, 31, v{V_LANE}')
        a(f'v_lshrrev_b32 v{VHI}, 5, v{V_LANE}')
        a(f's_lshl_b32 s42, s{TAU}, 6')
        a(f's_lshl_b32 s43, s{WT}, 5')
        a('s_add_u32 s42, s42, s43')
        a(f'v_add_u32 v{VTOK}, s42, v{VTOK}')
        a(f'v_lshlrev_b32 v18, 2, v{VTOK}')
        a(f'v_add_u32 v18, {hex(WS_G)}, v18')
        a(f'buffer_load_dword v{GV}, v18, s[{SRD0}:{SRD0+3}], 0 offen {SC}')
        a(f's_lshl_b32 s42, s{DT}, 6')
        a(f's_lshl_b32 s43, s{WF}, 5')
        a('s_add_u32 s85, s42, s43')
        a(f'v_lshlrev_b32 v18, 2, v{VHI}')
        a('v_add_u32 v18, s85, v18')
        a('v_lshlrev_b32 v19, 1, v18')
        for i in range(4):
            a(f'global_load_dwordx2 v[{B2+2*i}:{B2+2*i+1}], v19, s[{P_B2}:{P_B2+1}] offset:{16*i}')
        a(f'v_lshrrev_b32 v18, 2, v{V_LANE}')
        a(f'v_and_b32 v19, 3, v{V_LANE}')
        a('v_add_u32 v2, s85, v18')
        a('v_lshlrev_b32 v2, 12, v2')
        a('v_lshl_add_u32 v2, v19, 4, v2')
        a(f's_lshl_b32 s42, s{TAU}, 7')
        a(f's_lshl_b32 s43, s{WT}, 6')
        a('s_add_u32 s42, s42, s43')
        a(f's_add_u32 s42, s42, {hex(WS_AT)}')
        a(f's_add_u32 s43, s42, {16*4096}')
        a(f'buffer_load_dwordx4 v[138:141], v2, s[{SRD0}:{SRD0+3}], s42 offen {SC}')
        a(f'buffer_load_dwordx4 v[142:145], v2, s[{SRD0}:{SRD0+3}], s43 offen {SC}')
        a(f's_add_u32 s42, s{W2K}, 73728')
        a('v_lshlrev_b32 v3, 6, v18')
        a('v_lshl_add_u32 v3, v19, 4, v3')
        a('v_add_u32 v3, s42, v3')
        a(f'v_lshrrev_b32 v4, 4, v{V_LANE}')
        a(f'v_and_b32 v5, 15, v{V_LANE}')
        a('v_lshrrev_b32 v6, 1, v4')
        a('v_lshrrev_b32 v7, 2, v5')
        a('v_lshl_add_u32 v6, v6, 2, v7')
        a('v_lshlrev_b32 v6, 6, v6')
        a('v_and_b32 v4, 1, v4')
        a('v_lshl_add_u32 v6, v4, 5, v6')
        a('v_and_b32 v5, 3, v5')
        a('v_lshl_add_u32 v6, v5, 3, v6')
        a('v_add_u32 v4, s42, v6')
    def a_stage():
        a('ds_write_b128 v3, v[138:141]')
        a('ds_write_b128 v3, v[142:145] offset:1024')
        for i in range(4):
            a(f'ds_read_b64_tr_b16 v[{146+2*i}:{147+2*i}], v4 offset:{512*i}')
    prep = [f'v_sub_f32 v20, 1.0, v{GV}', 'v_cvt_pk_bf16_f32 v20, v20, v20', 'v_lshlrev_b32 v20, 16, v20']
    for i in range(4):
        for h in range(2):
            prep.append(f'v_lshlrev_b32 v{AV[4*i+2*h]}, 16, v{146+2*i+h}')
            prep.append(f'v_and_b32 v{AV[4*i+2*h+1]}, 0xffff0000, v{146+2*i+h}')
        for h in range(2):
            prep.append(f'v_lshlrev_b32 v{6+2*h}, 16, v{B2+2*i+h}')
            prep.append(f'v_and_b32 v{7+2*h}, 0xffff0000, v{B2+2*i+h}')
        for r in range(4):
            prep.append(f'v_mul_f32 v{AV[4*i+r]}, v{AV[4*i+r]}, v{GV}')
        for r in range(4):
            prep.append(f'v_fmac_f32 v{AV[4*i+r]}, v{6+r}, v20')
    for k in range(28):
        rd = []
        if R1 <= k + 1 < 28:
            a.wait_vm_token(g.tokW[k + 1])
            rd = g2_wread_list(k + 1, wregs(k + 1))
        if 'g2st' in ARGS:
            if k in (1, 2, 3, 5, 7, 8, 10, 11, 14, 20): stamp(a, {1: 1, 2: 2, 3: 3, 5: 4, 7: 5, 8: 6, 10: 7, 11: 10, 14: 11, 20: 12}[k])
        elif 'tailst' in ARGS:
            if k in (20, 24): stamp(a, {20: 14, 24: 13}[k])
        elif k in (1, 9, 14, 20) and 'lastst' not in ARGS: stamp(a, {1: 11, 9: 12, 14: 13, 20: 14}[k])
        f = wregs(k)
        newp = [p for p in range(28) if HWHEN[p] == k]
        if k == HWHEN[7]:
            sc_eval(a, 1)
            sc_need(a, 'g2_h1', 2)
            sc_issue(a, 0)
        if k == HWHEN[14]: sc_need(a, 'g2_h2', 3)
        if k == HWHEN[21]:
            sc_eval(a, 0)
            sc_need(a, 'g2_h3', 4)
        if k == TAILK - 4: st_['t'] = poll_issue(a, VP, VT, SRDF, TAILMASK)
        if k == TAILK: tail_loads()
        hq = [hload(p, tt) for p in newp for tt in range(2)]
        n = 0
        for tt in range(2):
            r = HREGS[k][tt]
            for dd in range(2):
                acc = G2ACC[dd + 2 * tt]
                c = '0' if k == 0 else f'v[{acc}:{acc+15}]'
                a(f'v_mfma_f32_32x32x16_bf16 v[{acc}:{acc+15}], v[{f[dd]}:{f[dd]+3}], v[{r}:{r+3}], {c}')
                if hq: a(hq.pop(0))
                if n in (0, 1):
                    for l in rd[2*n:2*n+2]: a(l)
                if rest and (n in (1, 3) or len(rest) > 2 * (R1 - 2 - k)): put_items(a, g, rest.pop(0))
                if n == 3 and k >= R1 + 1 and k - 1 + 10 < 28: g2_dma(a, g, k - 1 + 10)
                if k == TAILK + ASTG and n == 3: a_stage()
                if k >= TAILK + ASTG + 2:
                    for _ in range(6):
                        if prep: a(prep.pop(0))
                n += 1
        assert not hq
    while prep: a(prep.pop(0))
    if 'tailst' in ARGS: stamp(a, 1)
    a(f'v_lshlrev_b32 v14, 4, v{V_LANE}')
    a(f'v_add_u32 v15, s{W4}, v14')
    XR = [32768, 0, 16384]
    for x in range(1, 4):
        for i in range(4):
            a(f'ds_write_b128 v15, v[{G2ACC[x]+4*i}:{G2ACC[x]+4*i+3}] offset:{XR[x-1]+1024*i}')
    if 'tailst' in ARGS: stamp(a, 2)
    if 'tailst' in ARGS: stamp(a, 3)
    a('s_waitcnt lgkmcnt(0)')
    a('s_barrier')
    if 'tailst' in ARGS: stamp(a, 4)
    PR = 170
    for x in range(1, 4):
        a(f's_xor_b32 s42, s{S_WAVE}, {x}')
        a('s_lshl_b32 s42, s42, 12')
        a('v_add_u32 v15, s42, v14')
        for i in range(4):
            a(f'ds_read_b128 v[{PR+16*(x-1)+4*i}:{PR+16*(x-1)+4*i+3}], v15 offset:{XR[x-1]+1024*i}')
    a(f'v_lshlrev_b32 v{VTOK}, 10, v{VTOK}')
    a('s_lshl_b32 s42, s85, 1')
    a(f'v_add_u32 v{VTOK}, s42, v{VTOK}')
    a(f'v_lshl_add_u32 v{VTOK}, v{VHI}, 4, v{VTOK}')
    srd(a, SRD1, P_OUT, 0, 2048 * 1024)
    ACC = G2ACC[0]
    for x in range(3):
        for r in range(16):
            a(f'v_add_f32 v{ACC+r}, v{ACC+r}, v{PR+16*x+r}')
    if 'tailst' in ARGS: stamp(a, 5)
    O = 96
    for r in range(16):
        a(f'v_fmac_f32 v{AV[r]}, v{ACC+r}, v20')
    for i in range(4):
        a(f'v_cvt_pk_bf16_f32 v{O+2*i}, v{AV[4*i]}, v{AV[4*i+1]}')
        a(f'v_cvt_pk_bf16_f32 v{O+2*i+1}, v{AV[4*i+2]}, v{AV[4*i+3]}')
    for p in range(2):
        a(f'v_permlane32_swap_b32 v{O+4*p}, v{O+4*p+2}')
        a(f'v_permlane32_swap_b32 v{O+4*p+1}, v{O+4*p+3}')
        a(f'buffer_store_dwordx4 v[{O+4*p}:{O+4*p+3}], v{VTOK}, s[{SRD1}:{SRD1+3}], 0 offen offset:{32*p} {OSC}')
    stamp(a, 15)
    if G.STAMP:
        a('s_waitcnt vmcnt(0)')
    G.stamp_flush(a)


def gemm_role(a):
    g = G2State()
    a(f's_sub_u32 s{S_IDX}, s2, 256')
    a('s_setprio 2')
    a(f's_and_b32 s{XC}, s{S_IDX}, 7')
    a(f's_lshr_b32 s{JJ}, s{S_IDX}, 3')
    a(f's_cmp_ge_u32 s{JJ}, 28')
    a('s_cbranch_scc1 L_service')
    a(f's_mul_i32 s42, s{JJ}, 37')
    a('s_lshr_b32 s42, s42, 8')
    a('s_mul_i32 s43, s42, 7')
    a(f's_sub_u32 s43, s{JJ}, s43')
    a(f's_lshr_b32 s44, s{XC}, 1')
    a('s_lshl_b32 s44, s44, 2')
    a(f's_add_u32 s{TB}, s44, s42')
    a(f's_and_b32 s44, s{XC}, 1')
    a('s_mul_i32 s44, s44, 7')
    a(f's_add_u32 s{FB_}, s44, s43')
    a('s_lshl_b32 s42, s42, 1')
    a('s_add_u32 s42, s42, s43')
    if 'rot7' in ARGS:
        a('s_cmp_ge_u32 s42, 7')
        a('s_cselect_b32 s43, 7, 0')
        a(f's_sub_u32 s{ROT}, s42, s43')
    else:
        a(f's_and_b32 s{ROT}, s42, 7')
    if 'norot' in ARGS: a(f's_mov_b32 s{ROT}, 0')
    g1_role(a, g)
    a('s_branch L_g2')
    a.label('L_service')
    a.reset()
    last_g1 = G._last[0]
    G.stamp_restart(0)
    service_role(a, G2State())
    stamp(a, 9)
    a.label('L_g2')
    a.reset()
    G.stamp_restart(9)
    g.tokW = {}
    g2_main(a, g)


def build():
    a = Asm()
    name = NAME + '_kernel'
    a.raw(HEADER.rstrip())
    a.raw(f'; @launch grid=(512,1,1) block=(256,1,1) lds={LDS_BYTES}')
    a.raw('.amdgcn_target "amdgcn-amd-amdhsa--gfx950"')
    a.raw('.text')
    a.raw(f'.globl {name}')
    a.raw('.p2align 8')
    a.raw(f'.type {name},@function')
    a.label(name)
    a.label('CODE_BEGIN')
    a.reset()
    a('s_cmp_ge_u32 s2, 512')
    a(f's_cbranch_scc1 L_exit')
    a('s_load_dwordx16 s[4:19], s[0:1], 0')
    a('s_load_dwordx16 s[20:35], s[0:1], 64')
    a('s_load_dwordx4 s[36:39], s[0:1], 128')
    a(f'v_lshrrev_b32 v2, 6, v{V_TID}')
    a(f'v_and_b32 v{V_LANE}, 63, v{V_TID}')
    a(f'v_readfirstlane_b32 s{S_WAVE}, v2')
    a('s_cmp_lt_u32 s2, 256')
    a('s_cbranch_scc1 L_ssm')
    a(f's_cmp_eq_u32 s2, {ZWG}')
    a('s_cbranch_scc0 L_gemm')
    a('s_setprio 3')
    if 'zst' in ARGS: a.raw('    s_memrealtime s[72:73]')
    a(f'v_lshlrev_b32 v2, 4, v{V_TID}')
    for k in range(4):
        a(f'v_mov_b32 v{4+k}, 0')
    a('s_waitcnt lgkmcnt(0)')
    a.lgq = []
    if 'zst' in ARGS: a.raw('    s_memrealtime s[74:75]')
    srd(a, SRDF, P_WS, WS_FL, FL_BYTES)
    for k in range(FL_BYTES // 4096):
        a(f'buffer_store_dwordx4 v[4:7], v2, s[{SRDF}:{SRDF+3}], 0 offen {SC}')
        if k + 1 < FL_BYTES // 4096: a('v_add_u32 v2, 4096, v2')
    srd(a, SRDD, P_DBG, 0, 256)
    a('v_mov_b32 v2, 0')
    a('v_mov_b32 v3, 1')
    if 'zst' in ARGS: a.raw('    s_memrealtime s[76:77]')
    a('s_waitcnt vmcnt(0)')
    if 'zst' in ARGS: a.raw('    s_memrealtime s[78:79]')
    a('s_barrier')
    a(f's_cmp_eq_u32 s{S_WAVE}, 0')
    a('s_cbranch_scc0 L_gemm')
    a('s_mov_b64 exec, 1')
    a(f'buffer_store_dword v3, v2, s[{SRDD}:{SRDD+3}], 0 offen {SC}', opt=True)
    if 'zst' in ARGS:
        a('s_waitcnt vmcnt(0)')
        a.raw('    s_memrealtime s[80:81]')
        a('s_waitcnt lgkmcnt(0)')
        for q, sr in enumerate((72, 74, 76, 78, 80)):
            a(f'v_mov_b32 v8, s{sr}')
            a(f'v_mov_b32 v9, {4 + 4*q}')
            a(f'buffer_store_dword v8, v9, s[{SRDD}:{SRDD+3}], 0 offen')
    a('s_mov_b64 exec, -1')
    a.label('L_gemm')
    a.reset()
    stamp(a, 0)
    gemm_role(a)
    a.label('L_exit')
    a('s_endpgm')
    emit_slow_blocks(a)
    emit_sc_slow(a)
    a.label('L_ssm')
    a.reset()
    G.stamp_restart(None)
    a('s_waitcnt lgkmcnt(0)')
    ssm_role(a)
    a('s_endpgm')
    emit_slow_blocks(a)
    a.raw(table())
    a.raw('CODE_END:')
    a.raw('.section .rodata,"a"')
    a.raw('.p2align 6')
    a.raw(kd(name).strip('\n'))
    return a.text()


if __name__ == '__main__':
    out = [x for x in sys.argv[1:] if x.endswith('.s')]
    out = out[0] if out else 'cdna_kernels/' + NAME + '.s'
    txt = build()
    open(out, 'w').write(txt)
    print('wrote', out, len(txt), 'bytes')
```

```python
import math, struct, sys
from asmlib import Asm
import gen as G
from gen import *

SC = 'sc1'
SRDF, SRDD = SRD4, SRD5
SPIN_LIMIT = 20000
FS = 5
FL_P0, FL_A, FL_H = 0x0, 0x2000, 0x4000
HS = 6
FL_BYTES = 0x8000
ARGS = set(sys.argv[1:])
slow_blocks = []


def setup_flag_srds(a):
    srd(a, SRDF, P_WS, WS_FL, FL_BYTES)
    srd(a, SRDD, P_DBG, 0, 256)


def set_exec(a, mask):
    if isinstance(mask, str):
        a(f's_mov_b64 exec, {mask}')
    elif mask < (1 << 31):
        a(f's_mov_b64 exec, {hex(mask)}')
    else:
        a(f's_mov_b32 exec_lo, {hex(mask & 0xffffffff)}')
        a(f's_mov_b32 exec_hi, {hex(mask >> 32)}')


def poll_issue(a, vd, vaddr, srd_, mask, off=0):
    set_exec(a, mask)
    tok = a(f'buffer_load_dword v{vd}, v{vaddr}, s[{srd_}:{srd_+3}], 0 offen offset:{off} {SC}')
    a('s_mov_b64 exec, -1')
    return tok


def cmp_mask(a, vd, mask):
    set_exec(a, mask)
    a(f'v_cmp_eq_u32 vcc, 1, v{vd}')
    a('s_mov_b64 s[46:47], exec')
    a('s_mov_b64 exec, -1')
    a('s_cmp_eq_u64 vcc, s[46:47]')


def spin(a, name, vd, vaddr, srd_, mask, off=0, sleep=2):
    a(f's_mov_b32 s45, {SPIN_LIMIT}')
    a.label(f'L_{name}_spin')
    set_exec(a, mask)
    a(f'buffer_load_dword v{vd}, v{vaddr}, s[{srd_}:{srd_+3}], 0 offen offset:{off} {SC}', opt=True)
    a('s_waitcnt vmcnt(0)')
    a(f'v_cmp_eq_u32 vcc, 1, v{vd}')
    a('s_mov_b64 s[46:47], exec')
    a('s_mov_b64 exec, -1')
    a('s_cmp_eq_u64 vcc, s[46:47]')
    a(f's_cbranch_scc1 L_{name}_done')
    a(f's_sleep {sleep}')
    a('s_sub_u32 s45, s45, 1')
    a('s_cmp_lg_u32 s45, 0')
    a(f's_cbranch_scc1 L_{name}_spin')
    a.label(f'L_{name}_done')


def check_or_spin(a, name, tok, vd, vaddr, srd_, mask, off=0):
    a.wait_vm_token(tok)
    cmp_mask(a, vd, mask)
    a(f's_cbranch_scc0 L_{name}_slow')
    a.label(f'L_{name}_back')
    slow_blocks.append((name, vd, vaddr, srd_, mask, off))


def emit_slow_blocks(a):
    for (name, vd, vaddr, srd_, mask, off) in slow_blocks:
        a.label(f'L_{name}_slow')
        a.reset()
        spin(a, name + 's', vd, vaddr, srd_, mask, off)
        a(f's_branch L_{name}_back')
    slow_blocks.clear()


def flag_store(a, vtmp, soff_expr_reg, extra=0, val=1):
    a(f'v_mov_b32 v{vtmp}, s{soff_expr_reg}')
    a(f'v_mov_b32 v{vtmp+1}, {val}')
    a('s_mov_b64 exec, 1')
    a(f'buffer_store_dword v{vtmp+1}, v{vtmp}, s[{SRDF}:{SRDF+3}], 0 offen offset:{extra} {SC}', opt=True)
    a('s_mov_b64 exec, -1')


def wave0_only(a, name, fn):
    a(f's_cmp_eq_u32 s{S_WAVE}, 0')
    a(f's_cbranch_scc0 L_{name}_skip')
    st = a.save()
    fn()
    a.label(f'L_{name}_skip')
    a.hist = []
    a.vmq = st[1]; a.lgq = st[2]


def red32(a, r, t):
    red8(a, r)
    a(f'v_add_f32_dpp v{r}, v{r}, v{r} row_mirror row_mask:0xf bank_mask:0xf')
    a(f'v_mov_b32 v{t}, v{r}')
    a(f'v_permlane16_swap_b32 v{r}, v{t}')
    a(f'v_add_f32 v{r}, v{r}, v{t}')


def p0_loads(a):
    X, J, T0, TT, DT = 72, 73, 74, 75, 76
    a(f's_and_b32 s{X}, s{S_IDX}, 7')
    a(f's_lshr_b32 s{J}, s{S_IDX}, 3')
    a(f's_lshl_b32 s{T0}, s{X}, 8')
    a(f's_lshl_b32 s42, s{J}, 3')
    a(f's_add_u32 s{T0}, s{T0}, s42')
    a(f's_lshl_b32 s{TT}, s{X}, 2')
    a(f's_lshr_b32 s42, s{J}, 3')
    a(f's_add_u32 s{TT}, s{TT}, s42')
    a(f's_and_b32 s{DT}, s{J}, 7')
    a(f'v_lshrrev_b32 v184, 3, v{V_LANE}')
    a(f'v_and_b32 v185, 7, v{V_LANE}')
    a(f's_lshl_b32 s42, s{TT}, 6')
    a(f's_lshl_b32 s43, s{S_WAVE}, 4')
    a('s_add_u32 s42, s42, s43')
    a('v_add_u32 v4, s42, v184')
    a('v_lshlrev_b32 v4, 10, v4')
    a('v_lshl_add_u32 v4, v185, 4, v4')
    a(f's_lshl_b32 s42, s{DT}, 7')
    a('v_add_u32 v4, s42, v4')
    a(f'global_load_dwordx4 v[160:163], v4, s[{P_U}:{P_U+1}]')
    a('v_add_u32 v4, 0x2000, v4')
    a(f'global_load_dwordx4 v[164:167], v4, s[{P_U}:{P_U+1}]')
    a(f'v_lshrrev_b32 v5, 5, v{V_LANE}')
    a(f'v_and_b32 v6, 31, v{V_LANE}')
    a(f's_lshl_b32 s42, s{S_WAVE}, 1')
    a(f's_add_u32 s42, s42, s{T0}')
    a('v_add_u32 v186, s42, v5')
    a('v_lshlrev_b32 v8, 10, v186')
    a('v_lshlrev_b32 v9, 5, v6')
    a('v_add_u32 v8, v8, v9')
    for k in range(2):
        a(f'global_load_dwordx4 v[{168+4*k}:{171+4*k}], v8, s[{P_U}:{P_U+1}] offset:{16*k}')
    for k in range(2):
        a(f'global_load_dwordx4 v[{176+4*k}:{179+4*k}], v9, s[{P_GW}:{P_GW+1}] offset:{16*k}')


def p0_compute(a):
    X, J, T0, TT, DT = 72, 73, 74, 75, 76
    srd(a, SRD0, P_WS, 0, 0x1000000)
    a(f's_lshl_b32 s42, s{S_WAVE}, 4')
    a('v_add_u32 v10, s42, v184')
    a('v_mul_u32_u24 v10, 144, v10')
    a('v_lshl_add_u32 v10, v185, 4, v10')
    a(f'v_add_u32 v10, {L_KT}, v10')
    a('ds_write_b128 v10, v[160:163]')
    a(f'ds_write_b128 v10, v[164:167] offset:{8*144}')
    if 'ssmst' in ARGS: stamp(a, 11)
    a('s_mov_b32 s46, 0x3f803f80')
    for k in range(4):
        a(f'v_mov_b32 v{12+k}, 0')
    for d in range(8):
        a(f'v_dot2_f32_bf16 v{12+d%2}, v{168+d}, s46, v{12+d%2}')
        a(f'v_dot2_f32_bf16 v{14+d%2}, v{168+d}, v{176+d}, v{14+d%2}')
    a('v_add_f32 v12, v12, v13')
    a('v_add_f32 v14, v14, v15')
    red32(a, 12, 16)
    red32(a, 14, 17)
    a(f'v_mul_f32 v12, {f32(1/512)}, v12')
    for k in range(4):
        a(f'v_mov_b32 v{20+k}, 0')
    for d in range(0, 8, 2):
        for e in range(2):
            a(f'v_lshlrev_b32 v{24+2*e}, 16, v{168+d+e}')
            a(f'v_and_b32 v{25+2*e}, 0xffff0000, v{168+d+e}')
        for e in range(4):
            a(f'v_sub_f32 v{24+e}, v{24+e}, v12')
        for e in range(4):
            a(f'v_fmac_f32 v{20+e}, v{24+e}, v{24+e}')
    a('v_add_f32 v20, v20, v21')
    a('v_add_f32 v22, v22, v23')
    a('v_add_f32 v20, v20, v22')
    red32(a, 20, 16)
    bf16_round(a, 14, 14)
    a(f'v_mul_f32 v14, {f32(-LOG2E)}, v14')
    a('v_exp_f32 v14, v14')
    a(f'v_mul_f32 v20, {f32(1/512)}, v20')
    a('v_add_f32 v14, 1.0, v14')
    a('v_rcp_f32 v14, v14')
    bf16_round(a, 20, 20)
    a(f'v_add_f32 v20, {f32(1e-5)}, v20')
    bf16_round(a, 14, 14)
    bf16_round(a, 20, 20)
    a('v_sqrt_f32 v20, v20')
    bf16_round(a, 12, 12)
    bf16_round(a, 13, 20)
    a('v_lshlrev_b32 v8, 2, v186')
    a(f'v_add_u32 v8, {hex(WS_G)}, v8')
    a('v_lshlrev_b32 v9, 3, v186')
    a(f'v_add_u32 v9, {hex(WS_ST)}, v9')
    a('s_mov_b32 exec_lo, 1')
    a('s_mov_b32 exec_hi, 1')
    a(f'buffer_store_dword v14, v8, s[{SRD0}:{SRD0+3}], 0 offen {SC}')
    a(f'buffer_store_dwordx2 v[12:13], v9, s[{SRD0}:{SRD0+3}], 0 offen {SC}')
    a('s_mov_b64 exec, -1')
    if 'ssmst' in ARGS: stamp(a, 12)
    a('s_waitcnt lgkmcnt(0)')
    a('s_barrier')
    if 'ssmst' in ARGS: stamp(a, 13)
    a(f'v_and_b32 v2, 15, v{V_LANE}')
    a(f'v_lshrrev_b32 v3, 4, v{V_LANE}')
    a('v_lshrrev_b32 v4, 2, v2')
    a('v_lshl_add_u32 v4, v3, 3, v4')
    a('v_mul_u32_u24 v4, 144, v4')
    a('v_and_b32 v5, 3, v2')
    a('v_lshl_add_u32 v4, v5, 3, v4')
    a(f's_lshl_b32 s42, s{S_WAVE}, 5')
    a(f's_add_u32 s42, s42, {L_KT}')
    a('v_add_u32 v4, s42, v4')
    for th in range(2):
        a(f'ds_read_b64_tr_b16 v[{64+4*th}:{65+4*th}], v4 offset:{th*32*144}')
        a(f'ds_read_b64_tr_b16 v[{66+4*th}:{67+4*th}], v4 offset:{th*32*144+4*144}')
    a(f's_lshl_b32 s42, s{DT}, 6')
    a(f's_lshl_b32 s43, s{S_WAVE}, 4')
    a('s_add_u32 s42, s42, s43')
    a('v_add_u32 v5, s42, v2')
    a('v_lshlrev_b32 v5, 12, v5')
    a('v_lshl_add_u32 v5, v3, 4, v5')
    a(f's_lshl_b32 s42, s{TT}, 7')
    a('v_add_u32 v5, s42, v5')
    for th in range(2):
        a(f'buffer_store_dwordx4 v[{64+4*th}:{67+4*th}], v5, s[{SRD0}:{SRD0+3}], 0 offen offset:{WS_UT+64*th} {SC}')


def ucopy_loads(a, opt):
    MH, D = 80, 81
    E = [160, 168, 176]
    for q2, vo in ((0, 30), (1, 31), (2, 32)):
        a(f'buffer_load_dwordx4 v[{E[q2]}:{E[q2]+3}], v{vo}, s[{SRD1}:{SRD1+3}], 0 offen {SC}', opt=opt)
        a(f'buffer_load_dwordx2 v[{E[q2]+4}:{E[q2]+5}], v{vo}, s[{SRD1}:{SRD1+3}], 0 offen offset:16 {SC}', opt=opt)


def ucopy_addr(a):
    MH, D = 80, 81
    a(f's_lshl_b32 s42, s{D}, 12')
    srd(a, SRD1, P_WS, 's42', 4096)
    a(f's_lshl_b32 s42, s{MH}, 11')
    a(f'v_lshlrev_b32 v29, 4, v{V_LANE}')
    a('v_add_u32 v29, s42, v29')
    a('v_subrev_u32 v30, 32, v29')
    a('v_add_u32 v31, 1024, v30')
    a('v_add_u32 v32, 2048, v30')


def ucopy_writes(a):
    C, MH = 79, 80
    E = [160, 168, 176]
    a(f's_mul_i32 s42, s{C}, {UC_CH}')
    a(f's_add_u32 s42, s42, {L_UC}')
    a('v_add_u32 v2, s42, v29')
    for q2 in range(3):
        e = E[q2]
        if q2 == 2:
            a(f's_cmp_eq_u32 s{MH}, 1')
            a('s_cselect_b64 exec, 3, 0')
        T = 184 + 12 * (q2 & 1)
        for k in range(4):
            a(f'v_alignbit_b32 v{T+k}, v{e+k+1}, v{e+k}, 16')
        for k in range(4):
            a(f'v_mov_b32 v{T+4+k}, v{e+k+1}')
        for k in range(4):
            a(f'v_alignbit_b32 v{T+8+k}, v{e+k+2}, v{e+k+1}, 16')
        off = 1024 * q2
        a(f'ds_write_b128 v2, v[{e}:{e+3}] offset:{off}')
        a(f'ds_write_b128 v2, v[{T}:{T+3}] offset:{off+UC_COPY}')
        a(f'ds_write_b128 v2, v[{T+4}:{T+7}] offset:{off+2*UC_COPY}')
        a(f'ds_write_b128 v2, v[{T+8}:{T+11}] offset:{off+3*UC_COPY}')
    a('s_mov_b64 exec, -1')


def ssm_role(a):
    X, J, T0, TT, DT = 72, 73, 74, 75, 76
    a(f's_mov_b32 s{S_IDX}, s2')
    stamp(a, 0)
    if 'kfirst' not in ARGS and 'noprio' not in ARGS: a('s_setprio 3')
    p0_loads(a)
    emit_ssm_loads(a)
    if 'hiprio' not in ARGS: a('s_setprio 0')
    if 'ssmst' in ARGS: stamp(a, 10)
    setup_flag_srds(a)
    st_ = {}
    def rdy_issue():
        pass
    def publish_p0():
        a('s_waitcnt vmcnt(0)')
        def chk():
            a('v_mov_b32 v33, 0')
            spin(a, 'ssm_rdy', 34, 33, SRDD, 1, sleep=3)
        wave0_only(a, 'ssm_rdyw', chk)
        a('s_barrier')
        def f():
            a(f's_lshl_b32 s42, s{S_IDX}, {FS}')
            a(f's_add_u32 s42, s42, {FL_P0}')
            flag_store(a, 35, 42)
        wave0_only(a, 'ssm_pub', f)
        stamp(a, 3 if 'kfirst' in ARGS else 9)
    def publish_a():
        def f():
            a(f's_lshl_b32 s42, s{S_IDX}, {FS}')
            a(f's_add_u32 s42, s42, {FL_A}')
            flag_store(a, 35, 42)
        wave0_only(a, 'ssm_pub2', f)
    if 'ssmlite' in ARGS:
        a('s_waitcnt lgkmcnt(0)')
        p0_compute(a)
        rdy_issue()
        publish_p0()
        publish_a()
        G.stamp_flush(a)
        return
    def ut_addr():
        a(f's_lshr_b32 s42, s{S_IDX}, 5')
        a(f'v_and_b32 v35, 7, v{V_LANE}')
        a(f'v_lshrrev_b32 v36, 3, v{V_LANE}')
        a('v_lshlrev_b32 v36, 3, v36')
        a('v_add_u32 v36, s42, v36')
        a('v_lshl_add_u32 v35, v36, 3, v35')
        a(f'v_lshlrev_b32 v35, {FS}, v35')
        ucopy_addr(a)
    if 'kfirst' in ARGS:
        def pre_mfma():
            stamp(a, 1)
            p0_compute(a)
            stamp(a, 2)
            rdy_issue()
        def post_mfma():
            publish_p0()
            ut_addr()
        G.emit_kgen(a, 'kg', pre_mfma=pre_mfma, post_mfma=post_mfma)
    else:
        p0_compute(a)
        stamp(a, 1)
        rdy_issue()
        def setup_hook():
            publish_p0()
            a('s_setprio 0')
        def pre_mfma():
            stamp(a, 2)
            ut_addr()
            st_['ut'] = poll_issue(a, 34, 35, SRDF, 0xffffffff, FL_P0)
        def post_mfma():
            a.wait_vm_token(st_['ut'])
            cmp_mask(a, 34, 0xffffffff)
            a('s_cselect_b32 s82, 1, 0')
            a('s_cbranch_scc0 L_ssm_noearly')
            sv = a.save()
            ucopy_loads(a, True)
            a.label('L_ssm_noearly')
            a.hist = []; a.vmq = sv[1]; a.lgq = sv[2]
        G.emit_kgen(a, 'kg', setup_hook=setup_hook, pre_mfma=pre_mfma, post_mfma=post_mfma)
    stamp(a, 4)
    a('s_cmp_eq_u32 s82, 1')
    a('s_cbranch_scc1 L_ssm_have')
    spin(a, 'ssm_ut', 34, 35, SRDF, 0xffffffff, FL_P0)
    ucopy_loads(a, True)
    a.label('L_ssm_have')
    a.hist = []
    a('s_waitcnt vmcnt(0) lgkmcnt(0)')
    a('s_barrier')
    ucopy_writes(a)
    a('s_waitcnt lgkmcnt(0)')
    a('s_barrier')
    stamp(a, 5)
    if 'nogate' not in ARGS:
        a(f's_cmp_ge_u32 s{J}, 28')
        a('s_cbranch_scc1 L_ssm_go')
        a(f's_mul_i32 s42, s{J}, 37')
        a('s_lshr_b32 s42, s42, 8')
        a('s_mul_i32 s43, s42, 7')
        a(f's_sub_u32 s43, s{J}, s43')
        a(f's_lshr_b32 s44, s{X}, 1')
        a('s_lshl_b32 s44, s44, 2')
        a('s_add_u32 s42, s44, s42')
        a(f's_and_b32 s44, s{X}, 1')
        a('s_mul_i32 s44, s44, 7')
        a('s_add_u32 s43, s44, s43')
        a('s_mul_i32 s42, s42, 14')
        a('s_add_u32 s42, s42, s43')
        a(f's_lshl_b32 s42, s42, {HS}')
        a(f's_lshl_b32 s43, s{S_WAVE}, 2')
        a('s_add_u32 s42, s42, s43')
        a(f's_add_u32 s83, s42, {hex(WS_FL + FL_H)}')
        a('s_mov_b32 s45, 300')
        a.label('L_ssm_gate')
        a.lgq = []
        a(f's_load_dword s84, s[{P_WS}:{P_WS+1}], s83 glc')
        a(f's_cmp_ge_u32 s84, {GATE_LEVEL}')
        a('s_cbranch_scc1 L_ssm_go')
        a('s_sleep 4')
        a('s_sub_u32 s45, s45, 1')
        a('s_cmp_lg_u32 s45, 0')
        a('s_cbranch_scc1 L_ssm_gate')
        a.label('L_ssm_go')
        a.reset()
    stamp(a, 6)
    if 'cvp0' not in ARGS: a('s_setprio 3')
    emit_conv(a, 'cv', SC)
    stamp(a, 7)
    a('s_waitcnt vmcnt(0)')
    a('s_barrier')
    publish_a()
    stamp(a, 8)
    G.stamp_flush(a)


TB, FB_, JJ, XC, PAR = 72, 73, 74, 75, 76
HOFF = [77, 78]
ROT = 79
WF, WT = 82, 83
W4, W2K = 81, 80
SLOTS = [(4, 32768), (4, 32768 + 2048), (2, 49152), (4, 0), (4, 2048), (2, 57344), (2, 65536), (4, 16384), (4, 16384 + 2048), (2, 73728)]
TAU, DT = 87, 88
KX = list(range(6, 14))
KW = list(range(14, 22))
SP = list(range(90, 97))
WE = [97, 98, 99, 100]
SRDW2 = 24
R1 = 10
GW, GA, GH, VF, VT, VP = [128, 129], [130, 131], [132, 133, 134, 135], 136, 137, 20
GA2 = [218, 219]
W2R = [138 + 4 * k for k in range(20)]
G2ACC = [32, 48, 64, 80]
HD = 6
HRING = [220, 224, 228, 232, 96, 100, 120, 124, 104, 108, 112, 116]
G2FA = [236, 244]
TAILMASK = (1 << 40) - 1
GAP = int([x[3:] for x in ARGS if x.startswith('gap')][0]) if any(x.startswith('gap') for x in ARGS) else 17
R1_READ_AT = int([x[3:] for x in ARGS if x.startswith('rra')][0]) if any(x.startswith('rra') for x in ARGS) else 1
PUB0 = int([x[3:] for x in ARGS if x.startswith('pub')][0]) if any(x.startswith('pub') for x in ARGS) else 3
GATE_LEVEL = int([x[4:] for x in ARGS if x.startswith('gate') and x[4:].isdigit()][0]) if any(x.startswith('gate') and x[4:].isdigit() for x in ARGS) else 3
ZWG = 256 + 8 * 29
TAILK = int([x[2:] for x in ARGS if x.startswith('tk')][0]) if any(x.startswith('tk') for x in ARGS) else 20
HSC = '' if 'hplain' in ARGS else 'sc1 nt' if 'hnt' in ARGS else 'sc0 sc1' if 'hsc01' in ARGS else 'sc0 sc1 nt' if 'hsc01nt' in ARGS else 'sc1'
OSC = 'sc1' if 'osc1' in ARGS else 'nt' if 'ont' in ARGS else 'sc0 sc1' if 'osc01' in ARGS else ''
ASTG = int([x[3:] for x in ARGS if x.startswith('ast')][0]) if any(x.startswith('ast') for x in ARGS) else 3
TOUCH_ST = int([x[3:] for x in ARGS if x.startswith('tst')][0]) if any(x.startswith('tst') for x in ARGS) else 12
PFDEPTH = int([x[3:] for x in ARGS if x.startswith('pfd')][0]) if any(x.startswith('pfd') for x in ARGS) else 1


class G2State:
    pass


def pos_mj(k):
    return k % 7, (k // 7) & 1, k >= 14


def g2_setup(a):
    if 'map48' in ARGS:
        a(f's_lshl_b32 s42, s{XC}, 2')
        a(f's_lshr_b32 s44, s{JJ}, 3')
        a(f's_add_u32 s{TAU}, s42, s44')
        a(f's_and_b32 s{DT}, s{JJ}, 7')
        a(f's_and_b32 s{PAR}, s{TAU}, 1')
        a(f's_cmp_eq_u32 s{DT}, 7')
        a(f's_cselect_b32 s42, 0, s{DT}')
    else:
        a(f's_lshr_b32 s42, s{XC}, 1')
        a('s_lshl_b32 s42, s42, 3')
        a(f's_lshr_b32 s44, s{JJ}, 2')
        a(f's_add_u32 s{TAU}, s42, s44')
        a(f's_and_b32 s42, s{XC}, 1')
        a('s_lshl_b32 s42, s42, 2')
        if 'dtshift' in ARGS:
            a(f's_add_u32 s43, s{JJ}, 1')
            a('s_and_b32 s43, s43, 3')
        else:
            a(f's_and_b32 s43, s{JJ}, 3')
        a(f's_add_u32 s{DT}, s42, s43')
        a(f's_and_b32 s{PAR}, s{TAU}, 1')
        a('s_lshl_b32 s42, s43, 1')
        a('s_add_u32 s42, s42, s44')
        a('s_cmp_ge_u32 s42, 7')
        a('s_cselect_b32 s43, 7, 0')
        a('s_sub_u32 s42, s42, s43')
    a(f's_mul_i32 s44, s{S_WAVE}, {28*1024}')
    for m in range(7):
        a('s_lshl_b32 s43, s42, 12')
        a(f's_add_u32 s{SP[m]}, s43, s44')
        if m < 6:
            a('s_add_u32 s42, s42, 1')
            a('s_cmp_eq_u32 s42, 7')
            a('s_cselect_b32 s42, 0, s42')
    a(f's_lshl_b32 s{WE[0]}, s{PAR}, 15')
    a(f's_add_u32 s{WE[1]}, s{WE[0]}, 16384')
    a(f's_sub_u32 s{WE[2]}, 32768, s{WE[0]}')
    a(f's_add_u32 s{WE[3]}, s{WE[2]}, 16384')
    a(f's_lshl_b32 s42, s{DT}, 7')
    a(f's_sub_u32 s43, {1792*1024}, s42')
    srd(a, SRDW2, P_W2, 's42', 's43')
    a(f's_mul_i32 s42, s{TAU}, {2*112*1024}')
    a(f's_add_u32 s42, s42, {hex(WS_H)}')
    srd(a, SRD3, P_WS, 's42', 2 * 112 * 1024)
    a(f's_and_b32 s{WF}, s{S_WAVE}, 1')
    a(f's_lshr_b32 s{WT}, s{S_WAVE}, 1')
    t0, t1, t2, t3 = 96, 97, 98, 99
    a(f'v_lshrrev_b32 v{t0}, 3, v{V_LANE}')
    a(f'v_and_b32 v{t1}, 7, v{V_LANE}')
    a(f'v_lshrrev_b32 v{t2}, 2, v{t1}')
    a(f'v_lshrrev_b32 v{t3}, 1, v{t0}')
    a(f'v_and_b32 v{t3}, 1, v{t3}')
    a(f'v_xor_b32 v{t2}, v{t2}, v{t3}')
    a(f'v_and_b32 v{t1}, 3, v{t1}')
    a(f'v_lshl_add_u32 v{t2}, v{t2}, 2, v{t1}')
    a(f'v_lshlrev_b32 v{t0}, 10, v{t0}')
    a(f'v_lshl_add_u32 v{GW[0]}, v{t2}, 4, v{t0}')
    a(f'v_add_u32 v{GW[1]}, {8*1024-1024}, v{GW[0]}')
    a(f's_lshl_b32 s{W4}, s{S_WAVE}, 12')
    a(f's_lshl_b32 s{W2K}, s{S_WAVE}, 11')
    a(f'v_lshrrev_b32 v{t0}, 4, v{V_LANE}')
    a(f'v_and_b32 v{t1}, 15, v{V_LANE}')
    a(f'v_lshrrev_b32 v{t2}, 2, v{t1}')
    a(f'v_and_b32 v{t1}, 3, v{t1}')
    a(f'v_lshrrev_b32 v{t3}, 1, v{t0}')
    a(f'v_and_b32 v{t0}, 1, v{t0}')
    a(f'v_lshl_add_u32 v{t3}, v{t3}, 2, v{t2}')
    a(f'v_lshlrev_b32 v{t3}, 7, v{t3}')
    a(f'v_lshl_add_u32 v{t3}, v{t0}, 5, v{t3}')
    a(f'v_lshl_add_u32 v{t3}, v{t1}, 3, v{t3}')
    a(f'v_lshrrev_b32 v{t2}, 1, v{t2}')
    a(f'v_xor_b32 v{t2}, s{WF}, v{t2}')
    a(f'v_lshl_add_u32 v{GA[0]}, v{t2}, 6, v{t3}')
    a(f'v_xor_b32 v{t2}, 1, v{t2}')
    a(f'v_lshl_add_u32 v{GA[1]}, v{t2}, 6, v{t3}')
    a(f's_add_u32 s42, s{W2K}, 49152')
    for dd in range(2):
        a(f'v_add_u32 v{GA2[dd]}, s42, v{GA[dd]}')
        a(f'v_add_u32 v{GA[dd]}, s{W4}, v{GA[dd]}')
    a(f'v_lshlrev_b32 v{t2}, 4, v{V_LANE}')
    a(f's_lshl_b32 s43, s{PAR}, 11')
    a(f'v_add_u32 v{t2}, s43, v{t2}')
    a(f's_mul_i32 s42, s{WT}, {112*1024}')
    a(f'v_add_u32 v{GH[0]}, s42, v{t2}')
    a(f's_sub_u32 s42, {112*1024}, s42')
    a(f'v_add_u32 v{GH[1]}, s42, v{t2}')
    a('s_lshl_b32 s43, s43, 1')
    a('s_sub_u32 s43, 2048, s43')
    a(f'v_add_u32 v{GH[2]}, s43, v{GH[0]}')
    a(f'v_add_u32 v{GH[3]}, s43, v{GH[1]}')
    a(f's_lshr_b32 s42, s{TAU}, 1')
    a('s_mul_i32 s42, s42, 14')
    a(f's_mul_i32 s43, s{S_WAVE}, 7')
    a('s_lshr_b32 s43, s43, 1')
    a('s_add_u32 s42, s42, s43')
    a(f's_lshl_b32 s42, s42, {HS}')
    a(f's_lshl_b32 s43, s{PAR}, 3')
    a('s_add_u32 s42, s42, s43')
    a(f's_add_u32 s42, s42, {hex(WS_FL + FL_H)}')
    a(f's_add_u32 s{SFL}, s{P_WS}, s42')
    a(f's_addc_u32 s{SFL+1}, s{P_WS+1}, 0')
    a(f's_lshl_b32 s42, s{DT}, 5')
    a(f'v_add_u32 v{VT}, s42, v{V_LANE}')
    a(f'v_lshlrev_b32 v{VT}, {FS}, v{VT}')
    a(f'v_add_u32 v{VT}, {FL_A}, v{VT}')
    a(f's_lshr_b32 s42, s{TAU}, 2')
    a(f's_and_b32 s43, s{TAU}, 3')
    a('s_lshl_b32 s43, s43, 6')
    a('s_add_u32 s42, s42, s43')
    a(f'v_subrev_u32 v{t0}, 32, v{V_LANE}')
    a(f'v_lshlrev_b32 v{t0}, 3, v{t0}')
    a(f'v_add_u32 v{t0}, s42, v{t0}')
    a(f'v_lshlrev_b32 v{t0}, {FS}, v{t0}')
    a(f'v_add_u32 v{t0}, {FL_P0}, v{t0}')
    a(f'v_cmp_gt_u32 vcc, 32, v{V_LANE}')
    a(f'v_cndmask_b32 v{VT}, v{t0}, v{VT}, vcc')


def g2_dma_items(k):
    m, j, late = pos_mj(k)
    kind, off = SLOTS[k % 10]
    pre = [f's_add_u32 m0, s{W4 if kind == 4 else W2K}, {off}']
    if 'w2same' in ARGS: pre.append('s_mov_b32 s89, 0')
    else: pre.append(f's_lshl4_add_u32 s89, s{SP[m]}, s{WE[2*late+j]}')
    if 'w2small' in ARGS: pre.append('s_and_b32 s89, s89, 0x1ffff')
    return [pre + [f'buffer_load_dwordx4 v{GW[0]}, s[{SRDW2}:{SRDW2+3}], s89 offen lds'],
            [(f'buffer_load_dwordx4 v{GW[1]}, s[{SRDW2}:{SRDW2+3}], s89 offen offset:1024 lds', k)]]


def put_items(a, g, items):
    for it in items:
        if isinstance(it, tuple): g.tokW[it[1]] = a(it[0])
        else: a(it)


def g2_dma(a, g, k):
    for grp in g2_dma_items(k): put_items(a, g, grp)


def g2_wread_list(k, regs):
    kind, off = SLOTS[k % 10]
    l = []
    for dd in range(2):
        v_, o = (GA[dd], off) if kind == 4 else (GA2[dd], off - 49152)
        l.append(f'ds_read_b64_tr_b16 v[{regs[dd]}:{regs[dd]+1}], v{v_} offset:{o}')
        l.append(f'ds_read_b64_tr_b16 v[{regs[dd]+2}:{regs[dd]+3}], v{v_} offset:{o+1024}')
    return l


def g2_round1_reads(a, g):
    a.wait_vm_token(max(g.tokW[k] for k in range(R1)))
    for k in range(R1):
        for l in g2_wread_list(k, W2R[2*k:2*k+2]): a(l)


def h_schedule():
    free = list(HRING)
    regs, when = {}, {}
    nxt = 0
    for p in range(HD - 1):
        regs[p] = (free.pop(0), free.pop(0)); when[p] = -1; nxt += 1
    for k in range(28):
        if k >= 1:
            free += list(regs[k - 1])
            if RESERVED <= k - 1 < R1: free += W2R[2*(k-1):2*(k-1)+2]
        n = 0
        while nxt < 28 and len(free) >= 2 and n < 2:
            regs[nxt] = (free.pop(0), free.pop(0)); when[nxt] = k; nxt += 1; n += 1
    return regs, when


RESERVED = 4
HREGS, HWHEN = h_schedule()


SFL = 32
PSET = [6, 14]
SPINSET = 72
sc_slow = []
NREST = [0]


LVL = 101


def sc_issue(a, st):
    d = PSET[st]
    for i in range(4):
        a(f's_load_dwordx2 s[{d+2*i}:{d+2*i+1}], s[{SFL}:{SFL+1}], {(1 << HS)*i} glc')


def sc_eval(a, st):
    d = PSET[st]
    a(f's_min_u32 s42, s{d}, s{d+1}')
    for i in range(2, 8):
        a(f's_min_u32 s42, s42, s{d+i}')
    a(f's_max_u32 s{LVL}, s{LVL}, s42')


def sc_need(a, name, level):
    a(f's_cmp_ge_u32 s{LVL}, {level}')
    a(f's_cbranch_scc0 L_{name}_slow')
    a.label(f'L_{name}_back')
    sc_slow.append((name, level))


def sc_spin(a, name, level):
    a(f's_mov_b32 s45, {SPIN_LIMIT}')
    a.label(f'L_{name}_spin')
    a.lgq = []
    for i in range(4):
        a(f's_load_dwordx2 s[{SPINSET+2*i}:{SPINSET+2*i+1}], s[{SFL}:{SFL+1}], {(1 << HS)*i} glc')
    a(f's_min_u32 s42, s{SPINSET}, s{SPINSET+1}')
    for i in range(2, 8):
        a(f's_min_u32 s42, s42, s{SPINSET+i}')
    a(f's_max_u32 s{LVL}, s{LVL}, s42')
    a(f's_cmp_ge_u32 s{LVL}, {level}')
    a(f's_cbranch_scc1 L_{name}_done')
    a('s_sleep 2')
    a('s_sub_u32 s45, s45, 1')
    a('s_cmp_lg_u32 s45, 0')
    a(f's_cbranch_scc1 L_{name}_spin')
    a.label(f'L_{name}_done')


def emit_sc_slow(a):
    for name, level in sc_slow:
        a.label(f'L_{name}_slow')
        a.reset()
        a('s_waitcnt lgkmcnt(0)')
        sc_spin(a, name + 's', level)
        a(f's_branch L_{name}_back')
    sc_slow.clear()


def hload(k, tt):
    m, j, late = pos_mj(k)
    r = HREGS[k][tt]
    return f'buffer_load_dwordx4 v[{r}:{r+3}], v{GH[2*late+tt]}, s[{SRD3}:{SRD3+3}], s{SP[m]} offen offset:{1024*j} {SC}'


def h_prologue(a, opt=False):
    for k in range(HD - 1):
        for tt in range(2): a(hload(k, tt), opt=opt)


def g1_role(a, g):
    VX = [2, 3, 4, 5]
    VW = [6, 7, 8, 9]
    a(f's_and_b32 s{WF}, s{S_WAVE}, 1')
    a(f's_lshr_b32 s{WT}, s{S_WAVE}, 1')
    a(f'v_lshrrev_b32 v12, 3, v{V_LANE}')
    a(f'v_and_b32 v13, 7, v{V_LANE}')
    a('v_lshrrev_b32 v14, 1, v12')
    a('v_xor_b32 v14, v13, v14')
    a(f's_lshl_b32 s42, s{S_WAVE}, 4')
    a('v_add_u32 v15, s42, v12')
    a('v_lshlrev_b32 v15, 10, v15')
    a(f'v_lshl_add_u32 v{VX[0]}, v14, 4, v15')
    a('v_xor_b32 v14, 4, v14')
    a(f'v_lshl_add_u32 v{VX[1]}, v14, 4, v15')
    a(f'v_add_u32 v{VX[1]}, {8*1024-1024}, v{VX[1]}')
    a(f'v_lshrrev_b32 v12, 4, v{V_LANE}')
    a(f'v_and_b32 v13, 15, v{V_LANE}')
    a('v_lshrrev_b32 v14, 2, v13')
    a('v_xor_b32 v14, v14, v12')
    a('v_and_b32 v13, 3, v13')
    a('v_lshl_add_u32 v14, v14, 2, v13')
    a(f's_lshl_b32 s42, s{S_WAVE}, 3')
    a('v_add_u32 v15, s42, v12')
    a('v_mul_u32_u24 v15, 3584, v15')
    a(f'v_lshl_add_u32 v{VW[0]}, v14, 4, v15')
    a(f'v_add_u32 v{VW[1]}, {4*3584-1024}, v{VW[0]}')
    a(f's_lshl_b32 s84, s{S_WAVE}, 11')
    def ktab(c):
        if 'rot7' in ARGS:
            if c == 0:
                a('s_mov_b32 s42, 0')
            else:
                a(f's_add_u32 s42, s{ROT}, {c - 1}')
                a('s_cmp_ge_u32 s42, 7')
                a('s_cselect_b32 s43, 7, 0')
                a('s_sub_u32 s42, s42, s43')
                a('s_add_u32 s42, s42, 1')
        else:
            a(f's_add_u32 s42, s{ROT}, {c}')
            a('s_and_b32 s42, s42, 7')
        a(f's_lshl_b32 s{KX[c]}, s42, 7')
        a(f's_mul_i32 s{KW[c]}, s42, 229376')
    if 'prost' in ARGS: stamp(a, 3)
    a('s_waitcnt lgkmcnt(0)')
    a.lgq = []
    if 'prost' in ARGS: stamp(a, 4)
    ktab(0); ktab(1)
    a(f's_lshl_b32 s42, s{TB}, 17')
    srd(a, SRD1, P_X, 's42', 131072)
    a(f's_lshl_b32 s42, s{FB_}, 8')
    a(f's_sub_u32 s43, {512*3584}, s42')
    srd(a, SRD2, P_W1, 's42', 's43')
    tokW, tokX = {}, {}
    def dma_w_list(st):
        o = 2 * (st & 1)
        return [f's_add_u32 m0, s84, {G1_WS[st % 4]}',
                f'buffer_load_dwordx4 v{VW[o]}, s[{SRD2}:{SRD2+3}], s{KW[st >> 1]} offen lds',
                (f'buffer_load_dwordx4 v{VW[o+1]}, s[{SRD2}:{SRD2+3}], s{KW[st >> 1]} offen offset:1024 lds', ('w', st))]
    def dma_x_list(c, h):
        return [f's_add_u32 m0, s84, {G1_XS[c % 3] + 8192*h}',
                f'buffer_load_dwordx4 v{VX[2*h]}, s[{SRD1}:{SRD1+3}], s{KX[c]} offen lds',
                (f'buffer_load_dwordx4 v{VX[2*h+1]}, s[{SRD1}:{SRD1+3}], s{KX[c]} offen offset:1024 lds', ('x', (c, h)))]
    g.tokW = {}
    def w2_items(k):
        out = []
        for grp in g2_dma_items(k):
            for it in grp:
                out.append((it[0], ('g', it[1])) if isinstance(it, tuple) else it)
        return out
    def put(item):
        if isinstance(item, tuple):
            t = a(item[0])
            {'w': tokW, 'x': tokX, 'g': g.tokW}[item[1][0]][item[1][1]] = t
        elif callable(item):
            item()
        else:
            a(item)
    if 'prost' in ARGS: stamp(a, 5)
    for it in dma_w_list(0) + dma_x_list(0, 0): put(it)
    if 'prost' in ARGS: stamp(a, 6)
    a(f'v_add_u32 v{VX[2]}, 65536, v{VX[0]}')
    a(f'v_add_u32 v{VX[3]}, 65536, v{VX[1]}')
    a(f'v_add_u32 v{VW[2]}, {32*3584}, v{VW[0]}')
    a(f'v_add_u32 v{VW[3]}, {32*3584}, v{VW[1]}')
    for it in dma_x_list(0, 1) + dma_w_list(1) + dma_x_list(1, 0) + dma_x_list(1, 1) + dma_w_list(2): put(it)
    if 'g2st' not in ARGS and 'blkst' not in ARGS and 'lastst' not in ARGS and 'tailst' not in ARGS: stamp(a, 1)
    for c in range(2, 8): ktab(c)
    B1V = [26, 27]
    a(f's_lshl_b32 s42, s{FB_}, 7')
    a(f's_lshl_b32 s43, s{WF}, 6')
    a('s_add_u32 s42, s42, s43')
    a(f'v_and_b32 v21, 31, v{V_LANE}')
    a('v_add_u32 v22, s42, v21')
    a('v_lshlrev_b32 v22, 1, v22')
    a(f's_lshl_b32 s42, s{WT}, 6')
    a('v_add_u32 v23, s42, v22')
    a(f'global_load_ushort v{B1V[0]}, v23, s[{P_B1}:{P_B1+1}]')
    a('s_sub_u32 s42, 64, s42')
    a('v_add_u32 v23, s42, v22')
    a(f'global_load_ushort v{B1V[1]}, v23, s[{P_B1}:{P_B1+1}]')
    setup_flag_srds(a)
    srd(a, SRD0, P_WS, 0, 0x1000000)
    g2_setup(a)
    VA = [10, 11]; VB = [16, 17, 18, 19]
    a(f'v_lshrrev_b32 v12, 4, v{V_LANE}')
    a(f'v_and_b32 v13, 15, v{V_LANE}')
    a('v_lshrrev_b32 v14, 2, v13')
    a('v_and_b32 v13, 3, v13')
    a('v_lshrrev_b32 v15, 1, v12')
    a('v_and_b32 v12, 1, v12')
    a('v_lshl_add_u32 v15, v15, 3, v14')
    a('v_lshlrev_b32 v15, 8, v15')
    a('v_lshl_add_u32 v15, v12, 5, v15')
    a('v_lshl_add_u32 v15, v13, 3, v15')
    a(f'v_add_u32 v15, {G1_WS[0]}, v15')
    a(f's_lshl_b32 s42, s{WF}, 1')
    a(f's_add_u32 s42, s42, s{WT}')
    for l in range(2):
        if l: a('s_xor_b32 s42, s42, 1')
        a('v_xor_b32 v12, s42, v14')
        a(f'v_lshl_add_u32 v{VA[l]}, v12, 6, v15')
    a(f'v_and_b32 v12, 31, v{V_LANE}')
    a(f'v_lshrrev_b32 v13, 5, v{V_LANE}')
    a('v_lshrrev_b32 v14, 1, v12')
    a('v_and_b32 v14, 7, v14')
    a(f's_lshl_b32 s42, s{WT}, 6')
    a('v_add_u32 v12, s42, v12')
    a('v_lshlrev_b32 v12, 7, v12')
    for kk in range(4):
        a(f'v_add_u32 v15, {2*kk}, v13')
        a('v_xor_b32 v15, v15, v14')
        a(f'v_lshl_add_u32 v{VB[kk]}, v15, 4, v12')
    ONES, SACC = 248, 232
    for k in range(4):
        a(f'v_mov_b32 v{ONES+k}, 0x3f803f80')
    MS = [12, 14]
    a('v_mov_b32 v28, 0')
    a(f's_lshr_b32 s42, s{TB}, 1')
    a(f's_and_b32 s43, s{TB}, 1')
    a('s_lshl_b32 s43, s43, 7')
    a('s_add_u32 s42, s42, s43')
    a(f'v_lshlrev_b32 v29, 3, v{V_LANE}')
    a('v_add_u32 v29, s42, v29')
    a(f'v_lshlrev_b32 v29, {FS}, v29')
    a(f's_lshl_b32 s42, s{TB}, 7')
    a(f's_lshl_b32 s43, s{WT}, 6')
    a('s_add_u32 s42, s42, s43')
    a('v_add_u32 v30, s42, v21')
    a('v_lshlrev_b32 v30, 3, v30')
    a(f'v_add_u32 v30, {hex(WS_ST)}, v30')
    a(f's_lshl_b32 s{HOFF[0]}, s{WT}, 11')
    a(f's_sub_u32 s{HOFF[1]}, 2048, s{HOFF[0]}')
    a(f's_lshl_b32 s42, s{TB}, 2')
    a(f's_lshl_b32 s43, s{WT}, 1')
    a('s_add_u32 s42, s42, s43')
    a('s_mul_i32 s42, s42, 112')
    a(f's_lshl_b32 s43, s{FB_}, 3')
    a('s_add_u32 s42, s42, s43')
    a(f's_lshl_b32 s43, s{WF}, 2')
    a('s_add_u32 s42, s42, s43')
    a('s_lshl_b32 s42, s42, 10')
    a(f's_add_u32 s42, s42, {hex(WS_H)}')
    VH = [24, 25]
    a(f'v_lshlrev_b32 v24, 4, v{V_LANE}')
    a('v_add_u32 v24, s42, v24')
    a(f'v_add_u32 v25, {112*1024}, v24')
    a(f's_add_u32 s44, s{W2K}, 65536')
    a(f's_xor_b32 s45, s{S_WAVE}, 2')
    a('s_lshl_b32 s45, s45, 11')
    a('s_add_u32 s45, s45, 65536')
    a('v_lshlrev_b32 v21, 2, v21')
    a('v_add_u32 v23, s45, v21')
    a('v_add_u32 v21, s44, v21')
    st_ = {}
    def h_rdy_issue(): st_['r'] = poll_issue(a, 31, 28, SRDD, 1)
    def h_rdy_check(): check_or_spin(a, 'g1_rdy', st_['r'], 31, 28, SRDD, 1)
    def h_fl_issue(): st_['f'] = poll_issue(a, 31, 29, SRDF, 0xffff, FL_P0)
    def h_fl_check():
        check_or_spin(a, 'g1_fl', st_['f'], 31, 29, SRDF, 0xffff, FL_P0)
        for tt in range(2):
            a(f'buffer_load_dwordx2 v[{MS[tt]}:{MS[tt]+1}], v30, s[{SRD0}:{SRD0+3}], 0 offen offset:{256*tt} {SC}')
    def w2_touch():
        if 'notouch' in ARGS: return
        a(f's_lshl_b32 s42, s{JJ}, 6')
        a(f's_lshl_b32 s43, s{S_WAVE}, 4')
        a('s_add_u32 s42, s42, s43')
        a(f'v_lshrrev_b32 v140, 2, v{V_LANE}')
        a('v_add_u32 v140, s42, v140')
        a('v_lshlrev_b32 v140, 10, v140')
        a(f'v_and_b32 v141, 3, v{V_LANE}')
        a('v_lshl_add_u32 v140, v141, 7, v140')
        a(f's_and_b32 s42, s{XC}, 1')
        a('s_lshl_b32 s42, s42, 9')
        a('v_add_u32 v140, s42, v140')
        a(f'global_load_dword v141, v140, s[{P_W2}:{P_W2+1}]', discard=True)
        if 'touch1' not in ARGS:
            a(f'global_load_dword v141, v140, s[{P_W2}:{P_W2+1}] offset:64', discard=True)
    hk = {7: h_rdy_issue, 10: h_rdy_check, 11: h_fl_issue, TOUCH_ST: w2_touch, 14: h_fl_check}
    AF, BF = [104, 228], [220, 224]
    SD = [13, 15]
    AL, BE = [28, 29], [30, 31]
    def token_operands(tt):
        b = BF[tt]
        a('s_mov_b32 s42, 0xffff0000')
        a(f'v_cmp_gt_u32 vcc, 32, v{V_LANE}')
        a(f'v_xor_b32 v22, 0x80000000, v{MS[tt]}')
        a(f'v_lshrrev_b32 v{b}, 16, v{SD[tt]}')
        a(f'v_and_or_b32 v{b}, v22, s42, v{b}')
        a(f'v_lshrrev_b32 v{b+1}, 16, v22')
        a(f'v_and_or_b32 v{b+1}, v22, s42, v{b+1}')
        a(f'v_cndmask_b32 v{b}, 0, v{b}, vcc')
        a(f'v_cndmask_b32 v{b+1}, 0, v{b+1}, vcc')
        a(f'v_mov_b32 v{b+2}, 0')
        a(f'v_mov_b32 v{b+3}, 0')
        a(f'v_rcp_f32 v22, v{SD[tt]}')
        a(f'v_mul_f32 v{AL[tt]}, {f32(-GELU_C)}, v22')
        a('v_mul_f32 v22, v22, v22')
        a(f'v_mul_f32 v22, v22, v{AL[tt]}')
        a(f'v_mul_f32 v{BE[tt]}, {f32(0.044715)}, v22')
    hk = {4: h_rdy_issue, 7: h_rdy_check, 8: h_fl_issue, 11: h_fl_check, 14: lambda: token_operands(0), 15: lambda: token_operands(1)}
    ACC = 32
    FR = [96, 112]
    def reads(st, kap):
        base = FR[kap]
        lst = []
        for l in range(2):
            o = (st % 4) * 8192 + kap * 16 * 256
            lst.append(f'ds_read_b64_tr_b16 v[{base+4*l}:{base+4*l+1}], v{VA[l]} offset:{o}')
            lst.append(f'ds_read_b64_tr_b16 v[{base+4*l+2}:{base+4*l+3}], v{VA[l]} offset:{o+1024}')
        for tt in range(2):
            kk = 2 * (st & 1) + kap
            lst.append(f'ds_read_b128 v[{base+8+4*tt}:{base+11+4*tt}], v{VB[kk]} offset:{G1_XS[(st>>1) % 3] + 4096*tt}')
        return lst
    def mfmas(st, kap, rd, dm):
        base = FR[kap]
        first = (st == 0 and kap == 0)
        ms = []
        c = '0' if first else f'v[{SACC}:{SACC+15}]'
        ms.append(f'v_mfma_f32_32x32x16_bf16 v[{SACC}:{SACC+15}], v[{ONES}:{ONES+3}], v[{base}:{base+3}], {c}')
        for l in range(2):
            for tt in range(2):
                acc = ACC + 32 * l + 16 * tt
                c = '0' if first else f'v[{acc}:{acc+15}]'
                ms.append(f'v_mfma_f32_32x32x16_bf16 v[{acc}:{acc+15}], v[{base+4*l}:{base+4*l+3}], v[{base+8+4*tt}:{base+11+4*tt}], {c}')
        if len(dm) <= 3:
            gaps = [rd[0:2], dm[0:2] + rd[2:3], rd[3:5], dm[2:3] + rd[5:6], []]
        else:
            q = (len(dm) + 3) // 4
            gaps = [rd[0:2] + dm[0:q], rd[2:4] + dm[q:2*q], rd[4:6] + dm[2*q:3*q], dm[3*q:], []]
        for m, gp in zip(ms, gaps):
            a(m)
            for it in gp: put(it)
    for st in range(16):
        need = [tokW[st]] + [tokX[(st >> 1, h)] for h in range(2)]
        if st + 1 < 16:
            need += [tokW[st + 1]] + [tokX[((st + 1) >> 1, h)] for h in range(2)]
        a.wait_vm_token(max(need))
        a('s_barrier')
        if st in (0, 4, 8, 12) and 'g2st' not in ARGS and 'blkst' not in ARGS and 'lastst' not in ARGS and 'tailst' not in ARGS and ('prost' not in ARGS or st == 0): stamp(a, 2 + st // 4)
        if 'lastst' in ARGS and st >= 11: stamp(a, {11: 1, 12: 2, 13: 3, 14: 4, 15: 5}[st])
        if st in hk: hk[st]()
        if st == 0:
            for l in reads(0, 0): a(l)
        c = (st >> 1) + 2
        d0 = dma_w_list(st + 3) if st + 3 < 16 else []
        d1 = dma_x_list(c, st & 1) if c < 8 else []
        early = {12: ([], [0, 1]), 13: ([2], []), 14: ([3, 4], [5])}.get(st)
        if early:
            d0 = d0 + [x for k in early[0] for x in w2_items(k)]
            d1 = d1 + [x for k in early[1] for x in w2_items(k)]
        mfmas(st, 0, reads(st, 1), d0)
        mfmas(st, 1, reads(st + 1, 0) if st + 1 < 16 else [], d1)
    if 'lastst' in ARGS: stamp(a, 12)
    def a_operand(l, sreg):
        f = AF[l]
        a(f'v_cmp_gt_u32 vcc, 32, v{V_LANE}')
        a(f'v_cvt_pk_bf16_f32 v{f}, v{sreg}, v{sreg}')
        a(f'v_lshlrev_b32 v{f}, 16, v{f}')
        a(f'v_sub_f32 v22, v{sreg}, v{f}')
        a(f'v_cvt_pk_bf16_f32 v{f+2}, v22, v22')
        a(f'v_lshlrev_b32 v{f+2}, 16, v{f+2}')
        a(f'v_sub_f32 v{f+2}, v22, v{f+2}')
        a(f'v_cvt_pk_bf16_f32 v{f+1}, v22, v{f+2}')
        a(f'v_or_b32 v{f}, v{f}, v{B1V[l]}')
        a(f'v_cndmask_b32 v{f}, 0, v{f}, vcc')
        a(f'v_cndmask_b32 v{f+1}, 0, v{f+1}, vcc')
        a(f'v_mov_b32 v{f+2}, 0')
        a(f'v_mov_b32 v{f+3}, 0')
    def aug(l):
        for tt in range(2):
            acc = ACC + 32 * l + 16 * tt
            a(f'v_mfma_f32_32x32x16_bf16 v[{acc}:{acc+15}], v[{AF[l]}:{AF[l]+3}], v[{BF[tt]}:{BF[tt]+3}], v[{acc}:{acc+15}]')
    a(f'ds_write_b32 v23, v{SACC}')
    a_operand(0, SACC)
    aug(0)
    a('s_waitcnt lgkmcnt(0)')
    a('s_barrier')
    if 'g2st' not in ARGS and 'blkst' not in ARGS and 'prost' not in ARGS and 'tailst' not in ARGS: stamp(a, 6)
    if 'blkst' in ARGS: stamp(a, 10)
    SR1 = 233
    a(f'ds_read_b32 v{SR1}, v21')
    for k in (7, 8, 9): g2_dma(a, g, k)
    a('s_waitcnt lgkmcnt(0)')
    g2_dma(a, g, 6)
    a_operand(1, SR1)
    aug(1)
    dq = []
    def queue_dma(ks):
        for k in ks: dq.extend(g2_dma_items(k))
    def drain_dma():
        while dq: put_items(a, g, dq.pop(0))
    cnt = [0]
    gap = [GAP]
    rq = []
    def e(text):
        r = a(text)
        cnt[0] += 1
        if cnt[0] % gap[0] == 0 and dq: put_items(a, g, dq.pop(0))
        if cnt[0] % 3 == 0 and rq: a(rq.pop(0))
        return r
    T = 96
    toks = {}
    def block(l, j, tt):
        acc = ACC + 32 * l + 16 * tt
        r0 = 8 * j
        E = range(8)
        for x in E: e(f'v_mul_f32 v{T+x}, v{acc+r0+x}, v{acc+r0+x}')
        for x in E: e(f'v_fma_f32 v{T+x}, v{T+x}, v{BE[tt]}, v{AL[tt]}')
        for x in E: e(f'v_mul_f32 v{T+x}, v{T+x}, v{acc+r0+x}')
        for x in E: e(f'v_exp_f32 v{T+x}, v{T+x}')
        for x in E: e(f'v_fma_f32 v{T+x}, v{T+x}, v{SD[tt]}, v{SD[tt]}')
        for x in E: e(f'v_rcp_f32 v{T+x}, v{T+x}')
        for x in E: e(f'v_mul_f32 v{T+x}, v{T+x}, v{acc+r0+x}')
        H = 104 + 4 * ((2 * j + tt) % 4)
        for x in range(4): e(f'v_cvt_pk_bf16_f32 v{H+x}, v{T+2*x}, v{T+2*x+1}')
        toks[(l, j, tt)] = a(f'buffer_store_dwordx4 v[{H}:{H+3}], v{VH[tt]}, s[{SRD0}:{SRD0+3}], s{HOFF[l]} offen offset:{j*1024} {HSC}')
    a(f's_mul_i32 s42, s{TB}, 14')
    a(f's_add_u32 s42, s42, s{FB_}')
    a(f's_lshl_b32 s42, s42, {HS}')
    a(f's_lshl_b32 s43, s{S_WAVE}, 2')
    a('s_add_u32 s42, s42, s43')
    a(f's_add_u32 s42, s42, {FL_H}')
    a('v_mov_b32 v26, s42')
    a('v_mov_b32 v27, 1')
    def publish(stage):
        a.wait_vm_token(toks[(stage >> 1, stage & 1, 1)])
        a(f'v_mov_b32 v27, {stage + 1}')
        a('s_mov_b64 exec, 1')
        a(f'buffer_store_dword v27, v26, s[{SRDF}:{SRDF+3}], 0 offen {SC}')
        a('s_mov_b64 exec, -1')
    a(f's_mov_b32 s{LVL}, 0')
    order = [(l, j, tt) for l in range(2) for j in range(2) for tt in range(2)]
    for n, (l, j, tt) in enumerate(order):
        block(l, j, tt)
        if 'blkst' in ARGS: stamp(a, 1 + n) if n < 7 else None
        if n == PUB0: publish(0)
        if n == R1_READ_AT:
            a.wait_vm_token(max(g.tokW[k] for k in range(R1)))
            for k in range(R1): rq.extend(g2_wread_list(k, W2R[2*k:2*k+2]))
            if 'rdspread' not in ARGS:
                while rq: a(rq.pop(0))
        if n == R1_READ_AT + 2:
            while rq: a(rq.pop(0))
            a('s_waitcnt lgkmcnt(0)')
            queue_dma(range(R1, R1 + 10))
        if n == PUB0 + 2: publish(1)
        if n == 6: sc_issue(a, 0)
    stamp(a, 8)
    publish(2)
    drain_dma()
    publish(3)
    g.nrest = 0
    NREST[0] = 0
    sc_eval(a, 0)
    sc_need(a, 'g1_h0', 1)
    sc_issue(a, 1)
    h_prologue(a)
    stamp(a, 9)


def service_role(a, g):
    a(f's_cmp_eq_u32 s{JJ}, 28')
    a('s_cbranch_scc0 L_sv_done')
    a(f's_cmp_eq_u32 s{S_WAVE}, 3')
    a('s_cbranch_scc0 L_sv_done')
    if 'nopf' not in ARGS:
        a('s_getpc_b64 s[44:45]')
        a.label('L_pf_pc')
        a('s_sub_u32 s44, s44, L_pf_pc-CODE_BEGIN')
        a('s_subb_u32 s45, s45, 0')
        a(f'v_lshlrev_b32 v37, 4, v{V_LANE}')
        NPF = 38
        for k in range(NPF):
            a('v_min_u32 v36, CODE_END-CODE_BEGIN-16, v37')
            a('global_load_dwordx4 v[244:247], v36, s[44:45]', opt=True, discard=True)
            a('v_add_u32 v37, 1024, v37')
    a.label('L_sv_done')
    a.reset()
    a('s_waitcnt lgkmcnt(0)')
    setup_flag_srds(a)
    def chk():
        a('v_mov_b32 v33, 0')
        spin(a, 'sv_rdy', 34, 33, SRDD, 1, sleep=12)
    wave0_only(a, 'sv_rdyw', chk)
    a('s_barrier')
    if 'now2pf' not in ARGS:
        a(f's_lshl_b32 s42, s{S_IDX}, {FS}')
        a(f's_add_u32 s42, s42, {FL_P0}')
        a('v_mov_b32 v33, s42')
        if 'pfnogate' not in ARGS: spin(a, 'sv_p0', 34, 33, SRDF, 1)
        srd(a, SRD1, P_W2, 0, 1792 * 1024)
        a(f's_sub_u32 s42, s{JJ}, 28')
        a('s_lshl_b32 s42, s42, 2')
        a(f's_add_u32 s42, s42, s{S_WAVE}')
        a(f's_mul_i32 s42, s42, {112*1024}')
        if 'map48' in ARGS:
            a(f'v_lshlrev_b32 v2, 7, v{V_LANE}')
            a('s_mov_b32 s43, 14')
        else:
            a(f'v_lshrrev_b32 v2, 2, v{V_LANE}')
            a('v_lshlrev_b32 v2, 10, v2')
            a(f'v_and_b32 v3, 3, v{V_LANE}')
            a('v_lshl_add_u32 v2, v3, 7, v2')
            a(f's_and_b32 s43, s{XC}, 1')
            a('s_lshl_b32 s43, s43, 9')
            a('v_add_u32 v2, s43, v2')
            a('s_mov_b32 s43, 7')
        a.label('L_w2pf')
        a(f'buffer_load_dword v40, v2, s[{SRD1}:{SRD1+3}], s42 offen', opt=True, discard=True)
        if 'pf64' in ARGS: a(f'buffer_load_dword v41, v2, s[{SRD1}:{SRD1+3}], s42 offen offset:64', opt=True, discard=True)
        a(f's_add_u32 s42, s42, {8192 if "map48" in ARGS else 16384}')
        a(f's_waitcnt vmcnt({PFDEPTH})')
        a('s_sub_u32 s43, s43, 1')
        a('s_cmp_lg_u32 s43, 0')
        a('s_cbranch_scc1 L_w2pf')
        a.reset()
    g2_setup(a)
    g.tokW = {}
    for k in range(R1):
        g2_dma(a, g, k)
    srd(a, SRD0, P_WS, 0, 0x1000000)
    g2_round1_reads(a, g)
    a('s_waitcnt lgkmcnt(0)')
    items = [grp for k in range(R1, R1 + 10) for grp in g2_dma_items(k)]
    for grp in items[:20 - NREST[0]]: put_items(a, g, grp)
    a(f's_mov_b32 s{LVL}, 0')
    sc_spin(a, 'sv_h0', 1)
    sc_issue(a, 1)
    h_prologue(a)


def g2_main(a, g):
    for k in range(HD - 1):
        for tt in range(2):
            r = HREGS[k][tt]
            a.vseq += 1
            a.vmq.append((a.vseq, {('v', r + i) for i in range(4)}, False))
    a.lseq += 1
    a.lgq.append((a.lseq, {('s', PSET[1] + i) for i in range(8)}, 'smem'))
    rest = [grp for k in range(R1, R1 + 10) for grp in g2_dma_items(k)][20 - NREST[0]:]
    for k in range(R1, R1 + 10): g.tokW[k] = 0
    def wregs(k):
        return W2R[2*k:2*k+2] if k < R1 else [G2FA[k & 1], G2FA[k & 1] + 4]
    st_ = {}
    VPS = {1: 21, 2: 22, 3: 23}
    AV = [138 + r for r in range(16)]
    GV, B2 = 154, 156
    VTOK, VHI = 16, 17
    def tail_loads():
        check_or_spin(a, 'g2_t', st_['t'], VP, VT, SRDF, TAILMASK)
        a(f'v_and_b32 v{VTOK}, 31, v{V_LANE}')
        a(f'v_lshrrev_b32 v{VHI}, 5, v{V_LANE}')
        a(f's_lshl_b32 s42, s{TAU}, 6')
        a(f's_lshl_b32 s43, s{WT}, 5')
        a('s_add_u32 s42, s42, s43')
        a(f'v_add_u32 v{VTOK}, s42, v{VTOK}')
        a(f'v_lshlrev_b32 v18, 2, v{VTOK}')
        a(f'v_add_u32 v18, {hex(WS_G)}, v18')
        a(f'buffer_load_dword v{GV}, v18, s[{SRD0}:{SRD0+3}], 0 offen {SC}')
        a(f's_lshl_b32 s42, s{DT}, 6')
        a(f's_lshl_b32 s43, s{WF}, 5')
        a('s_add_u32 s85, s42, s43')
        a(f'v_lshlrev_b32 v18, 2, v{VHI}')
        a('v_add_u32 v18, s85, v18')
        a('v_lshlrev_b32 v19, 1, v18')
        for i in range(4):
            a(f'global_load_dwordx2 v[{B2+2*i}:{B2+2*i+1}], v19, s[{P_B2}:{P_B2+1}] offset:{16*i}')
        a(f'v_lshrrev_b32 v18, 2, v{V_LANE}')
        a(f'v_and_b32 v19, 3, v{V_LANE}')
        a('v_add_u32 v2, s85, v18')
        a('v_lshlrev_b32 v2, 12, v2')
        a('v_lshl_add_u32 v2, v19, 4, v2')
        a(f's_lshl_b32 s42, s{TAU}, 7')
        a(f's_lshl_b32 s43, s{WT}, 6')
        a('s_add_u32 s42, s42, s43')
        a(f's_add_u32 s42, s42, {hex(WS_AT)}')
        a(f's_add_u32 s43, s42, {16*4096}')
        a(f'buffer_load_dwordx4 v[138:141], v2, s[{SRD0}:{SRD0+3}], s42 offen {SC}')
        a(f'buffer_load_dwordx4 v[142:145], v2, s[{SRD0}:{SRD0+3}], s43 offen {SC}')
        a(f's_add_u32 s42, s{W2K}, 73728')
        a('v_lshlrev_b32 v3, 6, v18')
        a('v_lshl_add_u32 v3, v19, 4, v3')
        a('v_add_u32 v3, s42, v3')
        a(f'v_lshrrev_b32 v4, 4, v{V_LANE}')
        a(f'v_and_b32 v5, 15, v{V_LANE}')
        a('v_lshrrev_b32 v6, 1, v4')
        a('v_lshrrev_b32 v7, 2, v5')
        a('v_lshl_add_u32 v6, v6, 2, v7')
        a('v_lshlrev_b32 v6, 6, v6')
        a('v_and_b32 v4, 1, v4')
        a('v_lshl_add_u32 v6, v4, 5, v6')
        a('v_and_b32 v5, 3, v5')
        a('v_lshl_add_u32 v6, v5, 3, v6')
        a('v_add_u32 v4, s42, v6')
    def a_stage():
        a('ds_write_b128 v3, v[138:141]')
        a('ds_write_b128 v3, v[142:145] offset:1024')
        for i in range(4):
            a(f'ds_read_b64_tr_b16 v[{146+2*i}:{147+2*i}], v4 offset:{512*i}')
    prep = [f'v_sub_f32 v20, 1.0, v{GV}', 'v_cvt_pk_bf16_f32 v20, v20, v20', 'v_lshlrev_b32 v20, 16, v20']
    for i in range(4):
        for h in range(2):
            prep.append(f'v_lshlrev_b32 v{AV[4*i+2*h]}, 16, v{146+2*i+h}')
            prep.append(f'v_and_b32 v{AV[4*i+2*h+1]}, 0xffff0000, v{146+2*i+h}')
        for h in range(2):
            prep.append(f'v_lshlrev_b32 v{6+2*h}, 16, v{B2+2*i+h}')
            prep.append(f'v_and_b32 v{7+2*h}, 0xffff0000, v{B2+2*i+h}')
        for r in range(4):
            prep.append(f'v_mul_f32 v{AV[4*i+r]}, v{AV[4*i+r]}, v{GV}')
        for r in range(4):
            prep.append(f'v_fmac_f32 v{AV[4*i+r]}, v{6+r}, v20')
    for k in range(28):
        rd = []
        if R1 <= k + 1 < 28:
            a.wait_vm_token(g.tokW[k + 1])
            rd = g2_wread_list(k + 1, wregs(k + 1))
        if 'g2st' in ARGS:
            if k in (1, 2, 3, 5, 7, 8, 10, 11, 14, 20): stamp(a, {1: 1, 2: 2, 3: 3, 5: 4, 7: 5, 8: 6, 10: 7, 11: 10, 14: 11, 20: 12}[k])
        elif 'tailst' in ARGS:
            if k in (20, 24): stamp(a, {20: 14, 24: 13}[k])
        elif k in (1, 9, 14, 20) and 'lastst' not in ARGS: stamp(a, {1: 11, 9: 12, 14: 13, 20: 14}[k])
        f = wregs(k)
        newp = [p for p in range(28) if HWHEN[p] == k]
        if k == HWHEN[7]:
            sc_eval(a, 1)
            sc_need(a, 'g2_h1', 2)
            sc_issue(a, 0)
        if k == HWHEN[14]: sc_need(a, 'g2_h2', 3)
        if k == HWHEN[21]:
            sc_eval(a, 0)
            sc_need(a, 'g2_h3', 4)
        if k == TAILK - 4: st_['t'] = poll_issue(a, VP, VT, SRDF, TAILMASK)
        if k == TAILK: tail_loads()
        hq = [hload(p, tt) for p in newp for tt in range(2)]
        n = 0
        for tt in range(2):
            r = HREGS[k][tt]
            for dd in range(2):
                acc = G2ACC[dd + 2 * tt]
                c = '0' if k == 0 else f'v[{acc}:{acc+15}]'
                a(f'v_mfma_f32_32x32x16_bf16 v[{acc}:{acc+15}], v[{f[dd]}:{f[dd]+3}], v[{r}:{r+3}], {c}')
                if hq: a(hq.pop(0))
                if n in (0, 1):
                    for l in rd[2*n:2*n+2]: a(l)
                if rest and (n in (1, 3) or len(rest) > 2 * (R1 - 2 - k)): put_items(a, g, rest.pop(0))
                if n == 3 and k >= R1 + 1 and k - 1 + 10 < 28: g2_dma(a, g, k - 1 + 10)
                if k == TAILK + ASTG and n == 3: a_stage()
                if k >= TAILK + ASTG + 2:
                    for _ in range(6):
                        if prep: a(prep.pop(0))
                n += 1
        assert not hq
    while prep: a(prep.pop(0))
    if 'tailst' in ARGS: stamp(a, 1)
    a(f'v_lshlrev_b32 v14, 4, v{V_LANE}')
    a(f'v_add_u32 v15, s{W4}, v14')
    XR = [32768, 0, 16384]
    for x in range(1, 4):
        for i in range(4):
            a(f'ds_write_b128 v15, v[{G2ACC[x]+4*i}:{G2ACC[x]+4*i+3}] offset:{XR[x-1]+1024*i}')
    if 'tailst' in ARGS: stamp(a, 2)
    if 'tailst' in ARGS: stamp(a, 3)
    a('s_waitcnt lgkmcnt(0)')
    a('s_barrier')
    if 'tailst' in ARGS: stamp(a, 4)
    PR = 170
    for x in range(1, 4):
        a(f's_xor_b32 s42, s{S_WAVE}, {x}')
        a('s_lshl_b32 s42, s42, 12')
        a('v_add_u32 v15, s42, v14')
        for i in range(4):
            a(f'ds_read_b128 v[{PR+16*(x-1)+4*i}:{PR+16*(x-1)+4*i+3}], v15 offset:{XR[x-1]+1024*i}')
    a(f'v_lshlrev_b32 v{VTOK}, 10, v{VTOK}')
    a('s_lshl_b32 s42, s85, 1')
    a(f'v_add_u32 v{VTOK}, s42, v{VTOK}')
    a(f'v_lshl_add_u32 v{VTOK}, v{VHI}, 4, v{VTOK}')
    srd(a, SRD1, P_OUT, 0, 2048 * 1024)
    ACC = G2ACC[0]
    for x in range(3):
        for r in range(16):
            a(f'v_add_f32 v{ACC+r}, v{ACC+r}, v{PR+16*x+r}')
    if 'tailst' in ARGS: stamp(a, 5)
    O = 96
    for r in range(16):
        a(f'v_fmac_f32 v{AV[r]}, v{ACC+r}, v20')
    for i in range(4):
        a(f'v_cvt_pk_bf16_f32 v{O+2*i}, v{AV[4*i]}, v{AV[4*i+1]}')
        a(f'v_cvt_pk_bf16_f32 v{O+2*i+1}, v{AV[4*i+2]}, v{AV[4*i+3]}')
    for p in range(2):
        a(f'v_permlane32_swap_b32 v{O+4*p}, v{O+4*p+2}')
        a(f'v_permlane32_swap_b32 v{O+4*p+1}, v{O+4*p+3}')
        a(f'buffer_store_dwordx4 v[{O+4*p}:{O+4*p+3}], v{VTOK}, s[{SRD1}:{SRD1+3}], 0 offen offset:{32*p} {OSC}')
    stamp(a, 15)
    if G.STAMP:
        a('s_waitcnt vmcnt(0)')
    G.stamp_flush(a)


def gemm_role(a):
    g = G2State()
    a(f's_sub_u32 s{S_IDX}, s2, 256')
    a('s_setprio 2')
    a(f's_and_b32 s{XC}, s{S_IDX}, 7')
    a(f's_lshr_b32 s{JJ}, s{S_IDX}, 3')
    a(f's_cmp_ge_u32 s{JJ}, 28')
    a('s_cbranch_scc1 L_service')
    a(f's_mul_i32 s42, s{JJ}, 37')
    a('s_lshr_b32 s42, s42, 8')
    a('s_mul_i32 s43, s42, 7')
    a(f's_sub_u32 s43, s{JJ}, s43')
    a(f's_lshr_b32 s44, s{XC}, 1')
    a('s_lshl_b32 s44, s44, 2')
    a(f's_add_u32 s{TB}, s44, s42')
    a(f's_and_b32 s44, s{XC}, 1')
    a('s_mul_i32 s44, s44, 7')
    a(f's_add_u32 s{FB_}, s44, s43')
    a('s_lshl_b32 s42, s42, 1')
    a('s_add_u32 s42, s42, s43')
    if 'rot7' in ARGS:
        a('s_cmp_ge_u32 s42, 7')
        a('s_cselect_b32 s43, 7, 0')
        a(f's_sub_u32 s{ROT}, s42, s43')
    else:
        a(f's_and_b32 s{ROT}, s42, 7')
    if 'norot' in ARGS: a(f's_mov_b32 s{ROT}, 0')
    g1_role(a, g)
    a('s_branch L_g2')
    a.label('L_service')
    a.reset()
    last_g1 = G._last[0]
    G.stamp_restart(0)
    service_role(a, G2State())
    stamp(a, 9)
    a.label('L_g2')
    a.reset()
    G.stamp_restart(9)
    g.tokW = {}
    g2_main(a, g)


def build():
    a = Asm()
    name = NAME + '_kernel'
    a.raw(HEADER.rstrip())
    a.raw(f'; @launch grid=(512,1,1) block=(256,1,1) lds={LDS_BYTES}')
    a.raw('.amdgcn_target "amdgcn-amd-amdhsa--gfx950"')
    a.raw('.text')
    a.raw(f'.globl {name}')
    a.raw('.p2align 8')
    a.raw(f'.type {name},@function')
    a.label(name)
    a.label('CODE_BEGIN')
    a.reset()
    a('s_cmp_ge_u32 s2, 512')
    a(f's_cbranch_scc1 L_exit')
    a('s_load_dwordx16 s[4:19], s[0:1], 0')
    a('s_load_dwordx16 s[20:35], s[0:1], 64')
    a('s_load_dwordx4 s[36:39], s[0:1], 128')
    a(f'v_lshrrev_b32 v2, 6, v{V_TID}')
    a(f'v_and_b32 v{V_LANE}, 63, v{V_TID}')
    a(f'v_readfirstlane_b32 s{S_WAVE}, v2')
    a('s_cmp_lt_u32 s2, 256')
    a('s_cbranch_scc1 L_ssm')
    a(f's_cmp_eq_u32 s2, {ZWG}')
    a('s_cbranch_scc0 L_gemm')
    a('s_setprio 3')
    if 'zst' in ARGS: a.raw('    s_memrealtime s[72:73]')
    a(f'v_lshlrev_b32 v2, 4, v{V_TID}')
    for k in range(4):
        a(f'v_mov_b32 v{4+k}, 0')
    a('s_waitcnt lgkmcnt(0)')
    a.lgq = []
    if 'zst' in ARGS: a.raw('    s_memrealtime s[74:75]')
    srd(a, SRDF, P_WS, WS_FL, FL_BYTES)
    for k in range(FL_BYTES // 4096):
        a(f'buffer_store_dwordx4 v[4:7], v2, s[{SRDF}:{SRDF+3}], 0 offen {SC}')
        if k + 1 < FL_BYTES // 4096: a('v_add_u32 v2, 4096, v2')
    srd(a, SRDD, P_DBG, 0, 256)
    a('v_mov_b32 v2, 0')
    a('v_mov_b32 v3, 1')
    if 'zst' in ARGS: a.raw('    s_memrealtime s[76:77]')
    a('s_waitcnt vmcnt(0)')
    if 'zst' in ARGS: a.raw('    s_memrealtime s[78:79]')
    a('s_barrier')
    a(f's_cmp_eq_u32 s{S_WAVE}, 0')
    a('s_cbranch_scc0 L_gemm')
    a('s_mov_b64 exec, 1')
    a(f'buffer_store_dword v3, v2, s[{SRDD}:{SRDD+3}], 0 offen {SC}', opt=True)
    if 'zst' in ARGS:
        a('s_waitcnt vmcnt(0)')
        a.raw('    s_memrealtime s[80:81]')
        a('s_waitcnt lgkmcnt(0)')
        for q, sr in enumerate((72, 74, 76, 78, 80)):
            a(f'v_mov_b32 v8, s{sr}')
            a(f'v_mov_b32 v9, {4 + 4*q}')
            a(f'buffer_store_dword v8, v9, s[{SRDD}:{SRDD+3}], 0 offen')
    a('s_mov_b64 exec, -1')
    a.label('L_gemm')
    a.reset()
    stamp(a, 0)
    gemm_role(a)
    a.label('L_exit')
    a('s_endpgm')
    emit_slow_blocks(a)
    emit_sc_slow(a)
    a.label('L_ssm')
    a.reset()
    G.stamp_restart(None)
    a('s_waitcnt lgkmcnt(0)')
    ssm_role(a)
    a('s_endpgm')
    emit_slow_blocks(a)
    a.raw(table())
    a.raw('CODE_END:')
    a.raw('.section .rodata,"a"')
    a.raw('.p2align 6')
    a.raw(kd(name).strip('\n'))
    return a.text()


if __name__ == '__main__':
    out = [x for x in sys.argv[1:] if x.endswith('.s')]
    out = out[0] if out else 'cdna_kernels/' + NAME + '.s'
    txt = build()
    open(out, 'w').write(txt)
    print('wrote', out, len(txt), 'bytes')
```

```python
import math, struct, sys
from asmlib import Asm
import gen as G
from gen import *

SC = 'sc1'
SRDF, SRDD = SRD4, SRD5
SPIN_LIMIT = 200000
FS = 5
FL_P0, FL_A, FL_H = 0x0, 0x2000, 0x4000
HS = 6
FL_BYTES = 0x8000
ARGS = set(sys.argv[1:])
slow_blocks = []


def setup_flag_srds(a):
    srd(a, SRDF, P_WS, WS_FL, FL_BYTES)
    srd(a, SRDD, P_DBG, 0, 256)


def set_exec(a, mask):
    if isinstance(mask, str):
        a(f's_mov_b64 exec, {mask}')
    elif mask < (1 << 31):
        a(f's_mov_b64 exec, {hex(mask)}')
    else:
        a(f's_mov_b32 exec_lo, {hex(mask & 0xffffffff)}')
        a(f's_mov_b32 exec_hi, {hex(mask >> 32)}')


def poll_issue(a, vd, vaddr, srd_, mask, off=0):
    set_exec(a, mask)
    tok = a(f'buffer_load_dword v{vd}, v{vaddr}, s[{srd_}:{srd_+3}], 0 offen offset:{off} {SC}')
    a('s_mov_b64 exec, -1')
    return tok


def cmp_mask(a, vd, mask):
    set_exec(a, mask)
    a(f'v_cmp_eq_u32 vcc, 1, v{vd}')
    a('s_mov_b64 s[46:47], exec')
    a('s_mov_b64 exec, -1')
    a('s_cmp_eq_u64 vcc, s[46:47]')


def spin(a, name, vd, vaddr, srd_, mask, off=0, sleep=2):
    a(f's_mov_b32 s45, {SPIN_LIMIT}')
    a.label(f'L_{name}_spin')
    set_exec(a, mask)
    a(f'buffer_load_dword v{vd}, v{vaddr}, s[{srd_}:{srd_+3}], 0 offen offset:{off} {SC}', opt=True)
    a('s_waitcnt vmcnt(0)')
    a(f'v_cmp_eq_u32 vcc, 1, v{vd}')
    a('s_mov_b64 s[46:47], exec')
    a('s_mov_b64 exec, -1')
    a('s_cmp_eq_u64 vcc, s[46:47]')
    a(f's_cbranch_scc1 L_{name}_done')
    a(f's_sleep {sleep}')
    a('s_sub_u32 s45, s45, 1')
    a('s_cmp_lg_u32 s45, 0')
    a(f's_cbranch_scc1 L_{name}_spin')
    a.label(f'L_{name}_done')


def check_or_spin(a, name, tok, vd, vaddr, srd_, mask, off=0):
    a.wait_vm_token(tok)
    cmp_mask(a, vd, mask)
    a(f's_cbranch_scc0 L_{name}_slow')
    a.label(f'L_{name}_back')
    slow_blocks.append((name, vd, vaddr, srd_, mask, off))


def emit_slow_blocks(a):
    for (name, vd, vaddr, srd_, mask, off) in slow_blocks:
        a.label(f'L_{name}_slow')
        a.reset()
        spin(a, name + 's', vd, vaddr, srd_, mask, off)
        a(f's_branch L_{name}_back')
    slow_blocks.clear()


def flag_store(a, vtmp, soff_expr_reg, extra=0, val=1):
    a(f'v_mov_b32 v{vtmp}, s{soff_expr_reg}')
    a(f'v_mov_b32 v{vtmp+1}, {val}')
    a('s_mov_b64 exec, 1')
    a(f'buffer_store_dword v{vtmp+1}, v{vtmp}, s[{SRDF}:{SRDF+3}], 0 offen offset:{extra} {SC}', opt=True)
    a('s_mov_b64 exec, -1')


def wave0_only(a, name, fn):
    a(f's_cmp_eq_u32 s{S_WAVE}, 0')
    a(f's_cbranch_scc0 L_{name}_skip')
    st = a.save()
    fn()
    a.label(f'L_{name}_skip')
    a.hist = []
    a.vmq = st[1]; a.lgq = st[2]


def red32(a, r, t):
    red8(a, r)
    a(f'v_add_f32_dpp v{r}, v{r}, v{r} row_mirror row_mask:0xf bank_mask:0xf')
    a(f'v_mov_b32 v{t}, v{r}')
    a(f'v_permlane16_swap_b32 v{r}, v{t}')
    a(f'v_add_f32 v{r}, v{r}, v{t}')


def p0_loads(a):
    X, J, T0, TT, DT = 72, 73, 74, 75, 76
    a(f's_and_b32 s{X}, s{S_IDX}, 7')
    a(f's_lshr_b32 s{J}, s{S_IDX}, 3')
    a(f's_lshl_b32 s{T0}, s{X}, 8')
    a(f's_lshl_b32 s42, s{J}, 3')
    a(f's_add_u32 s{T0}, s{T0}, s42')
    a(f's_lshl_b32 s{TT}, s{X}, 2')
    a(f's_lshr_b32 s42, s{J}, 3')
    a(f's_add_u32 s{TT}, s{TT}, s42')
    a(f's_and_b32 s{DT}, s{J}, 7')
    a(f'v_lshrrev_b32 v184, 3, v{V_LANE}')
    a(f'v_and_b32 v185, 7, v{V_LANE}')
    a(f's_lshl_b32 s42, s{TT}, 6')
    a(f's_lshl_b32 s43, s{S_WAVE}, 4')
    a('s_add_u32 s42, s42, s43')
    a('v_add_u32 v4, s42, v184')
    a('v_lshlrev_b32 v4, 10, v4')
    a('v_lshl_add_u32 v4, v185, 4, v4')
    a(f's_lshl_b32 s42, s{DT}, 7')
    a('v_add_u32 v4, s42, v4')
    a(f'global_load_dwordx4 v[160:163], v4, s[{P_U}:{P_U+1}]')
    a('v_add_u32 v4, 0x2000, v4')
    a(f'global_load_dwordx4 v[164:167], v4, s[{P_U}:{P_U+1}]')
    a(f'v_lshrrev_b32 v5, 5, v{V_LANE}')
    a(f'v_and_b32 v6, 31, v{V_LANE}')
    a(f's_lshl_b32 s42, s{S_WAVE}, 1')
    a(f's_add_u32 s42, s42, s{T0}')
    a('v_add_u32 v186, s42, v5')
    a('v_lshlrev_b32 v8, 10, v186')
    a('v_lshlrev_b32 v9, 5, v6')
    a('v_add_u32 v8, v8, v9')
    for k in range(2):
        a(f'global_load_dwordx4 v[{168+4*k}:{171+4*k}], v8, s[{P_U}:{P_U+1}] offset:{16*k}')
    for k in range(2):
        a(f'global_load_dwordx4 v[{176+4*k}:{179+4*k}], v9, s[{P_GW}:{P_GW+1}] offset:{16*k}')


def p0_compute(a):
    X, J, T0, TT, DT = 72, 73, 74, 75, 76
    srd(a, SRD0, P_WS, 0, 0x1000000)
    a(f's_lshl_b32 s42, s{S_WAVE}, 4')
    a('v_add_u32 v10, s42, v184')
    a('v_mul_u32_u24 v10, 144, v10')
    a('v_lshl_add_u32 v10, v185, 4, v10')
    a(f'v_add_u32 v10, {L_KT}, v10')
    a('ds_write_b128 v10, v[160:163]')
    a(f'ds_write_b128 v10, v[164:167] offset:{8*144}')
    if 'ssmst' in ARGS: stamp(a, 11)
    a('s_mov_b32 s46, 0x3f803f80')
    for k in range(4):
        a(f'v_mov_b32 v{12+k}, 0')
    for d in range(8):
        a(f'v_dot2_f32_bf16 v{12+d%2}, v{168+d}, s46, v{12+d%2}')
        a(f'v_dot2_f32_bf16 v{14+d%2}, v{168+d}, v{176+d}, v{14+d%2}')
    a('v_add_f32 v12, v12, v13')
    a('v_add_f32 v14, v14, v15')
    red32(a, 12, 16)
    red32(a, 14, 17)
    a(f'v_mul_f32 v12, {f32(1/512)}, v12')
    for k in range(4):
        a(f'v_mov_b32 v{20+k}, 0')
    for d in range(0, 8, 2):
        for e in range(2):
            a(f'v_lshlrev_b32 v{24+2*e}, 16, v{168+d+e}')
            a(f'v_and_b32 v{25+2*e}, 0xffff0000, v{168+d+e}')
        for e in range(4):
            a(f'v_sub_f32 v{24+e}, v{24+e}, v12')
        for e in range(4):
            a(f'v_fmac_f32 v{20+e}, v{24+e}, v{24+e}')
    a('v_add_f32 v20, v20, v21')
    a('v_add_f32 v22, v22, v23')
    a('v_add_f32 v20, v20, v22')
    red32(a, 20, 16)
    bf16_round(a, 14, 14)
    a(f'v_mul_f32 v14, {f32(-LOG2E)}, v14')
    a('v_exp_f32 v14, v14')
    a(f'v_mul_f32 v20, {f32(1/512)}, v20')
    a('v_add_f32 v14, 1.0, v14')
    a('v_rcp_f32 v14, v14')
    bf16_round(a, 20, 20)
    a(f'v_add_f32 v20, {f32(1e-5)}, v20')
    bf16_round(a, 14, 14)
    bf16_round(a, 20, 20)
    a('v_sqrt_f32 v20, v20')
    bf16_round(a, 12, 12)
    bf16_round(a, 13, 20)
    a('v_lshlrev_b32 v8, 2, v186')
    a(f'v_add_u32 v8, {hex(WS_G)}, v8')
    a('v_lshlrev_b32 v9, 3, v186')
    a(f'v_add_u32 v9, {hex(WS_ST)}, v9')
    a('s_mov_b32 exec_lo, 1')
    a('s_mov_b32 exec_hi, 1')
    a(f'buffer_store_dword v14, v8, s[{SRD0}:{SRD0+3}], 0 offen {SC}')
    a(f'buffer_store_dwordx2 v[12:13], v9, s[{SRD0}:{SRD0+3}], 0 offen {SC}')
    a('s_mov_b64 exec, -1')
    if 'ssmst' in ARGS: stamp(a, 12)
    a('s_waitcnt lgkmcnt(0)')
    a('s_barrier')
    if 'ssmst' in ARGS: stamp(a, 13)
    a(f'v_and_b32 v2, 15, v{V_LANE}')
    a(f'v_lshrrev_b32 v3, 4, v{V_LANE}')
    a('v_lshrrev_b32 v4, 2, v2')
    a('v_lshl_add_u32 v4, v3, 3, v4')
    a('v_mul_u32_u24 v4, 144, v4')
    a('v_and_b32 v5, 3, v2')
    a('v_lshl_add_u32 v4, v5, 3, v4')
    a(f's_lshl_b32 s42, s{S_WAVE}, 5')
    a(f's_add_u32 s42, s42, {L_KT}')
    a('v_add_u32 v4, s42, v4')
    for th in range(2):
        a(f'ds_read_b64_tr_b16 v[{64+4*th}:{65+4*th}], v4 offset:{th*32*144}')
        a(f'ds_read_b64_tr_b16 v[{66+4*th}:{67+4*th}], v4 offset:{th*32*144+4*144}')
    a(f's_lshl_b32 s42, s{DT}, 6')
    a(f's_lshl_b32 s43, s{S_WAVE}, 4')
    a('s_add_u32 s42, s42, s43')
    a('v_add_u32 v5, s42, v2')
    a('v_lshlrev_b32 v5, 12, v5')
    a('v_lshl_add_u32 v5, v3, 4, v5')
    a(f's_lshl_b32 s42, s{TT}, 7')
    a('v_add_u32 v5, s42, v5')
    for th in range(2):
        a(f'buffer_store_dwordx4 v[{64+4*th}:{67+4*th}], v5, s[{SRD0}:{SRD0+3}], 0 offen offset:{WS_UT+64*th} {SC}')


def ucopy_loads(a, opt):
    MH, D = 80, 81
    E = [160, 168, 176]
    for q2, vo in ((0, 30), (1, 31), (2, 32)):
        a(f'buffer_load_dwordx4 v[{E[q2]}:{E[q2]+3}], v{vo}, s[{SRD1}:{SRD1+3}], 0 offen {SC}', opt=opt)
        a(f'buffer_load_dwordx2 v[{E[q2]+4}:{E[q2]+5}], v{vo}, s[{SRD1}:{SRD1+3}], 0 offen offset:16 {SC}', opt=opt)


def ucopy_addr(a):
    MH, D = 80, 81
    a(f's_lshl_b32 s42, s{D}, 12')
    srd(a, SRD1, P_WS, 's42', 4096)
    a(f's_lshl_b32 s42, s{MH}, 11')
    a(f'v_lshlrev_b32 v29, 4, v{V_LANE}')
    a('v_add_u32 v29, s42, v29')
    a('v_subrev_u32 v30, 32, v29')
    a('v_add_u32 v31, 1024, v30')
    a('v_add_u32 v32, 2048, v30')


def ucopy_writes(a):
    C, MH = 79, 80
    E = [160, 168, 176]
    a(f's_mul_i32 s42, s{C}, {UC_CH}')
    a(f's_add_u32 s42, s42, {L_UC}')
    a('v_add_u32 v2, s42, v29')
    for q2 in range(3):
        e = E[q2]
        if q2 == 2:
            a(f's_cmp_eq_u32 s{MH}, 1')
            a('s_cselect_b64 exec, 3, 0')
        T = 184 + 12 * (q2 & 1)
        for k in range(4):
            a(f'v_alignbit_b32 v{T+k}, v{e+k+1}, v{e+k}, 16')
        for k in range(4):
            a(f'v_mov_b32 v{T+4+k}, v{e+k+1}')
        for k in range(4):
            a(f'v_alignbit_b32 v{T+8+k}, v{e+k+2}, v{e+k+1}, 16')
        off = 1024 * q2
        a(f'ds_write_b128 v2, v[{e}:{e+3}] offset:{off}')
        a(f'ds_write_b128 v2, v[{T}:{T+3}] offset:{off+UC_COPY}')
        a(f'ds_write_b128 v2, v[{T+4}:{T+7}] offset:{off+2*UC_COPY}')
        a(f'ds_write_b128 v2, v[{T+8}:{T+11}] offset:{off+3*UC_COPY}')
    a('s_mov_b64 exec, -1')


def ssm_role(a):
    X, J, T0, TT, DT = 72, 73, 74, 75, 76
    a(f's_mov_b32 s{S_IDX}, s2')
    stamp(a, 0)
    if 'kfirst' not in ARGS and 'noprio' not in ARGS: a('s_setprio 3')
    p0_loads(a)
    emit_ssm_loads(a)
    if 'hiprio' not in ARGS: a('s_setprio 0')
    if 'ssmst' in ARGS: stamp(a, 10)
    setup_flag_srds(a)
    st_ = {}
    def rdy_issue():
        pass
    def publish_p0():
        a('s_waitcnt vmcnt(0)')
        def chk():
            a('v_mov_b32 v33, 0')
            spin(a, 'ssm_rdy', 34, 33, SRDD, 1, sleep=3)
        wave0_only(a, 'ssm_rdyw', chk)
        a('s_barrier')
        def f():
            a(f's_lshl_b32 s42, s{S_IDX}, {FS}')
            a(f's_add_u32 s42, s42, {FL_P0}')
            flag_store(a, 35, 42)
        wave0_only(a, 'ssm_pub', f)
        stamp(a, 3 if 'kfirst' in ARGS else 9)
    def publish_a():
        def f():
            a(f's_lshl_b32 s42, s{S_IDX}, {FS}')
            a(f's_add_u32 s42, s42, {FL_A}')
            flag_store(a, 35, 42)
        wave0_only(a, 'ssm_pub2', f)
    if 'ssmlite' in ARGS:
        a('s_waitcnt lgkmcnt(0)')
        p0_compute(a)
        rdy_issue()
        publish_p0()
        publish_a()
        G.stamp_flush(a)
        return
    def ut_addr():
        a(f's_lshr_b32 s42, s{S_IDX}, 5')
        a(f'v_and_b32 v35, 7, v{V_LANE}')
        a(f'v_lshrrev_b32 v36, 3, v{V_LANE}')
        a('v_lshlrev_b32 v36, 3, v36')
        a('v_add_u32 v36, s42, v36')
        a('v_lshl_add_u32 v35, v36, 3, v35')
        a(f'v_lshlrev_b32 v35, {FS}, v35')
        ucopy_addr(a)
    if 'kfirst' in ARGS:
        def pre_mfma():
            stamp(a, 1)
            p0_compute(a)
            stamp(a, 2)
            rdy_issue()
        def post_mfma():
            publish_p0()
            ut_addr()
        G.emit_kgen(a, 'kg', pre_mfma=pre_mfma, post_mfma=post_mfma)
    else:
        p0_compute(a)
        stamp(a, 1)
        rdy_issue()
        def setup_hook():
            publish_p0()
            a('s_setprio 0')
        def pre_mfma():
            stamp(a, 2)
            ut_addr()
            st_['ut'] = poll_issue(a, 34, 35, SRDF, 0xffffffff, FL_P0)
        def post_mfma():
            a.wait_vm_token(st_['ut'])
            cmp_mask(a, 34, 0xffffffff)
            a('s_cselect_b32 s82, 1, 0')
            a('s_cbranch_scc0 L_ssm_noearly')
            sv = a.save()
            ucopy_loads(a, True)
            a.label('L_ssm_noearly')
            a.hist = []; a.vmq = sv[1]; a.lgq = sv[2]
        G.emit_kgen(a, 'kg', setup_hook=setup_hook, pre_mfma=pre_mfma, post_mfma=post_mfma)
    stamp(a, 4)
    a('s_cmp_eq_u32 s82, 1')
    a('s_cbranch_scc1 L_ssm_have')
    spin(a, 'ssm_ut', 34, 35, SRDF, 0xffffffff, FL_P0)
    ucopy_loads(a, True)
    a.label('L_ssm_have')
    a.hist = []
    a('s_waitcnt vmcnt(0) lgkmcnt(0)')
    a('s_barrier')
    ucopy_writes(a)
    a('s_waitcnt lgkmcnt(0)')
    a('s_barrier')
    stamp(a, 5)
    if 'nogate' not in ARGS:
        a(f's_cmp_ge_u32 s{J}, 28')
        a('s_cbranch_scc1 L_ssm_go')
        a(f's_mul_i32 s42, s{J}, 37')
        a('s_lshr_b32 s42, s42, 8')
        a('s_mul_i32 s43, s42, 7')
        a(f's_sub_u32 s43, s{J}, s43')
        a(f's_lshr_b32 s44, s{X}, 1')
        a('s_lshl_b32 s44, s44, 2')
        a('s_add_u32 s42, s44, s42')
        a(f's_and_b32 s44, s{X}, 1')
        a('s_mul_i32 s44, s44, 7')
        a('s_add_u32 s43, s44, s43')
        a('s_mul_i32 s42, s42, 14')
        a('s_add_u32 s42, s42, s43')
        a(f's_lshl_b32 s42, s42, {HS}')
        a(f's_lshl_b32 s43, s{S_WAVE}, 2')
        a('s_add_u32 s42, s42, s43')
        a(f's_add_u32 s83, s42, {hex(WS_FL + FL_H)}')
        a('s_mov_b32 s45, 300')
        a.label('L_ssm_gate')
        a.lgq = []
        a(f's_load_dword s84, s[{P_WS}:{P_WS+1}], s83 glc')
        a(f's_cmp_ge_u32 s84, {GATE_LEVEL}')
        a('s_cbranch_scc1 L_ssm_go')
        a('s_sleep 4')
        a('s_sub_u32 s45, s45, 1')
        a('s_cmp_lg_u32 s45, 0')
        a('s_cbranch_scc1 L_ssm_gate')
        a.label('L_ssm_go')
        a.reset()
    stamp(a, 6)
    if 'cvp0' not in ARGS: a('s_setprio 3')
    emit_conv(a, 'cv', SC)
    stamp(a, 7)
    a('s_waitcnt vmcnt(0)')
    a('s_barrier')
    publish_a()
    stamp(a, 8)
    G.stamp_flush(a)


TB, FB_, JJ, XC, PAR = 72, 73, 74, 75, 76
HOFF = [77, 78]
ROT = 79
WF, WT = 82, 83
W4, W2K = 81, 80
SLOTS = [(4, 32768), (4, 32768 + 2048), (2, 49152), (4, 0), (4, 2048), (2, 57344), (2, 65536), (4, 16384), (4, 16384 + 2048), (2, 73728)]
TAU, DT = 87, 88
KX = list(range(6, 14))
KW = list(range(14, 22))
SP = list(range(90, 97))
WE = [97, 98, 99, 100]
SRDW2 = 24
R1 = 10
GW, GA, GH, VF, VT, VP = [128, 129], [130, 131], [132, 133, 134, 135], 136, 137, 20
GA2 = [218, 219]
W2R = [138 + 4 * k for k in range(20)]
G2ACC = [32, 48, 64, 80]
HD = 6
HRING = [220, 224, 228, 232, 96, 100, 120, 124, 104, 108, 112, 116]
G2FA = [236, 244]
TAILMASK = (1 << 40) - 1
GAP = int([x[3:] for x in ARGS if x.startswith('gap')][0]) if any(x.startswith('gap') for x in ARGS) else 17
R1_READ_AT = int([x[3:] for x in ARGS if x.startswith('rra')][0]) if any(x.startswith('rra') for x in ARGS) else 1
PUB0 = int([x[3:] for x in ARGS if x.startswith('pub')][0]) if any(x.startswith('pub') for x in ARGS) else 3
GATE_LEVEL = int([x[4:] for x in ARGS if x.startswith('gate') and x[4:].isdigit()][0]) if any(x.startswith('gate') and x[4:].isdigit() for x in ARGS) else 3
ZWG = 256 + 8 * 29
TAILK = int([x[2:] for x in ARGS if x.startswith('tk')][0]) if any(x.startswith('tk') for x in ARGS) else 20
HSC = '' if 'hplain' in ARGS else 'sc1 nt' if 'hnt' in ARGS else 'sc0 sc1' if 'hsc01' in ARGS else 'sc0 sc1 nt' if 'hsc01nt' in ARGS else 'sc1'
OSC = 'sc1' if 'osc1' in ARGS else 'nt' if 'ont' in ARGS else 'sc0 sc1' if 'osc01' in ARGS else ''
ASTG = int([x[3:] for x in ARGS if x.startswith('ast')][0]) if any(x.startswith('ast') for x in ARGS) else 3
TOUCH_ST = int([x[3:] for x in ARGS if x.startswith('tst')][0]) if any(x.startswith('tst') for x in ARGS) else 12
PFDEPTH = int([x[3:] for x in ARGS if x.startswith('pfd')][0]) if any(x.startswith('pfd') for x in ARGS) else 1


class G2State:
    pass


def pos_mj(k):
    return k % 7, (k // 7) & 1, k >= 14


def g2_setup(a):
    if 'map48' in ARGS:
        a(f's_lshl_b32 s42, s{XC}, 2')
        a(f's_lshr_b32 s44, s{JJ}, 3')
        a(f's_add_u32 s{TAU}, s42, s44')
        a(f's_and_b32 s{DT}, s{JJ}, 7')
        a(f's_and_b32 s{PAR}, s{TAU}, 1')
        a(f's_cmp_eq_u32 s{DT}, 7')
        a(f's_cselect_b32 s42, 0, s{DT}')
    else:
        a(f's_lshr_b32 s42, s{XC}, 1')
        a('s_lshl_b32 s42, s42, 3')
        a(f's_lshr_b32 s44, s{JJ}, 2')
        a(f's_add_u32 s{TAU}, s42, s44')
        a(f's_and_b32 s42, s{XC}, 1')
        a('s_lshl_b32 s42, s42, 2')
        if 'dtshift' in ARGS:
            a(f's_add_u32 s43, s{JJ}, 1')
            a('s_and_b32 s43, s43, 3')
        else:
            a(f's_and_b32 s43, s{JJ}, 3')
        a(f's_add_u32 s{DT}, s42, s43')
        a(f's_and_b32 s{PAR}, s{TAU}, 1')
        a('s_lshl_b32 s42, s43, 1')
        a('s_add_u32 s42, s42, s44')
        a('s_cmp_ge_u32 s42, 7')
        a('s_cselect_b32 s43, 7, 0')
        a('s_sub_u32 s42, s42, s43')
    a(f's_mul_i32 s44, s{S_WAVE}, {28*1024}')
    for m in range(7):
        a('s_lshl_b32 s43, s42, 12')
        a(f's_add_u32 s{SP[m]}, s43, s44')
        if m < 6:
            a('s_add_u32 s42, s42, 1')
            a('s_cmp_eq_u32 s42, 7')
            a('s_cselect_b32 s42, 0, s42')
    a(f's_lshl_b32 s{WE[0]}, s{PAR}, 15')
    a(f's_add_u32 s{WE[1]}, s{WE[0]}, 16384')
    a(f's_sub_u32 s{WE[2]}, 32768, s{WE[0]}')
    a(f's_add_u32 s{WE[3]}, s{WE[2]}, 16384')
    a(f's_lshl_b32 s42, s{DT}, 7')
    a(f's_sub_u32 s43, {1792*1024}, s42')
    srd(a, SRDW2, P_W2, 's42', 's43')
    a(f's_mul_i32 s42, s{TAU}, {2*112*1024}')
    a(f's_add_u32 s42, s42, {hex(WS_H)}')
    srd(a, SRD3, P_WS, 's42', 2 * 112 * 1024)
    a(f's_and_b32 s{WF}, s{S_WAVE}, 1')
    a(f's_lshr_b32 s{WT}, s{S_WAVE}, 1')
    t0, t1, t2, t3 = 96, 97, 98, 99
    a(f'v_lshrrev_b32 v{t0}, 3, v{V_LANE}')
    a(f'v_and_b32 v{t1}, 7, v{V_LANE}')
    a(f'v_lshrrev_b32 v{t2}, 2, v{t1}')
    a(f'v_lshrrev_b32 v{t3}, 1, v{t0}')
    a(f'v_and_b32 v{t3}, 1, v{t3}')
    a(f'v_xor_b32 v{t2}, v{t2}, v{t3}')
    a(f'v_and_b32 v{t1}, 3, v{t1}')
    a(f'v_lshl_add_u32 v{t2}, v{t2}, 2, v{t1}')
    a(f'v_lshlrev_b32 v{t0}, 10, v{t0}')
    a(f'v_lshl_add_u32 v{GW[0]}, v{t2}, 4, v{t0}')
    a(f'v_add_u32 v{GW[1]}, {8*1024-1024}, v{GW[0]}')
    a(f's_lshl_b32 s{W4}, s{S_WAVE}, 12')
    a(f's_lshl_b32 s{W2K}, s{S_WAVE}, 11')
    a(f'v_lshrrev_b32 v{t0}, 4, v{V_LANE}')
    a(f'v_and_b32 v{t1}, 15, v{V_LANE}')
    a(f'v_lshrrev_b32 v{t2}, 2, v{t1}')
    a(f'v_and_b32 v{t1}, 3, v{t1}')
    a(f'v_lshrrev_b32 v{t3}, 1, v{t0}')
    a(f'v_and_b32 v{t0}, 1, v{t0}')
    a(f'v_lshl_add_u32 v{t3}, v{t3}, 2, v{t2}')
    a(f'v_lshlrev_b32 v{t3}, 7, v{t3}')
    a(f'v_lshl_add_u32 v{t3}, v{t0}, 5, v{t3}')
    a(f'v_lshl_add_u32 v{t3}, v{t1}, 3, v{t3}')
    a(f'v_lshrrev_b32 v{t2}, 1, v{t2}')
    a(f'v_xor_b32 v{t2}, s{WF}, v{t2}')
    a(f'v_lshl_add_u32 v{GA[0]}, v{t2}, 6, v{t3}')
    a(f'v_xor_b32 v{t2}, 1, v{t2}')
    a(f'v_lshl_add_u32 v{GA[1]}, v{t2}, 6, v{t3}')
    a(f's_add_u32 s42, s{W2K}, 49152')
    for dd in range(2):
        a(f'v_add_u32 v{GA2[dd]}, s42, v{GA[dd]}')
        a(f'v_add_u32 v{GA[dd]}, s{W4}, v{GA[dd]}')
    a(f'v_lshlrev_b32 v{t2}, 4, v{V_LANE}')
    a(f's_lshl_b32 s43, s{PAR}, 11')
    a(f'v_add_u32 v{t2}, s43, v{t2}')
    a(f's_mul_i32 s42, s{WT}, {112*1024}')
    a(f'v_add_u32 v{GH[0]}, s42, v{t2}')
    a(f's_sub_u32 s42, {112*1024}, s42')
    a(f'v_add_u32 v{GH[1]}, s42, v{t2}')
    a('s_lshl_b32 s43, s43, 1')
    a('s_sub_u32 s43, 2048, s43')
    a(f'v_add_u32 v{GH[2]}, s43, v{GH[0]}')
    a(f'v_add_u32 v{GH[3]}, s43, v{GH[1]}')
    a(f's_lshr_b32 s42, s{TAU}, 1')
    a('s_mul_i32 s42, s42, 14')
    a(f's_mul_i32 s43, s{S_WAVE}, 7')
    a('s_lshr_b32 s43, s43, 1')
    a('s_add_u32 s42, s42, s43')
    a(f's_lshl_b32 s42, s42, {HS}')
    a(f's_lshl_b32 s43, s{PAR}, 3')
    a('s_add_u32 s42, s42, s43')
    a(f's_add_u32 s42, s42, {hex(WS_FL + FL_H)}')
    a(f's_add_u32 s{SFL}, s{P_WS}, s42')
    a(f's_addc_u32 s{SFL+1}, s{P_WS+1}, 0')
    a(f's_lshl_b32 s42, s{DT}, 5')
    a(f'v_add_u32 v{VT}, s42, v{V_LANE}')
    a(f'v_lshlrev_b32 v{VT}, {FS}, v{VT}')
    a(f'v_add_u32 v{VT}, {FL_A}, v{VT}')
    a(f's_lshr_b32 s42, s{TAU}, 2')
    a(f's_and_b32 s43, s{TAU}, 3')
    a('s_lshl_b32 s43, s43, 6')
    a('s_add_u32 s42, s42, s43')
    a(f'v_subrev_u32 v{t0}, 32, v{V_LANE}')
    a(f'v_lshlrev_b32 v{t0}, 3, v{t0}')
    a(f'v_add_u32 v{t0}, s42, v{t0}')
    a(f'v_lshlrev_b32 v{t0}, {FS}, v{t0}')
    a(f'v_add_u32 v{t0}, {FL_P0}, v{t0}')
    a(f'v_cmp_gt_u32 vcc, 32, v{V_LANE}')
    a(f'v_cndmask_b32 v{VT}, v{t0}, v{VT}, vcc')


def g2_dma_items(k):
    m, j, late = pos_mj(k)
    kind, off = SLOTS[k % 10]
    pre = [f's_add_u32 m0, s{W4 if kind == 4 else W2K}, {off}']
    if 'w2same' in ARGS: pre.append('s_mov_b32 s89, 0')
    else: pre.append(f's_lshl4_add_u32 s89, s{SP[m]}, s{WE[2*late+j]}')
    if 'w2small' in ARGS: pre.append('s_and_b32 s89, s89, 0x1ffff')
    return [pre + [f'buffer_load_dwordx4 v{GW[0]}, s[{SRDW2}:{SRDW2+3}], s89 offen lds'],
            [(f'buffer_load_dwordx4 v{GW[1]}, s[{SRDW2}:{SRDW2+3}], s89 offen offset:1024 lds', k)]]


def put_items(a, g, items):
    for it in items:
        if isinstance(it, tuple): g.tokW[it[1]] = a(it[0])
        else: a(it)


def g2_dma(a, g, k):
    for grp in g2_dma_items(k): put_items(a, g, grp)


def g2_wread_list(k, regs):
    kind, off = SLOTS[k % 10]
    l = []
    for dd in range(2):
        v_, o = (GA[dd], off) if kind == 4 else (GA2[dd], off - 49152)
        l.append(f'ds_read_b64_tr_b16 v[{regs[dd]}:{regs[dd]+1}], v{v_} offset:{o}')
        l.append(f'ds_read_b64_tr_b16 v[{regs[dd]+2}:{regs[dd]+3}], v{v_} offset:{o+1024}')
    return l


def g2_round1_reads(a, g):
    a.wait_vm_token(max(g.tokW[k] for k in range(R1)))
    for k in range(R1):
        for l in g2_wread_list(k, W2R[2*k:2*k+2]): a(l)


def h_schedule():
    free = list(HRING)
    regs, when = {}, {}
    nxt = 0
    for p in range(HD - 1):
        regs[p] = (free.pop(0), free.pop(0)); when[p] = -1; nxt += 1
    for k in range(28):
        if k >= 1:
            free += list(regs[k - 1])
            if RESERVED <= k - 1 < R1: free += W2R[2*(k-1):2*(k-1)+2]
        n = 0
        while nxt < 28 and len(free) >= 2 and n < 2:
            regs[nxt] = (free.pop(0), free.pop(0)); when[nxt] = k; nxt += 1; n += 1
    return regs, when


RESERVED = 4
HREGS, HWHEN = h_schedule()


SFL = 32
PSET = [6, 14]
SPINSET = 72
sc_slow = []
NREST = [0]


LVL = 101


def sc_issue(a, st):
    d = PSET[st]
    for i in range(4):
        a(f's_load_dwordx2 s[{d+2*i}:{d+2*i+1}], s[{SFL}:{SFL+1}], {(1 << HS)*i} glc')


def sc_eval(a, st):
    d = PSET[st]
    a(f's_min_u32 s42, s{d}, s{d+1}')
    for i in range(2, 8):
        a(f's_min_u32 s42, s42, s{d+i}')
    a(f's_max_u32 s{LVL}, s{LVL}, s42')


def sc_need(a, name, level):
    a(f's_cmp_ge_u32 s{LVL}, {level}')
    a(f's_cbranch_scc0 L_{name}_slow')
    a.label(f'L_{name}_back')
    sc_slow.append((name, level))


def sc_spin(a, name, level):
    a(f's_mov_b32 s45, {SPIN_LIMIT}')
    a.label(f'L_{name}_spin')
    a.lgq = []
    for i in range(4):
        a(f's_load_dwordx2 s[{SPINSET+2*i}:{SPINSET+2*i+1}], s[{SFL}:{SFL+1}], {(1 << HS)*i} glc')
    a(f's_min_u32 s42, s{SPINSET}, s{SPINSET+1}')
    for i in range(2, 8):
        a(f's_min_u32 s42, s42, s{SPINSET+i}')
    a(f's_max_u32 s{LVL}, s{LVL}, s42')
    a(f's_cmp_ge_u32 s{LVL}, {level}')
    a(f's_cbranch_scc1 L_{name}_done')
    a('s_sleep 2')
    a('s_sub_u32 s45, s45, 1')
    a('s_cmp_lg_u32 s45, 0')
    a(f's_cbranch_scc1 L_{name}_spin')
    a.label(f'L_{name}_done')


def emit_sc_slow(a):
    for name, level in sc_slow:
        a.label(f'L_{name}_slow')
        a.reset()
        a('s_waitcnt lgkmcnt(0)')
        sc_spin(a, name + 's', level)
        a(f's_branch L_{name}_back')
    sc_slow.clear()


def hload(k, tt):
    m, j, late = pos_mj(k)
    r = HREGS[k][tt]
    return f'buffer_load_dwordx4 v[{r}:{r+3}], v{GH[2*late+tt]}, s[{SRD3}:{SRD3+3}], s{SP[m]} offen offset:{1024*j} {SC}'


def h_prologue(a, opt=False):
    for k in range(HD - 1):
        for tt in range(2): a(hload(k, tt), opt=opt)


def g1_role(a, g):
    VX = [2, 3, 4, 5]
    VW = [6, 7, 8, 9]
    a(f's_and_b32 s{WF}, s{S_WAVE}, 1')
    a(f's_lshr_b32 s{WT}, s{S_WAVE}, 1')
    a(f'v_lshrrev_b32 v12, 3, v{V_LANE}')
    a(f'v_and_b32 v13, 7, v{V_LANE}')
    a('v_lshrrev_b32 v14, 1, v12')
    a('v_xor_b32 v14, v13, v14')
    a(f's_lshl_b32 s42, s{S_WAVE}, 4')
    a('v_add_u32 v15, s42, v12')
    a('v_lshlrev_b32 v15, 10, v15')
    a(f'v_lshl_add_u32 v{VX[0]}, v14, 4, v15')
    a('v_xor_b32 v14, 4, v14')
    a(f'v_lshl_add_u32 v{VX[1]}, v14, 4, v15')
    a(f'v_add_u32 v{VX[1]}, {8*1024-1024}, v{VX[1]}')
    a(f'v_lshrrev_b32 v12, 4, v{V_LANE}')
    a(f'v_and_b32 v13, 15, v{V_LANE}')
    a('v_lshrrev_b32 v14, 2, v13')
    a('v_xor_b32 v14, v14, v12')
    a('v_and_b32 v13, 3, v13')
    a('v_lshl_add_u32 v14, v14, 2, v13')
    a(f's_lshl_b32 s42, s{S_WAVE}, 3')
    a('v_add_u32 v15, s42, v12')
    a('v_mul_u32_u24 v15, 3584, v15')
    a(f'v_lshl_add_u32 v{VW[0]}, v14, 4, v15')
    a(f'v_add_u32 v{VW[1]}, {4*3584-1024}, v{VW[0]}')
    a(f's_lshl_b32 s84, s{S_WAVE}, 11')
    def ktab(c):
        if 'rot7' in ARGS:
            if c == 0:
                a('s_mov_b32 s42, 0')
            else:
                a(f's_add_u32 s42, s{ROT}, {c - 1}')
                a('s_cmp_ge_u32 s42, 7')
                a('s_cselect_b32 s43, 7, 0')
                a('s_sub_u32 s42, s42, s43')
                a('s_add_u32 s42, s42, 1')
        else:
            a(f's_add_u32 s42, s{ROT}, {c}')
            a('s_and_b32 s42, s42, 7')
        a(f's_lshl_b32 s{KX[c]}, s42, 7')
        a(f's_mul_i32 s{KW[c]}, s42, 229376')
    if 'prost' in ARGS: stamp(a, 3)
    a('s_waitcnt lgkmcnt(0)')
    a.lgq = []
    if 'prost' in ARGS: stamp(a, 4)
    ktab(0); ktab(1)
    a(f's_lshl_b32 s42, s{TB}, 17')
    srd(a, SRD1, P_X, 's42', 131072)
    a(f's_lshl_b32 s42, s{FB_}, 8')
    a(f's_sub_u32 s43, {512*3584}, s42')
    srd(a, SRD2, P_W1, 's42', 's43')
    tokW, tokX = {}, {}
    def dma_w_list(st):
        o = 2 * (st & 1)
        return [f's_add_u32 m0, s84, {G1_WS[st % 4]}',
                f'buffer_load_dwordx4 v{VW[o]}, s[{SRD2}:{SRD2+3}], s{KW[st >> 1]} offen lds',
                (f'buffer_load_dwordx4 v{VW[o+1]}, s[{SRD2}:{SRD2+3}], s{KW[st >> 1]} offen offset:1024 lds', ('w', st))]
    def dma_x_list(c, h):
        return [f's_add_u32 m0, s84, {G1_XS[c % 3] + 8192*h}',
                f'buffer_load_dwordx4 v{VX[2*h]}, s[{SRD1}:{SRD1+3}], s{KX[c]} offen lds',
                (f'buffer_load_dwordx4 v{VX[2*h+1]}, s[{SRD1}:{SRD1+3}], s{KX[c]} offen offset:1024 lds', ('x', (c, h)))]
    g.tokW = {}
    def w2_items(k):
        out = []
        for grp in g2_dma_items(k):
            for it in grp:
                out.append((it[0], ('g', it[1])) if isinstance(it, tuple) else it)
        return out
    def put(item):
        if isinstance(item, tuple):
            t = a(item[0])
            {'w': tokW, 'x': tokX, 'g': g.tokW}[item[1][0]][item[1][1]] = t
        elif callable(item):
            item()
        else:
            a(item)
    if 'prost' in ARGS: stamp(a, 5)
    for it in dma_w_list(0) + dma_x_list(0, 0): put(it)
    if 'prost' in ARGS: stamp(a, 6)
    a(f'v_add_u32 v{VX[2]}, 65536, v{VX[0]}')
    a(f'v_add_u32 v{VX[3]}, 65536, v{VX[1]}')
    a(f'v_add_u32 v{VW[2]}, {32*3584}, v{VW[0]}')
    a(f'v_add_u32 v{VW[3]}, {32*3584}, v{VW[1]}')
    for it in dma_x_list(0, 1) + dma_w_list(1) + dma_x_list(1, 0) + dma_x_list(1, 1) + dma_w_list(2): put(it)
    if 'g2st' not in ARGS and 'blkst' not in ARGS and 'lastst' not in ARGS and 'tailst' not in ARGS: stamp(a, 1)
    for c in range(2, 8): ktab(c)
    B1V = [26, 27]
    a(f's_lshl_b32 s42, s{FB_}, 7')
    a(f's_lshl_b32 s43, s{WF}, 6')
    a('s_add_u32 s42, s42, s43')
    a(f'v_and_b32 v21, 31, v{V_LANE}')
    a('v_add_u32 v22, s42, v21')
    a('v_lshlrev_b32 v22, 1, v22')
    a(f's_lshl_b32 s42, s{WT}, 6')
    a('v_add_u32 v23, s42, v22')
    a(f'global_load_ushort v{B1V[0]}, v23, s[{P_B1}:{P_B1+1}]')
    a('s_sub_u32 s42, 64, s42')
    a('v_add_u32 v23, s42, v22')
    a(f'global_load_ushort v{B1V[1]}, v23, s[{P_B1}:{P_B1+1}]')
    setup_flag_srds(a)
    srd(a, SRD0, P_WS, 0, 0x1000000)
    g2_setup(a)
    VA = [10, 11]; VB = [16, 17, 18, 19]
    a(f'v_lshrrev_b32 v12, 4, v{V_LANE}')
    a(f'v_and_b32 v13, 15, v{V_LANE}')
    a('v_lshrrev_b32 v14, 2, v13')
    a('v_and_b32 v13, 3, v13')
    a('v_lshrrev_b32 v15, 1, v12')
    a('v_and_b32 v12, 1, v12')
    a('v_lshl_add_u32 v15, v15, 3, v14')
    a('v_lshlrev_b32 v15, 8, v15')
    a('v_lshl_add_u32 v15, v12, 5, v15')
    a('v_lshl_add_u32 v15, v13, 3, v15')
    a(f'v_add_u32 v15, {G1_WS[0]}, v15')
    a(f's_lshl_b32 s42, s{WF}, 1')
    a(f's_add_u32 s42, s42, s{WT}')
    for l in range(2):
        if l: a('s_xor_b32 s42, s42, 1')
        a('v_xor_b32 v12, s42, v14')
        a(f'v_lshl_add_u32 v{VA[l]}, v12, 6, v15')
    a(f'v_and_b32 v12, 31, v{V_LANE}')
    a(f'v_lshrrev_b32 v13, 5, v{V_LANE}')
    a('v_lshrrev_b32 v14, 1, v12')
    a('v_and_b32 v14, 7, v14')
    a(f's_lshl_b32 s42, s{WT}, 6')
    a('v_add_u32 v12, s42, v12')
    a('v_lshlrev_b32 v12, 7, v12')
    for kk in range(4):
        a(f'v_add_u32 v15, {2*kk}, v13')
        a('v_xor_b32 v15, v15, v14')
        a(f'v_lshl_add_u32 v{VB[kk]}, v15, 4, v12')
    ONES, SACC = 248, 232
    for k in range(4):
        a(f'v_mov_b32 v{ONES+k}, 0x3f803f80')
    MS = [12, 14]
    a('v_mov_b32 v28, 0')
    a(f's_lshr_b32 s42, s{TB}, 1')
    a(f's_and_b32 s43, s{TB}, 1')
    a('s_lshl_b32 s43, s43, 7')
    a('s_add_u32 s42, s42, s43')
    a(f'v_lshlrev_b32 v29, 3, v{V_LANE}')
    a('v_add_u32 v29, s42, v29')
    a(f'v_lshlrev_b32 v29, {FS}, v29')
    a(f's_lshl_b32 s42, s{TB}, 7')
    a(f's_lshl_b32 s43, s{WT}, 6')
    a('s_add_u32 s42, s42, s43')
    a('v_add_u32 v30, s42, v21')
    a('v_lshlrev_b32 v30, 3, v30')
    a(f'v_add_u32 v30, {hex(WS_ST)}, v30')
    a(f's_lshl_b32 s{HOFF[0]}, s{WT}, 11')
    a(f's_sub_u32 s{HOFF[1]}, 2048, s{HOFF[0]}')
    a(f's_lshl_b32 s42, s{TB}, 2')
    a(f's_lshl_b32 s43, s{WT}, 1')
    a('s_add_u32 s42, s42, s43')
    a('s_mul_i32 s42, s42, 112')
    a(f's_lshl_b32 s43, s{FB_}, 3')
    a('s_add_u32 s42, s42, s43')
    a(f's_lshl_b32 s43, s{WF}, 2')
    a('s_add_u32 s42, s42, s43')
    a('s_lshl_b32 s42, s42, 10')
    a(f's_add_u32 s42, s42, {hex(WS_H)}')
    VH = [24, 25]
    a(f'v_lshlrev_b32 v24, 4, v{V_LANE}')
    a('v_add_u32 v24, s42, v24')
    a(f'v_add_u32 v25, {112*1024}, v24')
    a(f's_add_u32 s44, s{W2K}, 65536')
    a(f's_xor_b32 s45, s{S_WAVE}, 2')
    a('s_lshl_b32 s45, s45, 11')
    a('s_add_u32 s45, s45, 65536')
    a('v_lshlrev_b32 v21, 2, v21')
    a('v_add_u32 v23, s45, v21')
    a('v_add_u32 v21, s44, v21')
    st_ = {}
    def h_rdy_issue(): st_['r'] = poll_issue(a, 31, 28, SRDD, 1)
    def h_rdy_check(): check_or_spin(a, 'g1_rdy', st_['r'], 31, 28, SRDD, 1)
    def h_fl_issue(): st_['f'] = poll_issue(a, 31, 29, SRDF, 0xffff, FL_P0)
    def h_fl_check():
        check_or_spin(a, 'g1_fl', st_['f'], 31, 29, SRDF, 0xffff, FL_P0)
        for tt in range(2):
            a(f'buffer_load_dwordx2 v[{MS[tt]}:{MS[tt]+1}], v30, s[{SRD0}:{SRD0+3}], 0 offen offset:{256*tt} {SC}')
    def w2_touch():
        if 'notouch' in ARGS: return
        a(f's_lshl_b32 s42, s{JJ}, 6')
        a(f's_lshl_b32 s43, s{S_WAVE}, 4')
        a('s_add_u32 s42, s42, s43')
        a(f'v_lshrrev_b32 v140, 2, v{V_LANE}')
        a('v_add_u32 v140, s42, v140')
        a('v_lshlrev_b32 v140, 10, v140')
        a(f'v_and_b32 v141, 3, v{V_LANE}')
        a('v_lshl_add_u32 v140, v141, 7, v140')
        a(f's_and_b32 s42, s{XC}, 1')
        a('s_lshl_b32 s42, s42, 9')
        a('v_add_u32 v140, s42, v140')
        a(f'global_load_dword v141, v140, s[{P_W2}:{P_W2+1}]', discard=True)
        if 'touch1' not in ARGS:
            a(f'global_load_dword v141, v140, s[{P_W2}:{P_W2+1}] offset:64', discard=True)
    hk = {7: h_rdy_issue, 10: h_rdy_check, 11: h_fl_issue, TOUCH_ST: w2_touch, 14: h_fl_check}
    AF, BF = [104, 228], [220, 224]
    SD = [13, 15]
    AL, BE = [28, 29], [30, 31]
    def token_operands(tt):
        b = BF[tt]
        a('s_mov_b32 s42, 0xffff0000')
        a(f'v_cmp_gt_u32 vcc, 32, v{V_LANE}')
        a(f'v_xor_b32 v22, 0x80000000, v{MS[tt]}')
        a(f'v_lshrrev_b32 v{b}, 16, v{SD[tt]}')
        a(f'v_and_or_b32 v{b}, v22, s42, v{b}')
        a(f'v_lshrrev_b32 v{b+1}, 16, v22')
        a(f'v_and_or_b32 v{b+1}, v22, s42, v{b+1}')
        a(f'v_cndmask_b32 v{b}, 0, v{b}, vcc')
        a(f'v_cndmask_b32 v{b+1}, 0, v{b+1}, vcc')
        a(f'v_mov_b32 v{b+2}, 0')
        a(f'v_mov_b32 v{b+3}, 0')
        a(f'v_rcp_f32 v22, v{SD[tt]}')
        a(f'v_mul_f32 v{AL[tt]}, {f32(-GELU_C)}, v22')
        a('v_mul_f32 v22, v22, v22')
        a(f'v_mul_f32 v22, v22, v{AL[tt]}')
        a(f'v_mul_f32 v{BE[tt]}, {f32(0.044715)}, v22')
    hk = {4: h_rdy_issue, 7: h_rdy_check, 8: h_fl_issue, 11: h_fl_check, 14: lambda: token_operands(0), 15: lambda: token_operands(1)}
    ACC = 32
    FR = [96, 112]
    def reads(st, kap):
        base = FR[kap]
        lst = []
        for l in range(2):
            o = (st % 4) * 8192 + kap * 16 * 256
            lst.append(f'ds_read_b64_tr_b16 v[{base+4*l}:{base+4*l+1}], v{VA[l]} offset:{o}')
            lst.append(f'ds_read_b64_tr_b16 v[{base+4*l+2}:{base+4*l+3}], v{VA[l]} offset:{o+1024}')
        for tt in range(2):
            kk = 2 * (st & 1) + kap
            lst.append(f'ds_read_b128 v[{base+8+4*tt}:{base+11+4*tt}], v{VB[kk]} offset:{G1_XS[(st>>1) % 3] + 4096*tt}')
        return lst
    def mfmas(st, kap, rd, dm):
        base = FR[kap]
        first = (st == 0 and kap == 0)
        ms = []
        c = '0' if first else f'v[{SACC}:{SACC+15}]'
        ms.append(f'v_mfma_f32_32x32x16_bf16 v[{SACC}:{SACC+15}], v[{ONES}:{ONES+3}], v[{base}:{base+3}], {c}')
        for l in range(2):
            for tt in range(2):
                acc = ACC + 32 * l + 16 * tt
                c = '0' if first else f'v[{acc}:{acc+15}]'
                ms.append(f'v_mfma_f32_32x32x16_bf16 v[{acc}:{acc+15}], v[{base+4*l}:{base+4*l+3}], v[{base+8+4*tt}:{base+11+4*tt}], {c}')
        if len(dm) <= 3:
            gaps = [rd[0:2], dm[0:2] + rd[2:3], rd[3:5], dm[2:3] + rd[5:6], []]
        else:
            q = (len(dm) + 3) // 4
            gaps = [rd[0:2] + dm[0:q], rd[2:4] + dm[q:2*q], rd[4:6] + dm[2*q:3*q], dm[3*q:], []]
        for m, gp in zip(ms, gaps):
            a(m)
            for it in gp: put(it)
    for st in range(16):
        need = [tokW[st]] + [tokX[(st >> 1, h)] for h in range(2)]
        if st + 1 < 16:
            need += [tokW[st + 1]] + [tokX[((st + 1) >> 1, h)] for h in range(2)]
        a.wait_vm_token(max(need))
        a('s_barrier')
        if st in (0, 4, 8, 12) and 'g2st' not in ARGS and 'blkst' not in ARGS and 'lastst' not in ARGS and 'tailst' not in ARGS and ('prost' not in ARGS or st == 0): stamp(a, 2 + st // 4)
        if 'lastst' in ARGS and st >= 11: stamp(a, {11: 1, 12: 2, 13: 3, 14: 4, 15: 5}[st])
        if st in hk: hk[st]()
        if st == 0:
            for l in reads(0, 0): a(l)
        c = (st >> 1) + 2
        d0 = dma_w_list(st + 3) if st + 3 < 16 else []
        d1 = dma_x_list(c, st & 1) if c < 8 else []
        early = {12: ([], [0, 1]), 13: ([2], []), 14: ([3, 4], [5])}.get(st)
        if early:
            d0 = d0 + [x for k in early[0] for x in w2_items(k)]
            d1 = d1 + [x for k in early[1] for x in w2_items(k)]
        mfmas(st, 0, reads(st, 1), d0)
        mfmas(st, 1, reads(st + 1, 0) if st + 1 < 16 else [], d1)
    if 'lastst' in ARGS: stamp(a, 12)
    def a_operand(l, sreg):
        f = AF[l]
        a(f'v_cmp_gt_u32 vcc, 32, v{V_LANE}')
        a(f'v_cvt_pk_bf16_f32 v{f}, v{sreg}, v{sreg}')
        a(f'v_lshlrev_b32 v{f}, 16, v{f}')
        a(f'v_sub_f32 v22, v{sreg}, v{f}')
        a(f'v_cvt_pk_bf16_f32 v{f+2}, v22, v22')
        a(f'v_lshlrev_b32 v{f+2}, 16, v{f+2}')
        a(f'v_sub_f32 v{f+2}, v22, v{f+2}')
        a(f'v_cvt_pk_bf16_f32 v{f+1}, v22, v{f+2}')
        a(f'v_or_b32 v{f}, v{f}, v{B1V[l]}')
        a(f'v_cndmask_b32 v{f}, 0, v{f}, vcc')
        a(f'v_cndmask_b32 v{f+1}, 0, v{f+1}, vcc')
        a(f'v_mov_b32 v{f+2}, 0')
        a(f'v_mov_b32 v{f+3}, 0')
    def aug(l):
        for tt in range(2):
            acc = ACC + 32 * l + 16 * tt
            a(f'v_mfma_f32_32x32x16_bf16 v[{acc}:{acc+15}], v[{AF[l]}:{AF[l]+3}], v[{BF[tt]}:{BF[tt]+3}], v[{acc}:{acc+15}]')
    a(f'ds_write_b32 v23, v{SACC}')
    a_operand(0, SACC)
    aug(0)
    a('s_waitcnt lgkmcnt(0)')
    a('s_barrier')
    if 'g2st' not in ARGS and 'blkst' not in ARGS and 'prost' not in ARGS and 'tailst' not in ARGS: stamp(a, 6)
    if 'blkst' in ARGS: stamp(a, 10)
    SR1 = 233
    a(f'ds_read_b32 v{SR1}, v21')
    for k in (7, 8, 9): g2_dma(a, g, k)
    a('s_waitcnt lgkmcnt(0)')
    g2_dma(a, g, 6)
    a_operand(1, SR1)
    aug(1)
    dq = []
    def queue_dma(ks):
        for k in ks: dq.extend(g2_dma_items(k))
    def drain_dma():
        while dq: put_items(a, g, dq.pop(0))
    cnt = [0]
    gap = [GAP]
    rq = []
    def e(text):
        r = a(text)
        cnt[0] += 1
        if cnt[0] % gap[0] == 0 and dq: put_items(a, g, dq.pop(0))
        if cnt[0] % 3 == 0 and rq: a(rq.pop(0))
        return r
    T = 96
    toks = {}
    def block(l, j, tt):
        acc = ACC + 32 * l + 16 * tt
        r0 = 8 * j
        E = range(8)
        for x in E: e(f'v_mul_f32 v{T+x}, v{acc+r0+x}, v{acc+r0+x}')
        for x in E: e(f'v_fma_f32 v{T+x}, v{T+x}, v{BE[tt]}, v{AL[tt]}')
        for x in E: e(f'v_mul_f32 v{T+x}, v{T+x}, v{acc+r0+x}')
        for x in E: e(f'v_exp_f32 v{T+x}, v{T+x}')
        for x in E: e(f'v_fma_f32 v{T+x}, v{T+x}, v{SD[tt]}, v{SD[tt]}')
        for x in E: e(f'v_rcp_f32 v{T+x}, v{T+x}')
        for x in E: e(f'v_mul_f32 v{T+x}, v{T+x}, v{acc+r0+x}')
        H = 104 + 4 * ((2 * j + tt) % 4)
        for x in range(4): e(f'v_cvt_pk_bf16_f32 v{H+x}, v{T+2*x}, v{T+2*x+1}')
        toks[(l, j, tt)] = a(f'buffer_store_dwordx4 v[{H}:{H+3}], v{VH[tt]}, s[{SRD0}:{SRD0+3}], s{HOFF[l]} offen offset:{j*1024} {HSC}')
    a(f's_mul_i32 s42, s{TB}, 14')
    a(f's_add_u32 s42, s42, s{FB_}')
    a(f's_lshl_b32 s42, s42, {HS}')
    a(f's_lshl_b32 s43, s{S_WAVE}, 2')
    a('s_add_u32 s42, s42, s43')
    a(f's_add_u32 s42, s42, {FL_H}')
    a('v_mov_b32 v26, s42')
    a('v_mov_b32 v27, 1')
    def publish(stage):
        a.wait_vm_token(toks[(stage >> 1, stage & 1, 1)])
        a(f'v_mov_b32 v27, {stage + 1}')
        a('s_mov_b64 exec, 1')
        a(f'buffer_store_dword v27, v26, s[{SRDF}:{SRDF+3}], 0 offen {SC}')
        a('s_mov_b64 exec, -1')
    a(f's_mov_b32 s{LVL}, 0')
    order = [(l, j, tt) for l in range(2) for j in range(2) for tt in range(2)]
    for n, (l, j, tt) in enumerate(order):
        block(l, j, tt)
        if 'blkst' in ARGS: stamp(a, 1 + n) if n < 7 else None
        if n == PUB0: publish(0)
        if n == R1_READ_AT:
            a.wait_vm_token(max(g.tokW[k] for k in range(R1)))
            for k in range(R1): rq.extend(g2_wread_list(k, W2R[2*k:2*k+2]))
            if 'rdspread' not in ARGS:
                while rq: a(rq.pop(0))
        if n == R1_READ_AT + (2 if 'rdspread' in ARGS else 0):
            while rq: a(rq.pop(0))
            a('s_waitcnt lgkmcnt(0)')
            queue_dma(range(R1, R1 + 10))
        if n == PUB0 + 2: publish(1)
        if n == 6: sc_issue(a, 0)
    stamp(a, 8)
    publish(2)
    drain_dma()
    publish(3)
    g.nrest = 0
    NREST[0] = 0
    sc_eval(a, 0)
    sc_need(a, 'g1_h0', 1)
    sc_issue(a, 1)
    h_prologue(a)
    stamp(a, 9)


def service_role(a, g):
    a(f's_cmp_eq_u32 s{JJ}, 28')
    a('s_cbranch_scc0 L_sv_done')
    a(f's_cmp_eq_u32 s{S_WAVE}, 3')
    a('s_cbranch_scc0 L_sv_done')
    if 'nopf' not in ARGS:
        a('s_getpc_b64 s[44:45]')
        a.label('L_pf_pc')
        a('s_sub_u32 s44, s44, L_pf_pc-CODE_BEGIN')
        a('s_subb_u32 s45, s45, 0')
        a(f'v_lshlrev_b32 v37, 4, v{V_LANE}')
        NPF = 38
        for k in range(NPF):
            a('v_min_u32 v36, CODE_END-CODE_BEGIN-16, v37')
            a('global_load_dwordx4 v[244:247], v36, s[44:45]', opt=True, discard=True)
            a('v_add_u32 v37, 1024, v37')
    a.label('L_sv_done')
    a.reset()
    a('s_waitcnt lgkmcnt(0)')
    setup_flag_srds(a)
    def chk():
        a('v_mov_b32 v33, 0')
        spin(a, 'sv_rdy', 34, 33, SRDD, 1, sleep=12)
    wave0_only(a, 'sv_rdyw', chk)
    a('s_barrier')
    if 'now2pf' not in ARGS:
        a(f's_lshl_b32 s42, s{S_IDX}, {FS}')
        a(f's_add_u32 s42, s42, {FL_P0}')
        a('v_mov_b32 v33, s42')
        if 'pfnogate' not in ARGS: spin(a, 'sv_p0', 34, 33, SRDF, 1)
        srd(a, SRD1, P_W2, 0, 1792 * 1024)
        a(f's_sub_u32 s42, s{JJ}, 28')
        a('s_lshl_b32 s42, s42, 2')
        a(f's_add_u32 s42, s42, s{S_WAVE}')
        a(f's_mul_i32 s42, s42, {112*1024}')
        if 'map48' in ARGS:
            a(f'v_lshlrev_b32 v2, 7, v{V_LANE}')
            a('s_mov_b32 s43, 14')
        else:
            a(f'v_lshrrev_b32 v2, 2, v{V_LANE}')
            a('v_lshlrev_b32 v2, 10, v2')
            a(f'v_and_b32 v3, 3, v{V_LANE}')
            a('v_lshl_add_u32 v2, v3, 7, v2')
            a(f's_and_b32 s43, s{XC}, 1')
            a('s_lshl_b32 s43, s43, 9')
            a('v_add_u32 v2, s43, v2')
            a('s_mov_b32 s43, 7')
        a.label('L_w2pf')
        a(f'buffer_load_dword v40, v2, s[{SRD1}:{SRD1+3}], s42 offen', opt=True, discard=True)
        if 'pf64' in ARGS: a(f'buffer_load_dword v41, v2, s[{SRD1}:{SRD1+3}], s42 offen offset:64', opt=True, discard=True)
        a(f's_add_u32 s42, s42, {8192 if "map48" in ARGS else 16384}')
        a(f's_waitcnt vmcnt({PFDEPTH})')
        a('s_sub_u32 s43, s43, 1')
        a('s_cmp_lg_u32 s43, 0')
        a('s_cbranch_scc1 L_w2pf')
        a.reset()
    g2_setup(a)
    g.tokW = {}
    a(f's_mov_b32 s{LVL}, 0')
    if 'svlate' in ARGS:
        sc_spin(a, 'sv_h0', 1)
    for k in range(R1):
        g2_dma(a, g, k)
    srd(a, SRD0, P_WS, 0, 0x1000000)
    g2_round1_reads(a, g)
    a('s_waitcnt lgkmcnt(0)')
    if 'svmid' in ARGS: sc_spin(a, 'sv_h0', 1)
    items = [grp for k in range(R1, R1 + 10) for grp in g2_dma_items(k)]
    for grp in items[:20 - NREST[0]]: put_items(a, g, grp)
    if 'svlate' not in ARGS and 'svmid' not in ARGS: sc_spin(a, 'sv_h0', 1)
    sc_issue(a, 1)
    h_prologue(a)


def g2_main(a, g):
    for k in range(HD - 1):
        for tt in range(2):
            r = HREGS[k][tt]
            a.vseq += 1
            a.vmq.append((a.vseq, {('v', r + i) for i in range(4)}, False))
    a.lseq += 1
    a.lgq.append((a.lseq, {('s', PSET[1] + i) for i in range(8)}, 'smem'))
    rest = [grp for k in range(R1, R1 + 10) for grp in g2_dma_items(k)][20 - NREST[0]:]
    for k in range(R1, R1 + 10): g.tokW[k] = 0
    def wregs(k):
        return W2R[2*k:2*k+2] if k < R1 else [G2FA[k & 1], G2FA[k & 1] + 4]
    st_ = {}
    VPS = {1: 21, 2: 22, 3: 23}
    AV = [138 + r for r in range(16)]
    GV, B2 = 154, 156
    VTOK, VHI = 16, 17
    def tail_loads():
        check_or_spin(a, 'g2_t', st_['t'], VP, VT, SRDF, TAILMASK)
        a(f'v_and_b32 v{VTOK}, 31, v{V_LANE}')
        a(f'v_lshrrev_b32 v{VHI}, 5, v{V_LANE}')
        a(f's_lshl_b32 s42, s{TAU}, 6')
        a(f's_lshl_b32 s43, s{WT}, 5')
        a('s_add_u32 s42, s42, s43')
        a(f'v_add_u32 v{VTOK}, s42, v{VTOK}')
        a(f'v_lshlrev_b32 v18, 2, v{VTOK}')
        a(f'v_add_u32 v18, {hex(WS_G)}, v18')
        a(f'buffer_load_dword v{GV}, v18, s[{SRD0}:{SRD0+3}], 0 offen {SC}')
        a(f's_lshl_b32 s42, s{DT}, 6')
        a(f's_lshl_b32 s43, s{WF}, 5')
        a('s_add_u32 s85, s42, s43')
        a(f'v_lshlrev_b32 v18, 2, v{VHI}')
        a('v_add_u32 v18, s85, v18')
        a('v_lshlrev_b32 v19, 1, v18')
        for i in range(4):
            a(f'global_load_dwordx2 v[{B2+2*i}:{B2+2*i+1}], v19, s[{P_B2}:{P_B2+1}] offset:{16*i}')
        a(f'v_lshrrev_b32 v18, 2, v{V_LANE}')
        a(f'v_and_b32 v19, 3, v{V_LANE}')
        a('v_add_u32 v2, s85, v18')
        a('v_lshlrev_b32 v2, 12, v2')
        a('v_lshl_add_u32 v2, v19, 4, v2')
        a(f's_lshl_b32 s42, s{TAU}, 7')
        a(f's_lshl_b32 s43, s{WT}, 6')
        a('s_add_u32 s42, s42, s43')
        a(f's_add_u32 s42, s42, {hex(WS_AT)}')
        a(f's_add_u32 s43, s42, {16*4096}')
        a(f'buffer_load_dwordx4 v[138:141], v2, s[{SRD0}:{SRD0+3}], s42 offen {SC}')
        a(f'buffer_load_dwordx4 v[142:145], v2, s[{SRD0}:{SRD0+3}], s43 offen {SC}')
        a(f's_add_u32 s42, s{W2K}, 73728')
        a('v_lshlrev_b32 v3, 6, v18')
        a('v_lshl_add_u32 v3, v19, 4, v3')
        a('v_add_u32 v3, s42, v3')
        a(f'v_lshrrev_b32 v4, 4, v{V_LANE}')
        a(f'v_and_b32 v5, 15, v{V_LANE}')
        a('v_lshrrev_b32 v6, 1, v4')
        a('v_lshrrev_b32 v7, 2, v5')
        a('v_lshl_add_u32 v6, v6, 2, v7')
        a('v_lshlrev_b32 v6, 6, v6')
        a('v_and_b32 v4, 1, v4')
        a('v_lshl_add_u32 v6, v4, 5, v6')
        a('v_and_b32 v5, 3, v5')
        a('v_lshl_add_u32 v6, v5, 3, v6')
        a('v_add_u32 v4, s42, v6')
    def a_stage():
        a('ds_write_b128 v3, v[138:141]')
        a('ds_write_b128 v3, v[142:145] offset:1024')
        for i in range(4):
            a(f'ds_read_b64_tr_b16 v[{146+2*i}:{147+2*i}], v4 offset:{512*i}')
    prep = [f'v_sub_f32 v20, 1.0, v{GV}', 'v_cvt_pk_bf16_f32 v20, v20, v20', 'v_lshlrev_b32 v20, 16, v20']
    for i in range(4):
        for h in range(2):
            prep.append(f'v_lshlrev_b32 v{AV[4*i+2*h]}, 16, v{146+2*i+h}')
            prep.append(f'v_and_b32 v{AV[4*i+2*h+1]}, 0xffff0000, v{146+2*i+h}')
        for h in range(2):
            prep.append(f'v_lshlrev_b32 v{6+2*h}, 16, v{B2+2*i+h}')
            prep.append(f'v_and_b32 v{7+2*h}, 0xffff0000, v{B2+2*i+h}')
        for r in range(4):
            prep.append(f'v_mul_f32 v{AV[4*i+r]}, v{AV[4*i+r]}, v{GV}')
        for r in range(4):
            prep.append(f'v_fmac_f32 v{AV[4*i+r]}, v{6+r}, v20')
    for k in range(28):
        rd = []
        if R1 <= k + 1 < 28:
            a.wait_vm_token(g.tokW[k + 1])
            rd = g2_wread_list(k + 1, wregs(k + 1))
        if 'g2st' in ARGS:
            if k in (1, 2, 3, 5, 7, 8, 10, 11, 14, 20): stamp(a, {1: 1, 2: 2, 3: 3, 5: 4, 7: 5, 8: 6, 10: 7, 11: 10, 14: 11, 20: 12}[k])
        elif 'tailst' in ARGS:
            if k in (20, 24): stamp(a, {20: 14, 24: 13}[k])
        elif k in (1, 9, 14, 20) and 'lastst' not in ARGS: stamp(a, {1: 11, 9: 12, 14: 13, 20: 14}[k])
        f = wregs(k)
        newp = [p for p in range(28) if HWHEN[p] == k]
        if k == HWHEN[7]:
            sc_eval(a, 1)
            sc_need(a, 'g2_h1', 2)
            sc_issue(a, 0)
        if k == HWHEN[14]: sc_need(a, 'g2_h2', 3)
        if k == HWHEN[21]:
            sc_eval(a, 0)
            sc_need(a, 'g2_h3', 4)
        if k == TAILK - 4: st_['t'] = poll_issue(a, VP, VT, SRDF, TAILMASK)
        if k == TAILK: tail_loads()
        hq = [hload(p, tt) for p in newp for tt in range(2)]
        n = 0
        for tt in range(2):
            r = HREGS[k][tt]
            for dd in range(2):
                acc = G2ACC[dd + 2 * tt]
                c = '0' if k == 0 else f'v[{acc}:{acc+15}]'
                a(f'v_mfma_f32_32x32x16_bf16 v[{acc}:{acc+15}], v[{f[dd]}:{f[dd]+3}], v[{r}:{r+3}], {c}')
                if hq: a(hq.pop(0))
                if n in (0, 1):
                    for l in rd[2*n:2*n+2]: a(l)
                if rest and (n in (1, 3) or len(rest) > 2 * (R1 - 2 - k)): put_items(a, g, rest.pop(0))
                if n == 3 and k >= R1 + 1 and k - 1 + 10 < 28: g2_dma(a, g, k - 1 + 10)
                if k == TAILK + ASTG and n == 3: a_stage()
                if k >= TAILK + ASTG + 2:
                    for _ in range(6):
                        if prep: a(prep.pop(0))
                n += 1
        assert not hq
    while prep: a(prep.pop(0))
    if 'tailst' in ARGS: stamp(a, 1)
    a(f'v_lshlrev_b32 v14, 4, v{V_LANE}')
    a(f'v_add_u32 v15, s{W4}, v14')
    XR = [32768, 0, 16384]
    for x in range(1, 4):
        for i in range(4):
            a(f'ds_write_b128 v15, v[{G2ACC[x]+4*i}:{G2ACC[x]+4*i+3}] offset:{XR[x-1]+1024*i}')
    if 'tailst' in ARGS: stamp(a, 2)
    if 'tailst' in ARGS: stamp(a, 3)
    a('s_waitcnt lgkmcnt(0)')
    a('s_barrier')
    if 'tailst' in ARGS: stamp(a, 4)
    PR = 170
    for x in range(1, 4):
        a(f's_xor_b32 s42, s{S_WAVE}, {x}')
        a('s_lshl_b32 s42, s42, 12')
        a('v_add_u32 v15, s42, v14')
        for i in range(4):
            a(f'ds_read_b128 v[{PR+16*(x-1)+4*i}:{PR+16*(x-1)+4*i+3}], v15 offset:{XR[x-1]+1024*i}')
    a(f'v_lshlrev_b32 v{VTOK}, 10, v{VTOK}')
    a('s_lshl_b32 s42, s85, 1')
    a(f'v_add_u32 v{VTOK}, s42, v{VTOK}')
    a(f'v_lshl_add_u32 v{VTOK}, v{VHI}, 4, v{VTOK}')
    srd(a, SRD1, P_OUT, 0, 2048 * 1024)
    ACC = G2ACC[0]
    for x in range(3):
        for r in range(16):
            a(f'v_add_f32 v{ACC+r}, v{ACC+r}, v{PR+16*x+r}')
    if 'tailst' in ARGS: stamp(a, 5)
    O = 96
    for r in range(16):
        a(f'v_fmac_f32 v{AV[r]}, v{ACC+r}, v20')
    for i in range(4):
        a(f'v_cvt_pk_bf16_f32 v{O+2*i}, v{AV[4*i]}, v{AV[4*i+1]}')
        a(f'v_cvt_pk_bf16_f32 v{O+2*i+1}, v{AV[4*i+2]}, v{AV[4*i+3]}')
    for p in range(2):
        a(f'v_permlane32_swap_b32 v{O+4*p}, v{O+4*p+2}')
        a(f'v_permlane32_swap_b32 v{O+4*p+1}, v{O+4*p+3}')
        a(f'buffer_store_dwordx4 v[{O+4*p}:{O+4*p+3}], v{VTOK}, s[{SRD1}:{SRD1+3}], 0 offen offset:{32*p} {OSC}')
    stamp(a, 15)
    if G.STAMP:
        a('s_waitcnt vmcnt(0)')
    G.stamp_flush(a)


def gemm_role(a):
    g = G2State()
    a(f's_sub_u32 s{S_IDX}, s2, 256')
    a('s_setprio 2')
    a(f's_and_b32 s{XC}, s{S_IDX}, 7')
    a(f's_lshr_b32 s{JJ}, s{S_IDX}, 3')
    a(f's_cmp_ge_u32 s{JJ}, 28')
    a('s_cbranch_scc1 L_service')
    a(f's_mul_i32 s42, s{JJ}, 37')
    a('s_lshr_b32 s42, s42, 8')
    a('s_mul_i32 s43, s42, 7')
    a(f's_sub_u32 s43, s{JJ}, s43')
    a(f's_lshr_b32 s44, s{XC}, 1')
    a('s_lshl_b32 s44, s44, 2')
    a(f's_add_u32 s{TB}, s44, s42')
    a(f's_and_b32 s44, s{XC}, 1')
    a('s_mul_i32 s44, s44, 7')
    a(f's_add_u32 s{FB_}, s44, s43')
    a('s_lshl_b32 s42, s42, 1')
    a('s_add_u32 s42, s42, s43')
    if 'rot7' in ARGS:
        a('s_cmp_ge_u32 s42, 7')
        a('s_cselect_b32 s43, 7, 0')
        a(f's_sub_u32 s{ROT}, s42, s43')
    else:
        a(f's_and_b32 s{ROT}, s42, 7')
    if 'norot' in ARGS: a(f's_mov_b32 s{ROT}, 0')
    g1_role(a, g)
    a('s_branch L_g2')
    a.label('L_service')
    a.reset()
    last_g1 = G._last[0]
    G.stamp_restart(0)
    service_role(a, G2State())
    stamp(a, 9)
    a.label('L_g2')
    a.reset()
    G.stamp_restart(9)
    g.tokW = {}
    g2_main(a, g)


def build():
    a = Asm()
    name = NAME + '_kernel'
    a.raw(HEADER.rstrip())
    a.raw(f'; @launch grid=(512,1,1) block=(256,1,1) lds={LDS_BYTES}')
    a.raw('.amdgcn_target "amdgcn-amd-amdhsa--gfx950"')
    a.raw('.text')
    a.raw(f'.globl {name}')
    a.raw('.p2align 8')
    a.raw(f'.type {name},@function')
    a.label(name)
    a.label('CODE_BEGIN')
    a.reset()
    a('s_cmp_ge_u32 s2, 512')
    a(f's_cbranch_scc1 L_exit')
    a('s_load_dwordx16 s[4:19], s[0:1], 0')
    a('s_load_dwordx16 s[20:35], s[0:1], 64')
    a('s_load_dwordx4 s[36:39], s[0:1], 128')
    a(f'v_lshrrev_b32 v2, 6, v{V_TID}')
    a(f'v_and_b32 v{V_LANE}, 63, v{V_TID}')
    a(f'v_readfirstlane_b32 s{S_WAVE}, v2')
    a('s_cmp_lt_u32 s2, 256')
    a('s_cbranch_scc1 L_ssm')
    a(f's_cmp_eq_u32 s2, {ZWG}')
    a('s_cbranch_scc0 L_gemm')
    a('s_setprio 3')
    if 'zst' in ARGS: a.raw('    s_memrealtime s[72:73]')
    a(f'v_lshlrev_b32 v2, 4, v{V_TID}')
    for k in range(4):
        a(f'v_mov_b32 v{4+k}, 0')
    a('s_waitcnt lgkmcnt(0)')
    a.lgq = []
    if 'zst' in ARGS: a.raw('    s_memrealtime s[74:75]')
    srd(a, SRDF, P_WS, WS_FL, FL_BYTES)
    for k in range(FL_BYTES // 4096):
        a(f'buffer_store_dwordx4 v[4:7], v2, s[{SRDF}:{SRDF+3}], 0 offen {SC}')
        if k + 1 < FL_BYTES // 4096: a('v_add_u32 v2, 4096, v2')
    srd(a, SRDD, P_DBG, 0, 256)
    a('v_mov_b32 v2, 0')
    a('v_mov_b32 v3, 1')
    if 'zst' in ARGS: a.raw('    s_memrealtime s[76:77]')
    a('s_waitcnt vmcnt(0)')
    if 'zst' in ARGS: a.raw('    s_memrealtime s[78:79]')
    a('s_barrier')
    a(f's_cmp_eq_u32 s{S_WAVE}, 0')
    a('s_cbranch_scc0 L_gemm')
    a('s_mov_b64 exec, 1')
    a(f'buffer_store_dword v3, v2, s[{SRDD}:{SRDD+3}], 0 offen {SC}', opt=True)
    if 'zst' in ARGS:
        a('s_waitcnt vmcnt(0)')
        a.raw('    s_memrealtime s[80:81]')
        a('s_waitcnt lgkmcnt(0)')
        for q, sr in enumerate((72, 74, 76, 78, 80)):
            a(f'v_mov_b32 v8, s{sr}')
            a(f'v_mov_b32 v9, {4 + 4*q}')
            a(f'buffer_store_dword v8, v9, s[{SRDD}:{SRDD+3}], 0 offen')
    a('s_mov_b64 exec, -1')
    a.label('L_gemm')
    a.reset()
    stamp(a, 0)
    gemm_role(a)
    a.label('L_exit')
    a('s_endpgm')
    emit_slow_blocks(a)
    emit_sc_slow(a)
    a.label('L_ssm')
    a.reset()
    G.stamp_restart(None)
    a('s_waitcnt lgkmcnt(0)')
    ssm_role(a)
    a('s_endpgm')
    emit_slow_blocks(a)
    a.raw(table())
    a.raw('CODE_END:')
    a.raw('.section .rodata,"a"')
    a.raw('.p2align 6')
    a.raw(kd(name).strip('\n'))
    return a.text()


if __name__ == '__main__':
    out = [x for x in sys.argv[1:] if x.endswith('.s')]
    out = out[0] if out else 'cdna_kernels/' + NAME + '.s'
    txt = build()
    open(out, 'w').write(txt)
    print('wrote', out, len(txt), 'bytes')
```

```python
import math, struct, sys
from asmlib import Asm, v, s

NAME = "gated_mix__ssm_conv_s4__mixer_channel_mlp__prompt"

WS_UT, WS_AT, WS_H = 0x000000, 0x200000, 0x400000
WS_G, WS_ST, WS_S = 0xB00000, 0xB02000, 0xB06000
WS_FL = 0xB10000
FL_P0, FL_S, FL_H, FL_A = 0x0, 0x8000, 0x9000, 0x11000
FL_LINES = 0x19000 // 128
LDS_BYTES = 81920

P_U, P_ARE, P_AIM, P_BRE, P_BIM, P_CRE, P_CIM, P_LDT, P_DSK, P_X, P_W1, P_B1, P_W2, P_B2, P_GW, P_OUT, P_DBG, P_WS = \
    [4 + 2 * i for i in range(18)]
P_X = P_U
S_WAVE, S_IDX = 40, 41
ST = 42
SRD0, SRD1, SRD2, SRD3, SRD4, SRD5 = 48, 52, 56, 60, 64, 68
V_TID, V_LANE = 0, 1

def f32(x):
    return '0x%08x' % struct.unpack('<I', struct.pack('<f', x))[0]

LOG2E = 1.4426950408889634


def srd(a, dst, ptr, off, size):
    if isinstance(off, str):
        a(f's_add_u32 s{dst}, s{ptr}, {off}')
        a(f's_addc_u32 s{dst+1}, s{ptr+1}, 0')
    elif off:
        a(f's_add_u32 s{dst}, s{ptr}, {hex(off)}')
        a(f's_addc_u32 s{dst+1}, s{ptr+1}, 0')
    else:
        a(f's_mov_b32 s{dst}, s{ptr}')
        a(f's_mov_b32 s{dst+1}, s{ptr+1}')
    a(f's_mov_b32 s{dst+2}, {size if isinstance(size, str) else hex(size)}')
    a(f's_mov_b32 s{dst+3}, 0x20000')


def bf16_round(a, dst, src):
    a(f'v_cvt_pk_bf16_f32 v{dst}, v{src}, v{src}')
    a(f'v_lshlrev_b32 v{dst}, 16, v{dst}')


def entry(a, name, nwg):
    a.raw(f'.globl {name}')
    a.raw('.p2align 8')
    a.raw(f'.type {name},@function')
    a.label(name)
    a.reset()
    a(f's_cmp_ge_u32 s2, {nwg}')
    a(f's_cbranch_scc1 L_{name}_exit')
    a('s_load_dwordx16 s[4:19], s[0:1], 0')
    a('s_load_dwordx16 s[20:35], s[0:1], 64')
    a('s_load_dwordx4 s[36:39], s[0:1], 128')
    a(f'v_lshrrev_b32 v2, 6, v{V_TID}')
    a(f'v_and_b32 v{V_LANE}, 63, v{V_TID}')
    a(f'v_readfirstlane_b32 s{S_WAVE}, v2')
    a('s_waitcnt lgkmcnt(0)')


WS_STAMP = 0x1000000
STAMP = 'stamp' in sys.argv
_last = [None]
def stamp(a, k):
    if not STAMP:
        return
    if _last[0] is None:
        a.raw('    v_mov_b32 v253, 0')
    else:
        a.raw(f'    v_writelane_b32 v253, s0, {_last[0]}')
    a.raw('    ' + ('s_memtime s[0:1]' if 'cyc' in sys.argv else 's_memrealtime s[0:1]'))
    _last[0] = k


def stamp_restart(last):
    _last[0] = last


def stamp_flush(a):
    if not STAMP:
        return
    a('s_waitcnt lgkmcnt(0)')
    a.raw(f'    v_writelane_b32 v253, s0, {_last[0]}')
    a('s_lshl_b32 s3, s2, 2')
    a(f's_add_u32 s3, s3, s{S_WAVE}')
    a('s_lshl_b32 s3, s3, 6')
    a(f's_add_u32 s3, s3, {hex(WS_STAMP)}')
    a(f'v_lshlrev_b32 v252, 2, v{V_LANE}')
    a('v_add_u32 v252, s3, v252')
    a('s_mov_b64 exec, 0xffff')
    a(f'global_store_dword v252, v253, s[{P_WS}:{P_WS+1}]')
    a('s_mov_b64 exec, -1')


def red8(a, r):
    a(f'v_add_f32_dpp v{r}, v{r}, v{r} quad_perm:[1,0,3,2] row_mask:0xf bank_mask:0xf')
    a(f'v_add_f32_dpp v{r}, v{r}, v{r} quad_perm:[2,3,0,1] row_mask:0xf bank_mask:0xf')
    a(f'v_add_f32_dpp v{r}, v{r}, v{r} row_half_mirror row_mask:0xf bank_mask:0xf')


def emit_p0(a, tag, SC):
    X, J, T0, TT, DT = 72, 73, 74, 75, 76
    a(f's_and_b32 s{X}, s{S_IDX}, 7')
    a(f's_lshr_b32 s{J}, s{S_IDX}, 3')
    a(f's_lshl_b32 s{T0}, s{X}, 8')
    a(f's_lshl_b32 s42, s{J}, 3')
    a(f's_add_u32 s{T0}, s{T0}, s42')
    a(f's_lshl_b32 s{TT}, s{X}, 2')
    a(f's_lshr_b32 s42, s{J}, 3')
    a(f's_add_u32 s{TT}, s{TT}, s42')
    a(f's_and_b32 s{DT}, s{J}, 7')
    srd(a, SRD0, P_WS, 0, 0x1000000)
    a(f'v_lshrrev_b32 v2, 3, v{V_LANE}')
    a(f'v_and_b32 v3, 7, v{V_LANE}')
    a(f'v_lshlrev_b32 v4, 4, v3')
    a(f's_cmp_ge_u32 s{S_WAVE}, 2')
    a(f's_cbranch_scc1 L_{tag}_tr')
    st_tr = a.save()
    a(f's_cmp_eq_u32 s{S_WAVE}, 0')
    a(f's_cselect_b32 s44, s{P_U}, s{P_X}')
    a(f's_cselect_b32 s45, s{P_U+1}, s{P_X+1}')
    a(f'v_add_u32 v5, s{T0}, v2')
    a(f'v_lshlrev_b32 v5, 10, v5')
    a(f'v_add_u32 v5, v5, v4')
    for jj in range(8):
        a(f'global_load_dwordx4 v[{64+4*jj}:{67+4*jj}], v5, s[44:45] offset:{128*jj}')
    a(f's_cmp_eq_u32 s{S_WAVE}, 0')
    a(f's_cbranch_scc0 L_{tag}_stats')
    st_stats = a.save()
    for jj in range(8):
        a(f'global_load_dwordx4 v[{96+4*jj}:{99+4*jj}], v4, s[{P_GW}:{P_GW+1}] offset:{128*jj}')
    for k in range(4):
        a(f'v_mov_b32 v{8+k}, 0')
    for d in range(32):
        a(f'v_dot2_f32_bf16 v{8+d%4}, v{64+d}, v{96+d}, v{8+d%4}')
    a('v_add_f32 v8, v8, v9')
    a('v_add_f32 v10, v10, v11')
    a('v_add_f32 v8, v8, v10')
    red8(a, 8)
    bf16_round(a, 8, 8)
    a(f'v_mul_f32 v8, {f32(-LOG2E)}, v8')
    a('v_exp_f32 v8, v8')
    a('v_add_f32 v8, 1.0, v8')
    a('v_rcp_f32 v8, v8')
    bf16_round(a, 8, 8)
    a(f'v_add_u32 v5, s{T0}, v2')
    a('v_lshlrev_b32 v5, 2, v5')
    a(f'v_add_u32 v5, {hex(WS_G)}, v5')
    a('s_mov_b32 s46, 0x01010101')
    a('s_mov_b32 s47, 0x01010101')
    a('s_mov_b64 exec, s[46:47]')
    a(f'buffer_store_dword v8, v5, s[{SRD0}:{SRD0+3}], 0 offen {SC}')
    a('s_mov_b64 exec, -1')
    a(f's_branch L_{tag}_join')
    a.label(f'L_{tag}_stats')
    a.restore(st_stats)
    a('s_mov_b32 s46, 0x3f803f80')
    for k in range(4):
        a(f'v_mov_b32 v{8+k}, 0')
    for d in range(32):
        a(f'v_dot2_f32_bf16 v{8+d%4}, v{64+d}, s46, v{8+d%4}')
    a('v_add_f32 v8, v8, v9')
    a('v_add_f32 v10, v10, v11')
    a('v_add_f32 v8, v8, v10')
    red8(a, 8)
    a(f'v_mul_f32 v8, {f32(1/512)}, v8')
    for k in range(4):
        a(f'v_mov_b32 v{12+k}, 0')
    for d in range(0, 32, 2):
        for e in range(2):
            a(f'v_lshlrev_b32 v{16+4*e}, 16, v{64+d+e}')
            a(f'v_and_b32 v{17+4*e}, 0xffff0000, v{64+d+e}')
        for e in range(2):
            a(f'v_sub_f32 v{16+4*e}, v{16+4*e}, v8')
            a(f'v_sub_f32 v{17+4*e}, v{17+4*e}, v8')
        for e in range(2):
            a(f'v_fmac_f32 v{12+2*e}, v{16+4*e}, v{16+4*e}')
            a(f'v_fmac_f32 v{13+2*e}, v{17+4*e}, v{17+4*e}')
    a('v_add_f32 v12, v12, v13')
    a('v_add_f32 v14, v14, v15')
    a('v_add_f32 v12, v12, v14')
    red8(a, 12)
    a(f'v_mul_f32 v12, {f32(1/512)}, v12')
    bf16_round(a, 12, 12)
    a(f'v_add_f32 v12, {f32(1e-5)}, v12')
    bf16_round(a, 12, 12)
    a('v_sqrt_f32 v12, v12')
    bf16_round(a, 9, 12)
    bf16_round(a, 8, 8)
    a(f'v_add_u32 v5, s{T0}, v2')
    a('v_lshlrev_b32 v5, 3, v5')
    a(f'v_add_u32 v5, {hex(WS_ST)}, v5')
    a('s_mov_b32 s46, 0x01010101')
    a('s_mov_b32 s47, 0x01010101')
    a('s_mov_b64 exec, s[46:47]')
    a(f'buffer_store_dwordx2 v[8:9], v5, s[{SRD0}:{SRD0+3}], 0 offen {SC}')
    a('s_mov_b64 exec, -1')
    a(f's_branch L_{tag}_join')
    a.label(f'L_{tag}_tr')
    a.restore(st_tr)
    a(f's_sub_u32 s42, s{S_WAVE}, 2')
    a('s_lshl_b32 s42, s42, 5')
    a(f's_lshl_b32 s43, s{TT}, 6')
    a('s_add_u32 s43, s43, s42')
    a('v_add_u32 v5, s43, v2')
    a('v_lshlrev_b32 v5, 10, v5')
    a('v_add_u32 v5, v5, v4')
    a(f's_lshl_b32 s43, s{DT}, 7')
    a('v_add_u32 v5, s43, v5')
    for jj in range(4):
        if jj:
            a('v_add_u32 v5, 0x2000, v5')
        a(f'global_load_dwordx4 v[{64+4*jj}:{67+4*jj}], v5, s[{P_U}:{P_U+1}]')
    a('v_add_u32 v6, s42, v2')
    a('v_mul_u32_u24 v6, 144, v6')
    a('v_add_u32 v6, v6, v4')
    for jj in range(4):
        a(f'ds_write_b128 v6, v[{64+4*jj}:{67+4*jj}] offset:{jj*8*144}')
    a.label(f'L_{tag}_join')
    a.hist = []
    a('s_waitcnt lgkmcnt(0)')
    a.lgq = []
    a('s_barrier')
    a(f'v_and_b32 v2, 15, v{V_LANE}')
    a(f'v_lshrrev_b32 v3, 4, v{V_LANE}')
    a('v_lshrrev_b32 v4, 2, v2')
    a('v_lshl_add_u32 v4, v3, 3, v4')
    a('v_mul_u32_u24 v4, 144, v4')
    a('v_and_b32 v5, 3, v2')
    a('v_lshl_add_u32 v4, v5, 3, v4')
    a(f's_lshl_b32 s42, s{S_WAVE}, 5')
    a('v_add_u32 v4, s42, v4')
    for th in range(2):
        a(f'ds_read_b64_tr_b16 v[{64+4*th}:{65+4*th}], v4 offset:{th*32*144}')
        a(f'ds_read_b64_tr_b16 v[{66+4*th}:{67+4*th}], v4 offset:{th*32*144+4*144}')
    a(f's_lshl_b32 s42, s{DT}, 6')
    a(f's_lshl_b32 s43, s{S_WAVE}, 4')
    a('s_add_u32 s42, s42, s43')
    a('v_add_u32 v5, s42, v2')
    a('v_lshlrev_b32 v5, 12, v5')
    a('v_lshl_add_u32 v5, v3, 4, v5')
    a(f's_lshl_b32 s42, s{TT}, 7')
    a('v_add_u32 v5, s42, v5')
    for th in range(2):
        a(f'buffer_store_dwordx4 v[{64+4*th}:{67+4*th}], v5, s[{SRD0}:{SRD0+3}], 0 offen offset:{WS_UT+64*th} {SC}')


def emit_shelper(a, tag, SH, SC):
    srd(a, SRD0, P_WS, 0, 0x1000000)
    a(f'v_lshrrev_b32 v2, 3, v{V_LANE}')
    a(f'v_and_b32 v3, 7, v{V_LANE}')
    a(f's_lshl_b32 s42, s{S_WAVE}, 7')
    a('v_add_u32 v4, s42, v2')
    a('v_mul_u32_u24 v4, 3584, v4')
    a('v_lshl_add_u32 v4, v3, 4, v4')
    a(f's_lshl_b32 s42, s{SH}, 7')
    a('v_add_u32 v4, s42, v4')
    for jj in range(16):
        if jj:
            a(f'v_add_u32 v4, {8*3584}, v4')
        a(f'global_load_dwordx4 v[{64+4*jj}:{67+4*jj}], v4, s[{P_W1}:{P_W1+1}]')
    for k in range(8):
        a(f'v_mov_b32 v{8+k}, 0')
    for jj in range(16):
        for d in range(4):
            a(f'v_lshlrev_b32 v{16+2*d}, 16, v{64+4*jj+d}')
            a(f'v_and_b32 v{17+2*d}, 0xffff0000, v{64+4*jj+d}')
        for k in range(8):
            a(f'v_add_f32 v{8+k}, v{8+k}, v{16+k}')
    a(f's_lshl_b32 s42, s{S_WAVE}, 3')
    a('v_add_u32 v4, s42, v2')
    a('v_lshlrev_b32 v4, 8, v4')
    a('v_lshl_add_u32 v4, v3, 5, v4')
    a('ds_write_b128 v4, v[8:11]')
    a('ds_write_b128 v4, v[12:15] offset:16')
    a('s_waitcnt lgkmcnt(0)')
    a('s_barrier')
    a(f's_cmp_eq_u32 s{S_WAVE}, 0')
    a(f's_cbranch_scc0 L_{tag}_done')
    a(f'v_lshlrev_b32 v4, 2, v{V_LANE}')
    for r in range(32):
        a(f'ds_read_b32 v{64+r}, v4 offset:{256*r}')
    for r in range(1, 32):
        a(f'v_add_f32 v64, v64, v{64+r}')
    a(f's_lshl_b32 s42, s{SH}, 8')
    a(f's_add_u32 s42, s42, {hex(WS_S)}')
    a('v_add_u32 v4, s42, v4')
    a(f'buffer_store_dword v64, v4, s[{SRD0}:{SRD0+3}], 0 offen {SC}')
    a.label(f'L_{tag}_done')
    a.hist = []


L_PQ = 15360
PQ_ROW = 272
L_UC = 0
UC_COPY, UC_CH = 4160, 16640
L_XC = 33280
L_KT = 61440
KT_CH = 4576
L_KC = 70592
KC_CH = 1536
L_XK = 73664


def kidx(l):
    u = struct.unpack('<I', struct.pack('<f', float(l)))[0]
    b = (u + 0x7FFF + ((u >> 16) & 1)) >> 16
    return l if l < 128 else b - 17024


def cmul(a, cr, ci, ar, ai, br, bi, nbi):
    if 'kgnovalu' in sys.argv: return
    a(f'v_mul_f32 v{cr}, v{ar}, v{br}')
    a(f'v_mul_f32 v{ci}, v{ar}, v{bi}')
    a(f'v_fmac_f32 v{cr}, v{ai}, v{nbi}')
    a(f'v_fmac_f32 v{ci}, v{ai}, v{br}')


def emit_ssm_loads(a):
    C, MH = 79, 80
    a(f's_lshr_b32 s{C}, s{S_WAVE}, 1')
    a(f's_and_b32 s{MH}, s{S_WAVE}, 1')
    a(f's_lshl_b32 s42, s{S_IDX}, 1')
    a(f's_add_u32 s81, s42, s{C}')
    a('s_lshl_b32 s42, s81, 8')
    a(f's_lshl_b32 s43, s{MH}, 7')
    a('s_add_u32 s42, s42, s43')
    a(f'v_lshlrev_b32 v38, 1, v{V_LANE}')
    a('v_add_u32 v38, s42, v38')
    for k, p in enumerate((P_ARE, P_AIM, P_BRE, P_BIM, P_CRE, P_CIM)):
        a(f'global_load_ushort v{40+k}, v38, s[{p}:{p+1}]')
    a(f's_lshl_b32 s42, s{S_IDX}, 2')
    a(f's_load_dword s77, s[{P_LDT}:{P_LDT+1}], s42')
    a(f's_load_dword s78, s[{P_DSK}:{P_DSK+1}], s42')


def emit_cis(a, outr, outi, A, B, m, t0):
    a(f'v_mul_f32 v{t0}, {f32(float(m))}, v{A}')
    a(f'v_mul_f32 v{t0+1}, {f32(float(m))}, v{B}')
    a(f'v_exp_f32 v{t0}, v{t0}')
    a(f'v_fract_f32 v{t0+1}, v{t0+1}')
    a(f'v_cos_f32 v{outr}, v{t0+1}')
    a(f'v_sin_f32 v{outi}, v{t0+1}')
    a(f'v_mul_f32 v{outr}, v{outr}, v{t0}')
    a(f'v_mul_f32 v{outi}, v{outi}, v{t0}')


def emit_kgen(a, tag, mid_hook=None, pre_mfma=None, post_mfma=None, setup_hook=None):
    C, MH, D = 79, 80, 81
    a('s_waitcnt lgkmcnt(0)')
    a(f's_lshl_b32 s42, s{C}, 4')
    a('s_lshr_b32 s77, s77, s42')
    a('s_lshl_b32 s77, s77, 16')
    a('s_lshr_b32 s78, s78, s42')
    a('s_lshl_b32 s78, s78, 16')
    a('v_mov_b32 v2, s77')
    a(f'v_mul_f32 v3, {f32(LOG2E)}, v2')
    hi = struct.unpack('<f', struct.pack('<f', LOG2E))[0]
    a(f's_mov_b32 s42, {f32(LOG2E)}')
    a('v_fma_f32 v4, v2, s42, -v3')
    a(f'v_fmac_f32 v4, {f32(LOG2E - hi)}, v2')
    a('v_exp_f32 v3, v3')
    a(f'v_mul_f32 v4, {f32(math.log(2))}, v4')
    a('v_fmac_f32 v3, v3, v4')
    bf16_round(a, 2, 3)
    for k in range(6):
        a(f'v_lshlrev_b32 v{40+k}, 16, v{40+k}')
    ZA, ZB = 46, 47
    a(f'v_mul_f32 v{ZA}, v2, v40')
    a(f'v_mul_f32 v{ZB}, v2, v41')
    a(f'v_mul_f32 v{ZA}, {f32(LOG2E)}, v{ZA}')
    a(f'v_mul_f32 v{ZB}, {f32(1/(2*math.pi))}, v{ZB}')
    a('v_mul_f32 v42, v2, v42')
    a('v_mul_f32 v43, v2, v43')
    WR, WI = 48, 49
    a(f'v_mul_f32 v{WR}, v44, v42')
    a(f'v_mul_f32 v{WI}, v44, v43')
    a('v_mul_f32 v3, v45, v43')
    a(f'v_fmac_f32 v{WI}, v45, v42')
    a(f'v_sub_f32 v{WR}, v{WR}, v3')
    E1, E8, E256, E2, E4 = 50, 53, 56, 59, 62
    emit_cis(a, E1, E1 + 1, ZA, ZB, 1, 4)
    emit_cis(a, E8, E8 + 1, ZA, ZB, 8, 6)
    emit_cis(a, E256, E256 + 1, ZA, ZB, 256, 8)
    for e in (E1, E8, E256):
        a(f'v_sub_f32 v{e+2}, 0, v{e+1}')
    cmul(a, E2, E2 + 1, E1, E1 + 1, E1, E1 + 1, E1 + 2)
    a(f'v_sub_f32 v{E2+2}, 0, v{E2+1}')
    cmul(a, E4, E4 + 1, E2, E2 + 1, E2, E2 + 1, E2 + 2)
    a(f'v_sub_f32 v{E4+2}, 0, v{E4+1}')
    VA = 39
    a(f's_mul_i32 s42, s{S_WAVE}, {L_PQ}')
    a(f'v_lshlrev_b32 v{VA}, 2, v{V_LANE}')
    a(f'v_add_u32 v{VA}, s42, v{VA}')
    pk = [70, 71, 72, 73]
    cnt = [0]
    pend = []
    VB2 = 78
    base_row = [None]
    def flush_put():
        if not pend: return
        if 'kgnolds' in sys.argv:
            pend.clear(); return
        if len(pend) == 1 or 'nowrite2' in sys.argv:
            for row, r in pend: a(f'ds_write_b32 v{VA}, v{r} offset:{row*PQ_ROW}')
        else:
            (r0, a0), (r1, a1) = pend
            lo = min(r0, r1)
            if base_row[0] is None or not (base_row[0] <= lo and (max(r0, r1) - base_row[0]) * 68 <= 255):
                base_row[0] = lo
                a(f'v_add_u32 v{VB2}, {lo*PQ_ROW}, v{VA}')
            a(f'ds_write2_b32 v{VB2}, v{a0}, v{a1} offset0:{(r0-base_row[0])*68} offset1:{(r1-base_row[0])*68}')
        pend.clear()
    def put(row, re, im, neg):
        r = pk[cnt[0] % 4]; cnt[0] += 1
        a(f'v_cvt_pk_bf16_f32 v{r}, v{re}, {"-" if neg else ""}v{im}')
        pend.append((row, r))
        if len(pend) == 2: flush_put()
    if setup_hook:
        setup_hook()
    q = [(66, 67), (68, 69)]
    a('v_mov_b32 v66, 1.0')
    a('v_mov_b32 v67, 0')
    put(24, 66, 67, False)
    put(25, E8, E8 + 1, False)
    cur = (E8, E8 + 1)
    for j in range(2, 32):
        nxt = q[j % 2]
        cmul(a, nxt[0], nxt[1], cur[0], cur[1], E8, E8 + 1, E8 + 2)
        put(24 + j, nxt[0], nxt[1], False)
        cur = nxt
    flush_put()
    if mid_hook:
        mid_hook()
    put(0, WR, WI, True)
    cur = (WR, WI)
    for p in range(1, 8):
        nxt = q[p % 2]
        cmul(a, nxt[0], nxt[1], cur[0], cur[1], E1, E1 + 1, E1 + 2)
        put(p, nxt[0], nxt[1], True)
        cur = nxt
    g = [(74, 75), (76, 77)]
    gc = (WR, WI)
    for k in range(1, 9):
        gn = g[k % 2]
        cmul(a, gn[0], gn[1], gc[0], gc[1], E256, E256 + 1, E256 + 2)
        row = {1: 8, 2: 12, 3: 14, 4: 16, 5: 17, 6: 18, 7: 19, 8: 20}[k]
        put(row, gn[0], gn[1], True)
        if k == 1:
            cur = gn
            for p in range(1, 4):
                nxt = q[p % 2]
                cmul(a, nxt[0], nxt[1], cur[0], cur[1], E2, E2 + 1, E2 + 2)
                put(8 + p, nxt[0], nxt[1], True)
                cur = nxt
        if k in (2, 3):
            cmul(a, 66, 67, gn[0], gn[1], E4, E4 + 1, E4 + 2)
            put(row + 1, 66, 67, True)
        gc = gn
    flush_put()
    if pre_mfma:
        pre_mfma()
    a(f'v_and_b32 v2, 31, v{V_LANE}')
    a(f'v_lshrrev_b32 v3, 5, v{V_LANE}')
    a(f'v_mul_u32_u24 v4, {PQ_ROW}, v2')
    a('v_lshl_add_u32 v4, v3, 4, v4')
    a(f's_mul_i32 s42, s{S_WAVE}, {L_PQ}')
    a('v_add_u32 v4, s42, v4')
    for st in range(8):
        a(f'ds_read_b128 v[{128+8*st}:{131+8*st}], v4 offset:{32*st}')
        a(f'ds_read_b128 v[{132+8*st}:{135+8*st}], v4 offset:{24*PQ_ROW+32*st}')
    ACC = 96
    for st in range(8):
        c = '0' if st == 0 else f'v[{ACC}:{ACC+15}]'
        a(f'v_mfma_f32_32x32x16_bf16 v[{ACC}:{ACC+15}], v[{128+8*st}:{131+8*st}], v[{132+8*st}:{135+8*st}], {c}')
    if post_mfma:
        post_mfma()
    a(f's_lshl_b32 s42, s{MH}, 12')
    a(f'v_lshlrev_b32 v5, 5, v{V_LANE}')
    a('v_add_u32 v5, s42, v5')
    a('s_getpc_b64 s[44:45]')
    a.label(f'L_{tag}_pc')
    a(f's_add_u32 s44, s44, KIDX_TABLE-L_{tag}_pc')
    a('s_addc_u32 s45, s45, 0')
    for q2 in range(2):
        a(f'global_load_dwordx4 v[{200+8*q2}:{203+8*q2}], v5, s[44:45] offset:{2048*q2}')
        a(f'global_load_dwordx4 v[{204+8*q2}:{207+8*q2}], v5, s[44:45] offset:{2048*q2+16}')
    a(f's_mul_i32 s42, s{C}, 3072')
    a(f's_add_u32 s42, s42, {L_XK}')
    a(f'v_lshlrev_b32 v6, 4, v{V_LANE}')
    a('v_add_u32 v6, s42, v6')
    a(f's_cmp_eq_u32 s{MH}, 0')
    a(f's_cbranch_scc1 L_{tag}_k1')
    for i in range(3):
        a(f'ds_write_b128 v6, v[{ACC+4*i}:{ACC+4*i+3}] offset:{1024*i}')
    a.label(f'L_{tag}_k1')
    a.nop(12)
    a('s_waitcnt lgkmcnt(0)')
    a('s_barrier')
    a(f's_cmp_eq_u32 s{MH}, 0')
    a(f's_cbranch_scc0 L_{tag}_k2')
    for i in range(3):
        a(f'ds_read_b128 v[{128+4*i}:{131+4*i}], v6 offset:{1024*i}')
    for r in range(12):
        a(f'v_add_f32 v{ACC+r}, v{ACC+r}, v{128+r}')
    for r in range(6):
        a(f'v_cvt_pk_bf16_f32 v{128+r}, v{ACC+2*r}, v{ACC+2*r+1}')
    a(f's_mul_i32 s42, s{C}, {KC_CH}')
    a(f's_add_u32 s42, s42, {L_KC}')
    a('v_lshlrev_b32 v7, 4, v2')
    a('v_lshl_add_u32 v7, v3, 3, v7')
    a('v_add_u32 v7, s42, v7')
    a('ds_write_b64 v7, v[128:129]')
    a('v_cmp_eq_u32 vcc, 0, v3')
    a('v_lshlrev_b32 v8, 3, v2')
    a('v_add_u32 v8, 512, v8')
    a('v_lshlrev_b32 v9, 2, v2')
    a('v_add_u32 v10, 768, v9')
    a('v_cndmask_b32 v10, v10, v8, vcc')
    a('v_add_u32 v8, 4, v8')
    a('v_add_u32 v9, 896, v9')
    a('v_cndmask_b32 v9, v9, v8, vcc')
    a('v_add_u32 v10, s42, v10')
    a('v_add_u32 v9, s42, v9')
    a('ds_write_b32 v10, v130')
    a('ds_write_b32 v9, v131')
    a('v_lshlrev_b32 v8, 1, v2')
    a('v_lshl_add_u32 v8, v3, 8, v8')
    a('v_add_u32 v8, s42, v8')
    a('ds_write_b16 v8, v132 offset:1024')
    a('ds_write_b16_d16_hi v8, v132 offset:1088')
    a('ds_write_b16 v8, v133 offset:1152')
    a('ds_write_b16_d16_hi v8, v133 offset:1216')
    a.label(f'L_{tag}_k2')
    a.hist = []
    a('s_waitcnt lgkmcnt(0)')
    a.lgq = []
    a('s_barrier')
    a(f's_mul_i32 s42, s{C}, {KC_CH}')
    a(f's_add_u32 s42, s42, {L_KC}')
    for e in range(16):
        a(f'v_add_u32 v{200+e}, s42, v{200+e}')
    for e in range(16):
        a(f'ds_read_u16 v{216+e}, v{200+e}')
    for k in range(8):
        a(f'v_lshl_or_b32 v{128+k}, v{216+2*k+1}, 16, v{216+2*k}')
    a(f's_mul_i32 s42, s{C}, {KT_CH}')
    a(f's_add_u32 s42, s42, {L_KT}')
    a(f's_lshl_b32 s43, s{MH}, 11')
    a('s_sub_u32 s43, s42, s43')
    a(f's_add_u32 s43, s43, {16*255}')
    a(f'v_lshlrev_b32 v7, 4, v{V_LANE}')
    a('v_sub_u32 v7, s43, v7')
    a('ds_write_b128 v7, v[128:131]')
    a('v_subrev_u32 v8, 1024, v7')
    a('ds_write_b128 v8, v[132:135]')
    for k in range(4):
        a(f'v_mov_b32 v{136+k}, 0')
    a(f'v_lshlrev_b32 v8, 4, v{V_LANE}')
    a('s_add_u32 s42, s42, 4096')
    a('v_add_u32 v8, s42, v8')
    a('s_mov_b64 exec, 0x3fffffff')
    a('ds_write_b128 v8, v[136:139]')
    a('s_mov_b64 exec, -1')


def emit_ucopies(a, tag, SC):
    C, MH, D = 79, 80, 81
    a(f's_lshl_b32 s42, s{D}, 12')
    srd(a, SRD1, P_WS, 's42', 4096)
    a(f's_lshl_b32 s42, s{MH}, 11')
    a(f'v_lshlrev_b32 v2, 4, v{V_LANE}')
    a('v_add_u32 v2, s42, v2')
    a('v_subrev_u32 v3, 32, v2')
    a('v_add_u32 v4, 1024, v3')
    a('v_add_u32 v5, 2048, v3')
    E = [128, 136, 144]
    for q2, vo in ((0, 3), (1, 4), (2, 5)):
        a(f'buffer_load_dwordx4 v[{E[q2]}:{E[q2]+3}], v{vo}, s[{SRD1}:{SRD1+3}], 0 offen {SC}')
        a(f'v_add_u32 v6, 16, v{vo}')
        a(f'buffer_load_dwordx2 v[{E[q2]+4}:{E[q2]+5}], v6, s[{SRD1}:{SRD1+3}], 0 offen {SC}')
    a(f's_mul_i32 s42, s{C}, {UC_CH}')
    a(f's_add_u32 s42, s42, {L_UC}')
    a('v_add_u32 v2, s42, v2')
    for q2 in range(3):
        e = E[q2]
        if q2 == 2:
            a(f's_cmp_eq_u32 s{MH}, 1')
            a('s_cselect_b64 exec, 3, 0')
        T = 152
        for k in range(4):
            a(f'v_alignbit_b32 v{T+k}, v{e+k+1}, v{e+k}, 16')
        for k in range(4):
            a(f'v_mov_b32 v{T+4+k}, v{e+k+1}')
        for k in range(4):
            a(f'v_alignbit_b32 v{T+8+k}, v{e+k+2}, v{e+k+1}, 16')
        off = 1024 * q2
        a(f'ds_write_b128 v2, v[{e}:{e+3}] offset:{off}')
        a(f'ds_write_b128 v2, v[{T}:{T+3}] offset:{off+UC_COPY}')
        a(f'ds_write_b128 v2, v[{T+4}:{T+7}] offset:{off+2*UC_COPY}')
        a(f'ds_write_b128 v2, v[{T+8}:{T+11}] offset:{off+3*UC_COPY}')
    a('s_mov_b64 exec, -1')


def emit_conv(a, tag, SC):
    C, MH, D = 79, 80, 81
    VK, VU = 2, 3
    ACC = 16
    FA = [[64 + 4 * p for p in range(8)], [128 + 4 * p for p in range(8)]]
    FB = [[96 + 4 * p for p in range(8)], [160 + 4 * p for p in range(8)]]
    a(f'v_and_b32 v4, 15, v{V_LANE}')
    a(f'v_lshrrev_b32 v5, 4, v{V_LANE}')
    a('v_lshlrev_b32 v6, 1, v4')
    a('v_sub_u32 v6, v5, v6')
    a('v_lshlrev_b32 v6, 4, v6')
    a(f's_mul_i32 s42, s{C}, {KT_CH}')
    a(f's_add_u32 s42, s42, {L_KT + 16*282 - 64*59}')
    a(f's_lshl_b32 s43, s{MH}, 8')
    a('s_sub_u32 s42, s42, s43')
    a(f'v_add_u32 v{VK}, s42, v6')
    a('v_add_u32 v6, 1, v4')
    a('v_and_b32 v7, 3, v6')
    a('v_sub_u32 v6, v6, v7')
    a('v_lshlrev_b32 v6, 1, v6')
    a(f'v_mul_u32_u24 v7, {UC_COPY}, v7')
    a('v_add_u32 v6, v6, v7')
    a('v_lshl_add_u32 v6, v5, 4, v6')
    a(f's_mul_i32 s42, s{C}, {UC_CH}')
    a(f's_add_u32 s42, s42, {L_UC + 256}')
    a('s_sub_u32 s42, s42, s43')
    a(f'v_add_u32 v{VU}, s42, v6')
    def reads(rr, st, k):
        a(f'ds_read_b128 v[{FB[st][k]}:{FB[st][k]+3}], v{VK} offset:{64*(59-8*k-rr)}')
        o = 512 * k + 64 * (3 - rr)
        a(f'ds_read_b64 v[{FA[st][k]}:{FA[st][k]+1}], v{VU} offset:{o}')
        a(f'ds_read_b64 v[{FA[st][k]+2}:{FA[st][k]+3}], v{VU} offset:{o+8}')
    for k in range(8):
        reads(0, 0, k)
    for rr in range(4):
        st = rr & 1
        pairs = sorted([(qq, p) for qq in range(8) for p in range(8 - qq)], key=lambda x: (max(x), x))
        nxt = list(range(8)) if rr < 3 else []
        for n, (qq, p) in enumerate(pairs):
            j = qq + p
            first = (rr == 0 and not any(q2 + p2 == j for q2, p2 in pairs[:n]))
            c = '0' if first else f'v[{ACC+4*j}:{ACC+4*j+3}]'
            a(f'v_mfma_f32_16x16x32_bf16 v[{ACC+4*j}:{ACC+4*j+3}], v[{FA[st][p]}:{FA[st][p]+3}], v[{FB[st][qq]}:{FB[st][qq]+3}], {c}')
            if nxt and n % 4 == 3:
                reads(rr + 1, st ^ 1, nxt.pop(0))
        while nxt:
            reads(rr + 1, st ^ 1, nxt.pop(0))
    a(f's_lshl_b32 s42, s{S_WAVE}, 12')
    a(f's_add_u32 s42, s42, {L_XC}')
    a(f'v_lshlrev_b32 v6, 4, v{V_LANE}')
    a('v_add_u32 v7, s42, v6')
    a(f's_xor_b32 s43, s{S_WAVE}, 1')
    a('s_lshl_b32 s43, s43, 12')
    a(f's_add_u32 s43, s43, {L_XC}')
    a('v_add_u32 v8, s43, v6')
    a(f's_cmp_eq_u32 s{MH}, 0')
    a(f's_cbranch_scc1 L_{tag}_x0')
    a.nop(8)
    for jj in range(4):
        a(f'ds_write_b128 v7, v[{ACC+4*jj}:{ACC+4*jj+3}] offset:{1024*jj}')
    a.nop(2)
    for r in range(16):
        a(f'v_mov_b32 v{ACC+r}, v{ACC+16+r}')
    a(f's_branch L_{tag}_x1')
    a.label(f'L_{tag}_x0')
    a.hist = []
    a.nop(8)
    for jj in range(4):
        a(f'ds_write_b128 v7, v[{ACC+16+4*jj}:{ACC+16+4*jj+3}] offset:{1024*jj}')
    a.label(f'L_{tag}_x1')
    a.hist = []
    a('s_waitcnt lgkmcnt(0)')
    a.lgq = []
    a('s_barrier')
    for jj in range(4):
        a(f'ds_read_b128 v[{64+4*jj}:{67+4*jj}], v8 offset:{1024*jj}')
    a('v_lshlrev_b32 v9, 5, v4')
    a('v_lshl_add_u32 v9, v5, 3, v9')
    a(f's_lshl_b32 s43, s{MH}, 11')
    a('v_add_u32 v9, s43, v9')
    a(f's_mul_i32 s42, s{C}, {UC_CH}')
    a(f's_add_u32 s42, s42, {L_UC + 32}')
    a('v_add_u32 v10, s42, v9')
    for jj in range(4):
        a(f'ds_read_b64 v[{96+2*jj}:{97+2*jj}], v10 offset:{512*jj}')
    a(f's_lshl_b32 s42, s{D}, 12')
    a(f's_add_u32 s42, s42, {hex(WS_AT)}')
    a('v_add_u32 v9, s42, v9')
    srd(a, SRD0, P_WS, 0, 0x1000000)
    for r in range(16):
        a(f'v_add_f32 v{ACC+r}, v{ACC+r}, v{64+r}')
    for jj in range(4):
        Y = ACC + 4 * jj
        U = 104
        a(f'v_lshlrev_b32 v{U}, 16, v{96+2*jj}')
        a(f'v_and_b32 v{U+1}, 0xffff0000, v{96+2*jj}')
        a(f'v_lshlrev_b32 v{U+2}, 16, v{97+2*jj}')
        a(f'v_and_b32 v{U+3}, 0xffff0000, v{97+2*jj}')
        for r in range(4):
            a(f'v_mul_f32 v{U+r}, s78, v{U+r}')
        a(f'v_cvt_pk_bf16_f32 v{U}, v{U}, v{U+1}')
        a(f'v_cvt_pk_bf16_f32 v{U+1}, v{U+2}, v{U+3}')
        a(f'v_cvt_pk_bf16_f32 v{Y}, v{Y}, v{Y+1}')
        a(f'v_cvt_pk_bf16_f32 v{Y+1}, v{Y+2}, v{Y+3}')
        for h in range(2):
            a(f'v_lshlrev_b32 v{U+4+2*h}, 16, v{U+h}')
            a(f'v_and_b32 v{U+5+2*h}, 0xffff0000, v{U+h}')
            a(f'v_lshlrev_b32 v{U+8+2*h}, 16, v{Y+h}')
            a(f'v_and_b32 v{U+9+2*h}, 0xffff0000, v{Y+h}')
        for r in range(4):
            a(f'v_add_f32 v{U+4+r}, v{U+4+r}, v{U+8+r}')
        a(f'v_cvt_pk_bf16_f32 v{112+2*jj}, v{U+4}, v{U+5}')
        a(f'v_cvt_pk_bf16_f32 v{113+2*jj}, v{U+6}, v{U+7}')
        a(f'buffer_store_dwordx2 v[{112+2*jj}:{113+2*jj}], v9, s[{SRD0}:{SRD0+3}], 0 offen offset:{512*jj} {SC}')


G1_XS = [0, 16384, 32768]
G1_WS = [49152 + 8192 * k for k in range(4)]
GELU_C = 2.0 * 0.7978845608028654 * LOG2E


def emit_g1_index(a):
    a(f's_and_b32 s75, s{S_IDX}, 7')
    a(f's_lshr_b32 s74, s{S_IDX}, 3')
    a('s_mul_i32 s42, s74, 37')
    a('s_lshr_b32 s42, s42, 8')
    a('s_mul_i32 s43, s42, 7')
    a('s_sub_u32 s43, s74, s43')
    a('s_lshr_b32 s44, s75, 1')
    a('s_lshl_b32 s44, s44, 2')
    a('s_add_u32 s72, s44, s42')
    a('s_and_b32 s44, s75, 1')
    a('s_mul_i32 s44, s44, 7')
    a('s_add_u32 s73, s44, s43')


def emit_g1(a, tag, SC, pre_epilogue=None, hooks=None):
    TB, FB_ = 72, 73
    WF, WT = 82, 83
    hooks = hooks or {}
    a(f's_and_b32 s{WF}, s{S_WAVE}, 1')
    a(f's_lshr_b32 s{WT}, s{S_WAVE}, 1')
    a(f's_lshl_b32 s42, s{TB}, 17')
    srd(a, SRD1, P_X, 's42', 131072)
    a(f's_lshl_b32 s42, s{FB_}, 8')
    a(f's_sub_u32 s43, {512*3584}, s42')
    srd(a, SRD2, P_W1, 's42', 's43')
    VX0, VX1, VW0, VW1 = 2, 3, 4, 5
    a(f'v_lshrrev_b32 v6, 3, v{V_LANE}')
    a(f'v_and_b32 v7, 7, v{V_LANE}')
    a('v_lshrrev_b32 v8, 1, v6')
    a('v_xor_b32 v9, v7, v8')
    a(f's_lshl_b32 s42, s{S_WAVE}, 4')
    a('v_add_u32 v10, s42, v6')
    a('v_lshlrev_b32 v10, 10, v10')
    a(f'v_lshl_add_u32 v{VX0}, v9, 4, v10')
    a('v_xor_b32 v9, 4, v9')
    a(f'v_lshl_add_u32 v{VX1}, v9, 4, v10')
    a(f'v_add_u32 v{VX1}, {8*1024-1024}, v{VX1}')
    a(f'v_lshrrev_b32 v6, 4, v{V_LANE}')
    a(f'v_and_b32 v7, 15, v{V_LANE}')
    a('v_lshrrev_b32 v8, 2, v7')
    a('v_xor_b32 v8, v8, v6')
    a('v_and_b32 v7, 3, v7')
    a('v_lshl_add_u32 v8, v8, 2, v7')
    a(f's_lshl_b32 s42, s{S_WAVE}, 3')
    a('v_add_u32 v10, s42, v6')
    a('v_mul_u32_u24 v10, 3584, v10')
    a(f'v_lshl_add_u32 v{VW0}, v8, 4, v10')
    a(f'v_add_u32 v{VW1}, {4*3584-1024}, v{VW0}')
    a(f's_lshl_b32 s84, s{S_WAVE}, 11')
    tokW, tokX = {}, {}
    def dma_w(st):
        a(f's_add_u32 m0, s84, {G1_WS[st % 4]}')
        a(f's_mov_b32 s85, {st*32*3584}')
        a(f'buffer_load_dwordx4 v{VW0}, s[{SRD2}:{SRD2+3}], s85 offen lds')
        tokW[st] = a(f'buffer_load_dwordx4 v{VW1}, s[{SRD2}:{SRD2+3}], s85 offen offset:1024 lds')
    def dma_x(c, h):
        a(f's_add_u32 m0, s84, {G1_XS[c % 3] + 8192*h}')
        a(f's_mov_b32 s86, {c*128 + h*65536}')
        a(f'buffer_load_dwordx4 v{VX0}, s[{SRD1}:{SRD1+3}], s86 offen lds')
        tokX[(c, h)] = a(f'buffer_load_dwordx4 v{VX1}, s[{SRD1}:{SRD1+3}], s86 offen offset:1024 lds')
    dma_w(0); dma_x(0, 0); dma_x(0, 1); dma_w(1); dma_x(1, 0); dma_x(1, 1); dma_w(2)
    VA = [6, 7]; VB = [8, 9, 10, 11]
    a(f'v_lshrrev_b32 v12, 4, v{V_LANE}')
    a(f'v_and_b32 v13, 15, v{V_LANE}')
    a('v_lshrrev_b32 v14, 2, v13')
    a('v_and_b32 v13, 3, v13')
    a('v_lshrrev_b32 v15, 1, v12')
    a('v_and_b32 v12, 1, v12')
    a('v_lshl_add_u32 v15, v15, 3, v14')
    a('v_lshlrev_b32 v15, 8, v15')
    a('v_lshl_add_u32 v15, v12, 5, v15')
    a('v_lshl_add_u32 v15, v13, 3, v15')
    a(f'v_add_u32 v15, {G1_WS[0]}, v15')
    a(f's_lshl_b32 s42, s{WF}, 1')
    for ft in range(2):
        a(f's_add_u32 s43, s42, {ft}')
        a('v_xor_b32 v12, s43, v14')
        a(f'v_lshl_add_u32 v{VA[ft]}, v12, 6, v15')
    a(f'v_and_b32 v12, 31, v{V_LANE}')
    a(f'v_lshrrev_b32 v13, 5, v{V_LANE}')
    a('v_lshrrev_b32 v14, 1, v12')
    a('v_and_b32 v14, 7, v14')
    a(f's_lshl_b32 s42, s{WT}, 6')
    a('v_add_u32 v12, s42, v12')
    a('v_lshlrev_b32 v12, 7, v12')
    for kk in range(4):
        a(f'v_add_u32 v15, {2*kk}, v13')
        a('v_xor_b32 v15, v15, v14')
        a(f'v_lshl_add_u32 v{VB[kk]}, v15, 4, v12')
    ACC = 32
    FR = [96, 112]
    def reads(st, kap):
        base = FR[kap]
        lst = []
        if 'g1noread' in sys.argv: return lst
        for ft in range(2):
            o = (st % 4) * 8192 + kap * 16 * 256
            lst.append(f'ds_read_b64_tr_b16 v[{base+4*ft}:{base+4*ft+1}], v{VA[ft]} offset:{o}')
            lst.append(f'ds_read_b64_tr_b16 v[{base+4*ft+2}:{base+4*ft+3}], v{VA[ft]} offset:{o+1024}')
        for tt in range(2):
            kk = 2 * (st & 1) + kap
            lst.append(f'ds_read_b128 v[{base+8+4*tt}:{base+11+4*tt}], v{VB[kk]} offset:{G1_XS[(st>>1) % 3] + 4096*tt}')
        return lst
    def mfmas(st, kap, fill):
        base = FR[kap]
        n = 0
        for ft in range(2):
            for tt in range(2):
                acc = ACC + 32 * ft + 16 * tt
                c = '0' if (st == 0 and kap == 0) else f'v[{acc}:{acc+15}]'
                if 'g1nomfma' not in sys.argv or st == 0:
                    a(f'v_mfma_f32_32x32x16_bf16 v[{acc}:{acc+15}], v[{base+4*ft}:{base+4*ft+3}], v[{base+8+4*tt}:{base+11+4*tt}], {c}')
                for _ in range(2):
                    if fill: a(fill.pop(0))
        while fill: a(fill.pop(0))
    for st in range(16):
        need = [tokW[st]] + [tokX[(st >> 1, h)] for h in range(2)]
        if st + 1 < 16:
            need += [tokW[st + 1]] + [tokX[((st + 1) >> 1, h)] for h in range(2)]
        a.wait_vm_token(max(need))
        if 'g1nobar' not in sys.argv: a('s_barrier')
        if 'g1nodma' in sys.argv:
            tokW.setdefault(st + 3, tokW[2]); tokX.setdefault(((st >> 1) + 2, st & 1), tokX[(1, 1)])
        else:
            if st + 3 < 16: dma_w(st + 3)
            c = (st >> 1) + 2
            if c < 8: dma_x(c, st & 1)
        if st in hooks: hooks[st]()
        if st == 0:
            for l in reads(0, 0): a(l)
        mfmas(st, 0, reads(st, 1))
        mfmas(st, 1, reads(st + 1, 0) if st + 1 < 16 else [])
    if pre_epilogue:
        pre_epilogue()
    SV, BV = 128, 160
    MS = [12, 14]
    a(f'v_and_b32 v2, 31, v{V_LANE}')
    a(f'v_lshrrev_b32 v3, 5, v{V_LANE}')
    srd(a, SRD0, P_WS, 0, 0x1000000)
    a(f's_lshl_b32 s42, s{TB}, 7')
    a(f's_lshl_b32 s43, s{WT}, 6')
    a('s_add_u32 s42, s42, s43')
    a('v_add_u32 v4, s42, v2')
    a('v_lshlrev_b32 v4, 3, v4')
    a(f'v_add_u32 v4, {hex(WS_ST)}, v4')
    for tt in range(2):
        a(f'buffer_load_dwordx2 v[{MS[tt]}:{MS[tt]+1}], v4, s[{SRD0}:{SRD0+3}], 0 offen offset:{256*tt} {SC}')
    a(f's_lshl_b32 s42, s{FB_}, 7')
    a(f's_lshl_b32 s43, s{WF}, 6')
    a('s_add_u32 s42, s42, s43')
    a('v_lshlrev_b32 v5, 2, v3')
    a('v_add_u32 v5, s42, v5')
    a('v_lshlrev_b32 v6, 2, v5')
    a(f'v_add_u32 v6, {hex(WS_S)}, v6')
    a('v_lshlrev_b32 v5, 1, v5')
    for ft in range(2):
        for i in range(4):
            a(f'buffer_load_dwordx4 v[{SV+16*ft+4*i}:{SV+16*ft+4*i+3}], v6, s[{SRD0}:{SRD0+3}], 0 offen offset:{128*ft+32*i} {SC}')
            a(f'global_load_dwordx2 v[{192+8*ft+2*i}:{193+8*ft+2*i}], v5, s[{P_B1}:{P_B1+1}] offset:{64*ft+16*i}')
    for ft in range(2):
        for i in range(4):
            for h in range(2):
                a(f'v_lshlrev_b32 v{BV+16*ft+4*i+2*h}, 16, v{192+8*ft+2*i+h}')
                a(f'v_and_b32 v{BV+16*ft+4*i+2*h+1}, 0xffff0000, v{192+8*ft+2*i+h}')
    NM, SD, AL, BE = [16, 17], [13, 15], [18, 19], [20, 21]
    for tt in range(2):
        a(f'v_sub_f32 v{NM[tt]}, 0, v{MS[tt]}')
        a(f'v_rcp_f32 v22, v{SD[tt]}')
        a(f'v_mul_f32 v{AL[tt]}, {f32(-GELU_C)}, v22')
        a('v_mul_f32 v23, v22, v22')
        a(f'v_mul_f32 v23, v23, v{AL[tt]}')
        a(f'v_mul_f32 v{BE[tt]}, {f32(0.044715)}, v23')
    a(f's_lshl_b32 s42, s{TB}, 2')
    a(f's_lshl_b32 s43, s{WT}, 1')
    a('s_add_u32 s42, s42, s43')
    a('s_mul_i32 s42, s42, 112')
    a(f's_lshl_b32 s43, s{FB_}, 3')
    a('s_add_u32 s42, s42, s43')
    a(f's_lshl_b32 s43, s{WF}, 2')
    a('s_add_u32 s42, s42, s43')
    a('s_lshl_b32 s42, s42, 10')
    a(f's_add_u32 s42, s42, {hex(WS_H)}')
    a(f'v_lshlrev_b32 v4, 4, v{V_LANE}')
    a('v_add_u32 v4, s42, v4')
    a(f'v_add_u32 v5, {112*1024}, v4')
    VH = [4, 5]
    T = 208
    for ft in range(2):
        for tt in range(2):
            acc = ACC + 32 * ft + 16 * tt
            for j in range(2):
                r0 = 8 * j
                E = range(8)
                for e in E: a(f'v_fmac_f32 v{acc+r0+e}, v{BV+16*ft+r0+e}, v{SD[tt]}')
                for e in E: a(f'v_fmac_f32 v{acc+r0+e}, v{SV+16*ft+r0+e}, v{NM[tt]}')
                for e in E: a(f'v_mul_f32 v{T+e}, v{acc+r0+e}, v{acc+r0+e}')
                for e in E: a(f'v_fma_f32 v{T+e}, v{T+e}, v{BE[tt]}, v{AL[tt]}')
                for e in E: a(f'v_mul_f32 v{T+e}, v{T+e}, v{acc+r0+e}')
                for e in E: a(f'v_exp_f32 v{T+e}, v{T+e}')
                for e in E: a(f'v_fma_f32 v{T+e}, v{T+e}, v{SD[tt]}, v{SD[tt]}')
                for e in E: a(f'v_rcp_f32 v{T+e}, v{T+e}')
                for e in E: a(f'v_mul_f32 v{T+e}, v{T+e}, v{acc+r0+e}')
                H = 216 + 4 * ((2 * tt + j) % 4)
                for e in range(4): a(f'v_cvt_pk_bf16_f32 v{H+e}, v{T+2*e}, v{T+2*e+1}')
                a(f'buffer_store_dwordx4 v[{H}:{H+3}], v{VH[tt]}, s[{SRD0}:{SRD0+3}], 0 offen offset:{(2*ft+j)*1024} {SC}')
        if ('ft', ft) in hooks: hooks[('ft', ft)]()


def emit_g2(a, tag, SC, pre_h=None, pre_mix=None):
    TAU, DT = 87, 88
    a(f's_and_b32 s42, s{S_IDX}, 7')
    a(f's_lshr_b32 s43, s{S_IDX}, 3')
    a('s_lshl_b32 s42, s42, 2')
    a('s_lshr_b32 s44, s43, 3')
    a(f's_add_u32 s{TAU}, s42, s44')
    a(f's_and_b32 s{DT}, s43, 7')
    a(f's_lshl_b32 s42, s{DT}, 7')
    a(f's_sub_u32 s43, {1792*1024}, s42')
    srd(a, SRD2, P_W2, 's42', 's43')
    a(f's_mul_i32 s42, s{TAU}, {2*112*1024}')
    a(f's_add_u32 s42, s42, {hex(WS_H)}')
    srd(a, SRD3, P_WS, 's42', 2 * 112 * 1024)
    WD, WT = 82, 83
    a(f's_and_b32 s{WD}, s{S_WAVE}, 1')
    a(f's_lshr_b32 s{WT}, s{S_WAVE}, 1')
    VW0, VW1 = 2, 3
    a(f'v_lshrrev_b32 v6, 3, v{V_LANE}')
    a(f'v_and_b32 v7, 7, v{V_LANE}')
    a('v_lshrrev_b32 v8, 2, v7')
    a('v_lshrrev_b32 v9, 1, v6')
    a('v_and_b32 v9, 1, v9')
    a('v_xor_b32 v8, v8, v9')
    a('v_and_b32 v7, 3, v7')
    a('v_lshl_add_u32 v8, v8, 2, v7')
    a('v_lshlrev_b32 v6, 10, v6')
    a(f'v_lshl_add_u32 v{VW0}, v8, 4, v6')
    a(f'v_add_u32 v{VW1}, {8*1024-1024}, v{VW0}')
    a(f's_mul_i32 s84, s{S_WAVE}, 20480')
    a(f's_mul_i32 s85, s{S_WAVE}, {28*16384}')
    a(f's_mul_i32 s86, s{S_WAVE}, {28*1024}')
    tokW = {}
    def dma(k):
        a(f's_add_u32 m0, s84, {2048*(k % 10)}')
        a(f's_add_u32 s89, s85, {k*16384}')
        a(f'buffer_load_dwordx4 v{VW0}, s[{SRD2}:{SRD2+3}], s89 offen lds')
        tokW[k] = a(f'buffer_load_dwordx4 v{VW1}, s[{SRD2}:{SRD2+3}], s89 offen offset:1024 lds')
    for k in range(10): dma(k)
    VA = [4, 5]; VH = [6, 7]
    a(f'v_lshrrev_b32 v12, 4, v{V_LANE}')
    a(f'v_and_b32 v13, 15, v{V_LANE}')
    a('v_lshrrev_b32 v14, 2, v13')
    a('v_and_b32 v13, 3, v13')
    a('v_lshrrev_b32 v15, 1, v12')
    a('v_and_b32 v12, 1, v12')
    a('v_lshl_add_u32 v15, v15, 2, v14')
    a('v_lshlrev_b32 v15, 7, v15')
    a('v_lshl_add_u32 v15, v12, 5, v15')
    a('v_lshl_add_u32 v15, v13, 3, v15')
    a('v_lshrrev_b32 v14, 1, v14')
    a(f'v_xor_b32 v12, s{WD}, v14')
    a('v_lshl_add_u32 v16, v12, 6, v15')
    a('v_xor_b32 v12, 1, v12')
    a('v_lshl_add_u32 v17, v12, 6, v15')
    a(f'v_add_u32 v{VA[0]}, s84, v16')
    a(f'v_add_u32 v{VA[1]}, s84, v17')
    a(f'v_xor_b32 v12, s{WT}, v14')
    a('v_lshl_add_u32 v18, v12, 6, v15')
    a(f'v_lshlrev_b32 v12, 4, v{V_LANE}')
    a(f's_mul_i32 s42, s{WT}, {112*1024}')
    a(f'v_add_u32 v{VH[0]}, s42, v12')
    a(f's_sub_u32 s42, {112*1024}, s42')
    a(f'v_add_u32 v{VH[1]}, s42, v12')
    if pre_h: pre_h()
    HD = 6
    HB = 128
    ACC = 32
    FA = [96, 104]
    def hload(k):
        b = HB + 8 * (k % HD)
        a(f's_add_u32 s90, s86, {k*1024}')
        for tt in range(2):
            a(f'buffer_load_dwordx4 v[{b+4*tt}:{b+4*tt+3}], v{VH[tt]}, s[{SRD3}:{SRD3+3}], s90 offen {SC}')
    def wread(k):
        b = FA[k & 1]
        for dd in range(2):
            a(f'ds_read_b64_tr_b16 v[{b+4*dd}:{b+4*dd+1}], v{VA[dd]} offset:{2048*(k % 10)}')
            a(f'ds_read_b64_tr_b16 v[{b+4*dd+2}:{b+4*dd+3}], v{VA[dd]} offset:{2048*(k % 10)+1024}')
    for k in range(HD): hload(k)
    a.wait_vm_token(tokW[0]); wread(0)
    for k in range(28):
        if k + 1 < 28:
            a.wait_vm_token(tokW[k + 1]); wread(k + 1)
        b = HB + 8 * (k % HD); f = FA[k & 1]
        for tt in range(2):
            for dd in range(2):
                acc = ACC + 16 * (dd + 2 * tt)
                c = '0' if k == 0 else f'v[{acc}:{acc+15}]'
                a(f'v_mfma_f32_32x32x16_bf16 v[{acc}:{acc+15}], v[{f+4*dd}:{f+4*dd+3}], v[{b+4*tt}:{b+4*tt+3}], {c}')
        if k + HD < 28: hload(k + HD)
        if k + 10 < 28: dma(k + 10)
    a('s_waitcnt lgkmcnt(0)')
    a('s_barrier')
    if pre_mix: pre_mix()
    srd(a, SRD0, P_WS, 0, 0x1000000)
    a(f's_lshl_b32 s42, s{DT}, 18')
    a(f's_lshl_b32 s43, s{TAU}, 7')
    a('s_add_u32 s42, s42, s43')
    a(f's_lshl_b32 s43, s{S_WAVE}, 16')
    a('s_add_u32 s42, s42, s43')
    a(f's_add_u32 s89, s42, {hex(WS_AT)}')
    a(f'v_lshrrev_b32 v6, 3, v{V_LANE}')
    a('v_mul_u32_u24 v6, 3072, v6')
    a(f'v_add_u32 v8, v{VW0}, v6')
    a(f'v_add_u32 v9, {8*4096-1024}, v8')
    a(f's_lshl_b32 s43, s{S_WAVE}, 11')
    a('s_add_u32 m0, s43, 49152')
    a(f'buffer_load_dwordx4 v8, s[{SRD0}:{SRD0+3}], s89 offen lds {SC}')
    tokA = a(f'buffer_load_dwordx4 v9, s[{SRD0}:{SRD0+3}], s89 offen offset:1024 lds {SC}')
    a(f'v_and_b32 v2, 31, v{V_LANE}')
    a(f'v_lshrrev_b32 v3, 5, v{V_LANE}')
    a(f's_lshl_b32 s42, s{TAU}, 6')
    a(f's_lshl_b32 s43, s{WT}, 5')
    a('s_add_u32 s42, s42, s43')
    a('v_add_u32 v10, s42, v2')
    a('v_lshlrev_b32 v11, 2, v10')
    a(f'v_add_u32 v11, {hex(WS_G)}, v11')
    a(f'buffer_load_dword v12, v11, s[{SRD0}:{SRD0+3}], 0 offen {SC}')
    a(f's_lshl_b32 s42, s{DT}, 6')
    a(f's_lshl_b32 s43, s{WD}, 5')
    a('s_add_u32 s42, s42, s43')
    a('v_lshlrev_b32 v11, 2, v3')
    a('v_add_u32 v11, s42, v11')
    a('v_lshlrev_b32 v13, 1, v11')
    for i in range(4):
        a(f'global_load_dwordx2 v[{112+2*i}:{113+2*i}], v13, s[{P_B2}:{P_B2+1}] offset:{16*i}')
    a(f'v_lshlrev_b32 v14, 4, v{V_LANE}')
    for x in range(1, 4):
        a(f's_xor_b32 s42, s{S_WAVE}, {x}')
        a('s_mul_i32 s42, s42, 12288')
        a(f'v_add_u32 v15, s42, v14')
        for i in range(4):
            a(f'ds_write_b128 v15, v[{ACC+16*x+4*i}:{ACC+16*x+4*i+3}] offset:{4096*(x-1)+1024*i}')
    a.wait_vm_token(tokA)
    a('s_waitcnt lgkmcnt(0)')
    a('s_barrier')
    a(f's_mul_i32 s42, s{S_WAVE}, 12288')
    a('v_add_u32 v15, s42, v14')
    for x in range(3):
        for i in range(4):
            a(f'ds_read_b128 v[{128+16*x+4*i}:{128+16*x+4*i+3}], v15 offset:{4096*x+1024*i}')
    a(f's_lshl_b32 s42, s{WD}, 12')
    a('s_add_u32 s42, s42, 49152')
    a('v_add_u32 v18, s42, v18')
    for i in range(4):
        a(f'ds_read_b64_tr_b16 v[{176+2*i}:{177+2*i}], v18 offset:{1024*i}')
    a('v_sub_f32 v16, 1.0, v12')
    bf16_round(a, 16, 16)
    for x in range(3):
        for r in range(16):
            a(f'v_add_f32 v{ACC+r}, v{ACC+r}, v{128+16*x+r}')
    O = 184
    for i in range(4):
        T = 192
        for h in range(2):
            a(f'v_lshlrev_b32 v{T+2*h}, 16, v{112+2*i+h}')
            a(f'v_and_b32 v{T+2*h+1}, 0xffff0000, v{112+2*i+h}')
            a(f'v_lshlrev_b32 v{T+4+2*h}, 16, v{176+2*i+h}')
            a(f'v_and_b32 v{T+4+2*h+1}, 0xffff0000, v{176+2*i+h}')
        for r in range(4):
            a(f'v_add_f32 v{T+r}, v{T+r}, v{ACC+4*i+r}')
        if 'outb' in sys.argv:
            pass
        elif 'outa' in sys.argv:
            for r in range(4):
                a(f'v_mov_b32 v{T+r}, v{T+4+r}')
        else:
            for r in range(4):
                a(f'v_mul_f32 v{T+r}, v{T+r}, v16')
            for r in range(4):
                a(f'v_fmac_f32 v{T+r}, v{T+4+r}, v12')
        a(f'v_cvt_pk_bf16_f32 v{O+2*i}, v{T}, v{T+1}')
        a(f'v_cvt_pk_bf16_f32 v{O+2*i+1}, v{T+2}, v{T+3}')
    a('v_lshlrev_b32 v10, 10, v10')
    a(f's_lshl_b32 s42, s{DT}, 6')
    a(f's_lshl_b32 s43, s{WD}, 5')
    a('s_add_u32 s42, s42, s43')
    a('s_lshl_b32 s42, s42, 1')
    a('v_add_u32 v10, s42, v10')
    a('v_lshl_add_u32 v10, v3, 4, v10')
    srd(a, SRD1, P_OUT, 0, 2048 * 1024)
    for p in range(2):
        a(f'v_permlane32_swap_b32 v{O+4*p}, v{O+4*p+2}')
        a(f'v_permlane32_swap_b32 v{O+4*p+1}, v{O+4*p+3}')
        a(f'buffer_store_dwordx4 v[{O+4*p}:{O+4*p+3}], v10, s[{SRD1}:{SRD1+3}], 0 offen offset:{32*p}')


WS_DBG = 0xC00000
def dump_lds(a, base, nbytes, slot_bytes):
    a('s_waitcnt vmcnt(0) lgkmcnt(0)')
    a('s_barrier')
    srd(a, SRD5, P_WS, 0, 0x4000000)
    a(f's_mul_i32 s42, s{S_IDX}, {slot_bytes}')
    a(f's_add_u32 s42, s42, {hex(WS_DBG)}')
    a(f'v_lshlrev_b32 v250, 4, v{V_TID}')
    for o in range(0, nbytes, 4096):
        a(f'v_add_u32 v251, {base + o}, v250')
        a('ds_read_b128 v[252:255], v251')
        a(f'v_add_u32 v251, {o}, v250')
        a(f'v_add_u32 v251, s42, v251')
        a(f'buffer_store_dwordx4 v[252:255], v251, s[{SRD5}:{SRD5+3}], 0 offen')
        a('s_waitcnt vmcnt(0)')
    a('s_barrier')


def kd(name):
    return f"""
.amdhsa_kernel {name}
  .amdhsa_next_free_vgpr 256
  .amdhsa_next_free_sgpr 102
  .amdhsa_accum_offset 256
  .amdhsa_group_segment_fixed_size 0
  .amdhsa_kernarg_size 144
  .amdhsa_user_sgpr_count 2
  .amdhsa_user_sgpr_kernarg_segment_ptr 1
  .amdhsa_system_sgpr_workgroup_id_x 1
.end_amdhsa_kernel"""


def table():
    rows = []
    for lam in range(256):
        rows.append('.long ' + ', '.join(str(2 * kidx(8 * lam + 7 - e)) for e in range(8)))
    return '.p2align 8\nKIDX_TABLE:\n' + '\n'.join(rows) + '\n'


DEBUG = 'debug' in sys.argv
HEADER = open('cdna_kernels/' + NAME + '.s.ref').read().split('; Override launch')[0]


def build_multi():
    a = Asm()
    names = ['p0_kernel', 'mid_kernel', 'g2_kernel']
    a.raw(HEADER.rstrip())
    a.raw(f'; @launch kernel=p0_kernel grid=(284,1,1) block=(256,1,1) lds={LDS_BYTES}')
    a.raw(f'; @launch kernel=mid_kernel grid=(512,1,1) block=(256,1,1) lds={LDS_BYTES}')
    a.raw(f'; @launch kernel=g2_kernel grid=(256,1,1) block=(256,1,1) lds={LDS_BYTES}')
    a.raw('.amdgcn_target "amdgcn-amd-amdhsa--gfx950"')
    a.raw('.text')
    entry(a, 'p0_kernel', 284)
    a(f's_mov_b32 s{S_IDX}, s2')
    stamp(a, 0)
    a('s_cmp_ge_u32 s2, 256')
    a('s_cbranch_scc1 L_p0_sh')
    emit_p0(a, 'p0', '')
    a('s_waitcnt vmcnt(0)') if STAMP else None
    stamp(a, 1)
    a('s_branch L_p0_kernel_exit')
    a.label('L_p0_sh'); a.reset()
    a('s_sub_u32 s72, s2, 256')
    emit_shelper(a, 'sh', 72, '')
    a.label('L_p0_kernel_exit')
    a('s_endpgm')
    entry(a, 'mid_kernel', 512)
    stamp(a, 16)
    a('s_cmp_ge_u32 s2, 256')
    a('s_cbranch_scc1 L_mid_g1')
    a(f's_mov_b32 s{S_IDX}, s2')
    if 'nossm' in sys.argv: a('s_branch L_mid_kernel_exit')
    emit_ssm_loads(a)
    emit_kgen(a, 'kg')
    a('s_waitcnt lgkmcnt(0)')
    a('s_barrier')
    if DEBUG: dump_lds(a, L_KT, 20480, 20480)
    stamp(a, 17)
    emit_ucopies(a, 'uc', '')
    a('s_waitcnt lgkmcnt(0)')
    a('s_barrier')
    stamp(a, 18)
    emit_conv(a, 'cv', '')
    a('s_waitcnt vmcnt(0)') if STAMP else None
    stamp(a, 19)
    a('s_branch L_mid_kernel_exit')
    a.label('L_mid_g1'); a.reset()
    a(f's_sub_u32 s{S_IDX}, s2, 256')
    emit_g1_index(a)
    if 'nog1' in sys.argv: a('s_branch L_mid_kernel_exit')
    a('s_cmp_ge_u32 s74, 28')
    a('s_cbranch_scc1 L_mid_kernel_exit')
    emit_g1(a, 'g1', '', pre_epilogue=lambda: stamp(a, 17), hooks={0: lambda: stamp(a, 20), 1: lambda: stamp(a, 21), 4: lambda: stamp(a, 22), 8: lambda: stamp(a, 23), 12: lambda: stamp(a, 24)} if STAMP else None)
    a('s_waitcnt vmcnt(0)') if STAMP else None
    stamp(a, 19)
    a.label('L_mid_kernel_exit')
    a('s_endpgm')
    entry(a, 'g2_kernel', 256)
    a(f's_mov_b32 s{S_IDX}, s2')
    stamp(a, 32)
    emit_g2(a, 'g2', '', pre_mix=lambda: stamp(a, 33))
    a('s_waitcnt vmcnt(0)') if STAMP else None
    stamp(a, 35)
    a.label('L_g2_kernel_exit')
    a('s_endpgm')
    a.raw(table())
    a.raw('.section .rodata,"a"')
    for n in names:
        a.raw('.p2align 6')
        a.raw(kd(n).strip('\n'))
    return a.text()


if __name__ == '__main__':
    mode = sys.argv[1] if len(sys.argv) > 1 else 'multi'
    out = sys.argv[2] if len(sys.argv) > 2 else 'cdna_kernels/' + NAME + '.s'
    txt = {'multi': build_multi}[mode]()
    open(out, 'w').write(txt)
    print('wrote', out, len(txt), 'bytes')
```

```python
import math, struct, sys
from asmlib import Asm
import gen as G
from gen import *

SC = 'sc1'
SRDF, SRDD = SRD4, SRD5
SPIN_LIMIT = 200000
FS = 5
FL_P0, FL_A, FL_H = 0x0, 0x2000, 0x4000
HS = 6
FL_BYTES = 0x8000
ARGS = set(sys.argv[1:])
slow_blocks = []


def setup_flag_srds(a):
    srd(a, SRDF, P_WS, WS_FL, FL_BYTES)
    srd(a, SRDD, P_DBG, 0, 256)


def set_exec(a, mask):
    if isinstance(mask, str):
        a(f's_mov_b64 exec, {mask}')
    elif mask < (1 << 31):
        a(f's_mov_b64 exec, {hex(mask)}')
    else:
        a(f's_mov_b32 exec_lo, {hex(mask & 0xffffffff)}')
        a(f's_mov_b32 exec_hi, {hex(mask >> 32)}')


def poll_issue(a, vd, vaddr, srd_, mask, off=0):
    set_exec(a, mask)
    tok = a(f'buffer_load_dword v{vd}, v{vaddr}, s[{srd_}:{srd_+3}], 0 offen offset:{off} {SC}')
    a('s_mov_b64 exec, -1')
    return tok


def cmp_mask(a, vd, mask):
    set_exec(a, mask)
    a(f'v_cmp_eq_u32 vcc, 1, v{vd}')
    a('s_mov_b64 s[46:47], exec')
    a('s_mov_b64 exec, -1')
    a('s_cmp_eq_u64 vcc, s[46:47]')


def spin(a, name, vd, vaddr, srd_, mask, off=0, sleep=2):
    a(f's_mov_b32 s45, {SPIN_LIMIT}')
    a.label(f'L_{name}_spin')
    set_exec(a, mask)
    a(f'buffer_load_dword v{vd}, v{vaddr}, s[{srd_}:{srd_+3}], 0 offen offset:{off} {SC}', opt=True)
    a('s_waitcnt vmcnt(0)')
    a(f'v_cmp_eq_u32 vcc, 1, v{vd}')
    a('s_mov_b64 s[46:47], exec')
    a('s_mov_b64 exec, -1')
    a('s_cmp_eq_u64 vcc, s[46:47]')
    a(f's_cbranch_scc1 L_{name}_done')
    a(f's_sleep {sleep}')
    a('s_sub_u32 s45, s45, 1')
    a('s_cmp_lg_u32 s45, 0')
    a(f's_cbranch_scc1 L_{name}_spin')
    a.label(f'L_{name}_done')


def check_or_spin(a, name, tok, vd, vaddr, srd_, mask, off=0):
    a.wait_vm_token(tok)
    cmp_mask(a, vd, mask)
    a(f's_cbranch_scc0 L_{name}_slow')
    a.label(f'L_{name}_back')
    slow_blocks.append((name, vd, vaddr, srd_, mask, off))


def emit_slow_blocks(a):
    for (name, vd, vaddr, srd_, mask, off) in slow_blocks:
        a.label(f'L_{name}_slow')
        a.reset()
        spin(a, name + 's', vd, vaddr, srd_, mask, off)
        a(f's_branch L_{name}_back')
    slow_blocks.clear()


def flag_store(a, vtmp, soff_expr_reg, extra=0, val=1):
    a(f'v_mov_b32 v{vtmp}, s{soff_expr_reg}')
    a(f'v_mov_b32 v{vtmp+1}, {val}')
    a('s_mov_b64 exec, 1')
    a(f'buffer_store_dword v{vtmp+1}, v{vtmp}, s[{SRDF}:{SRDF+3}], 0 offen offset:{extra} {SC}', opt=True)
    a('s_mov_b64 exec, -1')


def wave0_only(a, name, fn):
    a(f's_cmp_eq_u32 s{S_WAVE}, 0')
    a(f's_cbranch_scc0 L_{name}_skip')
    st = a.save()
    fn()
    a.label(f'L_{name}_skip')
    a.hist = []
    a.vmq = st[1]; a.lgq = st[2]


def red32(a, r, t):
    red8(a, r)
    a(f'v_add_f32_dpp v{r}, v{r}, v{r} row_mirror row_mask:0xf bank_mask:0xf')
    a(f'v_mov_b32 v{t}, v{r}')
    a(f'v_permlane16_swap_b32 v{r}, v{t}')
    a(f'v_add_f32 v{r}, v{r}, v{t}')


def p0_loads(a):
    X, J, T0, TT, DT = 72, 73, 74, 75, 76
    a(f's_and_b32 s{X}, s{S_IDX}, 7')
    a(f's_lshr_b32 s{J}, s{S_IDX}, 3')
    a(f's_lshl_b32 s{T0}, s{X}, 8')
    a(f's_lshl_b32 s42, s{J}, 3')
    a(f's_add_u32 s{T0}, s{T0}, s42')
    a(f's_lshl_b32 s{TT}, s{X}, 2')
    a(f's_lshr_b32 s42, s{J}, 3')
    a(f's_add_u32 s{TT}, s{TT}, s42')
    a(f's_and_b32 s{DT}, s{J}, 7')
    a(f'v_lshrrev_b32 v184, 3, v{V_LANE}')
    a(f'v_and_b32 v185, 7, v{V_LANE}')
    a(f's_lshl_b32 s42, s{TT}, 6')
    a(f's_lshl_b32 s43, s{S_WAVE}, 4')
    a('s_add_u32 s42, s42, s43')
    a('v_add_u32 v4, s42, v184')
    a('v_lshlrev_b32 v4, 10, v4')
    a('v_lshl_add_u32 v4, v185, 4, v4')
    a(f's_lshl_b32 s42, s{DT}, 7')
    a('v_add_u32 v4, s42, v4')
    a(f'global_load_dwordx4 v[160:163], v4, s[{P_U}:{P_U+1}]')
    a('v_add_u32 v4, 0x2000, v4')
    a(f'global_load_dwordx4 v[164:167], v4, s[{P_U}:{P_U+1}]')
    a(f'v_lshrrev_b32 v5, 5, v{V_LANE}')
    a(f'v_and_b32 v6, 31, v{V_LANE}')
    a(f's_lshl_b32 s42, s{S_WAVE}, 1')
    a(f's_add_u32 s42, s42, s{T0}')
    a('v_add_u32 v186, s42, v5')
    a('v_lshlrev_b32 v8, 10, v186')
    a('v_lshlrev_b32 v9, 5, v6')
    a('v_add_u32 v8, v8, v9')
    for k in range(2):
        a(f'global_load_dwordx4 v[{168+4*k}:{171+4*k}], v8, s[{P_U}:{P_U+1}] offset:{16*k}')
    for k in range(2):
        a(f'global_load_dwordx4 v[{176+4*k}:{179+4*k}], v9, s[{P_GW}:{P_GW+1}] offset:{16*k}')


def p0_compute(a):
    X, J, T0, TT, DT = 72, 73, 74, 75, 76
    srd(a, SRD0, P_WS, 0, 0x1000000)
    a(f's_lshl_b32 s42, s{S_WAVE}, 4')
    a('v_add_u32 v10, s42, v184')
    a('v_mul_u32_u24 v10, 144, v10')
    a('v_lshl_add_u32 v10, v185, 4, v10')
    a(f'v_add_u32 v10, {L_KT}, v10')
    a('ds_write_b128 v10, v[160:163]')
    a(f'ds_write_b128 v10, v[164:167] offset:{8*144}')
    if 'ssmst' in ARGS: stamp(a, 11)
    a('s_mov_b32 s46, 0x3f803f80')
    for k in range(4):
        a(f'v_mov_b32 v{12+k}, 0')
    for d in range(8):
        a(f'v_dot2_f32_bf16 v{12+d%2}, v{168+d}, s46, v{12+d%2}')
        a(f'v_dot2_f32_bf16 v{14+d%2}, v{168+d}, v{176+d}, v{14+d%2}')
    a('v_add_f32 v12, v12, v13')
    a('v_add_f32 v14, v14, v15')
    red32(a, 12, 16)
    red32(a, 14, 17)
    a(f'v_mul_f32 v12, {f32(1/512)}, v12')
    for k in range(4):
        a(f'v_mov_b32 v{20+k}, 0')
    for d in range(0, 8, 2):
        for e in range(2):
            a(f'v_lshlrev_b32 v{24+2*e}, 16, v{168+d+e}')
            a(f'v_and_b32 v{25+2*e}, 0xffff0000, v{168+d+e}')
        for e in range(4):
            a(f'v_sub_f32 v{24+e}, v{24+e}, v12')
        for e in range(4):
            a(f'v_fmac_f32 v{20+e}, v{24+e}, v{24+e}')
    a('v_add_f32 v20, v20, v21')
    a('v_add_f32 v22, v22, v23')
    a('v_add_f32 v20, v20, v22')
    red32(a, 20, 16)
    bf16_round(a, 14, 14)
    a(f'v_mul_f32 v14, {f32(-LOG2E)}, v14')
    a('v_exp_f32 v14, v14')
    a(f'v_mul_f32 v20, {f32(1/512)}, v20')
    a('v_add_f32 v14, 1.0, v14')
    a('v_rcp_f32 v14, v14')
    bf16_round(a, 20, 20)
    a(f'v_add_f32 v20, {f32(1e-5)}, v20')
    bf16_round(a, 14, 14)
    bf16_round(a, 20, 20)
    a('v_sqrt_f32 v20, v20')
    bf16_round(a, 12, 12)
    bf16_round(a, 13, 20)
    a('v_lshlrev_b32 v8, 2, v186')
    a(f'v_add_u32 v8, {hex(WS_G)}, v8')
    a('v_lshlrev_b32 v9, 3, v186')
    a(f'v_add_u32 v9, {hex(WS_ST)}, v9')
    a('s_mov_b32 exec_lo, 1')
    a('s_mov_b32 exec_hi, 1')
    a(f'buffer_store_dword v14, v8, s[{SRD0}:{SRD0+3}], 0 offen {SC}')
    a(f'buffer_store_dwordx2 v[12:13], v9, s[{SRD0}:{SRD0+3}], 0 offen {SC}')
    a('s_mov_b64 exec, -1')
    if 'ssmst' in ARGS: stamp(a, 12)
    a('s_waitcnt lgkmcnt(0)')
    a('s_barrier')
    if 'ssmst' in ARGS: stamp(a, 13)
    a(f'v_and_b32 v2, 15, v{V_LANE}')
    a(f'v_lshrrev_b32 v3, 4, v{V_LANE}')
    a('v_lshrrev_b32 v4, 2, v2')
    a('v_lshl_add_u32 v4, v3, 3, v4')
    a('v_mul_u32_u24 v4, 144, v4')
    a('v_and_b32 v5, 3, v2')
    a('v_lshl_add_u32 v4, v5, 3, v4')
    a(f's_lshl_b32 s42, s{S_WAVE}, 5')
    a(f's_add_u32 s42, s42, {L_KT}')
    a('v_add_u32 v4, s42, v4')
    for th in range(2):
        a(f'ds_read_b64_tr_b16 v[{64+4*th}:{65+4*th}], v4 offset:{th*32*144}')
        a(f'ds_read_b64_tr_b16 v[{66+4*th}:{67+4*th}], v4 offset:{th*32*144+4*144}')
    a(f's_lshl_b32 s42, s{DT}, 6')
    a(f's_lshl_b32 s43, s{S_WAVE}, 4')
    a('s_add_u32 s42, s42, s43')
    a('v_add_u32 v5, s42, v2')
    a('v_lshlrev_b32 v5, 12, v5')
    a('v_lshl_add_u32 v5, v3, 4, v5')
    a(f's_lshl_b32 s42, s{TT}, 7')
    a('v_add_u32 v5, s42, v5')
    for th in range(2):
        a(f'buffer_store_dwordx4 v[{64+4*th}:{67+4*th}], v5, s[{SRD0}:{SRD0+3}], 0 offen offset:{WS_UT+64*th} {SC}')


def ucopy_loads(a, opt):
    MH, D = 80, 81
    E = [160, 168, 176]
    for q2, vo in ((0, 30), (1, 31), (2, 32)):
        a(f'buffer_load_dwordx4 v[{E[q2]}:{E[q2]+3}], v{vo}, s[{SRD1}:{SRD1+3}], 0 offen {SC}', opt=opt)
        a(f'buffer_load_dwordx2 v[{E[q2]+4}:{E[q2]+5}], v{vo}, s[{SRD1}:{SRD1+3}], 0 offen offset:16 {SC}', opt=opt)


def ucopy_addr(a):
    MH, D = 80, 81
    a(f's_lshl_b32 s42, s{D}, 12')
    srd(a, SRD1, P_WS, 's42', 4096)
    a(f's_lshl_b32 s42, s{MH}, 11')
    a(f'v_lshlrev_b32 v29, 4, v{V_LANE}')
    a('v_add_u32 v29, s42, v29')
    a('v_subrev_u32 v30, 32, v29')
    a('v_add_u32 v31, 1024, v30')
    a('v_add_u32 v32, 2048, v30')


def ucopy_writes(a):
    C, MH = 79, 80
    E = [160, 168, 176]
    a(f's_mul_i32 s42, s{C}, {UC_CH}')
    a(f's_add_u32 s42, s42, {L_UC}')
    a('v_add_u32 v2, s42, v29')
    for q2 in range(3):
        e = E[q2]
        if q2 == 2:
            a(f's_cmp_eq_u32 s{MH}, 1')
            a('s_cselect_b64 exec, 3, 0')
        T = 184 + 12 * (q2 & 1)
        for k in range(4):
            a(f'v_alignbit_b32 v{T+k}, v{e+k+1}, v{e+k}, 16')
        for k in range(4):
            a(f'v_mov_b32 v{T+4+k}, v{e+k+1}')
        for k in range(4):
            a(f'v_alignbit_b32 v{T+8+k}, v{e+k+2}, v{e+k+1}, 16')
        off = 1024 * q2
        a(f'ds_write_b128 v2, v[{e}:{e+3}] offset:{off}')
        a(f'ds_write_b128 v2, v[{T}:{T+3}] offset:{off+UC_COPY}')
        a(f'ds_write_b128 v2, v[{T+4}:{T+7}] offset:{off+2*UC_COPY}')
        a(f'ds_write_b128 v2, v[{T+8}:{T+11}] offset:{off+3*UC_COPY}')
    a('s_mov_b64 exec, -1')


def ssm_role(a):
    X, J, T0, TT, DT = 72, 73, 74, 75, 76
    a(f's_mov_b32 s{S_IDX}, s2')
    stamp(a, 0)
    if 'kfirst' not in ARGS and 'noprio' not in ARGS: a('s_setprio 3')
    p0_loads(a)
    emit_ssm_loads(a)
    if 'hiprio' not in ARGS: a('s_setprio 0')
    if 'ssmst' in ARGS: stamp(a, 10)
    setup_flag_srds(a)
    st_ = {}
    def rdy_issue():
        pass
    def publish_p0():
        a('s_waitcnt vmcnt(0)')
        def chk():
            a('v_mov_b32 v33, 0')
            spin(a, 'ssm_rdy', 34, 33, SRDD, 1, sleep=3)
        wave0_only(a, 'ssm_rdyw', chk)
        a('s_barrier')
        def f():
            a(f's_lshl_b32 s42, s{S_IDX}, {FS}')
            a(f's_add_u32 s42, s42, {FL_P0}')
            flag_store(a, 35, 42)
        wave0_only(a, 'ssm_pub', f)
        stamp(a, 3 if 'kfirst' in ARGS else 9)
    def publish_a():
        def f():
            a(f's_lshl_b32 s42, s{S_IDX}, {FS}')
            a(f's_add_u32 s42, s42, {FL_A}')
            flag_store(a, 35, 42)
        wave0_only(a, 'ssm_pub2', f)
    if 'ssmlite' in ARGS:
        a('s_waitcnt lgkmcnt(0)')
        p0_compute(a)
        rdy_issue()
        publish_p0()
        publish_a()
        G.stamp_flush(a)
        return
    def ut_addr():
        a(f's_lshr_b32 s42, s{S_IDX}, 5')
        a(f'v_and_b32 v35, 7, v{V_LANE}')
        a(f'v_lshrrev_b32 v36, 3, v{V_LANE}')
        a('v_lshlrev_b32 v36, 3, v36')
        a('v_add_u32 v36, s42, v36')
        a('v_lshl_add_u32 v35, v36, 3, v35')
        a(f'v_lshlrev_b32 v35, {FS}, v35')
        ucopy_addr(a)
    if 'kfirst' in ARGS:
        def pre_mfma():
            stamp(a, 1)
            p0_compute(a)
            stamp(a, 2)
            rdy_issue()
        def post_mfma():
            publish_p0()
            ut_addr()
        G.emit_kgen(a, 'kg', pre_mfma=pre_mfma, post_mfma=post_mfma)
    else:
        p0_compute(a)
        stamp(a, 1)
        rdy_issue()
        def setup_hook():
            publish_p0()
            a('s_setprio 0')
        def pre_mfma():
            stamp(a, 2)
            ut_addr()
            st_['ut'] = poll_issue(a, 34, 35, SRDF, 0xffffffff, FL_P0)
        def post_mfma():
            a.wait_vm_token(st_['ut'])
            cmp_mask(a, 34, 0xffffffff)
            a('s_cselect_b32 s82, 1, 0')
            a('s_cbranch_scc0 L_ssm_noearly')
            sv = a.save()
            ucopy_loads(a, True)
            a.label('L_ssm_noearly')
            a.hist = []; a.vmq = sv[1]; a.lgq = sv[2]
        G.emit_kgen(a, 'kg', setup_hook=setup_hook, pre_mfma=pre_mfma, post_mfma=post_mfma)
    stamp(a, 4)
    a('s_cmp_eq_u32 s82, 1')
    a('s_cbranch_scc1 L_ssm_have')
    spin(a, 'ssm_ut', 34, 35, SRDF, 0xffffffff, FL_P0)
    ucopy_loads(a, True)
    a.label('L_ssm_have')
    a.hist = []
    a('s_waitcnt vmcnt(0) lgkmcnt(0)')
    a('s_barrier')
    ucopy_writes(a)
    a('s_waitcnt lgkmcnt(0)')
    a('s_barrier')
    stamp(a, 5)
    if 'nogate' not in ARGS:
        a(f's_cmp_ge_u32 s{J}, 28')
        a('s_cbranch_scc1 L_ssm_go')
        a(f's_mul_i32 s42, s{J}, 37')
        a('s_lshr_b32 s42, s42, 8')
        a('s_mul_i32 s43, s42, 7')
        a(f's_sub_u32 s43, s{J}, s43')
        a(f's_lshr_b32 s44, s{X}, 1')
        a('s_lshl_b32 s44, s44, 2')
        a('s_add_u32 s42, s44, s42')
        a(f's_and_b32 s44, s{X}, 1')
        a('s_mul_i32 s44, s44, 7')
        a('s_add_u32 s43, s44, s43')
        a('s_mul_i32 s42, s42, 14')
        a('s_add_u32 s42, s42, s43')
        a(f's_lshl_b32 s42, s42, {HS}')
        a(f's_lshl_b32 s43, s{S_WAVE}, 2')
        a('s_add_u32 s42, s42, s43')
        a(f's_add_u32 s83, s42, {hex(WS_FL + FL_H)}')
        a('s_mov_b32 s45, 300')
        a.label('L_ssm_gate')
        a.lgq = []
        a(f's_load_dword s84, s[{P_WS}:{P_WS+1}], s83 glc')
        a(f's_cmp_ge_u32 s84, {GATE_LEVEL}')
        a('s_cbranch_scc1 L_ssm_go')
        a('s_sleep 4')
        a('s_sub_u32 s45, s45, 1')
        a('s_cmp_lg_u32 s45, 0')
        a('s_cbranch_scc1 L_ssm_gate')
        a.label('L_ssm_go')
        a.reset()
    stamp(a, 6)
    if 'cvp0' not in ARGS: a('s_setprio 3')
    emit_conv(a, 'cv', SC)
    stamp(a, 7)
    a('s_waitcnt vmcnt(0)')
    a('s_barrier')
    publish_a()
    stamp(a, 8)
    G.stamp_flush(a)


TB, FB_, JJ, XC, PAR = 72, 73, 74, 75, 76
HOFF = [77, 78]
ROT = 79
WF, WT = 82, 83
W4, W2K = 81, 80
SLOTS = [(4, 32768), (4, 32768 + 2048), (2, 49152), (4, 0), (4, 2048), (2, 57344), (2, 65536), (4, 16384), (4, 16384 + 2048), (2, 73728)]
TAU, DT = 87, 88
KX = list(range(6, 14))
KW = list(range(14, 22))
SP = list(range(90, 97))
WE = [97, 98, 99, 100]
SRDW2 = 24
R1 = 10
GW, GA, GH, VF, VT, VP = [128, 129], [130, 131], [132, 133, 134, 135], 136, 137, 20
GA2 = [218, 219]
W2R = [138 + 4 * k for k in range(20)]
G2ACC = [32, 48, 64, 80]
HD = 6
HRING = [220, 224, 228, 232, 96, 100, 120, 124, 104, 108, 112, 116]
G2FA = [236, 244]
TAILMASK = (1 << 40) - 1
GAP = int([x[3:] for x in ARGS if x.startswith('gap')][0]) if any(x.startswith('gap') for x in ARGS) else 17
R1_READ_AT = int([x[3:] for x in ARGS if x.startswith('rra')][0]) if any(x.startswith('rra') for x in ARGS) else 1
PUB0 = int([x[3:] for x in ARGS if x.startswith('pub')][0]) if any(x.startswith('pub') for x in ARGS) else 3
GATE_LEVEL = int([x[4:] for x in ARGS if x.startswith('gate') and x[4:].isdigit()][0]) if any(x.startswith('gate') and x[4:].isdigit() for x in ARGS) else 3
ZWG = 256 + 8 * 29
TAILK = int([x[2:] for x in ARGS if x.startswith('tk')][0]) if any(x.startswith('tk') for x in ARGS) else 20
HSC = '' if 'hplain' in ARGS else 'sc1 nt' if 'hnt' in ARGS else 'sc0 sc1' if 'hsc01' in ARGS else 'sc0 sc1 nt' if 'hsc01nt' in ARGS else 'sc1'
OSC = 'sc1' if 'osc1' in ARGS else 'nt' if 'ont' in ARGS else 'sc0 sc1' if 'osc01' in ARGS else ''
ASTG = int([x[3:] for x in ARGS if x.startswith('ast')][0]) if any(x.startswith('ast') for x in ARGS) else 3
TOUCH_ST = int([x[3:] for x in ARGS if x.startswith('tst')][0]) if any(x.startswith('tst') for x in ARGS) else 12
PFDEPTH = int([x[3:] for x in ARGS if x.startswith('pfd')][0]) if any(x.startswith('pfd') for x in ARGS) else 1


class G2State:
    pass


def pos_mj(k):
    return k % 7, (k // 7) & 1, k >= 14


def g2_setup(a):
    if 'map48' in ARGS:
        a(f's_lshl_b32 s42, s{XC}, 2')
        a(f's_lshr_b32 s44, s{JJ}, 3')
        a(f's_add_u32 s{TAU}, s42, s44')
        a(f's_and_b32 s{DT}, s{JJ}, 7')
        a(f's_and_b32 s{PAR}, s{TAU}, 1')
        a(f's_cmp_eq_u32 s{DT}, 7')
        a(f's_cselect_b32 s42, 0, s{DT}')
    else:
        a(f's_lshr_b32 s42, s{XC}, 1')
        a('s_lshl_b32 s42, s42, 3')
        a(f's_lshr_b32 s44, s{JJ}, 2')
        a(f's_add_u32 s{TAU}, s42, s44')
        a(f's_and_b32 s42, s{XC}, 1')
        a('s_lshl_b32 s42, s42, 2')
        if 'dtshift' in ARGS:
            a(f's_add_u32 s43, s{JJ}, 1')
            a('s_and_b32 s43, s43, 3')
        else:
            a(f's_and_b32 s43, s{JJ}, 3')
        a(f's_add_u32 s{DT}, s42, s43')
        a(f's_and_b32 s{PAR}, s{TAU}, 1')
        a('s_lshl_b32 s42, s43, 1')
        a('s_add_u32 s42, s42, s44')
        a('s_cmp_ge_u32 s42, 7')
        a('s_cselect_b32 s43, 7, 0')
        a('s_sub_u32 s42, s42, s43')
    a(f's_mul_i32 s44, s{S_WAVE}, {28*1024}')
    for m in range(7):
        a('s_lshl_b32 s43, s42, 12')
        a(f's_add_u32 s{SP[m]}, s43, s44')
        if m < 6:
            a('s_add_u32 s42, s42, 1')
            a('s_cmp_eq_u32 s42, 7')
            a('s_cselect_b32 s42, 0, s42')
    a(f's_lshl_b32 s{WE[0]}, s{PAR}, 15')
    a(f's_add_u32 s{WE[1]}, s{WE[0]}, 16384')
    a(f's_sub_u32 s{WE[2]}, 32768, s{WE[0]}')
    a(f's_add_u32 s{WE[3]}, s{WE[2]}, 16384')
    a(f's_lshl_b32 s42, s{DT}, 7')
    a(f's_sub_u32 s43, {1792*1024}, s42')
    srd(a, SRDW2, P_W2, 's42', 's43')
    if 'nob2' not in ARGS:
        a(f'v_lshlrev_b32 v96, 4, v{V_LANE}')
        a(f'global_load_dwordx4 v[140:143], v96, s[{P_B2}:{P_B2+1}]', discard=True)
    a(f's_mul_i32 s42, s{TAU}, {2*112*1024}')
    a(f's_add_u32 s42, s42, {hex(WS_H)}')
    srd(a, SRD3, P_WS, 's42', 2 * 112 * 1024)
    a(f's_and_b32 s{WF}, s{S_WAVE}, 1')
    a(f's_lshr_b32 s{WT}, s{S_WAVE}, 1')
    t0, t1, t2, t3 = 96, 97, 98, 99
    a(f'v_lshrrev_b32 v{t0}, 3, v{V_LANE}')
    a(f'v_and_b32 v{t1}, 7, v{V_LANE}')
    a(f'v_lshrrev_b32 v{t2}, 2, v{t1}')
    a(f'v_lshrrev_b32 v{t3}, 1, v{t0}')
    a(f'v_and_b32 v{t3}, 1, v{t3}')
    a(f'v_xor_b32 v{t2}, v{t2}, v{t3}')
    a(f'v_and_b32 v{t1}, 3, v{t1}')
    a(f'v_lshl_add_u32 v{t2}, v{t2}, 2, v{t1}')
    a(f'v_lshlrev_b32 v{t0}, 10, v{t0}')
    a(f'v_lshl_add_u32 v{GW[0]}, v{t2}, 4, v{t0}')
    a(f'v_add_u32 v{GW[1]}, {8*1024-1024}, v{GW[0]}')
    a(f's_lshl_b32 s{W4}, s{S_WAVE}, 12')
    a(f's_lshl_b32 s{W2K}, s{S_WAVE}, 11')
    a(f'v_lshrrev_b32 v{t0}, 4, v{V_LANE}')
    a(f'v_and_b32 v{t1}, 15, v{V_LANE}')
    a(f'v_lshrrev_b32 v{t2}, 2, v{t1}')
    a(f'v_and_b32 v{t1}, 3, v{t1}')
    a(f'v_lshrrev_b32 v{t3}, 1, v{t0}')
    a(f'v_and_b32 v{t0}, 1, v{t0}')
    a(f'v_lshl_add_u32 v{t3}, v{t3}, 2, v{t2}')
    a(f'v_lshlrev_b32 v{t3}, 7, v{t3}')
    a(f'v_lshl_add_u32 v{t3}, v{t0}, 5, v{t3}')
    a(f'v_lshl_add_u32 v{t3}, v{t1}, 3, v{t3}')
    a(f'v_lshrrev_b32 v{t2}, 1, v{t2}')
    a(f'v_xor_b32 v{t2}, s{WF}, v{t2}')
    a(f'v_lshl_add_u32 v{GA[0]}, v{t2}, 6, v{t3}')
    a(f'v_xor_b32 v{t2}, 1, v{t2}')
    a(f'v_lshl_add_u32 v{GA[1]}, v{t2}, 6, v{t3}')
    a(f's_add_u32 s42, s{W2K}, 49152')
    for dd in range(2):
        a(f'v_add_u32 v{GA2[dd]}, s42, v{GA[dd]}')
        a(f'v_add_u32 v{GA[dd]}, s{W4}, v{GA[dd]}')
    a(f'v_lshlrev_b32 v{t2}, 4, v{V_LANE}')
    a(f's_lshl_b32 s43, s{PAR}, 11')
    a(f'v_add_u32 v{t2}, s43, v{t2}')
    a(f's_mul_i32 s42, s{WT}, {112*1024}')
    a(f'v_add_u32 v{GH[0]}, s42, v{t2}')
    a(f's_sub_u32 s42, {112*1024}, s42')
    a(f'v_add_u32 v{GH[1]}, s42, v{t2}')
    a('s_lshl_b32 s43, s43, 1')
    a('s_sub_u32 s43, 2048, s43')
    a(f'v_add_u32 v{GH[2]}, s43, v{GH[0]}')
    a(f'v_add_u32 v{GH[3]}, s43, v{GH[1]}')
    a(f's_lshr_b32 s42, s{TAU}, 1')
    a('s_mul_i32 s42, s42, 14')
    a(f's_mul_i32 s43, s{S_WAVE}, 7')
    a('s_lshr_b32 s43, s43, 1')
    a('s_add_u32 s42, s42, s43')
    a(f's_lshl_b32 s42, s42, {HS}')
    a(f's_lshl_b32 s43, s{PAR}, 3')
    a('s_add_u32 s42, s42, s43')
    a(f's_add_u32 s42, s42, {hex(WS_FL + FL_H)}')
    a(f's_add_u32 s{SFL}, s{P_WS}, s42')
    a(f's_addc_u32 s{SFL+1}, s{P_WS+1}, 0')
    a(f's_lshl_b32 s42, s{DT}, 5')
    a(f'v_add_u32 v{VT}, s42, v{V_LANE}')
    a(f'v_lshlrev_b32 v{VT}, {FS}, v{VT}')
    a(f'v_add_u32 v{VT}, {FL_A}, v{VT}')
    a(f's_lshr_b32 s42, s{TAU}, 2')
    a(f's_and_b32 s43, s{TAU}, 3')
    a('s_lshl_b32 s43, s43, 6')
    a('s_add_u32 s42, s42, s43')
    a(f'v_subrev_u32 v{t0}, 32, v{V_LANE}')
    a(f'v_lshlrev_b32 v{t0}, 3, v{t0}')
    a(f'v_add_u32 v{t0}, s42, v{t0}')
    a(f'v_lshlrev_b32 v{t0}, {FS}, v{t0}')
    a(f'v_add_u32 v{t0}, {FL_P0}, v{t0}')
    a(f'v_cmp_gt_u32 vcc, 32, v{V_LANE}')
    a(f'v_cndmask_b32 v{VT}, v{t0}, v{VT}, vcc')


def g2_dma_items(k):
    m, j, late = pos_mj(k)
    kind, off = SLOTS[k % 10]
    pre = [f's_add_u32 m0, s{W4 if kind == 4 else W2K}, {off}']
    if 'w2same' in ARGS: pre.append('s_mov_b32 s89, 0')
    else: pre.append(f's_lshl4_add_u32 s89, s{SP[m]}, s{WE[2*late+j]}')
    if 'w2small' in ARGS: pre.append('s_and_b32 s89, s89, 0x1ffff')
    return [pre + [f'buffer_load_dwordx4 v{GW[0]}, s[{SRDW2}:{SRDW2+3}], s89 offen lds'],
            [(f'buffer_load_dwordx4 v{GW[1]}, s[{SRDW2}:{SRDW2+3}], s89 offen offset:1024 lds', k)]]


def put_items(a, g, items):
    for it in items:
        if isinstance(it, tuple): g.tokW[it[1]] = a(it[0])
        else: a(it)


def g2_dma(a, g, k):
    for grp in g2_dma_items(k): put_items(a, g, grp)


def g2_wread_list(k, regs):
    kind, off = SLOTS[k % 10]
    l = []
    for dd in range(2):
        v_, o = (GA[dd], off) if kind == 4 else (GA2[dd], off - 49152)
        l.append(f'ds_read_b64_tr_b16 v[{regs[dd]}:{regs[dd]+1}], v{v_} offset:{o}')
        l.append(f'ds_read_b64_tr_b16 v[{regs[dd]+2}:{regs[dd]+3}], v{v_} offset:{o+1024}')
    return l


def g2_round1_reads(a, g):
    a.wait_vm_token(max(g.tokW[k] for k in range(R1)))
    for k in range(R1):
        for l in g2_wread_list(k, W2R[2*k:2*k+2]): a(l)


def h_schedule():
    free = list(HRING)
    regs, when = {}, {}
    nxt = 0
    for p in range(HD - 1):
        regs[p] = (free.pop(0), free.pop(0)); when[p] = -1; nxt += 1
    for k in range(28):
        if k >= 1:
            free += list(regs[k - 1])
            if RESERVED <= k - 1 < R1: free += W2R[2*(k-1):2*(k-1)+2]
        n = 0
        while nxt < 28 and len(free) >= 2 and n < 2:
            regs[nxt] = (free.pop(0), free.pop(0)); when[nxt] = k; nxt += 1; n += 1
    return regs, when


RESERVED = 4
HREGS, HWHEN = h_schedule()


SFL = 32
PSET = [6, 14]
SPINSET = 72
sc_slow = []
NREST = [0]


LVL = 101


def sc_issue(a, st):
    d = PSET[st]
    for i in range(4):
        a(f's_load_dwordx2 s[{d+2*i}:{d+2*i+1}], s[{SFL}:{SFL+1}], {(1 << HS)*i} glc')


def sc_eval(a, st):
    d = PSET[st]
    a(f's_min_u32 s42, s{d}, s{d+1}')
    for i in range(2, 8):
        a(f's_min_u32 s42, s42, s{d+i}')
    a(f's_max_u32 s{LVL}, s{LVL}, s42')


def sc_need(a, name, level):
    a(f's_cmp_ge_u32 s{LVL}, {level}')
    a(f's_cbranch_scc0 L_{name}_slow')
    a.label(f'L_{name}_back')
    sc_slow.append((name, level))


def sc_spin(a, name, level):
    a(f's_mov_b32 s45, {SPIN_LIMIT}')
    a.label(f'L_{name}_spin')
    a.lgq = []
    for i in range(4):
        a(f's_load_dwordx2 s[{SPINSET+2*i}:{SPINSET+2*i+1}], s[{SFL}:{SFL+1}], {(1 << HS)*i} glc')
    a(f's_min_u32 s42, s{SPINSET}, s{SPINSET+1}')
    for i in range(2, 8):
        a(f's_min_u32 s42, s42, s{SPINSET+i}')
    a(f's_max_u32 s{LVL}, s{LVL}, s42')
    a(f's_cmp_ge_u32 s{LVL}, {level}')
    a(f's_cbranch_scc1 L_{name}_done')
    a('s_sleep 2')
    a('s_sub_u32 s45, s45, 1')
    a('s_cmp_lg_u32 s45, 0')
    a(f's_cbranch_scc1 L_{name}_spin')
    a.label(f'L_{name}_done')


def emit_sc_slow(a):
    for name, level in sc_slow:
        a.label(f'L_{name}_slow')
        a.reset()
        a('s_waitcnt lgkmcnt(0)')
        sc_spin(a, name + 's', level)
        a(f's_branch L_{name}_back')
    sc_slow.clear()


def hload(k, tt):
    m, j, late = pos_mj(k)
    r = HREGS[k][tt]
    return f'buffer_load_dwordx4 v[{r}:{r+3}], v{GH[2*late+tt]}, s[{SRD3}:{SRD3+3}], s{SP[m]} offen offset:{1024*j} {SC}'


def h_prologue(a, opt=False):
    for k in range(HD - 1):
        for tt in range(2): a(hload(k, tt), opt=opt)


def g1_role(a, g):
    VX = [2, 3, 4, 5]
    VW = [6, 7, 8, 9]
    a(f's_and_b32 s{WF}, s{S_WAVE}, 1')
    a(f's_lshr_b32 s{WT}, s{S_WAVE}, 1')
    a(f'v_lshrrev_b32 v12, 3, v{V_LANE}')
    a(f'v_and_b32 v13, 7, v{V_LANE}')
    a('v_lshrrev_b32 v14, 1, v12')
    a('v_xor_b32 v14, v13, v14')
    a(f's_lshl_b32 s42, s{S_WAVE}, 4')
    a('v_add_u32 v15, s42, v12')
    a('v_lshlrev_b32 v15, 10, v15')
    a(f'v_lshl_add_u32 v{VX[0]}, v14, 4, v15')
    a('v_xor_b32 v14, 4, v14')
    a(f'v_lshl_add_u32 v{VX[1]}, v14, 4, v15')
    a(f'v_add_u32 v{VX[1]}, {8*1024-1024}, v{VX[1]}')
    a(f'v_lshrrev_b32 v12, 4, v{V_LANE}')
    a(f'v_and_b32 v13, 15, v{V_LANE}')
    a('v_lshrrev_b32 v14, 2, v13')
    a('v_xor_b32 v14, v14, v12')
    a('v_and_b32 v13, 3, v13')
    a('v_lshl_add_u32 v14, v14, 2, v13')
    a(f's_lshl_b32 s42, s{S_WAVE}, 3')
    a('v_add_u32 v15, s42, v12')
    a('v_mul_u32_u24 v15, 3584, v15')
    a(f'v_lshl_add_u32 v{VW[0]}, v14, 4, v15')
    a(f'v_add_u32 v{VW[1]}, {4*3584-1024}, v{VW[0]}')
    a(f's_lshl_b32 s84, s{S_WAVE}, 11')
    def ktab(c):
        if 'rot7' in ARGS:
            if c == 0:
                a('s_mov_b32 s42, 0')
            else:
                a(f's_add_u32 s42, s{ROT}, {c - 1}')
                a('s_cmp_ge_u32 s42, 7')
                a('s_cselect_b32 s43, 7, 0')
                a('s_sub_u32 s42, s42, s43')
                a('s_add_u32 s42, s42, 1')
        else:
            a(f's_add_u32 s42, s{ROT}, {c}')
            a('s_and_b32 s42, s42, 7')
        a(f's_lshl_b32 s{KX[c]}, s42, 7')
        a(f's_mul_i32 s{KW[c]}, s42, 229376')
    if 'prost' in ARGS: stamp(a, 3)
    a('s_waitcnt lgkmcnt(0)')
    a.lgq = []
    if 'prost' in ARGS: stamp(a, 4)
    ktab(0); ktab(1)
    a(f's_lshl_b32 s42, s{TB}, 17')
    srd(a, SRD1, P_X, 's42', 131072)
    a(f's_lshl_b32 s42, s{FB_}, 8')
    a(f's_sub_u32 s43, {512*3584}, s42')
    srd(a, SRD2, P_W1, 's42', 's43')
    tokW, tokX = {}, {}
    def dma_w_list(st):
        o = 2 * (st & 1)
        return [f's_add_u32 m0, s84, {G1_WS[st % 4]}',
                f'buffer_load_dwordx4 v{VW[o]}, s[{SRD2}:{SRD2+3}], s{KW[st >> 1]} offen lds',
                (f'buffer_load_dwordx4 v{VW[o+1]}, s[{SRD2}:{SRD2+3}], s{KW[st >> 1]} offen offset:1024 lds', ('w', st))]
    def dma_x_list(c, h):
        return [f's_add_u32 m0, s84, {G1_XS[c % 3] + 8192*h}',
                f'buffer_load_dwordx4 v{VX[2*h]}, s[{SRD1}:{SRD1+3}], s{KX[c]} offen lds',
                (f'buffer_load_dwordx4 v{VX[2*h+1]}, s[{SRD1}:{SRD1+3}], s{KX[c]} offen offset:1024 lds', ('x', (c, h)))]
    g.tokW = {}
    def w2_items(k):
        out = []
        for grp in g2_dma_items(k):
            for it in grp:
                out.append((it[0], ('g', it[1])) if isinstance(it, tuple) else it)
        return out
    def put(item):
        if isinstance(item, tuple):
            t = a(item[0])
            {'w': tokW, 'x': tokX, 'g': g.tokW}[item[1][0]][item[1][1]] = t
        elif callable(item):
            item()
        else:
            a(item)
    if 'prost' in ARGS: stamp(a, 5)
    for it in dma_w_list(0) + dma_x_list(0, 0): put(it)
    if 'prost' in ARGS: stamp(a, 6)
    a(f'v_add_u32 v{VX[2]}, 65536, v{VX[0]}')
    a(f'v_add_u32 v{VX[3]}, 65536, v{VX[1]}')
    a(f'v_add_u32 v{VW[2]}, {32*3584}, v{VW[0]}')
    a(f'v_add_u32 v{VW[3]}, {32*3584}, v{VW[1]}')
    for it in dma_x_list(0, 1) + dma_w_list(1) + dma_x_list(1, 0) + dma_x_list(1, 1) + dma_w_list(2): put(it)
    if 'g2st' not in ARGS and 'blkst' not in ARGS and 'lastst' not in ARGS and 'tailst' not in ARGS: stamp(a, 1)
    for c in range(2, 8): ktab(c)
    B1V = [26, 27]
    a(f's_lshl_b32 s42, s{FB_}, 7')
    a(f's_lshl_b32 s43, s{WF}, 6')
    a('s_add_u32 s42, s42, s43')
    a(f'v_and_b32 v21, 31, v{V_LANE}')
    a('v_add_u32 v22, s42, v21')
    a('v_lshlrev_b32 v22, 1, v22')
    a(f's_lshl_b32 s42, s{WT}, 6')
    a('v_add_u32 v23, s42, v22')
    a(f'global_load_ushort v{B1V[0]}, v23, s[{P_B1}:{P_B1+1}]')
    a('s_sub_u32 s42, 64, s42')
    a('v_add_u32 v23, s42, v22')
    a(f'global_load_ushort v{B1V[1]}, v23, s[{P_B1}:{P_B1+1}]')
    setup_flag_srds(a)
    srd(a, SRD0, P_WS, 0, 0x1000000)
    g2_setup(a)
    VA = [10, 11]; VB = [16, 17, 18, 19]
    a(f'v_lshrrev_b32 v12, 4, v{V_LANE}')
    a(f'v_and_b32 v13, 15, v{V_LANE}')
    a('v_lshrrev_b32 v14, 2, v13')
    a('v_and_b32 v13, 3, v13')
    a('v_lshrrev_b32 v15, 1, v12')
    a('v_and_b32 v12, 1, v12')
    a('v_lshl_add_u32 v15, v15, 3, v14')
    a('v_lshlrev_b32 v15, 8, v15')
    a('v_lshl_add_u32 v15, v12, 5, v15')
    a('v_lshl_add_u32 v15, v13, 3, v15')
    a(f'v_add_u32 v15, {G1_WS[0]}, v15')
    a(f's_lshl_b32 s42, s{WF}, 1')
    a(f's_add_u32 s42, s42, s{WT}')
    for l in range(2):
        if l: a('s_xor_b32 s42, s42, 1')
        a('v_xor_b32 v12, s42, v14')
        a(f'v_lshl_add_u32 v{VA[l]}, v12, 6, v15')
    a(f'v_and_b32 v12, 31, v{V_LANE}')
    a(f'v_lshrrev_b32 v13, 5, v{V_LANE}')
    a('v_lshrrev_b32 v14, 1, v12')
    a('v_and_b32 v14, 7, v14')
    a(f's_lshl_b32 s42, s{WT}, 6')
    a('v_add_u32 v12, s42, v12')
    a('v_lshlrev_b32 v12, 7, v12')
    for kk in range(4):
        a(f'v_add_u32 v15, {2*kk}, v13')
        a('v_xor_b32 v15, v15, v14')
        a(f'v_lshl_add_u32 v{VB[kk]}, v15, 4, v12')
    ONES, SACC = 248, 232
    for k in range(4):
        a(f'v_mov_b32 v{ONES+k}, 0x3f803f80')
    MS = [12, 14]
    a('v_mov_b32 v28, 0')
    a(f's_lshr_b32 s42, s{TB}, 1')
    a(f's_and_b32 s43, s{TB}, 1')
    a('s_lshl_b32 s43, s43, 7')
    a('s_add_u32 s42, s42, s43')
    a(f'v_lshlrev_b32 v29, 3, v{V_LANE}')
    a('v_add_u32 v29, s42, v29')
    a(f'v_lshlrev_b32 v29, {FS}, v29')
    a(f's_lshl_b32 s42, s{TB}, 7')
    a(f's_lshl_b32 s43, s{WT}, 6')
    a('s_add_u32 s42, s42, s43')
    a('v_add_u32 v30, s42, v21')
    a('v_lshlrev_b32 v30, 3, v30')
    a(f'v_add_u32 v30, {hex(WS_ST)}, v30')
    a(f's_lshl_b32 s{HOFF[0]}, s{WT}, 11')
    a(f's_sub_u32 s{HOFF[1]}, 2048, s{HOFF[0]}')
    a(f's_lshl_b32 s42, s{TB}, 2')
    a(f's_lshl_b32 s43, s{WT}, 1')
    a('s_add_u32 s42, s42, s43')
    a('s_mul_i32 s42, s42, 112')
    a(f's_lshl_b32 s43, s{FB_}, 3')
    a('s_add_u32 s42, s42, s43')
    a(f's_lshl_b32 s43, s{WF}, 2')
    a('s_add_u32 s42, s42, s43')
    a('s_lshl_b32 s42, s42, 10')
    a(f's_add_u32 s42, s42, {hex(WS_H)}')
    VH = [24, 25]
    a(f'v_lshlrev_b32 v24, 4, v{V_LANE}')
    a('v_add_u32 v24, s42, v24')
    a(f'v_add_u32 v25, {112*1024}, v24')
    a(f's_add_u32 s44, s{W2K}, 65536')
    a(f's_xor_b32 s45, s{S_WAVE}, 2')
    a('s_lshl_b32 s45, s45, 11')
    a('s_add_u32 s45, s45, 65536')
    a('v_lshlrev_b32 v21, 2, v21')
    a('v_add_u32 v23, s45, v21')
    a('v_add_u32 v21, s44, v21')
    st_ = {}
    def h_rdy_issue(): st_['r'] = poll_issue(a, 31, 28, SRDD, 1)
    def h_rdy_check(): check_or_spin(a, 'g1_rdy', st_['r'], 31, 28, SRDD, 1)
    def h_fl_issue(): st_['f'] = poll_issue(a, 31, 29, SRDF, 0xffff, FL_P0)
    def h_fl_check():
        check_or_spin(a, 'g1_fl', st_['f'], 31, 29, SRDF, 0xffff, FL_P0)
        for tt in range(2):
            a(f'buffer_load_dwordx2 v[{MS[tt]}:{MS[tt]+1}], v30, s[{SRD0}:{SRD0+3}], 0 offen offset:{256*tt} {SC}')
    def w2_touch():
        if 'notouch' in ARGS: return
        a(f's_lshl_b32 s42, s{JJ}, 6')
        a(f's_lshl_b32 s43, s{S_WAVE}, 4')
        a('s_add_u32 s42, s42, s43')
        a(f'v_lshrrev_b32 v140, 2, v{V_LANE}')
        a('v_add_u32 v140, s42, v140')
        a('v_lshlrev_b32 v140, 10, v140')
        a(f'v_and_b32 v141, 3, v{V_LANE}')
        a('v_lshl_add_u32 v140, v141, 7, v140')
        a(f's_and_b32 s42, s{XC}, 1')
        a('s_lshl_b32 s42, s42, 9')
        a('v_add_u32 v140, s42, v140')
        a(f'global_load_dword v141, v140, s[{P_W2}:{P_W2+1}]', discard=True)
        if 'touch1' not in ARGS:
            a(f'global_load_dword v141, v140, s[{P_W2}:{P_W2+1}] offset:64', discard=True)
    hk = {7: h_rdy_issue, 10: h_rdy_check, 11: h_fl_issue, TOUCH_ST: w2_touch, 14: h_fl_check}
    AF, BF = [104, 228], [220, 224]
    SD = [13, 15]
    AL, BE = [28, 29], [30, 31]
    def token_operands(tt):
        b = BF[tt]
        a('s_mov_b32 s42, 0xffff0000')
        a(f'v_cmp_gt_u32 vcc, 32, v{V_LANE}')
        a(f'v_xor_b32 v22, 0x80000000, v{MS[tt]}')
        a(f'v_lshrrev_b32 v{b}, 16, v{SD[tt]}')
        a(f'v_and_or_b32 v{b}, v22, s42, v{b}')
        a(f'v_lshrrev_b32 v{b+1}, 16, v22')
        a(f'v_and_or_b32 v{b+1}, v22, s42, v{b+1}')
        a(f'v_cndmask_b32 v{b}, 0, v{b}, vcc')
        a(f'v_cndmask_b32 v{b+1}, 0, v{b+1}, vcc')
        a(f'v_mov_b32 v{b+2}, 0')
        a(f'v_mov_b32 v{b+3}, 0')
        a(f'v_rcp_f32 v22, v{SD[tt]}')
        a(f'v_mul_f32 v{AL[tt]}, {f32(-GELU_C)}, v22')
        a('v_mul_f32 v22, v22, v22')
        a(f'v_mul_f32 v22, v22, v{AL[tt]}')
        a(f'v_mul_f32 v{BE[tt]}, {f32(0.044715)}, v22')
    hk = {4: h_rdy_issue, 7: h_rdy_check, 8: h_fl_issue, 11: h_fl_check, 14: lambda: token_operands(0), 15: lambda: token_operands(1)}
    ACC = 32
    FR = [96, 112]
    def reads(st, kap):
        base = FR[kap]
        lst = []
        for l in range(2):
            o = (st % 4) * 8192 + kap * 16 * 256
            lst.append(f'ds_read_b64_tr_b16 v[{base+4*l}:{base+4*l+1}], v{VA[l]} offset:{o}')
            lst.append(f'ds_read_b64_tr_b16 v[{base+4*l+2}:{base+4*l+3}], v{VA[l]} offset:{o+1024}')
        for tt in range(2):
            kk = 2 * (st & 1) + kap
            lst.append(f'ds_read_b128 v[{base+8+4*tt}:{base+11+4*tt}], v{VB[kk]} offset:{G1_XS[(st>>1) % 3] + 4096*tt}')
        return lst
    def mfmas(st, kap, rd, dm):
        base = FR[kap]
        first = (st == 0 and kap == 0)
        ms = []
        c = '0' if first else f'v[{SACC}:{SACC+15}]'
        ms.append(f'v_mfma_f32_32x32x16_bf16 v[{SACC}:{SACC+15}], v[{ONES}:{ONES+3}], v[{base}:{base+3}], {c}')
        for l in range(2):
            for tt in range(2):
                acc = ACC + 32 * l + 16 * tt
                c = '0' if first else f'v[{acc}:{acc+15}]'
                ms.append(f'v_mfma_f32_32x32x16_bf16 v[{acc}:{acc+15}], v[{base+4*l}:{base+4*l+3}], v[{base+8+4*tt}:{base+11+4*tt}], {c}')
        if len(dm) <= 3:
            gaps = [rd[0:2], dm[0:2] + rd[2:3], rd[3:5], dm[2:3] + rd[5:6], []]
        else:
            q = (len(dm) + 3) // 4
            gaps = [rd[0:2] + dm[0:q], rd[2:4] + dm[q:2*q], rd[4:6] + dm[2*q:3*q], dm[3*q:], []]
        for m, gp in zip(ms, gaps):
            a(m)
            for it in gp: put(it)
    for st in range(16):
        need = [tokW[st]] + [tokX[(st >> 1, h)] for h in range(2)]
        if st + 1 < 16:
            need += [tokW[st + 1]] + [tokX[((st + 1) >> 1, h)] for h in range(2)]
        a.wait_vm_token(max(need))
        a('s_barrier')
        if st in (0, 4, 8, 12) and 'g2st' not in ARGS and 'blkst' not in ARGS and 'lastst' not in ARGS and 'tailst' not in ARGS and ('prost' not in ARGS or st == 0): stamp(a, 2 + st // 4)
        if 'lastst' in ARGS and st >= 11: stamp(a, {11: 1, 12: 2, 13: 3, 14: 4, 15: 5}[st])
        if st in hk: hk[st]()
        if st == 0:
            for l in reads(0, 0): a(l)
        c = (st >> 1) + 2
        d0 = dma_w_list(st + 3) if st + 3 < 16 else []
        d1 = dma_x_list(c, st & 1) if c < 8 else []
        early = {12: ([], [0, 1]), 13: ([2], []), 14: ([3, 4], [5])}.get(st)
        if early:
            d0 = d0 + [x for k in early[0] for x in w2_items(k)]
            d1 = d1 + [x for k in early[1] for x in w2_items(k)]
        mfmas(st, 0, reads(st, 1), d0)
        mfmas(st, 1, reads(st + 1, 0) if st + 1 < 16 else [], d1)
    if 'lastst' in ARGS: stamp(a, 12)
    def a_operand(l, sreg):
        f = AF[l]
        a(f'v_cmp_gt_u32 vcc, 32, v{V_LANE}')
        a(f'v_cvt_pk_bf16_f32 v{f}, v{sreg}, v{sreg}')
        a(f'v_lshlrev_b32 v{f}, 16, v{f}')
        a(f'v_sub_f32 v22, v{sreg}, v{f}')
        a(f'v_cvt_pk_bf16_f32 v{f+2}, v22, v22')
        a(f'v_lshlrev_b32 v{f+2}, 16, v{f+2}')
        a(f'v_sub_f32 v{f+2}, v22, v{f+2}')
        a(f'v_cvt_pk_bf16_f32 v{f+1}, v22, v{f+2}')
        a(f'v_or_b32 v{f}, v{f}, v{B1V[l]}')
        a(f'v_cndmask_b32 v{f}, 0, v{f}, vcc')
        a(f'v_cndmask_b32 v{f+1}, 0, v{f+1}, vcc')
        a(f'v_mov_b32 v{f+2}, 0')
        a(f'v_mov_b32 v{f+3}, 0')
    def aug(l):
        for tt in range(2):
            acc = ACC + 32 * l + 16 * tt
            a(f'v_mfma_f32_32x32x16_bf16 v[{acc}:{acc+15}], v[{AF[l]}:{AF[l]+3}], v[{BF[tt]}:{BF[tt]+3}], v[{acc}:{acc+15}]')
    a(f'ds_write_b32 v23, v{SACC}')
    a_operand(0, SACC)
    aug(0)
    a('s_waitcnt lgkmcnt(0)')
    a('s_barrier')
    if 'g2st' not in ARGS and 'blkst' not in ARGS and 'prost' not in ARGS and 'tailst' not in ARGS: stamp(a, 6)
    if 'blkst' in ARGS: stamp(a, 10)
    SR1 = 233
    a(f'ds_read_b32 v{SR1}, v21')
    for k in (7, 8, 9): g2_dma(a, g, k)
    a('s_waitcnt lgkmcnt(0)')
    g2_dma(a, g, 6)
    a_operand(1, SR1)
    aug(1)
    dq = []
    def queue_dma(ks):
        for k in ks: dq.extend(g2_dma_items(k))
    def drain_dma():
        while dq: put_items(a, g, dq.pop(0))
    cnt = [0]
    gap = [GAP]
    rq = []
    def e(text):
        r = a(text)
        cnt[0] += 1
        if cnt[0] % gap[0] == 0 and dq: put_items(a, g, dq.pop(0))
        if cnt[0] % 3 == 0 and rq: a(rq.pop(0))
        return r
    T = 96
    toks = {}
    def block(l, j, tt):
        acc = ACC + 32 * l + 16 * tt
        r0 = 8 * j
        E = range(8)
        for x in E: e(f'v_mul_f32 v{T+x}, v{acc+r0+x}, v{acc+r0+x}')
        for x in E: e(f'v_fma_f32 v{T+x}, v{T+x}, v{BE[tt]}, v{AL[tt]}')
        for x in E: e(f'v_mul_f32 v{T+x}, v{T+x}, v{acc+r0+x}')
        for x in E: e(f'v_exp_f32 v{T+x}, v{T+x}')
        for x in E: e(f'v_fma_f32 v{T+x}, v{T+x}, v{SD[tt]}, v{SD[tt]}')
        for x in E: e(f'v_rcp_f32 v{T+x}, v{T+x}')
        for x in E: e(f'v_mul_f32 v{T+x}, v{T+x}, v{acc+r0+x}')
        H = 104 + 4 * ((2 * j + tt) % 4)
        for x in range(4): e(f'v_cvt_pk_bf16_f32 v{H+x}, v{T+2*x}, v{T+2*x+1}')
        toks[(l, j, tt)] = a(f'buffer_store_dwordx4 v[{H}:{H+3}], v{VH[tt]}, s[{SRD0}:{SRD0+3}], s{HOFF[l]} offen offset:{j*1024} {HSC}')
    a(f's_mul_i32 s42, s{TB}, 14')
    a(f's_add_u32 s42, s42, s{FB_}')
    a(f's_lshl_b32 s42, s42, {HS}')
    a(f's_lshl_b32 s43, s{S_WAVE}, 2')
    a('s_add_u32 s42, s42, s43')
    a(f's_add_u32 s42, s42, {FL_H}')
    a('v_mov_b32 v26, s42')
    a('v_mov_b32 v27, 1')
    def publish(stage):
        a.wait_vm_token(toks[(stage >> 1, stage & 1, 1)])
        a(f'v_mov_b32 v27, {stage + 1}')
        a('s_mov_b64 exec, 1')
        a(f'buffer_store_dword v27, v26, s[{SRDF}:{SRDF+3}], 0 offen {SC}')
        a('s_mov_b64 exec, -1')
    a(f's_mov_b32 s{LVL}, 0')
    order = [(l, j, tt) for l in range(2) for j in range(2) for tt in range(2)]
    for n, (l, j, tt) in enumerate(order):
        block(l, j, tt)
        if 'blkst' in ARGS: stamp(a, 1 + n) if n < 7 else None
        if n == PUB0: publish(0)
        if n == R1_READ_AT:
            a.wait_vm_token(max(g.tokW[k] for k in range(R1)))
            for k in range(R1): rq.extend(g2_wread_list(k, W2R[2*k:2*k+2]))
            if 'rdspread' not in ARGS:
                while rq: a(rq.pop(0))
        if n == R1_READ_AT + (2 if 'rdspread' in ARGS else 0):
            while rq: a(rq.pop(0))
            a('s_waitcnt lgkmcnt(0)')
            queue_dma(range(R1, R1 + 10))
        if n == PUB0 + 2: publish(1)
        if n == 6: sc_issue(a, 0)
    stamp(a, 8)
    publish(2)
    drain_dma()
    publish(3)
    g.nrest = 0
    NREST[0] = 0
    sc_eval(a, 0)
    sc_need(a, 'g1_h0', 1)
    sc_issue(a, 1)
    h_prologue(a)
    stamp(a, 9)


def service_role(a, g):
    a(f's_cmp_eq_u32 s{JJ}, 28')
    a('s_cbranch_scc0 L_sv_done')
    a(f's_cmp_eq_u32 s{S_WAVE}, 3')
    a('s_cbranch_scc0 L_sv_done')
    if 'nopf' not in ARGS:
        a('s_getpc_b64 s[44:45]')
        a.label('L_pf_pc')
        a('s_sub_u32 s44, s44, L_pf_pc-CODE_BEGIN')
        a('s_subb_u32 s45, s45, 0')
        a(f'v_lshlrev_b32 v37, 4, v{V_LANE}')
        NPF = 38
        for k in range(NPF):
            a('v_min_u32 v36, CODE_END-CODE_BEGIN-16, v37')
            a('global_load_dwordx4 v[244:247], v36, s[44:45]', opt=True, discard=True)
            a('v_add_u32 v37, 1024, v37')
    a.label('L_sv_done')
    a.reset()
    a('s_waitcnt lgkmcnt(0)')
    setup_flag_srds(a)
    def chk():
        a('v_mov_b32 v33, 0')
        spin(a, 'sv_rdy', 34, 33, SRDD, 1, sleep=12)
    wave0_only(a, 'sv_rdyw', chk)
    a('s_barrier')
    if 'now2pf' not in ARGS:
        a(f's_lshl_b32 s42, s{S_IDX}, {FS}')
        a(f's_add_u32 s42, s42, {FL_P0}')
        a('v_mov_b32 v33, s42')
        if 'pfnogate' not in ARGS: spin(a, 'sv_p0', 34, 33, SRDF, 1)
        srd(a, SRD1, P_W2, 0, 1792 * 1024)
        a(f's_sub_u32 s42, s{JJ}, 28')
        a('s_lshl_b32 s42, s42, 2')
        a(f's_add_u32 s42, s42, s{S_WAVE}')
        a(f's_mul_i32 s42, s42, {112*1024}')
        if 'map48' in ARGS:
            a(f'v_lshlrev_b32 v2, 7, v{V_LANE}')
            a('s_mov_b32 s43, 14')
        else:
            a(f'v_lshrrev_b32 v2, 2, v{V_LANE}')
            a('v_lshlrev_b32 v2, 10, v2')
            a(f'v_and_b32 v3, 3, v{V_LANE}')
            a('v_lshl_add_u32 v2, v3, 7, v2')
            a(f's_and_b32 s43, s{XC}, 1')
            a('s_lshl_b32 s43, s43, 9')
            a('v_add_u32 v2, s43, v2')
            a('s_mov_b32 s43, 7')
        a.label('L_w2pf')
        a(f'buffer_load_dword v40, v2, s[{SRD1}:{SRD1+3}], s42 offen', opt=True, discard=True)
        if 'pf64' in ARGS: a(f'buffer_load_dword v41, v2, s[{SRD1}:{SRD1+3}], s42 offen offset:64', opt=True, discard=True)
        a(f's_add_u32 s42, s42, {8192 if "map48" in ARGS else 16384}')
        a(f's_waitcnt vmcnt({PFDEPTH})')
        a('s_sub_u32 s43, s43, 1')
        a('s_cmp_lg_u32 s43, 0')
        a('s_cbranch_scc1 L_w2pf')
        a.reset()
    g2_setup(a)
    g.tokW = {}
    a(f's_mov_b32 s{LVL}, 0')
    if 'svlate' in ARGS:
        sc_spin(a, 'sv_h0', 1)
    for k in range(R1):
        g2_dma(a, g, k)
    srd(a, SRD0, P_WS, 0, 0x1000000)
    g2_round1_reads(a, g)
    a('s_waitcnt lgkmcnt(0)')
    if 'svmid' in ARGS: sc_spin(a, 'sv_h0', 1)
    items = [grp for k in range(R1, R1 + 10) for grp in g2_dma_items(k)]
    for grp in items[:20 - NREST[0]]: put_items(a, g, grp)
    if 'svlate' not in ARGS and 'svmid' not in ARGS: sc_spin(a, 'sv_h0', 1)
    sc_issue(a, 1)
    h_prologue(a)


def g2_main(a, g):
    for k in range(HD - 1):
        for tt in range(2):
            r = HREGS[k][tt]
            a.vseq += 1
            a.vmq.append((a.vseq, {('v', r + i) for i in range(4)}, False))
    a.lseq += 1
    a.lgq.append((a.lseq, {('s', PSET[1] + i) for i in range(8)}, 'smem'))
    rest = [grp for k in range(R1, R1 + 10) for grp in g2_dma_items(k)][20 - NREST[0]:]
    for k in range(R1, R1 + 10): g.tokW[k] = 0
    def wregs(k):
        return W2R[2*k:2*k+2] if k < R1 else [G2FA[k & 1], G2FA[k & 1] + 4]
    st_ = {}
    VPS = {1: 21, 2: 22, 3: 23}
    AV = [138 + r for r in range(16)]
    GV, B2 = 154, 156
    VTOK, VHI = 16, 17
    def tail_loads():
        check_or_spin(a, 'g2_t', st_['t'], VP, VT, SRDF, TAILMASK)
        a(f'v_and_b32 v{VTOK}, 31, v{V_LANE}')
        a(f'v_lshrrev_b32 v{VHI}, 5, v{V_LANE}')
        a(f's_lshl_b32 s42, s{TAU}, 6')
        a(f's_lshl_b32 s43, s{WT}, 5')
        a('s_add_u32 s42, s42, s43')
        a(f'v_add_u32 v{VTOK}, s42, v{VTOK}')
        a(f'v_lshlrev_b32 v18, 2, v{VTOK}')
        a(f'v_add_u32 v18, {hex(WS_G)}, v18')
        a(f'buffer_load_dword v{GV}, v18, s[{SRD0}:{SRD0+3}], 0 offen {SC}')
        a(f's_lshl_b32 s42, s{DT}, 6')
        a(f's_lshl_b32 s43, s{WF}, 5')
        a('s_add_u32 s85, s42, s43')
        a(f'v_lshlrev_b32 v18, 2, v{VHI}')
        a('v_add_u32 v18, s85, v18')
        a('v_lshlrev_b32 v19, 1, v18')
        for i in range(4):
            a(f'global_load_dwordx2 v[{B2+2*i}:{B2+2*i+1}], v19, s[{P_B2}:{P_B2+1}] offset:{16*i}')
        a(f'v_lshrrev_b32 v18, 2, v{V_LANE}')
        a(f'v_and_b32 v19, 3, v{V_LANE}')
        a('v_add_u32 v2, s85, v18')
        a('v_lshlrev_b32 v2, 12, v2')
        a('v_lshl_add_u32 v2, v19, 4, v2')
        a(f's_lshl_b32 s42, s{TAU}, 7')
        a(f's_lshl_b32 s43, s{WT}, 6')
        a('s_add_u32 s42, s42, s43')
        a(f's_add_u32 s42, s42, {hex(WS_AT)}')
        a(f's_add_u32 s43, s42, {16*4096}')
        a(f'buffer_load_dwordx4 v[138:141], v2, s[{SRD0}:{SRD0+3}], s42 offen {SC}')
        a(f'buffer_load_dwordx4 v[142:145], v2, s[{SRD0}:{SRD0+3}], s43 offen {SC}')
        a(f's_add_u32 s42, s{W2K}, 73728')
        a('v_lshlrev_b32 v3, 6, v18')
        a('v_lshl_add_u32 v3, v19, 4, v3')
        a('v_add_u32 v3, s42, v3')
        a(f'v_lshrrev_b32 v4, 4, v{V_LANE}')
        a(f'v_and_b32 v5, 15, v{V_LANE}')
        a('v_lshrrev_b32 v6, 1, v4')
        a('v_lshrrev_b32 v7, 2, v5')
        a('v_lshl_add_u32 v6, v6, 2, v7')
        a('v_lshlrev_b32 v6, 6, v6')
        a('v_and_b32 v4, 1, v4')
        a('v_lshl_add_u32 v6, v4, 5, v6')
        a('v_and_b32 v5, 3, v5')
        a('v_lshl_add_u32 v6, v5, 3, v6')
        a('v_add_u32 v4, s42, v6')
    def a_stage():
        a('ds_write_b128 v3, v[138:141]')
        a('ds_write_b128 v3, v[142:145] offset:1024')
        for i in range(4):
            a(f'ds_read_b64_tr_b16 v[{146+2*i}:{147+2*i}], v4 offset:{512*i}')
    prep = [f'v_sub_f32 v20, 1.0, v{GV}', 'v_cvt_pk_bf16_f32 v20, v20, v20', 'v_lshlrev_b32 v20, 16, v20']
    for i in range(4):
        for h in range(2):
            prep.append(f'v_lshlrev_b32 v{AV[4*i+2*h]}, 16, v{146+2*i+h}')
            prep.append(f'v_and_b32 v{AV[4*i+2*h+1]}, 0xffff0000, v{146+2*i+h}')
        for h in range(2):
            prep.append(f'v_lshlrev_b32 v{6+2*h}, 16, v{B2+2*i+h}')
            prep.append(f'v_and_b32 v{7+2*h}, 0xffff0000, v{B2+2*i+h}')
        for r in range(4):
            prep.append(f'v_mul_f32 v{AV[4*i+r]}, v{AV[4*i+r]}, v{GV}')
        for r in range(4):
            prep.append(f'v_fmac_f32 v{AV[4*i+r]}, v{6+r}, v20')
    for k in range(28):
        rd = []
        if R1 <= k + 1 < 28:
            a.wait_vm_token(g.tokW[k + 1])
            rd = g2_wread_list(k + 1, wregs(k + 1))
        if 'g2st' in ARGS:
            if k in (1, 2, 3, 5, 7, 8, 10, 11, 14, 20): stamp(a, {1: 1, 2: 2, 3: 3, 5: 4, 7: 5, 8: 6, 10: 7, 11: 10, 14: 11, 20: 12}[k])
        elif 'tailst' in ARGS:
            if k in (20, 24): stamp(a, {20: 14, 24: 13}[k])
        elif k in (1, 9, 14, 20) and 'lastst' not in ARGS: stamp(a, {1: 11, 9: 12, 14: 13, 20: 14}[k])
        f = wregs(k)
        newp = [p for p in range(28) if HWHEN[p] == k]
        if k == HWHEN[7]:
            sc_eval(a, 1)
            sc_need(a, 'g2_h1', 2)
            sc_issue(a, 0)
        if k == HWHEN[14]: sc_need(a, 'g2_h2', 3)
        if k == HWHEN[21]:
            sc_eval(a, 0)
            sc_need(a, 'g2_h3', 4)
        if k == TAILK - 4: st_['t'] = poll_issue(a, VP, VT, SRDF, TAILMASK)
        if k == TAILK: tail_loads()
        hq = [hload(p, tt) for p in newp for tt in range(2)]
        n = 0
        for tt in range(2):
            r = HREGS[k][tt]
            for dd in range(2):
                acc = G2ACC[dd + 2 * tt]
                c = '0' if k == 0 else f'v[{acc}:{acc+15}]'
                a(f'v_mfma_f32_32x32x16_bf16 v[{acc}:{acc+15}], v[{f[dd]}:{f[dd]+3}], v[{r}:{r+3}], {c}')
                if hq: a(hq.pop(0))
                if n in (0, 1):
                    for l in rd[2*n:2*n+2]: a(l)
                if rest and (n in (1, 3) or len(rest) > 2 * (R1 - 2 - k)): put_items(a, g, rest.pop(0))
                if n == 3 and k >= R1 + 1 and k - 1 + 10 < 28: g2_dma(a, g, k - 1 + 10)
                if k == TAILK + ASTG and n == 3: a_stage()
                if k >= TAILK + ASTG + 2:
                    for _ in range(6):
                        if prep: a(prep.pop(0))
                n += 1
        assert not hq
    while prep: a(prep.pop(0))
    if 'tailst' in ARGS: stamp(a, 1)
    a(f'v_lshlrev_b32 v14, 4, v{V_LANE}')
    a(f'v_add_u32 v15, s{W4}, v14')
    XR = [32768, 0, 16384]
    for x in range(1, 4):
        for i in range(4):
            a(f'ds_write_b128 v15, v[{G2ACC[x]+4*i}:{G2ACC[x]+4*i+3}] offset:{XR[x-1]+1024*i}')
    if 'tailst' in ARGS: stamp(a, 2)
    if 'tailst' in ARGS: stamp(a, 3)
    a('s_waitcnt lgkmcnt(0)')
    a('s_barrier')
    if 'tailst' in ARGS: stamp(a, 4)
    PR = 170
    for x in range(1, 4):
        a(f's_xor_b32 s42, s{S_WAVE}, {x}')
        a('s_lshl_b32 s42, s42, 12')
        a('v_add_u32 v15, s42, v14')
        for i in range(4):
            a(f'ds_read_b128 v[{PR+16*(x-1)+4*i}:{PR+16*(x-1)+4*i+3}], v15 offset:{XR[x-1]+1024*i}')
    a(f'v_lshlrev_b32 v{VTOK}, 10, v{VTOK}')
    a('s_lshl_b32 s42, s85, 1')
    a(f'v_add_u32 v{VTOK}, s42, v{VTOK}')
    a(f'v_lshl_add_u32 v{VTOK}, v{VHI}, 4, v{VTOK}')
    srd(a, SRD1, P_OUT, 0, 2048 * 1024)
    ACC = G2ACC[0]
    for x in range(3):
        for r in range(16):
            a(f'v_add_f32 v{ACC+r}, v{ACC+r}, v{PR+16*x+r}')
    if 'tailst' in ARGS: stamp(a, 5)
    O = 96
    for r in range(16):
        a(f'v_fmac_f32 v{AV[r]}, v{ACC+r}, v20')
    for i in range(4):
        a(f'v_cvt_pk_bf16_f32 v{O+2*i}, v{AV[4*i]}, v{AV[4*i+1]}')
        a(f'v_cvt_pk_bf16_f32 v{O+2*i+1}, v{AV[4*i+2]}, v{AV[4*i+3]}')
    for p in range(2):
        a(f'v_permlane32_swap_b32 v{O+4*p}, v{O+4*p+2}')
        a(f'v_permlane32_swap_b32 v{O+4*p+1}, v{O+4*p+3}')
        a(f'buffer_store_dwordx4 v[{O+4*p}:{O+4*p+3}], v{VTOK}, s[{SRD1}:{SRD1+3}], 0 offen offset:{32*p} {OSC}')
    stamp(a, 15)
    if G.STAMP:
        a('s_waitcnt vmcnt(0)')
    G.stamp_flush(a)


def gemm_role(a):
    g = G2State()
    a(f's_sub_u32 s{S_IDX}, s2, 256')
    a('s_setprio 2')
    a(f's_and_b32 s{XC}, s{S_IDX}, 7')
    a(f's_lshr_b32 s{JJ}, s{S_IDX}, 3')
    a(f's_cmp_ge_u32 s{JJ}, 28')
    a('s_cbranch_scc1 L_service')
    a(f's_mul_i32 s42, s{JJ}, 37')
    a('s_lshr_b32 s42, s42, 8')
    a('s_mul_i32 s43, s42, 7')
    a(f's_sub_u32 s43, s{JJ}, s43')
    a(f's_lshr_b32 s44, s{XC}, 1')
    a('s_lshl_b32 s44, s44, 2')
    a(f's_add_u32 s{TB}, s44, s42')
    a(f's_and_b32 s44, s{XC}, 1')
    a('s_mul_i32 s44, s44, 7')
    a(f's_add_u32 s{FB_}, s44, s43')
    a('s_lshl_b32 s42, s42, 1')
    a('s_add_u32 s42, s42, s43')
    if 'rot7' in ARGS:
        a('s_cmp_ge_u32 s42, 7')
        a('s_cselect_b32 s43, 7, 0')
        a(f's_sub_u32 s{ROT}, s42, s43')
    else:
        a(f's_and_b32 s{ROT}, s42, 7')
    if 'norot' in ARGS: a(f's_mov_b32 s{ROT}, 0')
    g1_role(a, g)
    a('s_branch L_g2')
    a.label('L_service')
    a.reset()
    last_g1 = G._last[0]
    G.stamp_restart(0)
    service_role(a, G2State())
    stamp(a, 9)
    a.label('L_g2')
    a.reset()
    G.stamp_restart(9)
    g.tokW = {}
    g2_main(a, g)


def zero_block(a):
    a.label('L_zero')
    a.reset()
    a('s_setprio 3')
    if 'zst' in ARGS: a.raw('    s_memrealtime s[72:73]')
    a(f'v_lshlrev_b32 v2, 4, v{V_TID}')
    for k in range(4):
        a(f'v_mov_b32 v{4+k}, 0')
    a('s_waitcnt lgkmcnt(0)')
    a.lgq = []
    if 'zst' in ARGS: a.raw('    s_memrealtime s[74:75]')
    srd(a, SRDF, P_WS, WS_FL, FL_BYTES)
    for k in range(FL_BYTES // 4096):
        a(f'buffer_store_dwordx4 v[4:7], v2, s[{SRDF}:{SRDF+3}], 0 offen {SC}')
        if k + 1 < FL_BYTES // 4096: a('v_add_u32 v2, 4096, v2')
    srd(a, SRDD, P_DBG, 0, 256)
    a('v_mov_b32 v2, 0')
    a('v_mov_b32 v3, 1')
    if 'zst' in ARGS: a.raw('    s_memrealtime s[76:77]')
    a('s_waitcnt vmcnt(0)')
    if 'zst' in ARGS: a.raw('    s_memrealtime s[78:79]')
    a('s_barrier')
    a(f's_cmp_eq_u32 s{S_WAVE}, 0')
    a('s_cbranch_scc0 L_gemm')
    a('s_mov_b64 exec, 1')
    a(f'buffer_store_dword v3, v2, s[{SRDD}:{SRDD+3}], 0 offen {SC}', opt=True)
    if 'zst' in ARGS:
        a('s_waitcnt vmcnt(0)')
        a.raw('    s_memrealtime s[80:81]')
        a('s_waitcnt lgkmcnt(0)')
        for q, sr in enumerate((72, 74, 76, 78, 80)):
            a(f'v_mov_b32 v8, s{sr}')
            a(f'v_mov_b32 v9, {4 + 4*q}')
            a(f'buffer_store_dword v8, v9, s[{SRDD}:{SRDD+3}], 0 offen')
    a('s_mov_b64 exec, -1')
    a('s_branch L_gemm')


def build():
    a = Asm()
    name = NAME + '_kernel'
    a.raw(HEADER.rstrip())
    a.raw(f'; @launch grid=(512,1,1) block=(256,1,1) lds={LDS_BYTES}')
    a.raw('.amdgcn_target "amdgcn-amd-amdhsa--gfx950"')
    a.raw('.text')
    a.raw(f'.globl {name}')
    a.raw('.p2align 8')
    a.raw(f'.type {name},@function')
    a.label(name)
    a.label('CODE_BEGIN')
    a.reset()
    a('s_cmp_ge_u32 s2, 512')
    a(f's_cbranch_scc1 L_exit')
    a('s_load_dwordx16 s[4:19], s[0:1], 0')
    a('s_load_dwordx16 s[20:35], s[0:1], 64')
    a('s_load_dwordx4 s[36:39], s[0:1], 128')
    a(f'v_lshrrev_b32 v2, 6, v{V_TID}')
    a(f'v_and_b32 v{V_LANE}, 63, v{V_TID}')
    a(f'v_readfirstlane_b32 s{S_WAVE}, v2')
    a('s_cmp_lt_u32 s2, 256')
    a('s_cbranch_scc1 L_ssm')
    a(f's_cmp_eq_u32 s2, {ZWG}')
    a('s_cbranch_scc1 L_zero')
    a.label('L_gemm')
    a.reset()
    stamp(a, 0)
    gemm_role(a)
    a.label('L_exit')
    a('s_endpgm')
    zero_block(a)
    emit_slow_blocks(a)
    emit_sc_slow(a)
    a.label('L_ssm')
    a.reset()
    G.stamp_restart(None)
    a('s_waitcnt lgkmcnt(0)')
    ssm_role(a)
    a('s_endpgm')
    emit_slow_blocks(a)
    a.raw(table())
    a.raw('CODE_END:')
    a.raw('.section .rodata,"a"')
    a.raw('.p2align 6')
    a.raw(kd(name).strip('\n'))
    return a.text()


if __name__ == '__main__':
    out = [x for x in sys.argv[1:] if x.endswith('.s')]
    out = out[0] if out else 'cdna_kernels/' + NAME + '.s'
    txt = build()
    open(out, 'w').write(txt)
    print('wrote', out, len(txt), 'bytes')
```
